```python
import torch

def _softmax(x, axis=-1):
    return torch.softmax(x, dim=axis)
def _gelu(x):
    return torch.nn.functional.gelu(x, approximate="tanh")
def _silu(x):
    return torch.nn.functional.silu(x)
def _sigmoid(x):
    return torch.sigmoid(x)
def _layernorm(x, axis=-1, eps=1e-5):
    m = x.mean(dim=axis, keepdim=True)
    v = x.var(dim=axis, keepdim=True, unbiased=False)
    return (x - m) / torch.sqrt(v + eps)
def _scatter_add(tgt, idx, src, axis=0):
    return tgt.clone().index_add_(axis, idx, src)
def _segment_sum(src, seg, n):
    out = torch.zeros((n,) + src.shape[1:], dtype=src.dtype)
    return out.index_add_(0, seg, src)
def _pad(x, pw):
    flat = tuple(v for pair in reversed(pw) for v in pair)
    return torch.nn.functional.pad(x, flat)

kernel_name = 'recurrent_scan__sliding_block_cached__glu_gated_geglu__prompt'

def setup_inputs():

    _w = (lambda a: (lambda t: t.to(torch.bfloat16) if t.is_floating_point() else t)(torch.as_tensor(a)))
    def _A_setup():
        B, Sq, D = 1, 2048, 640
        Hq, Hkv, Sk, Dh = 32, 32, 2048, 192
        assert Hq % Hkv == 0, (Hq, Hkv)
        return {
            "x": _w((lambda *s: torch.randn(*s, dtype=torch.bfloat16) * 0.05)(B, Sq, D)),
            "k_cache": _w((lambda *s: torch.randn(*s, dtype=torch.bfloat16) * 3.2)(B, Hkv, Sk, Dh)),
            "v_cache": _w((lambda *s: torch.randn(*s, dtype=torch.bfloat16) * 3.2)(B, Hkv, Sk, Dh)),
            "wq": _w((lambda *s: torch.randn(*s, dtype=torch.bfloat16) * 3.2)(D, Hq * Dh) * (D ** -0.5)),
            "wo": _w((lambda *s: torch.randn(*s, dtype=torch.bfloat16) * 3.2)(Hq * Dh, D) * ((Hq * Dh) ** -0.5)),
        }
    _A_in = _A_setup()

    def _B_setup():
        B, S, Dm, Df = 1, 2048, 640, 1536
        return {
            "x": _w((lambda *s: torch.randn(*s, dtype=torch.bfloat16) * 0.05)(B, S, Dm)),
            "w_gate": _w((lambda *s: torch.randn(*s, dtype=torch.bfloat16) * 0.4)(Dm, Df) * (Dm ** -0.5)),
            "w_up": _w((lambda *s: torch.randn(*s, dtype=torch.bfloat16) * 0.4)(Dm, Df) * (Dm ** -0.5)),
            "w_down": _w((lambda *s: torch.randn(*s, dtype=torch.bfloat16) * 0.4)(Df, Dm) * (Df ** -0.5)),
        }
    _B_in = _B_setup()

    return {
        "A_x": _A_in["x"],
        "A_k_cache": _A_in["k_cache"],
        "A_v_cache": _A_in["v_cache"],
        "A_wq": _A_in["wq"],
        "A_wo": _A_in["wo"],
        "B_x": _B_in["x"],
        "B_w_gate": _B_in["w_gate"],
        "B_w_up": _B_in["w_up"],
        "B_w_down": _B_in["w_down"],
    }

def reference(A_x, A_k_cache, A_v_cache, A_wq, A_wo, B_x, B_w_gate, B_w_up, B_w_down):
    def _A_ref(x, k_cache, v_cache, wq, wo):
        B, Sq, D = x.shape
        Hq, Dh = 32, 192
        Hkv, Sk = k_cache.shape[1], k_cache.shape[2]
        W = min(4096, max(256, Sk // 4))
        rep = Hq // Hkv
        q = (lambda x, *d: x.permute(*d))((x @ wq).reshape(B, Sq, Hq, Dh), 0, 2, 1, 3)
        k = (lambda x, n, axis: torch.repeat_interleave(x, n, dim=axis))(k_cache[:, :, Sk - W:, :], rep, axis=1)
        v = (lambda x, n, axis: torch.repeat_interleave(x, n, dim=axis))(v_cache[:, :, Sk - W:, :], rep, axis=1)
        scores = torch.einsum("bhqd,bhkd->bhqk", q, k) * (Dh ** -0.5)
        p = _softmax(scores, axis=-1)
        o = torch.einsum("bhqk,bhkd->bhqd", p, v)
        return (lambda x, *d: x.permute(*d))(o, 0, 2, 1, 3).reshape(B, Sq, Hq * Dh) @ wo

    def _B_ref(x, w_gate, w_up, w_down):
        g = torch.einsum("bsd,df->bsf", x, w_gate)
        u = torch.einsum("bsd,df->bsf", x, w_up)
        h = _gelu(g) * u
        return torch.einsum("bsf,fd->bsd", h, w_down)

    x = A_x
    xn = _layernorm(x, axis=-1)
    s = _A_ref(xn, A_k_cache, A_v_cache, A_wq, A_wo)
    g = _silu(_B_ref(xn, B_w_gate, B_w_up, B_w_down))
    return x + s * g
```

```python
import re

def vr(lo, n=1):
    return f"v{lo}" if n == 1 else f"v[{lo}:{lo+n-1}]"
def sr(lo, n=1):
    return f"s{lo}" if n == 1 else f"s[{lo}:{lo+n-1}]"

_REG = re.compile(r"\b([vsa])(\d+)\b|\b([vsa])\[(\d+):(\d+)\]")
def regs_of(op):
    out = set()
    for m in _REG.finditer(op):
        if m.group(1):
            out.add((m.group(1), int(m.group(2))))
        else:
            for i in range(int(m.group(4)), int(m.group(5)) + 1):
                out.add((m.group(3), i))
    if "vcc" in op: out.add(("s", 106));
    if re.search(r"\bm0\b", op): out.add(("s", 124))
    if re.search(r"\bexec\b", op): out.add(("s", 126))
    return out

TRANS = ("v_exp_f32", "v_log_f32", "v_rcp_f32", "v_rsq_f32", "v_sqrt_f32", "v_sin_f32", "v_cos_f32")

class Ins:
    __slots__ = ("text", "mn", "ops", "rd", "wr", "kind", "srcc", "srcab", "label", "mods")
    def __init__(self, text):
        self.text = text
        t = text.split(";")[0].strip()
        self.label = None
        self.rd = set(); self.wr = set(); self.srcc = set(); self.srcab = set()
        self.kind = "other"; self.mn = ""; self.ops = []
        if not t:
            self.kind = "blank"; return
        if t.endswith(":"):
            self.label = t[:-1]; self.kind = "label"; return
        if t.startswith("."):
            self.kind = "dir"; return
        parts = t.split(None, 1)
        mn = parts[0]; self.mn = mn
        rest = parts[1] if len(parts) > 1 else ""
        ops = [o.strip() for o in rest.split(",")] if rest else []
        self.ops = ops
        R = lambda i: regs_of(ops[i]) if i < len(ops) else set()
        if mn.startswith("v_mfma"):
            self.kind = "mfma"
            self.wr = R(0); self.srcab = R(1) | R(2); self.srcc = R(3); self.rd = self.srcab | self.srcc
        elif mn.startswith("v_cmp"):
            self.kind = "valu"; self.wr = R(0); self.rd = R(1) | R(2)
        elif mn.startswith("v_permlane") :
            self.kind = "permlane"; self.wr = R(0) | R(1); self.rd = R(0) | R(1)
        elif mn.startswith("v_readfirstlane") or mn.startswith("v_readlane"):
            self.kind = "readlane"; self.wr = R(0); self.rd = set().union(*[R(i) for i in range(1, len(ops))])
        elif mn.startswith("v_"):
            self.kind = "valu"
            if mn.startswith("v_dot"): self.kind = "dot"
            if mn in TRANS: self.kind = "trans"
            self.wr = R(0)
            st = 1
            if mn.startswith(("v_add_co", "v_sub_co", "v_addc_co", "v_subb_co")):
                self.wr |= R(1); st = 2
            self.rd = set().union(*[R(i) for i in range(st, len(ops))]) if len(ops) > st else set()
            if mn.startswith(("v_fmac", "v_dot2c", "v_pk_fmac")): self.rd |= R(0)
            if mn.startswith("v_cndmask") and len(ops) == 3: self.rd.add(("s", 106))
        elif mn.startswith("ds_read"):
            self.kind = "dsread"; self.wr = R(0); self.rd = R(1)
        elif mn.startswith("ds_write") or mn.startswith("ds_add"):
            self.kind = "dswrite"; self.rd = set().union(*[R(i) for i in range(len(ops))])
        elif mn.startswith("buffer_load") or mn.startswith("global_load"):
            if " lds" in t or mn.startswith("global_load_lds"):
                self.kind = "dma"; self.rd = set().union(*[R(i) for i in range(len(ops))]) | {("s", 124)}
            else:
                self.kind = "vload"; self.wr = R(0); self.rd = set().union(*[R(i) for i in range(1, len(ops))])
        elif mn.startswith("buffer_store") or mn.startswith("global_store") or mn.startswith("buffer_atomic") or mn.startswith("global_atomic"):
            self.kind = "vstore"; self.rd = set().union(*[R(i) for i in range(len(ops))])
            if "atomic" in mn and " sc0" in t: self.wr = R(0)
        elif mn.startswith("s_load"):
            self.kind = "smem"; self.wr = R(0); self.rd = R(1)
        elif mn in ("s_waitcnt", "s_barrier", "s_nop", "s_endpgm", "s_setprio", "s_sleep", "s_branch") or mn.startswith("s_cbranch") or mn.startswith("buffer_wbl2") or mn.startswith("buffer_inv"):
            self.kind = "ctl"
        elif mn.startswith("s_cmp"):
            self.kind = "salu"; self.rd = R(0) | R(1)
        elif mn.startswith("s_"):
            self.kind = "salu"; self.wr = R(0); self.rd = set().union(*[R(i) for i in range(1, len(ops))]) if len(ops) > 1 else set()
            if mn.startswith(("s_addk", "s_mulk")): self.rd |= R(0)
        else:
            raise ValueError("unknown instr " + text)
    def states(self):
        if self.kind in ("blank", "label", "dir"): return 0
        if self.mn == "s_nop": return int(self.ops[0], 0) + 1
        return 1

def mfma_passes(mn):
    return 8 if "32x32" in mn else 4

class Asm:
    def __init__(self):
        self.L = []
        self.lgkm = []
        self.vm = []
    def e(self, text):
        m = re.match(r"s_cselect_b32 (s\d+), (\w+), (\w+)$", text)
        if m and all(re.match(r"^(0x[0-9a-f]+|\d+)$", g) and int(g, 0) > 64 for g in m.group(2, 3)):
            self.L.append(Ins(f"s_mov_b32 {m.group(1)}, {m.group(3)}"))
            self.L.append(Ins(f"s_cselect_b32 {m.group(1)}, {m.group(2)}, {m.group(1)}")); return self
        self.L.append(Ins(text)); return self
    def c(self, text):
        self.L.append(Ins("; " + text))
    def label(self, name):
        self.L.append(Ins(name + ":"))
    def ds(self, text, tag=None):
        self.e(text); self.lgkm.append(tag)
    def vmem(self, text, tag=None):
        self.e(text); self.vm.append(tag)
    def wait_lgkm(self, tag):
        idx = [i for i, t in enumerate(self.lgkm) if t == tag]
        if not idx: return
        n = len(self.lgkm) - 1 - idx[-1]
        assert n <= 15, n
        self.e(f"s_waitcnt lgkmcnt({n})")
        self.lgkm = self.lgkm[idx[-1] + 1:]
    def wait_vm(self, tag):
        idx = [i for i, t in enumerate(self.vm) if t == tag]
        if not idx: return
        n = len(self.vm) - 1 - idx[-1]
        assert n <= 63, n
        self.e(f"s_waitcnt vmcnt({n})")
        self.vm = self.vm[idx[-1] + 1:]
    def wait_all(self, vm=True, lgkm=True):
        s = []
        if vm: s.append("vmcnt(0)"); self.vm = []
        if lgkm: s.append("lgkmcnt(0)"); self.lgkm = []
        self.e("s_waitcnt " + " ".join(s))
    def text(self):
        out = []
        for i in self.L:
            if i.kind in ("label", "dir"): out.append(i.text)
            else: out.append("    " + i.text)
        return "\n".join(out) + "\n"

VALU_KINDS = ("valu", "dot", "trans", "permlane", "readlane")

def need(p, c):
    n = 0
    pv = p.kind in VALU_KINDS
    cv = c.kind in VALU_KINDS
    vw = {r for r in p.wr if r[0] in "va"}
    sw = {r for r in p.wr if r[0] == "s"}
    if p.kind == "mfma":
        P = mfma_passes(p.mn)
        tab = {4: (6, 8, 3), 8: (10, 12, 7)}[P]
        if c.kind == "mfma":
            if c.srcc & p.wr and not (c.srcc == p.wr and mfma_passes(c.mn) == P): n = max(n, tab[0])
            if c.srcab & p.wr: n = max(n, tab[1])
            if (c.wr & p.wr) and not (c.srcc == p.wr): n = max(n, tab[0])
        else:
            if (c.rd | c.wr) & p.wr: n = max(n, tab[1])
            if cv and (c.wr & p.srcc): n = max(n, tab[2])
    if pv:
        if c.kind == "mfma" and (c.rd & vw): n = max(n, 2 if p.kind != "dot" else 3)
        if c.kind == "permlane" and (c.rd & vw): n = max(n, 2)
        if c.kind == "readlane" and (c.rd & vw): n = max(n, 1)
        if p.kind == "trans" and cv and c.kind != "trans" and (c.rd & vw): n = max(n, 1)
        if p.kind == "trans" and c.kind in ("vstore", "dswrite", "mfma") and (c.rd & vw): n = max(n, 2)
        if p.kind == "dot":
            if c.kind == "dot" and c.mn == p.mn:
                srcab = set().union(*[regs_of(o) for o in c.ops[1:3]])
                if srcab & vw: n = max(n, 3)
            elif (c.rd | c.wr) & vw: n = max(n, 3)
        if sw:
            if c.kind in ("vload", "vstore", "dma") and (c.rd & sw): n = max(n, 5)
            if cv and (c.rd & sw): n = max(n, 4 if c.kind == "readlane" else 2)
            if c.kind == "salu" and (c.rd & sw): n = max(n, 2)
            if ("s", 126) in sw and c.kind == "mfma": n = max(n, 4)
        if "dpp" in c.text or "row_" in c.text:
            if c.rd & vw: n = max(n, 2)
    if p.kind == "salu" and ("s", 124) in p.wr and c.kind == "dma": n = max(n, 1)
    if p.kind == "vstore" and ("x4" in p.mn or "x3" in p.mn):
        data = regs_of(p.ops[0]) if p.mn.startswith("buffer") else regs_of(p.ops[1])
        if c.wr & data: n = max(n, 2)
    if p.kind == "dswrite" and ("b128" in p.mn or "b96" in p.mn or "b64" in p.mn):
        if c.wr & p.rd and cv: n = max(n, 1)
    return n

def check_hazards(L, window=24):
    labels = {i.label: k for k, i in enumerate(L) if i.label}
    errs = []
    n = len(L)
    def succ(k):
        i = L[k]
        if i.mn == "s_endpgm": return []
        if i.mn == "s_branch": return [labels[i.ops[0]]]
        if i.mn.startswith("s_cbranch"): return [k + 1, labels[i.ops[0]]]
        return [k + 1] if k + 1 < n else []
    for k, p in enumerate(L):
        if p.kind in ("blank", "label", "dir", "ctl", "dsread", "vload", "smem", "dma", "other"): continue
        stack = [(s, 0) for s in succ(k)]
        seen = {}
        while stack:
            j, d = stack.pop()
            if d > 20: continue
            if j in seen and seen[j] <= d: continue
            seen[j] = d
            c = L[j]
            if c.kind not in ("blank", "label", "dir"):
                r = need(p, c)
                if r > d:
                    errs.append((k, j, r, d, p.text, c.text))
            for s in succ(j): stack.append((s, d + c.states()))
    return errs
```

```python
import sys, struct, math
from asmlib import *

NAME = "recurrent_scan__sliding_block_cached__glu_gated_geglu__prompt"
def f32(x): return "0x%08x" % struct.unpack("<I", struct.pack("<f", x))[0]

LOG2E = 1.4426950408889634
SCALE_C = (192 ** -0.5) * LOG2E
GELU_C0 = -2.0 * math.sqrt(2.0 / math.pi) * LOG2E
GELU_C1 = GELU_C0 * 0.044715

WS_A = 0
WS_A_BYTES = 64 * 480 * 1024
WS_P = WS_A_BYTES
PB_BYTES = 64 * 20 * 4096

def suffix_of(x, y):
    return len(x) <= len(y) and (x == y[len(y)-len(x):] if x else True)

def load_ptrs(a):
    a.e("s_load_dwordx16 s[4:19], s[0:1], 0")
    a.e("s_load_dwordx8 s[20:27], s[0:1], 64")

def srd(a, d, base_lo, base_hi, off_sreg, nbytes_expr):
    if off_sreg is None:
        a.e(f"s_mov_b32 s{d}, s{base_lo}")
        a.e(f"s_and_b32 s{d+1}, s{base_hi}, 0xffff")
    else:
        a.e(f"s_add_u32 s{d}, s{base_lo}, {off_sreg}")
        a.e(f"s_addc_u32 s{d+1}, s{base_hi}, 0")
        a.e(f"s_and_b32 s{d+1}, s{d+1}, 0xffff")
    a.e(f"s_mov_b32 s{d+2}, {nbytes_expr}")
    a.e(f"s_mov_b32 s{d+3}, 0x20000")

def kernel1():
    a = Asm()
    K = "k1"
    ACC = 0; GUA = 96; XS = 144; FR = 176; CS = 192; S1 = 201; S2 = 202
    O = 0; QP = 96; S = 144; P = 192
    MR, MS, LS, AL, T0, T1, T2, T3 = 208, 209, 210, 211, 212, 213, 214, 215
    ONES = 216; AE, AO, AG = 217, 218, 219
    DA, DB = 220, 223; KA, VB = 226, 229; XOFF = 232; KR = 233; VE, VO = 237, 238; L16 = 239
    TMP = 240
    MEAN, RSTD = 206, 207
    sX, sDA, sDB, sK, sV, sWS = 28, 32, 36, 40, 44, 48
    sW, sH, sB = 52, 53, 54
    sKD, sOA, sOB, sMA, sMB, sSTB = 55, 56, 57, 58, 59, 60
    sEXB = 62
    sRS, sXO, sIT, sT, sT2, sC = 64, 65, 66, 67, 68, 69
    sKS, sVS = 70, 73
    sW3 = 76
    sHO = 77
    sG0, sG1 = 80, 81
    WSLOT = 36992; WTOT = 4 * WSLOT
    GOFF = 24576; UOFF = 24576 + 6144 + 128
    KSL = [114688, 0, 24576]; VSL = [139264, 49152, 73728]
    CSL = 110976

    a.e("s_cmp_ge_u32 s2, 256")
    a.e(f"s_cbranch_scc1 L_{K}_done")
    load_ptrs(a)
    a.e(f"v_lshrrev_b32 v{TMP}, 6, v0")
    a.e(f"v_and_b32 v{TMP+1}, 63, v0")
    a.e(f"v_readfirstlane_b32 s{sW}, v{TMP}")
    LANE = TMP + 1
    a.e(f"s_and_b32 s{sT}, s2, 7")
    a.e(f"s_lshr_b32 s{sT2}, s2, 3")
    a.e(f"s_lshl_b32 s{sH}, s{sT}, 2")
    a.e(f"s_and_b32 s{sT}, s{sT2}, 3")
    a.e(f"s_add_u32 s{sH}, s{sH}, s{sT}")
    a.e(f"s_lshr_b32 s{sB}, s{sT2}, 2")
    a.e(f"s_mul_i32 s{sW3}, s{sW}, 3072")
    t = TMP + 2
    a.e(f"v_lshlrev_b32 v{L16}, 4, v{LANE}")
    a.e(f"v_mov_b32 v{ONES}, 0x3f803f80")
    a.e(f"v_and_b32 v{t}, 31, v{LANE}")
    a.e(f"v_lshrrev_b32 v{t+1}, 5, v{LANE}")
    a.e(f"v_mul_u32_u24 v{XOFF}, 1280, v{t}")
    a.e(f"v_lshl_add_u32 v{XOFF}, v{t+1}, 4, v{XOFF}")
    a.e(f"v_bfe_u32 v{t+2}, v{t}, 1, 3")
    a.e(f"v_mul_u32_u24 v{t+3}, 384, v{t}")
    for i in range(4):
        a.e(f"v_add_u32 v{t+4}, {2*i}, v{t+1}")
        a.e(f"v_xor_b32 v{t+4}, v{t+4}, v{t+2}")
        a.e(f"v_lshl_add_u32 v{KR+i}, v{t+4}, 4, v{t+3}")
        a.e(f"v_add_u32 v{KR+i}, {KSL[0]}, v{KR+i}")
    a.e(f"v_bfe_u32 v{t+2}, v{LANE}, 4, 1")
    a.e(f"v_bfe_u32 v{t+3}, v{LANE}, 2, 2")
    a.e(f"v_and_b32 v{t+4}, 1, v{LANE}")
    a.e(f"v_bfe_u32 v{t+5}, v{LANE}, 1, 1")
    a.e(f"v_lshl_add_u32 v{t+4}, v{t+4}, 1, v{t+5}")
    a.e(f"v_lshlrev_b32 v{t+4}, 3, v{t+4}")
    a.e(f"v_lshl_add_u32 v{t+5}, v{t+2}, 5, v{t+4}")
    a.e(f"v_bfe_u32 v{t+6}, v{LANE}, 3, 1")
    a.e(f"v_lshlrev_b32 v{t+6}, 6, v{t+6}")
    a.e(f"v_lshl_add_u32 v{t+7}, v{t+1}, 3, v{t+3}")
    a.e(f"v_mul_u32_u24 v{t+8}, 384, v{t+7}")
    a.e(f"v_add_u32 v{t+8}, v{t+8}, v{t+5}")
    a.e(f"v_add_u32 v{t+8}, {WSLOT}, v{t+8}")
    a.e(f"v_add_u32 v{AE}, v{t+8}, v{t+6}")
    a.e(f"v_sub_u32 v{AO}, v{t+8}, v{t+6}")
    a.e(f"v_mul_u32_u24 v{t+8}, 96, v{t+7}")
    a.e(f"v_add_u32 v{t+8}, v{t+8}, v{t+4}")
    a.e(f"v_mul_u32_u24 v{t+9}, {UOFF-GOFF}, v{t+2}")
    a.e(f"v_add_u32 v{t+8}, v{t+8}, v{t+9}")
    a.e(f"v_add_u32 v{AG}, {WSLOT+GOFF}, v{t+8}")
    a.e(f"v_lshl_add_u32 v{t+7}, v{t+1}, 2, v{t+3}")
    a.e(f"v_mul_u32_u24 v{t+8}, 384, v{t+7}")
    a.e(f"v_add_u32 v{t+8}, v{t+8}, v{t+5}")
    a.e(f"v_add_u32 v{t+8}, {VSL[0]}, v{t+8}")
    a.e(f"v_add_u32 v{VE}, v{t+8}, v{t+6}")
    a.e(f"v_sub_u32 v{VO}, v{t+8}, v{t+6}")
    a.e(f"s_lshl_b32 s{sT}, s{sW}, 3")
    for i in range(3):
        a.e(f"v_add_u32 v{t}, {64*i}, v{LANE}")
        a.e(f"v_mul_u32_u24 v{t+1}, 2731, v{t}")
        a.e(f"v_lshrrev_b32 v{t+1}, 16, v{t+1}")
        a.e(f"v_mul_u32_u24 v{t+2}, 24, v{t+1}")
        a.e(f"v_sub_u32 v{t+2}, v{t}, v{t+2}")
        a.e(f"v_add_u32 v{t+1}, s{sT}, v{t+1}")
        a.e(f"v_bfe_u32 v{t+3}, v{t+1}, 1, 3")
        a.e(f"v_xor_b32 v{t+4}, v{t+2}, v{t+3}")
        a.e(f"v_and_b32 v{t+3}, 1, v{t+3}")
        a.e(f"v_lshlrev_b32 v{t+3}, 2, v{t+3}")
        a.e(f"v_xor_b32 v{t+5}, v{t+2}, v{t+3}")
        a.e(f"v_mul_u32_u24 v{t+6}, 384, v{t+1}")
        a.e(f"v_lshl_add_u32 v{KA+i}, v{t+4}, 4, v{t+6}")
        a.e(f"v_lshl_add_u32 v{VB+i}, v{t+5}, 4, v{t+6}")
        a.e(f"v_mul_u32_u24 v{t+6}, 12288, v{t+1}")
        a.e(f"v_lshl_add_u32 v{DA+i}, v{t+5}, 4, v{t+6}")
    a.e(f"s_and_b32 s{sT}, s{sW}, 3")
    a.e(f"s_lshl_b32 s{sT2}, s{sT}, 4")
    a.e(f"v_and_b32 v{t+7}, 31, v{LANE}")
    for i in range(3):
        a.e(f"v_add_u32 v{t}, {32*i}, v{t+7}")
        a.e(f"v_mul_u32_u24 v{t+1}, 10923, v{t}")
        a.e(f"v_lshrrev_b32 v{t+1}, 16, v{t+1}")
        a.e(f"v_mul_u32_u24 v{t+2}, 6, v{t+1}")
        a.e(f"v_sub_u32 v{t+2}, v{t}, v{t+2}")
        a.e(f"v_add_u32 v{t+1}, s{sT2}, v{t+1}")
        a.e(f"v_mul_u32_u24 v{t+6}, 3072, v{t+1}")
        a.e(f"v_lshl_add_u32 v{DB+i}, v{t+2}, 4, v{t+6}")
    a.e(f"s_add_u32 s{sMA}, s{sW3}, {WSLOT}")
    a.e(f"s_mul_i32 s{sMB}, s{sT}, 1536")
    a.e(f"s_cmp_ge_u32 s{sW}, 4")
    a.e(f"s_cselect_b32 s{sT}, {WSLOT+UOFF}, {WSLOT+GOFF}")
    a.e(f"s_add_u32 s{sMB}, s{sMB}, s{sT}")
    a.e(f"s_mov_b32 s{sSTB}, 512")
    a.e(f"s_mov_b32 s{sEXB}, -1")
    a.e(f"s_mov_b32 s{sEXB+1}, 0")
    a.e(f"s_mov_b32 s{sOA}, 0")
    a.e(f"s_mov_b32 s{sOB}, 0")
    a.e(f"s_mov_b32 s{sKD}, 0")
    a.e(f"s_mov_b32 s{sRS}, 1")
    a.e(f"s_mov_b32 s{sC}, {f32(SCALE_C)}")
    a.e(f"s_mov_b32 s{sG0}, {f32(GELU_C0)}")
    a.e(f"s_mov_b32 s{sG1}, {f32(GELU_C1)}")
    a.e("s_waitcnt lgkmcnt(0)")
    a.e(f"s_lshl_b32 s{sT}, s{sB}, 3")
    a.e(f"s_add_u32 s{sT}, s{sT}, s{sW}")
    a.e(f"s_mul_i32 s{sT2}, s{sT}, 40960")
    srd(a, sX, 4, 5, f"s{sT2}", "40960")
    a.e(f"s_mul_i32 s{sT2}, s{sT}, {480*1024}")
    srd(a, sWS, 26, 27, f"s{sT2}", f"{480*1024}")
    a.e(f"s_mul_i32 s{sT2}, s{sH}, 384")
    srd(a, sDA, 10, 11, f"s{sT2}", "0")
    a.e(f"s_sub_u32 s{sDA+2}, {640*12288}, s{sT2}")
    a.e(f"s_cmp_ge_u32 s{sW}, 4")
    a.e(f"s_cselect_b32 s14, s18, s16")
    a.e(f"s_cselect_b32 s15, s19, s17")
    a.e(f"s_mul_i32 s{sT2}, s{sH}, 96")
    srd(a, sDB, 14, 15, f"s{sT2}", "0")
    a.e(f"s_sub_u32 s{sDB+2}, {640*3072}, s{sT2}")
    a.e(f"s_mul_i32 s{sT2}, s{sH}, 786432")
    a.e(f"s_add_u32 s{sT2}, s{sT2}, {1536*384}")
    srd(a, sK, 6, 7, f"s{sT2}", "196608")
    srd(a, sV, 8, 9, f"s{sT2}", "196608")
    a.e(f"s_mul_i32 s{sHO}, s{sH}, 12288")
    a.e(f"s_add_u32 s{sHO+1}, s{sHO}, 4096")
    a.e(f"s_add_u32 s{sHO+2}, s{sHO}, 8192")

    uid = [0]
    def dma_block(tag):
        a.e(f"s_mov_b64 exec, s[{sEXB}:{sEXB+1}]")
        a.e(f"s_mov_b32 m0, s{sMB}")
        a.e(f"s_add_u32 s{sT}, s{sMB}, s{sSTB}")
        a.vmem(f"buffer_load_dwordx4 v{DB}, s[{sDB}:{sDB+3}], s{sOB} offen lds", tag)
        a.e(f"s_mov_b32 m0, s{sT}")
        a.e(f"s_add_u32 s{sT}, s{sT}, s{sSTB}")
        a.vmem(f"buffer_load_dwordx4 v{DB+1}, s[{sDB}:{sDB+3}], s{sOB} offen lds", tag)
        a.e(f"s_mov_b32 m0, s{sT}")
        a.e("s_nop 0")
        a.vmem(f"buffer_load_dwordx4 v{DB+2}, s[{sDB}:{sDB+3}], s{sOB} offen lds", tag)
        a.e("s_mov_b64 exec, -1")
        a.e(f"s_mov_b32 m0, s{sMA}")
        a.e("s_nop 0")
        a.vmem(f"buffer_load_dwordx4 v{DA}, s[{sDA}:{sDA+3}], s{sOA} offen lds", tag)
        a.e(f"s_add_u32 m0, s{sMA}, 1024")
        a.e("s_nop 0")
        a.vmem(f"buffer_load_dwordx4 v{DA+1}, s[{sDA}:{sDA+3}], s{sOA} offen lds", tag)
        a.e(f"s_add_u32 m0, s{sMA}, 2048")
        a.e("s_nop 0")
        a.vmem(f"buffer_load_dwordx4 v{DA+2}, s[{sDA}:{sDA+3}], s{sOA} offen lds", tag)
    def dma_advance():
        u = uid[0]; uid[0] += 1
        a.e(f"s_add_u32 s{sKD}, s{sKD}, 1")
        a.e(f"s_cmp_lt_u32 s{sKD}, 10")
        a.e(f"s_cbranch_scc0 L_{K}_kv{u}")
        a.e(f"s_add_u32 s{sOA}, s{sOA}, 786432")
        a.e(f"s_add_u32 s{sOB}, s{sOB}, 196608")
        a.e(f"s_add_u32 s{sT}, s{sMA}, {WSLOT}")
        a.e(f"s_cmp_ge_u32 s{sT}, {WTOT}")
        a.e(f"s_cselect_b32 s{sT}, {(WSLOT-WTOT) & 0xffffffff}, {WSLOT}")
        a.e(f"s_add_u32 s{sMA}, s{sMA}, s{sT}")
        a.e(f"s_add_u32 s{sMB}, s{sMB}, s{sT}")
        a.e(f"s_branch L_{K}_adv{u}")
        a.label(f"L_{K}_kv{u}")
        for i in range(4):
            a.e(f"s_mov_b32 s{sDA+i}, s{sK+i}")
            a.e(f"s_mov_b32 s{sDB+i}, s{sV+i}")
        for i in range(3):
            a.e(f"v_mov_b32 v{DA+i}, v{KA+i}")
            a.e(f"v_mov_b32 v{DB+i}, v{VB+i}")
        a.e(f"s_mov_b32 s{sSTB}, 1024")
        a.e(f"s_mov_b32 s{sEXB+1}, -1")
        a.e(f"s_sub_u32 s{sT}, s{sKD}, 10")
        a.e(f"s_mul_i32 s{sOA}, s{sT}, 24576")
        a.e(f"s_cmp_eq_u32 s{sKD}, 12")
        a.e(f"s_cselect_b32 s{sOB}, 24576, 0")
        a.e(f"s_cselect_b32 s{sMB}, {VSL[1]}, {VSL[0]}")
        a.e(f"s_cselect_b32 s{sMA}, {KSL[2]}, {KSL[1]}")
        a.e(f"s_cmp_eq_u32 s{sKD}, 10")
        a.e(f"s_cselect_b32 s{sMA}, {KSL[0]}, s{sMA}")
        a.e(f"s_add_u32 s{sMA}, s{sMA}, s{sW3}")
        a.e(f"s_add_u32 s{sMB}, s{sMB}, s{sW3}")
        a.label(f"L_{K}_adv{u}")
    def xload(setp, s, tag):
        a.vmem(f"buffer_load_dwordx4 {vr(XS+16*setp+4*s,4)}, v{XOFF}, s[{sX}:{sX+3}], s{sXO} offen offset:{32*s + 128*setp}", tag)

    a.e(f"s_mov_b32 s{sXO}, 0")
    dma_block(("W", 0)); dma_advance()
    for s in range(3): xload(0, s, ("x", 0, s))
    dma_block(("W", 1)); dma_advance()
    xload(0, 3, ("x", 0, 3))
    for s in range(3): xload(1, s, ("x", 1, s))
    dma_block(("W", 0)); dma_advance()
    xload(1, 3, ("x", 1, 3))
    a.e(f"s_mov_b32 s{sXO}, 256")
    for i in range(144): a.e(f"v_mov_b32 v{ACC+i}, 0")
    for i in range(CS, S2 + 1): a.e(f"v_mov_b32 v{i}, 0")
    n = len(a.vm) - 6
    a.e(f"s_waitcnt vmcnt({n})"); a.vm = a.vm[6:]
    a.e("s_barrier")

    def wfrag_read(i, tagbase):
        s, j = divmod(i, 9)
        buf = FR + 4 * (i % 4)
        for tt in range(2):
            if j < 6:
                ad = AE if j % 2 == 0 else AO
                off = (16 * s + 4 * tt) * 384 + 64 * j
            else:
                ad = AG; off = (16 * s + 4 * tt) * 96 + 32 * (j - 6)
            a.ds(f"ds_read_b64_tr_b16 {vr(buf+2*tt,2)}, v{ad} offset:{off}", ("f", i % 4))
    for i in range(3): wfrag_read(i, None)
    a.e(f"s_mov_b32 s{sIT}, 0")
    a.label(f"L_{K}_A")
    vm_entry = list(a.vm); lg_entry = list(a.lgkm)
    for par in range(2):
        for i in range(36):
            s, j = divmod(i, 9)
            if i == 33:
                a.wait_vm(("W", 1 - par))
                a.e("s_barrier")
                a.e(f"s_add_u32 s{sRS}, s{sRS}, 1")
                a.e(f"s_cmp_eq_u32 s{sRS}, 4")
                a.e(f"s_cselect_b32 s{sT2}, {(WSLOT-WTOT) & 0xffffffff}, {WSLOT}")
                a.e(f"s_and_b32 s{sRS}, s{sRS}, 3")
                a.e(f"v_add_u32 v{AE}, s{sT2}, v{AE}")
                a.e(f"v_add_u32 v{AO}, s{sT2}, v{AO}")
                a.e(f"v_add_u32 v{AG}, s{sT2}, v{AG}")
            wfrag_read((i + 3) % 36, None)
            if j == 0: a.wait_vm(("x", par, s))
            a.wait_lgkm(("f", i % 4)) if False else None
            nleft = len(a.lgkm) - 2
            a.e(f"s_waitcnt lgkmcnt({nleft})"); a.lgkm = a.lgkm[2:]
            buf = FR + 4 * (i % 4); xb = XS + 16 * par + 4 * s
            a.e(f"v_mfma_f32_32x32x16_bf16 {vr(ACC+16*j,16)}, {vr(buf,4)}, {vr(xb,4)}, {vr(ACC+16*j,16)}")
            for q in range(4):
                a.e(f"v_dot2_f32_bf16 v{CS+j}, v{buf+q}, v{ONES}, v{CS+j}")
            if j < 4:
                a.e(f"v_dot2_f32_bf16 v{S1}, v{xb+j}, v{ONES}, v{S1}")
                a.e(f"v_dot2_f32_bf16 v{S2}, v{xb+j}, v{xb+j}, v{S2}")
            if i == 33:
                dma_block(("W", 1 - par)); dma_advance()
            if j == 8:
                xload(par, s, ("x", par, s))
    a.e(f"s_add_u32 s{sIT}, s{sIT}, 1")
    a.e(f"s_add_u32 s{sXO}, s{sXO}, 256")
    a.e(f"s_cmp_eq_u32 s{sIT}, 4")
    a.e(f"s_cselect_b32 s{sXO}, 0x10000, s{sXO}")
    a.e(f"s_cmp_lt_u32 s{sIT}, 5")
    a.e(f"s_cbranch_scc1 L_{K}_A")
    assert suffix_of(a.vm, vm_entry), (a.vm, vm_entry)
    assert a.lgkm == lg_entry
    a.e("s_waitcnt lgkmcnt(0)"); a.lgkm = []
    regs = [S1, S2] + [CS + j for j in range(9)]
    for k, r in enumerate(regs):
        a.e(f"v_mov_b32 v{TMP+k}, v{r}")
    a.e("s_nop 1")
    for k, r in enumerate(regs):
        a.e(f"v_permlane32_swap_b32 v{r}, v{TMP+k}")
    for k, r in enumerate(regs):
        a.e(f"v_add_f32 v{r}, v{r}, v{TMP+k}")
    a.e(f"v_and_b32 v{T0}, 0x1f0, v{L16}")
    a.e(f"v_lshrrev_b32 v{T0}, 2, v{T0}")
    a.e(f"v_add_u32 v{T0}, {CSL}, v{T0}")
    for j in range(9):
        a.ds(f"ds_write_b32 v{T0}, v{CS+j} offset:{128*j}", "csw")
    a.e(f"v_lshrrev_b32 v{T1}, 9, v{L16}")
    a.e(f"v_lshlrev_b32 v{T1}, 4, v{T1}")
    a.e(f"v_add_u32 v{T1}, {CSL}, v{T1}")
    a.e(f"v_mul_f32 v{MEAN}, {f32(1.0/640)}, v{S1}")
    a.e(f"v_mul_f32 v{T2}, {f32(1.0/640)}, v{S2}")
    a.e(f"v_fma_f32 v{T2}, -v{MEAN}, v{MEAN}, v{T2}")
    a.e(f"v_max_f32 v{T2}, 0, v{T2}")
    a.e(f"v_add_f32 v{T2}, {f32(1e-5)}, v{T2}")
    a.e(f"v_rsq_f32 v{RSTD}, v{T2}")
    a.e("s_waitcnt lgkmcnt(0)"); a.lgkm = []
    CT = [FR, TMP]
    def cs_read(j):
        for q in range(4):
            a.ds(f"ds_read_b128 {vr(CT[j%2]+4*q,4)}, v{T1} offset:{128*j+32*q}", ("cs", j))
    order = [6, 7, 8, 0, 1, 2, 3, 4, 5]
    cs_idx = {j: n for n, j in enumerate(order)}
    def cs_read2(n):
        j = order[n]
        for q in range(4):
            a.ds(f"ds_read_b128 {vr(CT[n%2]+4*q,4)}, v{T1} offset:{128*j+32*q}", ("cs", n))
    cs_read2(0)
    for n, j in enumerate(order):
        if n + 1 < 9: cs_read2(n + 1)
        a.wait_lgkm(("cs", n))
        ct = CT[n % 2]; ac = ACC + 16 * j
        for r in range(16):
            a.e(f"v_fma_f32 v{ac+r}, -v{MEAN}, v{ct+r}, v{ac+r}")
        for r in range(16):
            a.e(f"v_mul_f32 v{ac+r}, v{RSTD}, v{ac+r}")
        if j >= 6:
            jj = j - 6
            for r in range(8):
                a.e(f"v_mul_f32 v{ct+r}, v{ac+r}, v{ac+r}")
            for r in range(8):
                a.e(f"v_mov_b32 v{ct+8+r}, s{sG0}")
            for r in range(8):
                a.e(f"v_fma_f32 v{ct+r}, v{ct+r}, s{sG1}, v{ct+8+r}")
            for r in range(8):
                a.e(f"v_mul_f32 v{ct+r}, v{ct+r}, v{ac+r}")
            for r in range(8):
                a.e(f"v_exp_f32 v{ct+r}, v{ct+r}")
            for r in range(8):
                a.e(f"v_add_f32 v{ct+r}, 1.0, v{ct+r}")
            for r in range(8):
                a.e(f"v_rcp_f32 v{ct+r}, v{ct+r}")
            for r in range(8):
                a.e(f"v_mul_f32 v{ac+r}, v{ac+r}, v{ac+8+r}")
            for r in range(8):
                a.e(f"v_mul_f32 v{ac+r}, v{ac+r}, v{ct+r}")
            hp = P + 4 * jj
            for q in range(4):
                a.e(f"v_cvt_pk_bf16_f32 v{hp+q}, v{ac+2*q}, v{ac+2*q+1}")
            a.e(f"s_mul_i32 s{sT}, s{sH}, 3072")
            a.e(f"s_add_u32 s{sT}, s{sT}, {384*1024}")
            a.vmem(f"buffer_store_dwordx4 {vr(hp,4)}, v{L16}, s[{sWS}:{sWS+3}], s{sT} offen offset:{1024*jj}", "hst")
        else:
            for q in range(8):
                a.e(f"v_cvt_pk_bf16_f32 v{QP+8*j+q}, v{ac+2*q}, v{ac+2*q+1}")
    for i in range(96): a.e(f"v_mov_b32 v{O+i}, 0")
    a.e(f"v_mov_b32 v{MR}, 0xff800000")
    a.e(f"v_mov_b32 v{MS}, 0xff800000")
    a.e(f"v_mov_b32 v{LS}, 0")
    a.wait_vm(("x", 1, 3))
    for i in range(3):
        a.e(f"s_mov_b32 s{sKS+i}, {KSL[i]}")
        a.e(f"s_mov_b32 s{sVS+i}, {VSL[(i+2)%3]}")

    def frag_read(i):
        i %= 48
        buf = FR + 4 * (i % 4)
        if i < 24:
            kb, s = divmod(i, 12)
            a.ds(f"ds_read_b128 {vr(buf,4)}, v{KR+(s&3)} offset:{kb*12288+(s>>2)*128}", ("f", i))
        else:
            u, j = divmod(i - 24, 6)
            ad = VE if j % 2 == 0 else VO
            for tt in range(2):
                a.ds(f"ds_read_b64_tr_b16 {vr(buf+2*tt,2)}, v{ad} offset:{(16*u+8*tt)*384+64*j}", ("f", i))
    def mfma_b(i):
        buf = FR + 4 * (i % 4)
        a.wait_lgkm(("f", i))
        if i < 24:
            kb, s = divmod(i, 12)
            c = "0" if s == 0 else vr(S + 16 * kb, 16)
            a.e(f"v_mfma_f32_32x32x16_bf16 {vr(S+16*kb,16)}, {vr(buf,4)}, {vr(QP+4*s,4)}, {c}")
        else:
            u, j = divmod(i - 24, 6)
            a.e(f"v_mfma_f32_32x32x16_bf16 {vr(O+16*j,16)}, {vr(buf,4)}, {vr(P+4*u,4)}, {vr(O+16*j,16)}")
    def softmax_ops():
        ops = []
        ops.append((f"v_max3_f32 v{T0}, v{S}, v{S+1}, v{MR}", 0))
        ops.append((f"v_max3_f32 v{T1}, v{S+2}, v{S+3}, v{S+4}", 0))
        k = 5
        tog = 0
        while k < 31:
            tt = T0 if tog == 0 else T1
            ops.append((f"v_max3_f32 v{tt}, v{S+k}, v{S+k+1}, v{tt}", 0)); k += 2; tog ^= 1
        ops.append((f"v_max3_f32 v{T0}, v{S+31}, v{T0}, v{T1}", 0))
        ops.append((f"v_mov_b32 v{T1}, v{T0}", 0))
        ops.append(("s_nop 1", 0))
        ops.append((f"v_permlane32_swap_b32 v{T0}, v{T1}", 0))
        ops.append((f"v_max_f32 v{MR}, v{T0}, v{T1}", 0))
        ops.append((f"v_mul_f32 v{T2}, s{sC}, v{MR}", 0))
        ops.append((f"v_sub_f32 v{T3}, v{MS}, v{T2}", 0))
        ops.append((f"v_exp_f32 v{AL}, v{T3}", 0))
        ops.append((f"v_mov_b32 v{MS}, v{T2}", 0))
        first = True
        for u in range(4):
            b = S + 8 * u
            for r in range(8):
                ops.append((f"v_fma_f32 v{b+r}, v{b+r}, s{sC}, -v{MS}", 0))
            if first:
                ops.append((f"v_mul_f32 v{LS}, v{LS}, v{AL}", 0)); first = False
            for r in range(8):
                ops.append((f"v_exp_f32 v{b+r}, v{b+r}", 0))
            for q in range(4):
                ops.append((f"v_cvt_pk_bf16_f32 v{P+4*u+q}, v{b+2*q}, v{b+2*q+1}", 6 * u + 6))
            for q in range(4):
                ops.append((f"v_dot2_f32_bf16 v{LS}, v{P+4*u+q}, v{ONES}, v{LS}", 6 * u + 6))
        return ops
    def rescale_ops():
        return [(f"v_mul_f32 v{O+i}, v{AL}, v{O+i}", 0) for i in range(96)]
    def kv_dma(which, soff, mbase, tag):
        srdr, vo = (sK, KA) if which == "K" else (sV, VB)
        for i in range(3):
            a.e(f"s_add_u32 m0, s{mbase}, {1024*i}")
            a.e("s_nop 0")
            a.vmem(f"buffer_load_dwordx4 v{vo+i}, s[{srdr}:{srdr+3}], s{soff} offen lds", tag)
    def barrier_step(first):
        u = uid[0]; uid[0] += 1
        if not first:
            a.e(f"s_cmp_lt_u32 s{sIT}, 6")
            a.e(f"s_cbranch_scc1 L_{K}_w{u}")
            a.e("s_waitcnt vmcnt(0)")
            a.label(f"L_{K}_w{u}")
            a.e("s_waitcnt vmcnt(3)")
        a.e("s_barrier")
        a.e(f"s_sub_u32 s{sT}, s{sKS+1}, s{sKS}")
        for i in range(4): a.e(f"v_add_u32 v{KR+i}, s{sT}, v{KR+i}")
        if not first:
            a.e(f"s_sub_u32 s{sT}, s{sVS+1}, s{sVS}")
            a.e(f"v_add_u32 v{VE}, s{sT}, v{VE}")
            a.e(f"v_add_u32 v{VO}, s{sT}, v{VO}")
    def dma_step(first):
        u = uid[0]; uid[0] += 1
        if not first:
            a.e(f"s_cmp_lt_u32 s{sIT}, 7")
            a.e(f"s_cbranch_scc0 L_{K}_d{u}")
            a.e(f"s_add_u32 s{sT}, s{sIT}, 1")
            a.e(f"s_mul_i32 s{sOB}, s{sT}, 24576")
            a.e(f"s_add_u32 s{sMB}, s{sVS+2}, s{sW3}")
            kv_dma("V", sOB, sMB, "V")
            a.e(f"s_cmp_lt_u32 s{sIT}, 5")
            a.e(f"s_cbranch_scc0 L_{K}_d{u}")
        a.e(f"s_add_u32 s{sT}, s{sIT}, 3")
        a.e(f"s_mul_i32 s{sOA}, s{sT}, 24576")
        a.e(f"s_add_u32 s{sMA}, s{sKS}, s{sW3}")
        kv_dma("K", sOA, sMA, "K")
        a.label(f"L_{K}_d{u}")
        for tr in (sKS, sVS):
            a.e(f"s_mov_b32 s{sT}, s{tr}")
            a.e(f"s_mov_b32 s{tr}, s{tr+1}")
            a.e(f"s_mov_b32 s{tr+1}, s{tr+2}")
            a.e(f"s_mov_b32 s{tr+2}, s{sT}")
        a.vm = []

    a.e(f"s_mov_b32 s{sIT}, 0")
    for i in range(3): frag_read(i)
    for i in range(24):
        if i + 3 < 24: frag_read(i + 3)
        mfma_b(i)
    barrier_step(True)
    for i in range(3): frag_read(i)
    dma_step(True)
    a.e("s_nop 7")
    for (tx, _) in softmax_ops(): a.e(tx)
    a.e(f"s_mov_b32 s{sIT}, 1")
    a.label(f"L_{K}_B")
    lg_entry = list(a.lgkm)
    def spread(ops, nslots):
        w = [2 if o[0].startswith("v_exp") else 1 for o in ops]
        tot = sum(w); groups = [[] for _ in range(nslots)]
        acc = 0
        for o, ww in zip(ops, w):
            g = min(nslots - 1, int(acc * nslots / tot))
            g = max(g, min(nslots - 1, o[1] - 1))
            if groups[g + 1:] and any(groups[g + 1:]):
                g = max(k for k in range(nslots) if groups[k])
            groups[g].append(o[0]); acc += ww
        return groups
    rs = spread(rescale_ops(), 24)
    sm = spread(softmax_ops(), 24)
    for i in range(48):
        if i == 45: barrier_step(False)
        frag_read(i + 3)
        mfma_b(i)
        if i == 45: dma_step(False)
        for tx in (rs[i] if i < 24 else sm[i - 24]): a.e(tx)
    a.e(f"s_add_u32 s{sIT}, s{sIT}, 1")
    a.e(f"s_cmp_lt_u32 s{sIT}, 8")
    a.e(f"s_cbranch_scc1 L_{K}_B")
    assert a.lgkm == lg_entry, (a.lgkm, lg_entry)
    a.e("s_waitcnt lgkmcnt(0)"); a.lgkm = []
    for i in range(24, 27): frag_read(i)
    a.e("s_nop 7")
    for (tx, _) in rescale_ops(): a.e(tx)
    for i in range(24, 48):
        if i + 3 < 48: frag_read(i + 3)
        mfma_b(i)
    a.e(f"v_mov_b32 v{T0}, v{LS}")
    a.e("s_nop 1")
    a.e(f"v_permlane32_swap_b32 v{LS}, v{T0}")
    a.e(f"v_add_f32 v{LS}, v{LS}, v{T0}")
    a.e(f"v_rcp_f32 v{AL}, v{LS}")
    a.e("s_nop 7")
    for j in range(6):
        for r in range(16): a.e(f"v_mul_f32 v{O+16*j+r}, v{AL}, v{O+16*j+r}")
        for q in range(8): a.e(f"v_cvt_pk_bf16_f32 v{QP+8*j+q}, v{O+16*j+2*q}, v{O+16*j+2*q+1}")
        for e_ in range(2):
            f = 2 * j + e_
            a.vmem(f"buffer_store_dwordx4 {vr(QP+4*f,4)}, v{L16}, s[{sWS}:{sWS+3}], s{sHO+f//4} offen offset:{1024*(f%4)}", "ost")
    a.label(f"L_{K}_done")
    a.e("s_endpgm")
    return a

def kernel2():
    a = Asm(); K = "k2"
    ACC = 0; ACC2 = 80; OF = 160; FR = 208
    AW = 224; DW = 225; L16 = 230; TMP = 232
    sO, sWr, sWd, sP = 28, 32, 36, 40
    sW, sS, sMT, sNT, sG, sMBk = 44, 45, 46, 47, 48, 49
    sOW, sM0, sOO, sT, sT2, sRS, sIT, sTD, sSW, sSWA = 50, 51, 52, 53, 54, 55, 56, 57, 58, 59
    SLOT = 40960; TOT = 4 * SLOT
    a.e("s_cmp_ge_u32 s2, 256")
    a.e(f"s_cbranch_scc1 L_{K}_done")
    load_ptrs(a)
    a.e(f"v_lshrrev_b32 v{TMP}, 6, v0")
    a.e(f"v_and_b32 v{TMP+1}, 63, v0")
    a.e(f"v_readfirstlane_b32 s{sW}, v{TMP}")
    LANE = TMP + 1; t = TMP + 2
    a.e(f"s_and_b32 s{sS}, s2, 3")
    a.e(f"s_bfe_u32 s{sT}, s2, 0x10002")
    a.e(f"s_lshr_b32 s{sT2}, s2, 3")
    a.e(f"s_and_b32 s{sNT}, s{sT2}, 3")
    a.e(f"s_lshr_b32 s{sMT}, s{sT2}, 2")
    a.e(f"s_lshl_b32 s{sT}, s{sT}, 3")
    a.e(f"s_add_u32 s{sMT}, s{sMT}, s{sT}")
    a.e(f"s_lshr_b32 s{sG}, s{sW}, 2")
    a.e(f"s_and_b32 s{sT}, s{sW}, 3")
    a.e(f"s_lshl_b32 s{sMBk}, s{sMT}, 2")
    a.e(f"s_add_u32 s{sMBk}, s{sMBk}, s{sT}")
    a.e(f"v_lshlrev_b32 v{L16}, 4, v{LANE}")
    a.e(f"v_lshrrev_b32 v{t}, 5, v{LANE}")
    a.e(f"v_bfe_u32 v{t+1}, v{LANE}, 2, 2")
    a.e(f"v_lshl_add_u32 v{t}, v{t}, 3, v{t+1}")
    a.e(f"v_mul_u32_u24 v{t}, 320, v{t}")
    a.e(f"v_and_b32 v{t+1}, 1, v{LANE}")
    a.e(f"v_lshl_add_u32 v{t}, v{t+1}, 5, v{t}")
    a.e(f"v_bfe_u32 v{t+1}, v{LANE}, 4, 1")
    a.e(f"v_lshl_add_u32 v{t}, v{t+1}, 4, v{t}")
    a.e(f"v_bfe_u32 v{t+1}, v{LANE}, 1, 1")
    a.e(f"v_lshl_add_u32 v{t}, v{t+1}, 3, v{t}")
    a.e(f"s_mul_i32 s{sT2}, s{sG}, 20480")
    a.e(f"v_add_u32 v{AW}, s{sT2}, v{t}")
    a.e(f"s_mul_i32 s{sM0}, s{sT}, 5120")
    a.e(f"s_add_u32 s{sM0}, s{sM0}, s{sT2}")
    a.e(f"s_lshl_b32 s{sT}, s{sT}, 4")
    for i in range(5):
        a.e(f"v_add_u32 v{t}, {64*i}, v{LANE}")
        a.e(f"v_mul_u32_u24 v{t+1}, 3277, v{t}")
        a.e(f"v_lshrrev_b32 v{t+1}, 16, v{t+1}")
        a.e(f"v_mul_u32_u24 v{t+2}, 20, v{t+1}")
        a.e(f"v_sub_u32 v{t+2}, v{t}, v{t+2}")
        a.e(f"v_add_u32 v{t+1}, s{sT}, v{t+1}")
        a.e(f"v_mul_u32_u24 v{t+1}, 1280, v{t+1}")
        a.e(f"v_lshl_add_u32 v{DW+i}, v{t+2}, 4, v{t+1}")
    a.e(f"s_lshl_b32 s{sT}, s{sS}, 1")
    a.e(f"s_add_u32 s{sT}, s{sT}, s{sG}")
    a.e(f"s_mul_i32 s{sOO}, s{sT}, {60*1024}")
    a.e(f"s_mul_i32 s{sOW}, s{sT}, {960*1280}")
    a.e(f"s_cmp_eq_u32 s{sT}, 6")
    a.e(f"s_cselect_b32 s{sSW}, 6, 99")
    a.e(f"s_mov_b32 s{sTD}, 0")
    a.e(f"s_mov_b32 s{sRS}, 0")
    a.e("s_waitcnt lgkmcnt(0)")
    a.e(f"s_mul_i32 s{sT2}, s{sMBk}, {480*1024}")
    srd(a, sO, 26, 27, f"s{sT2}", f"{480*1024}")
    a.e(f"s_mul_i32 s{sT2}, s{sNT}, 320")
    srd(a, sWr, 12, 13, f"s{sT2}", "0")
    a.e(f"s_sub_u32 s{sWr+2}, {6144*1280}, s{sT2}")
    srd(a, sWd, 20, 21, f"s{sT2}", "0")
    a.e(f"s_sub_u32 s{sWd+2}, {1536*1280}, s{sT2}")
    a.e(f"s_cmp_eq_u32 s{sT}, 7")
    a.e(f"s_cbranch_scc0 L_{K}_n7")
    for i in range(3): a.e(f"s_mov_b32 s{sWr+i}, s{sWd+i}")
    a.e(f"s_mov_b32 s{sOW}, {576*1280}")
    a.label(f"L_{K}_n7")
    a.e(f"s_mul_i32 s{sT2}, s{sMBk}, {20*4096}")
    a.e(f"s_mul_i32 s{sT}, s{sNT}, {5*4096}")
    a.e(f"s_add_u32 s{sT2}, s{sT2}, s{sT}")
    a.e(f"s_add_u32 s{sT2}, s{sT2}, {WS_P}")
    srd(a, sP, 26, 27, f"s{sT2}", "0")
    a.e(f"s_sub_u32 s{sP+2}, {WS_P + 5*PB_BYTES}, s{sT2}")
    uid = [0]
    def dma_block(tag):
        u = uid[0]; uid[0] += 1
        for i in range(5):
            a.e(f"s_add_u32 m0, s{sM0}, {1024*i}")
            a.e("s_nop 0")
            a.vmem(f"buffer_load_dwordx4 v{DW+i}, s[{sWr}:{sWr+3}], s{sOW} offen lds", tag)
        a.e(f"s_add_u32 s{sTD}, s{sTD}, 1")
        a.e(f"s_add_u32 s{sOW}, s{sOW}, {64*1280}")
        a.e(f"s_add_u32 s{sT}, s{sM0}, {SLOT}")
        a.e(f"s_cmp_ge_u32 s{sT}, {TOT}")
        a.e(f"s_cselect_b32 s{sT}, {(SLOT-TOT)&0xffffffff}, {SLOT}")
        a.e(f"s_add_u32 s{sM0}, s{sM0}, s{sT}")
        a.e(f"s_cmp_eq_u32 s{sTD}, s{sSW}")
        a.e(f"s_cbranch_scc0 L_{K}_ns{u}")
        for i in range(3): a.e(f"s_mov_b32 s{sWr+i}, s{sWd+i}")
        a.e(f"s_mov_b32 s{sOW}, 0")
        a.label(f"L_{K}_ns{u}")
        a.e(f"s_cmp_ge_u32 s{sTD}, 15")
        a.e(f"s_cselect_b32 s{sOW}, 0x1000000, s{sOW}")
    def oload(par, s, tag):
        a.vmem(f"buffer_load_dwordx4 {vr(OF+16*par+4*s,4)}, v{L16}, s[{sO}:{sO+3}], s{sOO} offen offset:{1024*s}", tag)
    def oadv():
        a.e(f"s_add_u32 s{sOO}, s{sOO}, 4096")
    dma_block(("W", 0))
    for par in range(3):
        for s in range(3): oload(par, s, ("o", par, s))
        if par > 0: dma_block(("W", par))
        oload(par, 3, ("o", par, 3)); oadv()
    for i in range(80): a.e(f"v_mov_b32 v{ACC+i}, 0")
    n = len(a.vm) - 5
    a.e(f"s_waitcnt vmcnt({n})"); a.vm = a.vm[5:]
    a.e("s_barrier")
    def wfrag(i):
        s, nb = divmod(i % 20, 5)
        buf = FR + 4 * (i % 4)
        for tt in range(2):
            a.ds(f"ds_read_b64_tr_b16 {vr(buf+2*tt,2)}, v{AW} offset:{(16*s+4*tt)*320+64*nb}", ("f", i % 4))
    for i in range(3): wfrag(i)
    a.e(f"s_mov_b32 s{sIT}, 0")
    a.label(f"L_{K}_loop")
    vm_entry = list(a.vm); lg_entry = list(a.lgkm)
    for par in range(3):
        if par == 0:
            a.e(f"s_cmp_eq_u32 s{sIT}, s{sSW}")
            a.e(f"s_cbranch_scc0 L_{K}_nsw")
            a.e("s_nop 15")
            for i in range(80):
                a.e(f"v_mov_b32 v{ACC2+i}, v{ACC+i}")
            for i in range(80):
                a.e(f"v_mov_b32 v{ACC+i}, 0")
            a.label(f"L_{K}_nsw")
        for i in range(20):
            s, nb = divmod(i, 5)
            if i == 17:
                a.wait_vm(("W", (par + 1) % 3))
                a.e("s_barrier")
                a.e(f"s_add_u32 s{sRS}, s{sRS}, 1")
                a.e(f"s_cmp_eq_u32 s{sRS}, 4")
                a.e(f"s_cselect_b32 s{sT2}, {(SLOT-TOT)&0xffffffff}, {SLOT}")
                a.e(f"s_and_b32 s{sRS}, s{sRS}, 3")
                a.e(f"v_add_u32 v{AW}, s{sT2}, v{AW}")
            wfrag(i + 3)
            if nb == 0: a.wait_vm(("o", par, s))
            nleft = len(a.lgkm) - 2
            a.e(f"s_waitcnt lgkmcnt({nleft})"); a.lgkm = a.lgkm[2:]
            buf = FR + 4 * (i % 4)
            a.e(f"v_mfma_f32_32x32x16_bf16 {vr(ACC+16*nb,16)}, {vr(buf,4)}, {vr(OF+16*par+4*s,4)}, {vr(ACC+16*nb,16)}")
            if i == 17: dma_block(("W", par))
            if nb == 4:
                oload(par, s, ("o", par, s))
                if s == 3: oadv()
    a.e(f"s_add_u32 s{sIT}, s{sIT}, 3")
    a.e(f"s_cmp_eq_u32 s{sIT}, 12")
    a.e(f"s_cselect_b32 s{sOO}, 0x1000000, s{sOO}")
    a.e(f"s_cmp_lt_u32 s{sIT}, 15")
    a.e(f"s_cbranch_scc1 L_{K}_loop")
    assert suffix_of(a.vm, vm_entry), (a.vm, vm_entry)
    assert a.lgkm == lg_entry
    a.wait_all()
    a.e("s_barrier")
    a.e(f"s_mul_i32 s{sT}, s{sW}, 10240")
    a.e(f"v_add_u32 v{TMP}, s{sT}, v{L16}")
    a.e(f"s_xor_b32 s{sT}, s{sW}, 4")
    a.e(f"s_mul_i32 s{sT}, s{sT}, 10240")
    a.e(f"v_add_u32 v{TMP+1}, s{sT}, v{L16}")
    a.e(f"s_cmp_eq_u32 s{sS}, 3")
    a.e(f"s_cselect_b32 s{sT}, 4, s{sS}")
    a.e(f"s_mul_i32 s{sT2}, s{sT}, {PB_BYTES}")
    a.e(f"s_cmp_eq_u32 s{sG}, 0")
    a.e(f"s_cbranch_scc0 L_{K}_g1")
    for g in range(2):
        keep = 40 * g; send = 40 * (1 - g)
        for q in range(10):
            a.e(f"ds_write_b128 v{TMP}, {vr(ACC+send+4*q,4)} offset:{1024*q}")
        a.e("s_waitcnt lgkmcnt(0)")
        a.e("s_barrier")
        for q in range(10):
            a.e(f"ds_read_b128 {vr(OF+4*q,4)}, v{TMP+1} offset:{1024*q}")
        a.e("s_waitcnt lgkmcnt(0)")
        for r in range(40):
            a.e(f"v_add_f32 v{ACC+keep+r}, v{ACC+keep+r}, v{OF+r}")
        a.e(f"s_cmp_eq_u32 s{sS}, 3")
        a.e(f"s_cbranch_scc0 L_{K}_nosilu{g}")
        for r in range(40): a.e(f"v_mul_f32 v{OF+r}, {f32(-LOG2E)}, v{ACC+keep+r}")
        for r in range(40): a.e(f"v_exp_f32 v{OF+r}, v{OF+r}")
        for r in range(40): a.e(f"v_add_f32 v{OF+r}, 1.0, v{OF+r}")
        for r in range(40): a.e(f"v_rcp_f32 v{OF+r}, v{OF+r}")
        for r in range(40): a.e(f"v_mul_f32 v{ACC+keep+r}, v{ACC+keep+r}, v{OF+r}")
        if g == 0:
            a.e(f"s_mov_b32 s{sT}, {3*PB_BYTES}")
            for q in range(20):
                if q % 4 == 0 and q: a.e(f"s_add_u32 s{sT}, s{sT}, 4096")
                a.e(f"buffer_store_dwordx4 {vr(ACC2+4*q,4)}, v{L16}, s[{sP}:{sP+3}], s{sT} offen offset:{1024*(q%4)}")
        a.label(f"L_{K}_nosilu{g}")
        for q in range(10):
            qq = 10 * g + q
            a.e(f"s_add_u32 s{sT}, s{sT2}, {4096*(qq//4)}")
            a.e(f"buffer_store_dwordx4 {vr(ACC+4*qq,4)}, v{L16}, s[{sP}:{sP+3}], s{sT} offen offset:{1024*(qq%4)}")
        if g == 0:
            a.e(f"s_branch L_{K}_done")
            a.label(f"L_{K}_g1")
    a.label(f"L_{K}_done")
    a.e("s_endpgm")
    return a

def kernel3():
    a = Asm(); K = "k3"
    sP, sX, sOut, sT, sT2, sW, sMB, sNB = 28, 32, 36, 40, 41, 42, 43, 44
    a.e("s_cmp_ge_u32 s2, 320")
    a.e(f"s_cbranch_scc1 L_{K}_done")
    load_ptrs(a)
    a.e("v_lshrrev_b32 v1, 6, v0")
    a.e("v_and_b32 v2, 63, v0")
    a.e(f"v_readfirstlane_b32 s{sW}, v1")
    a.e(f"s_lshl_b32 s{sT}, s2, 2")
    a.e("v_lshlrev_b32 v3, 4, v2")
    a.e(f"s_add_u32 s{sT}, s{sT}, s{sW}")
    a.e(f"s_mul_i32 s{sMB}, s{sT}, 3277")
    a.e(f"s_lshr_b32 s{sMB}, s{sMB}, 16")
    a.e(f"s_mul_i32 s{sT2}, s{sMB}, 20")
    a.e(f"s_sub_u32 s{sNB}, s{sT}, s{sT2}")
    a.e("v_and_b32 v4, 31, v2")
    a.e("v_mul_u32_u24 v4, 1280, v4")
    a.e("v_lshrrev_b32 v5, 5, v2")
    a.e("v_lshl_add_u32 v4, v5, 5, v4")
    a.e("s_waitcnt lgkmcnt(0)")
    a.e(f"s_lshl_b32 s{sT2}, s{sT}, 12")
    a.e(f"s_add_u32 s{sT2}, s{sT2}, {WS_P}")
    srd(a, sP, 26, 27, f"s{sT2}", "0")
    a.e(f"s_sub_u32 s{sP+2}, {WS_P + 5*PB_BYTES}, s{sT2}")
    a.e(f"s_mul_i32 s{sT2}, s{sMB}, 40960")
    a.e(f"s_lshl_b32 s{sT}, s{sNB}, 6")
    a.e(f"s_add_u32 s{sT2}, s{sT2}, s{sT}")
    srd(a, sX, 4, 5, f"s{sT2}", "0")
    a.e(f"s_sub_u32 s{sX+2}, {2048*1280}, s{sT2}")
    srd(a, sOut, 22, 23, f"s{sT2}", "0")
    a.e(f"s_sub_u32 s{sOut+2}, {2048*1280}, s{sT2}")
    for b in range(5):
        a.e(f"s_mov_b32 s{sT}, {b*PB_BYTES}")
        for q in range(4):
            a.e(f"buffer_load_dwordx4 {vr(8+16*b+4*q,4)}, v3, s[{sP}:{sP+3}], s{sT} offen offset:{1024*q}")
    a.e(f"buffer_load_dwordx4 v[88:91], v4, s[{sX}:{sX+3}], 0 offen")
    a.e(f"buffer_load_dwordx4 v[92:95], v4, s[{sX}:{sX+3}], 0 offen offset:16")
    a.e("s_waitcnt vmcnt(14)")
    for r in range(16): a.e(f"v_add_f32 v{8+r}, v{8+r}, v{24+r}")
    a.e("s_waitcnt vmcnt(6)")
    for r in range(16): a.e(f"v_add_f32 v{40+r}, v{40+r}, v{56+r}")
    for r in range(16): a.e(f"v_add_f32 v{8+r}, v{8+r}, v{40+r}")
    a.e("s_waitcnt vmcnt(0)")
    for q in range(8):
        a.e(f"v_lshlrev_b32 v{24+2*q}, 16, v{88+q}")
        a.e(f"v_and_b32 v{24+2*q+1}, 0xffff0000, v{88+q}")
    for r in range(16): a.e(f"v_fma_f32 v{8+r}, v{8+r}, v{72+r}, v{24+r}")
    for q in range(8): a.e(f"v_cvt_pk_bf16_f32 v{40+q}, v{8+2*q}, v{8+2*q+1}")
    a.e(f"buffer_store_dwordx4 v[40:43], v4, s[{sOut}:{sOut+3}], 0 offen")
    a.e(f"buffer_store_dwordx4 v[44:47], v4, s[{sOut}:{sOut+3}], 0 offen offset:16")
    a.label(f"L_{K}_done")
    a.e("s_endpgm")
    return a

def kd(name, vgpr, sgpr):
    return f""".amdhsa_kernel {name}
  .amdhsa_next_free_vgpr {vgpr}
  .amdhsa_next_free_sgpr {sgpr}
  .amdhsa_accum_offset {(vgpr+3)//4*4}
  .amdhsa_group_segment_fixed_size 0
  .amdhsa_kernarg_size 96
  .amdhsa_user_sgpr_count 2
  .amdhsa_user_sgpr_kernarg_segment_ptr 1
  .amdhsa_system_sgpr_workgroup_id_x 1
.end_amdhsa_kernel
"""

def main(out):
    ks = [("attn_kernel", kernel1(), (256, 512, 163840), 256, 96),
          ("gemm_kernel", kernel2(), (256, 512, 163840), 256, 96),
          ("fin_kernel", kernel3(), (320, 256, 0), 96, 64)]
    hdr = open("cdna_kernels/" + NAME + ".s.ref").read().split("; Override launch geometry")[0]
    s = hdr
    for n, a, (g, b, l), _, _ in ks:
        s += f"; @launch kernel={n} grid=({g},1,1) block=({b},1,1) lds={l}\n"
    s += '.amdgcn_target "amdgcn-amd-amdhsa--gfx950"\n.text\n'
    bad = 0
    for n, a, _, _, _ in ks:
        errs = check_hazards(a.L)
        for e in errs[:20]: print("HAZARD", n, e)
        bad += len(errs)
        s += f".globl {n}\n.p2align 8\n.type {n},@function\n{n}:\n" + a.text()
    s += '.section .rodata,"a"\n'
    for n, a, _, v, sg in ks:
        s += ".p2align 6\n" + kd(n, v, sg)
    open(out, "w").write(s)
    print("wrote", out, "hazards:", bad, "instrs:", [len(a.L) for _, a, _, _, _ in ks])

if __name__ == "__main__":
    main(sys.argv[1] if len(sys.argv) > 1 else "cdna_kernels/" + NAME + ".s")
```

```python
import re

def vr(lo, n=1):
    return f"v{lo}" if n == 1 else f"v[{lo}:{lo+n-1}]"
def sr(lo, n=1):
    return f"s{lo}" if n == 1 else f"s[{lo}:{lo+n-1}]"

_REG = re.compile(r"\b([vsa])(\d+)\b|\b([vsa])\[(\d+):(\d+)\]")
def regs_of(op):
    out = set()
    for m in _REG.finditer(op):
        if m.group(1):
            out.add((m.group(1), int(m.group(2))))
        else:
            for i in range(int(m.group(4)), int(m.group(5)) + 1):
                out.add((m.group(3), i))
    if "vcc" in op: out.add(("s", 106));
    if re.search(r"\bm0\b", op): out.add(("s", 124))
    if re.search(r"\bexec(_lo|_hi)?\b", op): out.add(("s", 126))
    return out

TRANS = ("v_exp_f32", "v_log_f32", "v_rcp_f32", "v_rsq_f32", "v_sqrt_f32", "v_sin_f32", "v_cos_f32")

class Ins:
    __slots__ = ("text", "mn", "ops", "rd", "wr", "kind", "srcc", "srcab", "label", "mods")
    def __init__(self, text):
        self.text = text
        t = text.split(";")[0].strip()
        self.label = None
        self.rd = set(); self.wr = set(); self.srcc = set(); self.srcab = set()
        self.kind = "other"; self.mn = ""; self.ops = []
        if not t:
            self.kind = "blank"; return
        if t.endswith(":"):
            self.label = t[:-1]; self.kind = "label"; return
        if t.startswith("."):
            self.kind = "dir"; return
        parts = t.split(None, 1)
        mn = parts[0]; self.mn = mn
        rest = parts[1] if len(parts) > 1 else ""
        ops = [o.strip() for o in rest.split(",")] if rest else []
        self.ops = ops
        R = lambda i: regs_of(ops[i]) if i < len(ops) else set()
        if mn.startswith("v_mfma"):
            self.kind = "mfma"
            self.wr = R(0); self.srcab = R(1) | R(2); self.srcc = R(3); self.rd = self.srcab | self.srcc
        elif mn.startswith("v_cmp"):
            self.kind = "valu"; self.wr = R(0); self.rd = R(1) | R(2)
        elif mn.startswith("v_permlane") :
            self.kind = "permlane"; self.wr = R(0) | R(1); self.rd = R(0) | R(1)
        elif mn.startswith("v_readfirstlane") or mn.startswith("v_readlane"):
            self.kind = "readlane"; self.wr = R(0); self.rd = set().union(*[R(i) for i in range(1, len(ops))])
        elif mn.startswith("v_"):
            self.kind = "valu"
            if mn.startswith("v_dot"): self.kind = "dot"
            if mn in TRANS: self.kind = "trans"
            self.wr = R(0)
            st = 1
            if mn.startswith(("v_add_co", "v_sub_co", "v_addc_co", "v_subb_co")):
                self.wr |= R(1); st = 2
            self.rd = set().union(*[R(i) for i in range(st, len(ops))]) if len(ops) > st else set()
            if mn.startswith(("v_fmac", "v_dot2c", "v_pk_fmac")): self.rd |= R(0)
            if mn.startswith("v_cndmask") and len(ops) == 3: self.rd.add(("s", 106))
        elif mn.startswith("ds_read") or mn.startswith("ds_bperm") or mn.startswith("ds_swizzle"):
            self.kind = "dsread"; self.wr = R(0); self.rd = R(1) | R(2)
        elif mn.startswith("ds_write") or mn.startswith("ds_add"):
            self.kind = "dswrite"; self.rd = set().union(*[R(i) for i in range(len(ops))])
        elif mn.startswith("buffer_load") or mn.startswith("global_load"):
            if " lds" in t or mn.startswith("global_load_lds"):
                self.kind = "dma"; self.rd = set().union(*[R(i) for i in range(len(ops))]) | {("s", 124)}
            else:
                self.kind = "vload"; self.wr = R(0); self.rd = set().union(*[R(i) for i in range(1, len(ops))])
        elif mn.startswith("buffer_store") or mn.startswith("global_store") or mn.startswith("buffer_atomic") or mn.startswith("global_atomic"):
            self.kind = "vstore"; self.rd = set().union(*[R(i) for i in range(len(ops))])
            if "atomic" in mn and " sc0" in t: self.wr = R(0)
        elif mn.startswith("s_load"):
            self.kind = "smem"; self.wr = R(0); self.rd = R(1)
        elif mn in ("s_waitcnt", "s_barrier", "s_nop", "s_endpgm", "s_setprio", "s_sleep", "s_branch", "s_call_b64", "s_setpc_b64") or mn.startswith("s_cbranch") or mn.startswith("buffer_wbl2") or mn.startswith("buffer_inv"):
            self.kind = "ctl"
        elif mn.startswith("s_cmp"):
            self.kind = "salu"; self.rd = R(0) | R(1)
        elif mn.startswith("s_"):
            self.kind = "salu"; self.wr = R(0); self.rd = set().union(*[R(i) for i in range(1, len(ops))]) if len(ops) > 1 else set()
            if mn.startswith(("s_addk", "s_mulk")): self.rd |= R(0)
        else:
            raise ValueError("unknown instr " + text)
    def states(self):
        if self.kind in ("blank", "label", "dir"): return 0
        if self.mn == "s_nop": return int(self.ops[0], 0) + 1
        return 1

def mfma_passes(mn):
    return 8 if "32x32" in mn else 4

class Asm:
    def __init__(self):
        self.L = []
        self.lgkm = []
        self.vm = []
    def e(self, text):
        m = re.match(r"s_cselect_b32 (s\d+), (\w+), (\w+)$", text)
        if m and all(re.match(r"^(0x[0-9a-f]+|\d+)$", g) and int(g, 0) > 64 for g in m.group(2, 3)):
            self.L.append(Ins(f"s_mov_b32 {m.group(1)}, {m.group(3)}"))
            self.L.append(Ins(f"s_cselect_b32 {m.group(1)}, {m.group(2)}, {m.group(1)}")); return self
        self.L.append(Ins(text)); return self
    def c(self, text):
        self.L.append(Ins("; " + text))
    def label(self, name):
        self.L.append(Ins(name + ":"))
    def ds(self, text, tag=None):
        self.e(text); self.lgkm.append(tag)
    def vmem(self, text, tag=None):
        self.e(text); self.vm.append(tag)
    def wait_lgkm(self, tag):
        idx = [i for i, t in enumerate(self.lgkm) if t == tag]
        if not idx: return
        n = len(self.lgkm) - 1 - idx[-1]
        assert n <= 15, n
        self.e(f"s_waitcnt lgkmcnt({n})")
        self.lgkm = self.lgkm[idx[-1] + 1:]
    def wait_vm(self, tag):
        idx = [i for i, t in enumerate(self.vm) if t == tag]
        if not idx: return
        n = len(self.vm) - 1 - idx[-1]
        assert n <= 63, n
        self.e(f"s_waitcnt vmcnt({n})")
        self.vm = self.vm[idx[-1] + 1:]
    def wait_all(self, vm=True, lgkm=True):
        s = []
        if vm: s.append("vmcnt(0)"); self.vm = []
        if lgkm: s.append("lgkmcnt(0)"); self.lgkm = []
        self.e("s_waitcnt " + " ".join(s))
    def text(self):
        out = []
        for i in self.L:
            if i.kind in ("label", "dir"): out.append(i.text)
            else: out.append("    " + i.text)
        return "\n".join(out) + "\n"

VALU_KINDS = ("valu", "dot", "trans", "permlane", "readlane")

def need(p, c):
    n = 0
    pv = p.kind in VALU_KINDS
    cv = c.kind in VALU_KINDS
    vw = {r for r in p.wr if r[0] in "va"}
    sw = {r for r in p.wr if r[0] == "s"}
    if p.kind == "mfma":
        P = mfma_passes(p.mn)
        tab = {4: (6, 8, 3), 8: (10, 12, 7)}[P]
        if c.kind == "mfma":
            if c.srcc & p.wr and not (c.srcc == p.wr and mfma_passes(c.mn) == P): n = max(n, tab[0])
            if c.srcab & p.wr: n = max(n, tab[1])
            if (c.wr & p.wr) and not (c.srcc == p.wr): n = max(n, tab[0])
        else:
            if (c.rd | c.wr) & p.wr: n = max(n, tab[1])
            if cv and (c.wr & p.srcc): n = max(n, tab[2])
    if pv:
        if c.kind == "mfma" and (c.rd & vw): n = max(n, 2 if p.kind != "dot" else 3)
        if c.kind == "permlane" and (c.rd & vw): n = max(n, 2)
        if c.kind == "readlane" and (c.rd & vw): n = max(n, 1)
        if p.kind == "trans" and cv and c.kind != "trans" and (c.rd & vw): n = max(n, 1)
        if p.kind == "trans" and c.kind in ("vstore", "dswrite", "mfma") and (c.rd & vw): n = max(n, 2)
        if p.kind == "dot":
            if c.kind == "dot" and c.mn == p.mn:
                srcab = set().union(*[regs_of(o) for o in c.ops[1:3]])
                if srcab & vw: n = max(n, 3)
            elif (c.rd | c.wr) & vw: n = max(n, 3)
        if sw:
            if c.kind in ("vload", "vstore", "dma") and (c.rd & sw): n = max(n, 5)
            if cv and (c.rd & sw): n = max(n, 4 if c.kind == "readlane" else 2)
            if c.kind == "salu" and (c.rd & sw): n = max(n, 2)
            if ("s", 126) in sw and c.kind == "mfma": n = max(n, 4)
        if "dpp" in c.text or "row_" in c.text:
            if c.rd & vw: n = max(n, 2)
    if p.kind == "salu" and ("s", 124) in p.wr and c.kind == "dma": n = max(n, 1)
    if p.kind == "vstore" and ("x4" in p.mn or "x3" in p.mn):
        data = regs_of(p.ops[0]) if p.mn.startswith("buffer") else regs_of(p.ops[1])
        if c.wr & data: n = max(n, 2)
    if p.kind == "dswrite" and ("b128" in p.mn or "b96" in p.mn or "b64" in p.mn):
        if c.wr & p.rd and cv: n = max(n, 1)
    return n

def check_hazards(L, window=24):
    labels = {i.label: k for k, i in enumerate(L) if i.label}
    errs = []
    n = len(L)
    def succ(k):
        i = L[k]
        if i.mn == "s_endpgm": return []
        if i.mn == "s_call_b64": return [labels[i.ops[1]]]
        if i.mn == "s_setpc_b64": return [q + 1 for q, z in enumerate(L) if z.mn == "s_call_b64"]
        if i.mn == "s_branch": return [labels[i.ops[0]]]
        if i.mn.startswith("s_cbranch"): return [k + 1, labels[i.ops[0]]]
        return [k + 1] if k + 1 < n else []
    for k, p in enumerate(L):
        if p.kind in ("blank", "label", "dir", "ctl", "dsread", "vload", "smem", "dma", "other"): continue
        stack = [(s, 0) for s in succ(k)]
        seen = {}
        while stack:
            j, d = stack.pop()
            if d > 20: continue
            if j in seen and seen[j] <= d: continue
            seen[j] = d
            c = L[j]
            if c.kind not in ("blank", "label", "dir"):
                r = need(p, c)
                if r > d:
                    errs.append((k, j, r, d, p.text, c.text))
            for s in succ(j): stack.append((s, d + c.states()))
    return errs
```

```python
import sys, struct, math
from asmlib import *

NAME = "recurrent_scan__sliding_block_cached__glu_gated_geglu__prompt"
def f32(x): return "0x%08x" % struct.unpack("<I", struct.pack("<f", x))[0]
LOG2E = 1.4426950408889634
SCALE_C = (192 ** -0.5) * LOG2E
GELU_C0 = -2.0 * math.sqrt(2.0 / math.pi) * LOG2E
GELU_C1 = GELU_C0 * 0.044715
MF = "v_mfma_f32_16x16x32_bf16"

A_MB = 240 * 1024
WS_A_BYTES = 128 * A_MB
WS_P = WS_A_BYTES
PB_BYTES = 128 * 40 * 1024
NPB = 4
STAMPS = False
OPT = {}
WS_ST = 200 * 1024 * 1024

class Stamper:
    def __init__(self, a, base=86, kid=0):
        self.a = a; self.n = 0; self.kid = kid
    def __call__(self, real=False, fine=False):
        if not STAMPS: return
        if fine and not OPT.get("fine"): return
        a = self.a
        if self.n == 0: a.e("v_mov_b32 v255, -1")
        a.e("s_memrealtime s[84:85]" if real else "s_memtime s[84:85]")
        a.e("s_waitcnt lgkmcnt(0)"); a.lgkm = []
        a.e(f"v_writelane_b32 v255, s84, {self.n}")
        self.n += 1; assert self.n <= 64
    def flush(self, swave, vtmp):
        if not STAMPS: return
        a = self.a
        a.e("s_waitcnt vmcnt(0)")
        self()
        a.e("s_memrealtime s[84:85]")
        a.e("s_waitcnt lgkmcnt(0)")
        a.e(f"v_writelane_b32 v255, s84, 63")
        a.e(f"s_lshl_b32 s84, s2, 3")
        a.e(f"s_add_u32 s84, s84, s{swave}")
        a.e(f"s_lshl_b32 s84, s84, 8")
        a.e(f"s_add_u32 s84, s84, {WS_ST + self.kid * 1048576}")
        a.e(f"s_add_u32 s28, s26, s84")
        a.e(f"s_addc_u32 s29, s27, 0")
        a.e(f"s_and_b32 s29, s29, 0xffff")
        a.e(f"s_mov_b32 s30, 256")
        a.e(f"s_mov_b32 s31, 0x20000")
        a.e(f"v_mbcnt_lo_u32_b32 v{vtmp}, -1, 0")
        a.e(f"v_mbcnt_hi_u32_b32 v{vtmp}, -1, v{vtmp}")
        a.e(f"v_lshlrev_b32 v{vtmp}, 2, v{vtmp}")
        a.e(f"buffer_store_dword v255, v{vtmp}, s[28:31], 0 offen")

def timed(a, acc, fn):
    if not OPT.get("acc"): fn(); return
    a.e("s_memtime s[82:83]"); a.e("s_waitcnt lgkmcnt(0)"); a.lgkm = []
    a.e(f"s_sub_u32 s{acc}, s{acc}, s82")
    fn()
    a.e("s_memtime s[82:83]"); a.e("s_waitcnt lgkmcnt(0)")
    a.e(f"s_add_u32 s{acc}, s{acc}, s82")

def load_ptrs(a):
    a.e("s_load_dwordx16 s[4:19], s[0:1], 0")
    a.e("s_load_dwordx8 s[20:27], s[0:1], 64")

def srd(a, d, base_lo, base_hi, off_sreg, nbytes_expr):
    if off_sreg is None:
        a.e(f"s_mov_b32 s{d}, s{base_lo}")
        a.e(f"s_and_b32 s{d+1}, s{base_hi}, 0xffff")
    else:
        a.e(f"s_add_u32 s{d}, s{base_lo}, {off_sreg}")
        a.e(f"s_addc_u32 s{d+1}, s{base_hi}, 0")
        a.e(f"s_and_b32 s{d+1}, s{d+1}, 0xffff")
    a.e(f"s_mov_b32 s{d+2}, {nbytes_expr}")
    a.e(f"s_mov_b32 s{d+3}, 0x20000")

def mfma_t(d, A, B, c=None):
    cc = vr(d, 4) if c is None else (c if isinstance(c, str) else vr(c, 4))
    return f"{MF} {vr(d,4)}, {vr(A,4)}, {vr(B,4)}, {cc}"

class Stream:
    def __init__(self, a, FR, ring=4, depth=3):
        self.a = a; self.m = []; self.pre = {}; self.post = {}
        self.FR = FR; self.R = ring; self.D = depth
        self.frags = []
    def n(self): return len(self.m)
    def add_pre(self, g, fn): self.pre.setdefault(g, []).append(fn)
    def add_post(self, g, fn): self.post.setdefault(g, []).append(fn)
    def mfma(self, text): self.m.append(text); return len(self.m) - 1
    def buf(self, f=None):
        f = len(self.frags) if f is None else f
        return self.FR + 4 * (f % self.R)
    def frag(self, reads, mfmas):
        f = len(self.frags); b = self.buf(f)
        g0 = self.n()
        self.frags.append((g0, [r(b) for r in reads], len(mfmas)))
        for m_ in mfmas: self.mfma(m_(b))
        return g0
    def spread(self, fns, g0, g1):
        n = len(fns)
        for k, fn in enumerate(fns):
            self.add_post(g0 + (k * (g1 - g0)) // max(n, 1), fn)
    def read_gap(self, f):
        return self.frags[f - self.D][0] if f >= self.D else -1
    def emit(self, tail_reads=None):
        a = self.a
        rd_at = {}
        nf = len(self.frags)
        for f, (g0, reads, nm) in enumerate(self.frags):
            if f < self.D:
                for t in reads: a.ds(t, ("f", f))
            else:
                hg, _, hn = self.frags[f - self.D]
                for k, t in enumerate(reads):
                    rd_at.setdefault(hg + min(k, hn - 1), []).append((t, f))
        first = {g0: f for f, (g0, _, _) in enumerate(self.frags)}
        for g, mt in enumerate(self.m):
            for fn in self.pre.get(g, []): fn()
            if g in first: a.wait_lgkm(("f", first[g]))
            a.e(mt)
            posts = self.post.get(g, [])
            nv = 0
            if OPT.get("vfirst", 1):
                while nv < len(posts) and getattr(posts[nv], "valu", False): posts[nv](); nv += 1
            for (t, f) in rd_at.get(g, []): a.ds(t, ("f", f))
            for fn in posts[nv:]: fn()

def E(a, text):
    fn = lambda: a.e(text)
    fn.valu = text.startswith("v_") and not text.startswith("v_add_u32")
    return fn

def kernel1():
    a = Asm(); K = "k1"; st = Stamper(a, kid=0)
    ACC = lambda jb, qs: (jb * 2 + qs) * 4
    XS = 144; FR = 176; SUMA = 192; GRAM = 200; CSA = 208
    O = ACC; QP = lambda qs, s: 96 + 24 * qs + 4 * s
    S = lambda kb, qs: 144 + (kb * 2 + qs) * 4
    P = lambda qs, u: 192 + (qs * 2 + u) * 4
    NEGM = lambda qs: 208 + 4 * qs
    LT = lambda qs: 216 + 4 * qs
    ONES = 224; LS = 228; TP = 230
    DUT = 230
    AWQ = 238; AGU = 242; DA = 243; DB = 246; XOFF = 247; L16 = 248; KA = 249; VB = 252
    VR = AWQ; KR = [AGU, DB]
    sX, sWQ, sGU, sK, sV, sWS = 28, 32, 36, 40, 44, 48
    sW, sH, sB = 52, 53, 54
    sTW, sOA, sOB, sOB2, sMB0, sTX = 55, 56, 57, 58, 59, 60
    sEX48 = 62
    sXO, sXO2, sT, sT2, sT3 = 64, 65, 66, 67, 68
    sW3 = 69; sHO = 70; sG1 = 71; sFL = 72; sTHR = 73; sKO = 74; sVO = 75
    sRET = 76
    GOFF = 24576; WSLOT = 24576 + 8 * 1664 - 128
    KSL = [114688, 0, 24576]; VSL = [139264, 49152, 73728]
    CSL = 3 * WSLOT
    assert CSL + 1152 <= KSL[0]
    wslot = lambda k: ((k + 2) % 3) * WSLOT
    ROT = OPT.get("rot", 1)

    a.e("s_cmp_ge_u32 s2, 256")
    a.e(f"s_cbranch_scc1 L_{K}_done")
    st(True); st()
    if OPT.get("acc"):
        for r in (99, 100, 101): a.e(f"s_mov_b32 s{r}, 0")
    load_ptrs(a)
    LANE = 0; t = 2
    a.e(f"v_lshrrev_b32 v1, 6, v0")
    a.e(f"v_and_b32 v{LANE}, 63, v0")
    a.e(f"v_readfirstlane_b32 s{sW}, v1")
    a.e(f"s_and_b32 s{sT}, s2, 7")
    a.e(f"s_lshr_b32 s{sT2}, s2, 3")
    a.e(f"s_lshl_b32 s{sH}, s{sT}, 2")
    a.e(f"s_and_b32 s{sT}, s{sT2}, 3")
    a.e(f"s_add_u32 s{sH}, s{sH}, s{sT}")
    a.e(f"s_lshr_b32 s{sB}, s{sT2}, 2")
    if OPT.get("rotw", 1):
        a.e(f"s_mul_i32 s{sT}, s{sT}, {OPT.get('roth', 3)}")
        sh = OPT.get("rsh", 0)
        if sh:
            a.e(f"s_lshr_b32 s{sTW}, s{sB}, {sh}")
            a.e(f"s_mul_i32 s{sTW}, s{sTW}, {10 << sh}")
            a.e(f"s_lshr_b32 s{sTW}, s{sTW}, 3")
            a.e(f"s_add_u32 s{sTW}, s{sT}, s{sTW}")
        else:
            a.e(f"s_add_u32 s{sTW}, s{sT}, s{sB}")
        a.e(f"s_sub_u32 s{sT}, s{sTW}, 10")
        a.e(f"s_cmp_ge_u32 s{sTW}, 10")
        a.e(f"s_cselect_b32 s{sTW}, s{sT}, s{sTW}")
    else:
        a.e(f"s_mov_b32 s{sTW}, 0")
    a.e(f"s_mov_b32 s{sTX}, s{sTW}")
    a.e(f"s_mul_i32 s{sW3}, s{sW}, 3072")
    a.e(f"v_lshlrev_b32 v{L16}, 4, v{LANE}")
    a.e(f"s_lshl_b32 s{sT}, s{sW}, 3")
    def voffs(i, which):
        a.e(f"v_add_u32 v{t}, {64*i}, v{LANE}")
        a.e(f"v_mul_u32_u24 v{t+1}, 2731, v{t}")
        a.e(f"v_lshrrev_b32 v{t+1}, 16, v{t+1}")
        a.e(f"v_mul_u32_u24 v{t+2}, 24, v{t+1}")
        a.e(f"v_sub_u32 v{t+2}, v{t}, v{t+2}")
        a.e(f"v_add_u32 v{t+1}, s{sT}, v{t+1}")
        if which == "W":
            a.e(f"v_and_b32 v{t+3}, 2, v{t+1}")
            a.e(f"v_bfe_u32 v{t+4}, v{t+1}, 3, 1")
            a.e(f"v_lshl_or_b32 v{t+3}, v{t+4}, 2, v{t+3}")
            a.e(f"v_xor_b32 v{t+3}, v{t+2}, v{t+3}")
            a.e(f"v_mul_u32_u24 v{t+6}, 12288, v{t+1}")
            a.e(f"v_lshl_add_u32 v{DA+i}, v{t+3}, 4, v{t+6}")
        else:
            a.e(f"v_mul_u32_u24 v{t+6}, 384, v{t+1}")
            a.e(f"v_bfe_u32 v{t+3}, v{t+1}, 1, 3")
            a.e(f"v_xor_b32 v{t+3}, v{t+2}, v{t+3}")
            a.e(f"v_lshl_add_u32 v{KA+i}, v{t+3}, 4, v{t+6}")
            a.e(f"v_and_b32 v{t+3}, 6, v{t+1}")
            a.e(f"v_xor_b32 v{t+3}, v{t+2}, v{t+3}")
            a.e(f"v_lshl_add_u32 v{VB+i}, v{t+3}, 4, v{t+6}")
    for i in range(3): voffs(i, "W")
    a.e(f"s_and_b32 s{sT3}, s{sW}, 3")
    a.e(f"s_lshl_b32 s{sT2}, s{sT3}, 4")
    a.e(f"v_mul_u32_u24 v{t+1}, 10923, v{LANE}")
    a.e(f"v_lshrrev_b32 v{t+1}, 16, v{t+1}")
    a.e(f"v_mul_u32_u24 v{t+2}, 6, v{t+1}")
    a.e(f"v_sub_u32 v{t+2}, v{LANE}, v{t+2}")
    a.e(f"v_add_u32 v{t+1}, s{sT2}, v{t+1}")
    a.e(f"v_mul_u32_u24 v{t+6}, 3072, v{t+1}")
    a.e(f"v_lshl_add_u32 v{DB}, v{t+2}, 4, v{t+6}")
    a.e(f"v_and_b32 v{t}, 15, v{LANE}")
    a.e(f"v_lshrrev_b32 v{t+1}, 4, v{LANE}")
    a.e(f"v_mul_u32_u24 v{XOFF}, 1280, v{t}")
    a.e(f"v_lshl_add_u32 v{XOFF}, v{t+1}, 4, v{XOFF}")
    a.e(f"s_mul_i32 s{sMB0}, s{sT3}, {2*1664}")
    a.e(f"s_cmp_ge_u32 s{sW}, 4")
    a.e(f"s_cselect_b32 s{sT2}, {GOFF+768}, {GOFF}")
    a.e(f"s_add_u32 s{sMB0}, s{sMB0}, s{sT2}")
    a.e(f"s_mov_b32 s{sEX48}, -1")
    a.e(f"s_mov_b32 s{sEX48+1}, 0xffff")
    a.e(f"s_mov_b32 s{sG1}, {f32(GELU_C1)}")
    a.e("s_waitcnt lgkmcnt(0)")
    st()
    a.e(f"s_mul_i32 s{sT2}, s{sH}, 384")
    srd(a, sWQ, 10, 11, f"s{sT2}", "0")
    a.e(f"s_sub_u32 s{sWQ+2}, {640*12288}, s{sT2}")
    a.e(f"s_cmp_ge_u32 s{sW}, 4")
    a.e(f"s_cselect_b32 s14, s18, s16")
    a.e(f"s_cselect_b32 s15, s19, s17")
    a.e(f"s_mul_i32 s{sT2}, s{sH}, 96")
    srd(a, sGU, 14, 15, f"s{sT2}", "0")
    a.e(f"s_sub_u32 s{sGU+2}, {640*3072}, s{sT2}")
    a.e(f"s_lshl_b32 s{sT3}, s{sB}, 3")
    a.e(f"s_add_u32 s{sT3}, s{sT3}, s{sW}")
    a.e(f"s_mul_i32 s{sT2}, s{sT3}, 40960")
    srd(a, sX, 4, 5, f"s{sT2}", "40960")

    def w_block(k):
        base = wslot(k); tag = ("W", k); fns = []
        def head():
            a.e(f"s_mul_i32 s{sOA}, s{sTW}, 786432")
            a.e(f"s_mul_i32 s{sOB}, s{sTW}, 196608")
        fns.append(head)
        for i in range(3):
            def f(i=i):
                a.e(f"s_add_u32 m0, s{sW3}, {base + 1024*i}")
                if i == 0: a.e(f"s_add_u32 s{sOB2}, s{sOB}, 24576")
                elif i == 1: a.e(f"s_add_u32 s{sTW}, s{sTW}, 1")
                else: a.e(f"s_cmp_eq_u32 s{sTW}, 10")
                a.vmem(f"buffer_load_dwordx4 v{DA+i}, s[{sWQ}:{sWQ+3}], s{sOA} offen lds", tag)
                if i == 2: a.e(f"s_cselect_b32 s{sTW}, 0, s{sTW}")
            fns.append(f)
        for i in range(2):
            def f(i=i):
                a.e(f"s_add_u32 m0, s{sMB0}, {base + 1664*i}")
                a.e(f"s_mov_b64 exec, s[{sEX48}:{sEX48+1}]")
                a.vmem(f"buffer_load_dwordx4 v{DB}, s[{sGU}:{sGU+3}], s{sOB2 if i else sOB} offen lds", tag)
                a.e("s_mov_b64 exec, -1")
            fns.append(f)
        return fns
    def kv_block(which, j):
        srdr, vo, base, so = (sK, KA, KSL[j % 3], sKO) if which == "K" else (sV, VB, VSL[j % 3], sVO)
        tag = (which, j); fns = []
        def head():
            if ROT:
                a.e(f"s_add_u32 s{so}, s{sB}, {j}")
                a.e(f"s_and_b32 s{so}, s{so}, 7")
                a.e(f"s_mul_i32 s{so}, s{so}, 24576")
            else:
                a.e(f"s_mov_b32 s{so}, {j*24576}")
        fns.append(head)
        for i in range(3):
            def f(i=i):
                a.e(f"s_add_u32 m0, s{sW3}, {base + 1024*i}")
                a.e("s_nop 0")
                a.vmem(f"buffer_load_dwordx4 v{vo+i}, s[{srdr}:{srdr+3}], s{so} offen lds", tag)
            fns.append(f)
        return fns
    def x_loads(k, ks):
        par = k % 2; fns = []
        if ks == 0:
            def head():
                a.e(f"s_lshl_b32 s{sXO}, s{sTX}, 7")
                a.e(f"s_add_u32 s{sTX}, s{sTX}, 1")
                a.e(f"s_add_u32 s{sXO2}, s{sXO}, 20480")
                a.e(f"s_cmp_eq_u32 s{sTX}, 10")
                a.e(f"s_cselect_b32 s{sTX}, 0, s{sTX}")
            fns.append(head)
        for qs in range(2):
            fns.append(lambda qs=qs: a.vmem(f"buffer_load_dwordx4 {vr(XS+16*par+8*ks+4*qs,4)}, v{XOFF}, s[{sX}:{sX+3}], s{sXO2 if qs else sXO} offen offset:{64*ks}", ("x", k, ks)))
        return fns

    for f in w_block(0) + x_loads(0, 0) + x_loads(0, 1): f()
    st()
    a.e(f"s_mul_i32 s{sT3}, s{sT3}, {2*A_MB}")
    srd(a, sWS, 26, 27, f"s{sT3}", f"{2*A_MB}")
    a.e(f"s_mul_i32 s{sT2}, s{sH}, 786432")
    a.e(f"s_add_u32 s{sT2}, s{sT2}, {1536*384}")
    srd(a, sK, 6, 7, f"s{sT2}", "196608")
    srd(a, sV, 8, 9, f"s{sT2}", "196608")
    for i in range(3): voffs(i, "KV")
    a.e(f"v_lshrrev_b32 v{t+1}, 4, v{LANE}")
    a.e(f"v_bfe_u32 v{t+3}, v{LANE}, 2, 2")
    a.e(f"v_and_b32 v{t+4}, 3, v{LANE}")
    a.e(f"v_lshlrev_b32 v{t+4}, 3, v{t+4}")
    a.e(f"v_bfe_u32 v{t+5}, v{LANE}, 3, 2")
    a.e(f"v_lshl_add_u32 v{t+7}, v{t+1}, 3, v{t+3}")
    a.e(f"v_mul_u32_u24 v{t+8}, 384, v{t+7}")
    a.e(f"v_add_u32 v{t+8}, v{t+8}, v{t+4}")
    for i in range(4):
        a.e(f"v_xor_b32 v{t+9}, {i}, v{t+5}")
        a.e(f"v_lshl_add_u32 v{AWQ+i}, v{t+9}, 5, v{t+8}")
    a.e(f"s_and_b32 s{sT}, s{sW}, 3")
    a.e(f"v_xor_b32 v{t+9}, s{sT}, v{t+5}")
    a.e(f"v_lshl_add_u32 v{t+9}, v{t+9}, 5, v{t+8}")
    a.e(f"v_add_u32 v{DUT+1}, 256, v{t+9}")
    a.e(f"s_lshr_b32 s{sT}, s{sW}, 2")
    a.e(f"s_lshl_b32 s{sT}, s{sT}, 7")
    a.e(f"v_add_u32 v{DUT}, s{sT}, v{t+9}")
    a.e(f"v_mul_u32_u24 v{t+8}, 1664, v{t+1}")
    a.e(f"v_mul_u32_u24 v{t+9}, 96, v{t+3}")
    a.e(f"v_add3_u32 v{t+8}, v{t+8}, v{t+9}, v{t+4}")
    a.e(f"v_add_u32 v{AGU}, {GOFF}, v{t+8}")
    a.e(f"s_min_u32 s{sT}, s{sW}, 5")
    a.e(f"s_lshl_b32 s{sT2}, s{sT}, 5")
    a.e(f"s_add_u32 s{sT3}, s{sT2}, {768-96}")
    a.e(f"s_cmp_ge_u32 s{sT}, 3")
    a.e(f"s_cselect_b32 s{sT2}, s{sT3}, s{sT2}")
    a.e(f"v_add_u32 v{DUT+2}, s{sT2}, v{AGU}")
    for i in range(4): a.e(f"v_mov_b32 v{ONES+i}, 0x3f803f80")
    for r in [AWQ, AWQ + 1, AWQ + 2, AWQ + 3, AGU, DUT, DUT + 1, DUT + 2]: a.e(f"v_add_u32 v{r}, {2*WSLOT}, v{r}")
    st()
    a.wait_vm(("x", 0, 0))
    a.e("s_barrier")
    st()

    sa = Stream(a, FR)
    tile_first_frag = []; tile_gap0 = []
    addr_regs = [AWQ, AWQ + 1, AWQ + 2, AWQ + 3, AGU, DUT, DUT + 1, DUT + 2]
    started = set()
    def C0(d):
        if d in started: return None
        started.add(d); return "0"
    T = TP + 3
    DUM = 255
    MEAN = lambda qs: SUMA + 4 * qs
    RSTD = lambda qs: SUMA + 4 * qs + 1
    RSC = lambda qs: SUMA + 4 * qs + 2
    NMS = lambda qs: SUMA + 4 * qs + 3
    NMC = lambda qs: GRAM + 4 * qs + 2
    for k in range(10):
        par = k % 2
        wb = 0 if wslot(k) < 2 * WSLOT else 2 * WSLOT
        so = wslot(k) - wb
        tile_first_frag.append(len(sa.frags)); tile_gap0.append(sa.n())
        def main(ks, jb):
            xb = XS + 16 * par + 8 * ks
            if jb < 12:
                rd = [lambda b, tt=tt: f"ds_read_b64_tr_b16 {vr(b+2*tt,2)}, v{AWQ+(jb&3)} offset:{so+(32*ks+4*tt)*384+(jb>>2)*128}" for tt in range(2)]
            else:
                jj = (jb - 12) % 3; up = (jb - 12) // 3
                rd = [lambda b, tt=tt: f"ds_read_b64_tr_b16 {vr(b+2*tt,2)}, v{AGU} offset:{so+ks*6656+tt*384+up*768+jj*32}" for tt in range(2)]
            sa.frag(rd, [lambda b, qs=qs: mfma_t(ACC(jb, qs), b, xb + 4 * qs, C0(ACC(jb, qs))) for qs in range(2)])
        def duty(ks, d):
            xb = XS + 16 * par + 8 * ks
            if d < 2: rd = [lambda b, tt=tt: f"ds_read_b64_tr_b16 {vr(b+2*tt,2)}, v{DUT+d} offset:{so+(32*ks+4*tt)*384}" for tt in range(2)]
            else: rd = [lambda b, tt=tt: f"ds_read_b64_tr_b16 {vr(b+2*tt,2)}, v{DUT+2} offset:{so+ks*6656+tt*384}" for tt in range(2)]
            second = [lambda b: mfma_t(SUMA, ONES, xb, C0(SUMA)), lambda b: mfma_t(SUMA + 4, ONES, xb + 4, C0(SUMA + 4)),
                      lambda b: mfma_t(GRAM, xb, xb, C0(GRAM))][d]
            sa.frag(rd, [lambda b: mfma_t(CSA + 4 * d, b, ONES, C0(CSA + 4 * d)), second])
            if d == 2: sa.mfma(mfma_t(GRAM + 4, xb + 4, xb + 4, C0(GRAM + 4)))
        if k < 9:
            for ks in range(2):
                sa.add_pre(sa.n(), lambda k=k, ks=ks: timed(a, 99, lambda: a.wait_vm(("x", k, ks))))
                for jb in range(18):
                    main(ks, jb)
                    if jb in (4, 10, 16): duty(ks, (jb - 4) // 6)
                if k + 2 < 10 and not OPT.get("nox"):
                    if OPT.get("xtog"):
                        if ks == 1: sa.spread(x_loads(k + 2, 0) + x_loads(k + 2, 1), sa.n(), sa.n() + 5)
                    else:
                        sa.spread(x_loads(k + 2, ks), sa.n(), sa.n() + 6)
        else:
            sa.add_pre(sa.n(), lambda: a.wait_vm(("x", 9, 1)))
            for ks in range(2):
                for d in range(3): duty(ks, d)
            g_d = sa.n()
            order9 = [12, 15, 13, 16, 14, 17] + list(range(12))
            g_blk = {}
            for jb in order9:
                main(0, jb); main(1, jb); g_blk[jb] = sa.n()
            def cs_addr():
                a.e(f"v_lshrrev_b32 v{T}, 4, v{L16}")
                a.e(f"v_and_b32 v{T+1}, 0x30, v{T}")
                a.e(f"v_add_u32 v{T+1}, {CSL}, v{T+1}")
            def cs_addr2():
                a.e(f"s_lshl_b32 s{sT}, s{sW}, 6")
                a.e(f"v_add_u32 v{DUT}, s{sT}, v{T+1}")
                a.e(f"s_and_b32 s{sT}, s{sT}, 0xc0")
                a.e(f"v_add_u32 v{DUT+1}, s{sT}, v{T+1}")
            def cs_addr3():
                a.e(f"s_min_u32 s{sT}, s{sW}, 5")
                a.e(f"s_lshl_b32 s{sT}, s{sT}, 6")
                a.e(f"v_add_u32 v{DUT+2}, s{sT}, v{T+1}")
                a.e(f"s_mov_b32 s{sT}, 0x00010001")
            def cs_write():
                a.e(f"s_mov_b32 exec_lo, s{sT}")
                a.e(f"s_mov_b32 exec_hi, s{sT}")
                a.ds(f"ds_write_b128 v{DUT}, {vr(CSA,4)}", "csw")
                a.ds(f"ds_write_b128 v{DUT+1}, {vr(CSA+4,4)} offset:512", "csw")
                a.ds(f"ds_write_b128 v{DUT+2}, {vr(CSA+8,4)} offset:768", "csw")
                a.e("s_mov_b64 exec, -1")
            fl = [cs_addr, cs_addr2, cs_addr3, cs_write,
                  E(a, f"v_and_b32 v{T+3}, 3, v{T}"), E(a, f"v_and_b32 v{T+4}, 15, v{T}"),
                  E(a, f"v_lshrrev_b32 v{T+2}, 2, v{T+4}"), E(a, f"v_lshl_add_u32 v{T+4}, v{T+2}, 4, v{T+4}"),
                  E(a, f"v_lshlrev_b32 v{T+4}, 2, v{T+4}")]
            for i in range(1, 4):
                def sel(i=i):
                    a.e(f"v_cmp_eq_u32 vcc, {i}, v{T+3}")
                    a.e("s_nop 1")
                    for qs in range(2): a.e(f"v_cndmask_b32 v{GRAM+4*qs}, v{GRAM+4*qs}, v{GRAM+4*qs+i}, vcc")
                fl.append(sel)
            for qs in range(2):
                fl.append(lambda qs=qs: a.ds(f"ds_bpermute_b32 v{GRAM+4*qs+1}, v{T+4}, v{GRAM+4*qs}", "bp"))
            sa.spread(fl, g_d, g_d + 14)
            def csbar():
                a.wait_vm(("K", 0))
                a.wait_lgkm("bp")
                a.e("s_barrier")
            sa.add_pre(g_d + 18, csbar)
            fl = []
            for qs in range(2):
                fl += [E(a, f"v_mul_f32 v{MEAN(qs)}, {f32(1.0/640)}, v{SUMA+4*qs}"),
                       E(a, f"v_mul_f32 v{T+2+qs}, {f32(1.0/640)}, v{GRAM+4*qs+1}"),
                       E(a, f"v_fma_f32 v{T+2+qs}, -v{MEAN(qs)}, v{MEAN(qs)}, v{T+2+qs}"),
                       E(a, f"v_max_f32 v{T+2+qs}, 0, v{T+2+qs}"),
                       E(a, f"v_add_f32 v{T+2+qs}, {f32(1e-5)}, v{T+2+qs}"),
                       E(a, f"v_rsq_f32 v{RSTD(qs)}, v{T+2+qs}")]
            for qs in range(2):
                fl += [E(a, f"v_mul_f32 v{RSC(qs)}, {f32(SCALE_C)}, v{RSTD(qs)}"),
                       E(a, f"v_mul_f32 v{NMS(qs)}, -v{MEAN(qs)}, v{RSTD(qs)}"),
                       E(a, f"v_mul_f32 v{NMC(qs)}, -v{MEAN(qs)}, v{RSC(qs)}")]
            fl.append(E(a, f"v_mov_b32 v{T+2}, {f32(GELU_C0)}"))
            fl.append(E(a, f"s_mul_i32 s{sHO}, s{sH}, 3"))
            sa.spread(fl, g_d + 18, g_d + 30)
            g_epi = g_d + 30
    tile_first_frag.append(len(sa.frags)); tile_gap0.append(sa.n())
    NG = sa.n()
    blocks_at = {k: [] for k in range(-1, 10)}
    for k in range(7): blocks_at[k] = w_block(k + 3)
    kb0 = kv_block("K", 0); vb0 = kv_block("V", 0)
    pieces = [kb0[:2], kb0[2:3], kb0[3:], vb0[:2], vb0[2:3], vb0[3:]]
    for k in range(6): blocks_at[k + OPT.get("kv0", 0)] += pieces[k]
    blocks_at[7] = kv_block("K", 1)
    blocks_at[8] = kv_block("V", 1) + kv_block("K", 2)
    sa.spread(w_block(1) + x_loads(1, 0) + x_loads(1, 1), 0, OPT.get("r1a", 20))
    sa.spread(w_block(2), OPT.get("r1b", 48), 76)
    if OPT.get("pf", 0):
        PX, PW, PG = T, T + 1, T + 2
        sPX, sPW, sPG = 78, 79, 80
        def pf_setup():
            L_ = T + 3; U_ = T + 4
            a.e(f"v_lshrrev_b32 v{L_}, 4, v{L16}")
            a.e(f"v_mov_b32 v{U_}, 0x1000000")
            a.e(f"v_mul_u32_u24 v{PX}, 1280, v{L_}")
            a.e(f"v_cmp_gt_u32 vcc, 8, v{L_}")
            a.e(f"v_lshlrev_b32 v{PW}, 7, v{L_}")
            a.e(f"v_bfe_u32 v{PG}, v{L_}, 1, 1")
            a.e(f"v_cndmask_b32 v{PX}, v{U_}, v{PX}, vcc")
            a.e(f"v_cmp_gt_u32 vcc, 3, v{L_}")
            a.e(f"v_mul_u32_u24 v{PG}, 3072, v{PG}")
            a.e(f"v_and_b32 v{DUM}, 1, v{L_}")
            a.e(f"v_cndmask_b32 v{PW}, v{U_}, v{PW}, vcc")
            a.e(f"v_cmp_gt_u32 vcc, 4, v{L_}")
            a.e(f"v_mul_u32_u24 v{DUM}, 92, v{DUM}")
            a.e(f"v_add_u32 v{PG}, v{PG}, v{DUM}")
            a.e(f"v_cndmask_b32 v{PG}, v{U_}, v{PG}, vcc")
            a.e(f"s_and_b32 s{sPX}, s{sH}, 3")
            a.e(f"s_mul_i32 s{sPX}, s{sPX}, {8*1280}")
            a.e(f"s_lshl_b32 s{sT}, s{sB}, 3")
            a.e(f"s_add_u32 s{sPW}, s{sT}, s{sW}")
            a.e(f"s_mul_i32 s{sPW}, s{sPW}, 12288")
            a.e(f"s_and_b32 s{sPG}, s{sW}, 3")
            a.e(f"s_lshl_b32 s{sPG}, s{sPG}, 1")
            a.e(f"s_add_u32 s{sPG}, s{sPG}, s{sT}")
            a.e(f"s_mul_i32 s{sPG}, s{sPG}, 3072")
        pf_setup()
        def pf_x(k):
            return lambda: a.vmem(f"buffer_load_dword v{DUM}, v{PX}, s[{sX}:{sX+3}], s{sPX} offen offset:{128*k}", "pf")
        def pf_w(k):
            def f1():
                a.e(f"s_add_u32 s{sT}, s{sPW}, {k*786432}")
                a.vmem(f"buffer_load_dword v{DUM}, v{PW}, s[{sWQ}:{sWQ+3}], s{sT} offen", "pf")
            def f2():
                a.e(f"s_add_u32 s{sT}, s{sPG}, {k*196608}")
                a.vmem(f"buffer_load_dword v{DUM}, v{PG}, s[{sGU}:{sGU+3}], s{sT} offen", "pf")
            return [f1, f2]
        dx = OPT.get("pfdx", 4); dw = OPT.get("pfdw", 5)
        sa.spread([pf_x(k) for k in range(2, dx)] + sum([pf_w(k) for k in range(4, dw)], []), 0, 4)
        for k in range(9):
            fl = ([pf_x(k + dx)] if k + dx < 10 else []) + (pf_w(k + dw) if k + dw < 10 else [])
            sa.spread(fl, tile_gap0[k] + 62, tile_gap0[k] + 76)
    for k in range(9):
        gb = sa.read_gap(tile_first_frag[k + 1])
        def bar(k=k):
            timed(a, 100, lambda: a.wait_vm(("W", k + 1)))
            a.e("s_waitcnt lgkmcnt(0)"); a.lgkm = []
            timed(a, 101, lambda: a.e("s_barrier"))
            st(fine=True)
            w0 = 0 if wslot(k) < 2 * WSLOT else 2 * WSLOT
            w1 = 0 if wslot(k + 1) < 2 * WSLOT else 2 * WSLOT
            if w0 != w1:
                for r in addr_regs: a.e(f"v_add_u32 v{r}, {(w1-w0) & 0xffffffff}, v{r}")
        sa.add_pre(gb, bar)
        if not OPT.get("nodma"): sa.spread(blocks_at[k], gb + 2, min(gb + (OPT.get('wsp', 78) if k < 8 else 18), NG))
    G0 = T + 2
    HT = CSA
    xfree = XS
    CT = [xfree + 4 * i for i in range(4)]
    order = order9
    epi = []
    def cs_read(n):
        return lambda: a.ds(f"ds_read_b128 {vr(CT[n%4],4)}, v{T+1} offset:{64*order[n]}", ("cs", n))
    for n in range(3): epi.append((cs_read(n), g_epi))
    for n, jb in enumerate(order):
        ge = g_blk[jb] + 3
        ct = CT[n % 4]
        for qs in range(2):
            ac = ACC(jb, qs)
            for r in range(4): epi.append((E(a, f"v_mul_f32 v{ac+r}, v{(RSC if jb < 12 else RSTD)(qs)}, v{ac+r}"), ge))
        if n + 3 < 18: epi.append((cs_read(n + 3), ge))
        epi.append((lambda n=n: a.wait_lgkm(("cs", n)), ge))
        for qs in range(2):
            ac = ACC(jb, qs)
            for r in range(4): epi.append((E(a, f"v_fma_f32 v{ac+r}, v{(NMC if jb < 12 else NMS)(qs)}, v{ct+r}, v{ac+r}"), ge))
        L_ = []
        if jb >= 15:
            jj = jb - 15
            g0 = ACC(12 + jj, 0); u0 = ACC(jb, 0)
            for r in range(8): L_.append(f"v_mul_f32 v{HT+r}, v{g0+r}, v{g0+r}")
            for r in range(8): L_.append(f"v_fma_f32 v{HT+r}, v{HT+r}, s{sG1}, v{G0}")
            for r in range(8): L_.append(f"v_mul_f32 v{HT+r}, v{HT+r}, v{g0+r}")
            for r in range(8): L_.append(f"v_exp_f32 v{HT+r}, v{HT+r}")
            for r in range(8): L_.append(f"v_mul_f32 v{g0+r}, v{g0+r}, v{u0+r}")
            for r in range(8): L_.append(f"v_add_f32 v{HT+r}, 1.0, v{HT+r}")
            for r in range(8): L_.append(f"v_rcp_f32 v{HT+r}, v{HT+r}")
            L_.append(f"s_add_u32 s{sT}, s{sHO}, {jj}")
            for r in range(8): L_.append(f"v_mul_f32 v{g0+r}, v{g0+r}, v{HT+r}")
            hp = 216 + 4 * jj if jj < 2 else u0
            for q in range(4): L_.append(f"v_cvt_pk_bf16_f32 v{hp+q}, v{g0+2*q}, v{g0+2*q+1}")
            for x_ in L_: epi.append((E(a, x_), ge))
            def hstore(hp=hp):
                a.e(f"s_and_b32 s{sT2}, s{sT}, 1")
                a.e(f"s_lshr_b32 s{sT}, s{sT}, 1")
                a.e(f"s_lshl_b32 s{sT}, s{sT}, 10")
                a.e(f"s_lshl_b32 s{sT2}, s{sT2}, 3")
                a.e(f"s_add_u32 s{sT}, s{sT}, s{sT2}")
                a.e(f"s_add_u32 s{sT}, s{sT}, {192*1024}")
                a.e(f"s_add_u32 s{sT2}, s{sT}, {A_MB}")
                a.vmem(f"buffer_store_dwordx2 {vr(hp,2)}, v{L16}, s[{sWS}:{sWS+3}], s{sT} offen", "hst")
                a.vmem(f"buffer_store_dwordx2 {vr(hp+2,2)}, v{L16}, s[{sWS}:{sWS+3}], s{sT2} offen", "hst")
            epi.append((hstore, ge))
        elif jb < 12:
            s_, e_ = divmod(jb, 2)
            for qs in range(2):
                ac = ACC(jb, qs)
                for q in range(2): L_.append(f"v_cvt_pk_bf16_f32 v{QP(qs,s_)+2*e_+q}, v{ac+2*q}, v{ac+2*q+1}")
            if e_ == 1:
                L_.append("s_nop 1")
                for qs in range(2):
                    for q in range(2): L_.append(f"v_permlane32_swap_b32 v{QP(qs,s_)+q}, v{QP(qs,s_)+2+q}")
                L_.append("s_nop 0")
                for qs in range(2):
                    for q in range(2): L_.append(f"v_permlane16_swap_b32 v{QP(qs,s_)+q}, v{QP(qs,s_)+2+q}")
            for x_ in L_: epi.append((E(a, x_), ge))
    per = OPT.get("epi_per", 2)
    g = g_epi; cnt = 0; n_in = 0
    for (fn, ge) in epi:
        if ge > g: g = ge; cnt = 0
        if g >= NG - 1: break
        sa.add_post(g, fn); n_in += 1; cnt += 1
        if cnt >= per: g += 1; cnt = 0
    sa.emit()
    st()
    a.e("s_nop 7")
    for (fn, ge) in epi[n_in:]: fn()
    T = TP
    kwin = lambda j: KSL[0] if j % 3 == 0 else 0
    vwin = lambda j: VSL[0] if j % 3 == 0 else VSL[1]
    a.e(f"v_lshrrev_b32 v{T}, 4, v{L16}")
    a.e(f"v_lshrrev_b32 v{T+1}, 4, v{T}")
    a.e(f"v_bfe_u32 v{T+3}, v{T}, 2, 2")
    a.e(f"v_and_b32 v{T+4}, 3, v{T}")
    a.e(f"v_lshlrev_b32 v{T+4}, 3, v{T+4}")
    a.e(f"v_bfe_u32 v{T+5}, v{T}, 3, 2")
    a.e(f"v_lshl_add_u32 v{T+3}, v{T+1}, 2, v{T+3}")
    a.e(f"v_mul_u32_u24 v{T+3}, 384, v{T+3}")
    a.e(f"v_add_u32 v{T+3}, v{T+3}, v{T+4}")
    a.e(f"v_add_u32 v{T+3}, {vwin(0)}, v{T+3}")
    for i in range(4):
        a.e(f"v_xor_b32 v{T+4}, {i}, v{T+5}")
        a.e(f"v_lshl_add_u32 v{VR+i}, v{T+4}, 5, v{T+3}")
    a.e(f"v_and_b32 v{T+3}, 15, v{T}")
    a.e(f"v_bfe_u32 v{T+5}, v{T}, 1, 3")
    a.e(f"v_mul_u32_u24 v{T+3}, 384, v{T+3}")
    a.e(f"v_add_u32 v{T+3}, {kwin(0)}, v{T+3}")
    for i in range(2):
        a.e(f"v_add_u32 v{T+4}, {4*i}, v{T+1}")
        a.e(f"v_xor_b32 v{T+4}, v{T+4}, v{T+5}")
        a.e(f"v_lshl_add_u32 v{KR[i]}, v{T+4}, 4, v{T+3}")
    a.e(f"v_mov_b32 v{LS}, 0")
    a.e(f"v_mov_b32 v{LS+1}, 0")
    a.e(f"s_mov_b32 s{sTHR}, {f32(2.0**60)}")
    st()

    def exp_ops(kb):
        u, e_ = divmod(kb, 2)
        o = []
        for r in range(4): o.append(f"v_exp_f32 v{TP+r}, v{S(kb,0)+r}")
        o.append(f"v_exp_f32 v{TP+4}, v{S(kb,1)}")
        o.append(f"v_cvt_pk_bf16_f32 v{P(0,u)+2*e_}, v{TP}, v{TP+1}")
        o.append(f"v_exp_f32 v{TP+5}, v{S(kb,1)+1}")
        o.append(f"v_cvt_pk_bf16_f32 v{P(0,u)+2*e_+1}, v{TP+2}, v{TP+3}")
        o.append(f"v_exp_f32 v{TP+6}, v{S(kb,1)+2}")
        o.append(f"v_exp_f32 v{TP+7}, v{S(kb,1)+3}")
        o.append(f"v_cvt_pk_bf16_f32 v{P(1,u)+2*e_}, v{TP+4}, v{TP+5}")
        o.append(f"v_cvt_pk_bf16_f32 v{P(1,u)+2*e_+1}, v{TP+6}, v{TP+7}")
        return o
    def rowmax_ops(u, D, X):
        o = []
        for qs in range(2):
            s0 = S(2 * u, qs); s1 = S(2 * u + 1, qs)
            o.append(f"v_max3_f32 v{D[qs]}, v{s0}, v{s0+1}, v{s0+2}")
            o.append(f"v_max3_f32 v{D[qs]}, v{D[qs]}, v{s0+3}, v{s1}")
            o.append(f"v_max3_f32 v{D[qs]}, v{D[qs]}, v{s1+1}, v{s1+2}")
            o.append(f"v_max_f32 v{D[qs]}, v{D[qs]}, v{s1+3}")
        for sw in ("v_permlane32_swap_b32", "v_permlane16_swap_b32"):
            for qs in range(2): o.append(f"v_mov_b32 v{X+qs}, v{D[qs]}")
            o.append("s_nop 1")
            for qs in range(2): o.append(f"{sw} v{D[qs]}, v{X+qs}")
            for qs in range(2): o.append(f"v_max_f32 v{D[qs]}, v{D[qs]}, v{X+qs}")
        return o
    stubs = []
    def slow_stub(u):
        a.label(f"L_{K}_slow{u}")
        a.e("s_nop 15")
        D = [TP, TP + 1]; AL = [TP + 2, TP + 3]; X = TP + 4
        for tx in rowmax_ops(u, D, X): a.e(tx)
        for qs in range(2):
            a.e(f"v_max_f32 v{D[qs]}, 0, v{D[qs]}")
            a.e(f"v_exp_f32 v{AL[qs]}, -v{D[qs]}")
        for qs in range(2):
            for r in range(4): a.e(f"v_sub_f32 v{NEGM(qs)+r}, v{NEGM(qs)+r}, v{D[qs]}")
            for kb in range(4):
                for r in range(4): a.e(f"v_sub_f32 v{S(kb,qs)+r}, v{S(kb,qs)+r}, v{D[qs]}")
            a.e(f"v_mul_f32 v{LS+qs}, v{LS+qs}, v{AL[qs]}")
            for jb in range(12):
                for r in range(4): a.e(f"v_mul_f32 v{O(jb,qs)+r}, v{O(jb,qs)+r}, v{AL[qs]}")
        for kb in (2 * u, 2 * u + 1):
            for tx in exp_ops(kb): a.e(tx)
        a.e("s_nop 1")
        for qs in range(2): a.e(mfma_t(LT(qs), ONES, P(qs, u), "0"))
        a.e("s_nop 7")
        a.e(f"s_setpc_b64 s[{sRET}:{sRET+1}]")
    def check(j, u):
        def fn():
            a.e(f"v_max_f32 v{LT(0)+1}, v{LT(0)}, v{LT(1)}")
            a.e(f"v_cmp_nge_f32 vcc, s{sTHR}, v{LT(0)+1}")
            a.e(f"s_cbranch_vccnz L_{K}_tr{j}_{u}")
            a.label(f"L_{K}_back{j}_{u}")
        def stub():
            a.label(f"L_{K}_tr{j}_{u}")
            a.e(f"s_call_b64 s[{sRET}:{sRET+1}], L_{K}_slow{u}")
            a.e(f"s_branch L_{K}_back{j}_{u}")
        stubs.append(stub)
        return fn

    sb = Stream(a, FR)
    seg = {}
    def QK(j, u, sum_of=None):
        ko = KSL[j % 3] - kwin(j); g0 = sb.n(); f0 = len(sb.frags)
        for kb in (2 * u, 2 * u + 1):
            for s_ in range(6):
                c0 = ("0" if j == 0 else "negm") if s_ == 0 else None
                sb.frag([lambda b: f"ds_read_b128 {vr(b,4)}, v{KR[s_&1]} offset:{ko+kb*6144+(s_>>1)*128}"],
                        [lambda b, qs=qs: mfma_t(S(kb, qs), b, QP(qs, s_), NEGM(qs) if c0 == "negm" else c0) for qs in range(2)])
                if sum_of is not None and kb == 2 * u + 1 and s_ == 2:
                    seg[("sum", sum_of)] = sb.n()
                    for qs in range(2): sb.mfma(mfma_t(LT(qs), ONES, P(qs, sum_of[1]), "0"))
        seg[("QK", j, u)] = (g0, sb.n(), f0)
    def PV(j, u, sum_of=None):
        vo = VSL[j % 3] - vwin(j); g0 = sb.n(); f0 = len(sb.frags)
        if not (j == 0 and u == 0) and not OPT.get("nocheck"): sb.add_pre(g0, check(j, u))
        sb.add_post(g0, E(a, f"v_add_f32 v{LS}, v{LS}, v{LT(0)}"))
        sb.add_post(g0 + 1, E(a, f"v_add_f32 v{LS+1}, v{LS+1}, v{LT(1)}"))
        for jb in range(12):
            sb.frag([lambda b, tt=tt: f"ds_read_b64_tr_b16 {vr(b+2*tt,2)}, v{VR+(jb&3)} offset:{vo+(32*u+16*tt)*384+(jb>>2)*128}" for tt in range(2)],
                    [lambda b, qs=qs: mfma_t(O(jb, qs), b, P(qs, u), "0" if (j == 0 and u == 0) else None) for qs in range(2)])
            if sum_of is not None and jb == 8:
                seg[("sum", sum_of)] = sb.n()
                for qs in range(2): sb.mfma(mfma_t(LT(qs), ONES, P(qs, sum_of[1]), "0"))
        seg[("PV", j, u)] = (g0, sb.n(), f0)
    QK(0, 0)
    for j in range(8):
        QK(j, 1, sum_of=(j, 0))
        if j < 7:
            PV(j, 0); QK(j + 1, 0, sum_of=(j, 1)); PV(j, 1)
        else:
            PV(j, 0, sum_of=(j, 1)); PV(j, 1)
    NG = sb.n()
    for j in range(8):
        for u in range(2):
            g0 = seg[("QK", j, u)][1] + 3; g1 = seg[("sum", (j, u))] - 2
            ops = exp_ops(2 * u) + exp_ops(2 * u + 1)
            if j == 0 and u == 0:
                D = [LT(0), LT(1)]
                pre = rowmax_ops(0, D, TP)
                for qs in range(2):
                    for kb in range(2):
                        for r in range(4): pre.append(f"v_sub_f32 v{S(kb,qs)+r}, v{S(kb,qs)+r}, v{D[qs]}")
                for qs in range(2):
                    for r in range(4): pre.append(f"v_sub_f32 v{NEGM(qs)+r}, 0, v{D[qs]}")
                ops = pre + ops
            if j == 0 and u == 1:
                pre = []
                for qs in range(2):
                    for kb in range(2, 4):
                        for r in range(4): pre.append(f"v_add_f32 v{S(kb,qs)+r}, v{S(kb,qs)+r}, v{NEGM(qs)}")
                ops = pre + ops
            if not OPT.get("noexp"): sb.spread([E(a, x) for x in ops], g0, g1)
    for j in range(8):
        gb = sb.read_gap(seg[("PV", j, 0)][2])
        def vbar(j=j):
            a.wait_vm(("V", j))
            if not OPT.get("nobar"): a.e("s_barrier")
        sb.add_pre(gb, vbar)
        if j > 0 and vwin(j) != vwin(j - 1):
            sb.spread([E(a, f"v_add_u32 v{VR+r}, {(vwin(j)-vwin(j-1)) & 0xffffffff}, v{VR+r}") for r in range(4)], gb - 9, gb - 1)
        if j + 2 < 8 and not OPT.get("nodma"): sb.spread(kv_block("V", j + 2), gb + 2, gb + 20)
        if j < 7:
            gb = sb.read_gap(seg[("QK", j + 1, 0)][2])
            def kbar(j=j):
                a.wait_vm(("K", j + 1))
                if not OPT.get("nobar"): a.e("s_barrier")
                st(fine=True)
            sb.add_pre(gb, kbar)
            if kwin(j) != kwin(j + 1):
                sb.spread([E(a, f"v_add_u32 v{r}, {(kwin(j+1)-kwin(j)) & 0xffffffff}, v{r}") for r in KR], gb - 6, gb - 1)
            if j + 3 < 8 and not OPT.get("nodma"): sb.spread(kv_block("K", j + 3), gb + 2, gb + 20)
    sb.emit()
    st()
    for qs in range(2): a.e(f"v_rcp_f32 v{TP+qs}, v{LS+qs}")
    a.e(f"s_mul_i32 s{sHO}, s{sH}, 6144")
    a.e("s_nop 3")
    for s_ in range(6):
        for qs in range(2):
            for e_ in range(2):
                ob = O(2 * s_ + e_, qs)
                for r in range(4): a.e(f"v_mul_f32 v{ob+r}, v{TP+qs}, v{ob+r}")
            for e_ in range(2):
                ob = O(2 * s_ + e_, qs)
                for q in range(2): a.e(f"v_cvt_pk_bf16_f32 v{QP(qs,s_)+2*e_+q}, v{ob+2*q}, v{ob+2*q+1}")
            a.e(f"s_add_u32 s{sT}, s{sHO}, {qs*A_MB + (s_//4)*4096}")
            a.e(f"buffer_store_dwordx4 {vr(QP(qs,s_),4)}, v{L16}, s[{sWS}:{sWS+3}], s{sT} offen offset:{1024*(s_%4)}{OPT.get('ost',' sc1')}")
    st()
    st.flush(sW, TP)
    a.label(f"L_{K}_done")
    a.e("s_endpgm")
    for sfn in stubs: sfn()
    slow_stub(0); slow_stub(1)
    return a

def kernel2():
    a = Asm(); K = "k2"; st = Stamper(a, kid=1)
    ACC = lambda nb, qs: (nb * 2 + qs) * 4
    NSET = 4
    OF = 80; FR = OF + 16 * NSET
    AW = 160; DW = 162; L16 = 167; TMP = 168
    sO, sWr, sP = 28, 32, 40
    sW, sS, sMT, sNT, sG, sMBk = 44, 45, 46, 47, 48, 49
    sOW, sM0, sOO, sT, sT2, sNTL, sTW, sTO, sOO2, sOB, sWB, sCW, sCO, sOOB = 50, 51, 52, 53, 54, 55, 56, 57, 58, 59, 60, 61, 62, 63
    SLOT = 40960
    ROT = OPT.get("rot2", 1)
    sWF = 36; sI4 = 64
    a.e("s_cmp_ge_u32 s2, 256")
    a.e(f"s_cbranch_scc1 L_{K}_done")
    st(True); st()
    if OPT.get("acc"):
        for r in (99, 100, 101): a.e(f"s_mov_b32 s{r}, 0")
    load_ptrs(a)
    a.e(f"v_lshrrev_b32 v{TMP}, 6, v0")
    a.e(f"v_and_b32 v{TMP+1}, 63, v0")
    a.e(f"v_readfirstlane_b32 s{sW}, v{TMP}")
    LANE = TMP + 1; t = TMP + 2
    a.e(f"s_and_b32 s{sS}, s2, 3")
    a.e(f"s_bfe_u32 s{sT}, s2, 0x10002")
    a.e(f"s_lshr_b32 s{sT2}, s2, 3")
    a.e(f"s_and_b32 s{sNT}, s{sT2}, 3")
    a.e(f"s_lshr_b32 s{sMT}, s{sT2}, 2")
    a.e(f"s_lshl_b32 s{sI4}, s{sT2}, 2")
    a.e(f"s_cmp_eq_u32 s{sS}, 3")
    a.e(f"s_cselect_b32 s{sNTL}, 12, 16")
    if ROT:
        if ROT == 2:
            a.e(f"s_lshl_b32 s{sTW}, s{sNT}, 1")
            a.e(f"s_add_u32 s{sTW}, s{sTW}, s{sMT}")
            a.e(f"s_and_b32 s{sTW}, s{sTW}, 7")
            a.e(f"s_mul_i32 s{sTW}, s{sTW}, s{sNTL}")
            a.e(f"s_lshr_b32 s{sTW}, s{sTW}, 4")
        else:
            a.e(f"s_and_b32 s{sTW}, s{sMT}, {8 - (1 << OPT.get('rsh2', 0))}")
            a.e(f"s_mul_i32 s{sTW}, s{sTW}, s{sNTL}")
            a.e(f"s_lshr_b32 s{sTW}, s{sTW}, 3")
    sHL = 67
    a.e(f"s_lshr_b32 s{sHL}, s{sNTL}, {1 if ROT == 2 else 0}")
    if not ROT:
        a.e(f"s_mov_b32 s{sTW}, 0")
    a.e(f"s_mov_b32 s{sTO}, s{sTW}")
    a.e(f"s_lshl_b32 s{sT}, s{sT}, 3")
    a.e(f"s_add_u32 s{sMT}, s{sMT}, s{sT}")
    a.e(f"s_lshr_b32 s{sG}, s{sW}, 2")
    a.e(f"s_and_b32 s{sT}, s{sW}, 3")
    a.e(f"s_lshl_b32 s{sMBk}, s{sMT}, 2")
    a.e(f"s_add_u32 s{sMBk}, s{sMBk}, s{sT}")
    a.e(f"v_lshlrev_b32 v{L16}, 4, v{LANE}")
    a.e(f"s_mul_i32 s{sT2}, s{sG}, 20480")
    a.e(f"s_mul_i32 s{sM0}, s{sT}, 5120")
    a.e(f"s_add_u32 s{sM0}, s{sM0}, s{sT2}")
    a.e(f"s_lshl_b32 s{sT}, s{sT}, 4")
    for i in range(5):
        a.e(f"v_add_u32 v{t}, {64*i}, v{LANE}")
        a.e(f"v_mul_u32_u24 v{t+1}, 3277, v{t}")
        a.e(f"v_lshrrev_b32 v{t+1}, 16, v{t+1}")
        a.e(f"v_mul_u32_u24 v{t+2}, 20, v{t+1}")
        a.e(f"v_sub_u32 v{t+2}, v{t}, v{t+2}")
        a.e(f"v_add_u32 v{t+1}, s{sT}, v{t+1}")
        a.e(f"v_bfe_u32 v{t+3}, v{t+1}, 2, 1")
        a.e(f"v_lshlrev_b32 v{t+3}, 1, v{t+3}")
        a.e(f"v_xor_b32 v{t+2}, v{t+2}, v{t+3}")
        a.e(f"v_mul_u32_u24 v{t+1}, 1280, v{t+1}")
        a.e(f"v_lshl_add_u32 v{DW+i}, v{t+2}, 4, v{t+1}")
    a.e(f"v_lshrrev_b32 v{t}, 2, v{LANE}")
    a.e(f"v_mul_u32_u24 v{t}, 320, v{t}")
    a.e(f"v_and_b32 v{t+1}, 3, v{LANE}")
    a.e(f"v_lshl_add_u32 v{t}, v{t+1}, 3, v{t}")
    a.e(f"v_add_u32 v{t}, s{sT2}, v{t}")
    a.e(f"v_bfe_u32 v{t+1}, v{LANE}, 4, 1")
    a.e(f"v_lshlrev_b32 v{t+1}, 5, v{t+1}")
    a.e(f"v_add_u32 v{AW}, v{t}, v{t+1}")
    a.e(f"v_sub_u32 v{AW+1}, v{t}, v{t+1}")
    a.e(f"s_lshl_b32 s{sT}, s{sS}, 5")
    a.e(f"s_mul_i32 s{sT2}, s{sG}, s{sNTL}")
    a.e(f"s_add_u32 s{sT}, s{sT}, s{sT2}")
    a.e(f"s_lshl_b32 s{sOB}, s{sT}, 11")
    a.e(f"s_cmp_eq_u32 s{sS}, 3")
    a.e(f"s_cselect_b32 s{sT}, s{sT2}, s{sT}")
    a.e(f"s_mul_i32 s{sWB}, s{sT}, {64*1280}")
    a.e(f"s_mov_b32 s{sCW}, 0")
    a.e(f"s_mov_b32 s{sCO}, 0")
    a.e(f"s_mov_b32 s{sOOB}, 0x1000000")
    a.e("s_waitcnt lgkmcnt(0)")
    a.e(f"s_cmp_eq_u32 s{sS}, 3")
    a.e(f"s_cselect_b32 s14, s20, s12")
    a.e(f"s_cselect_b32 s15, s21, s13")
    a.e(f"s_cselect_b32 s{sT}, {1536*1280}, {6144*1280}")
    a.e(f"s_mul_i32 s{sT2}, s{sNT}, 320")
    srd(a, sWr, 14, 15, f"s{sT2}", "0")
    a.e(f"s_sub_u32 s{sWr+2}, s{sT}, s{sT2}")
    srd(a, sWF, 14, 15, None, f"s{sT}")
    a.e(f"s_mul_i32 s{sT2}, s{sMBk}, {2*A_MB}")
    srd(a, sO, 26, 27, f"s{sT2}", f"{2*A_MB}")
    def w_block(k):
        base = (k % 4) * SLOT; tag = ("W", k); fns = []
        def head():
            if ROT == 2 and k in (6, 8):
                a.e(f"s_mul_i32 s{sOW}, s{sHL}, {64*1280}")
                a.e(f"s_add_u32 s{sOW}, s{sOW}, s{sWB}")
                a.e(f"s_cmp_eq_u32 s{sHL}, {k}")
                a.e(f"s_cselect_b32 s{sWB}, s{sOW}, s{sWB}")
            a.e(f"s_mul_i32 s{sOW}, s{sTW}, {64*1280}")
            a.e(f"s_add_u32 s{sOW}, s{sOW}, s{sWB}")
            if k >= 12:
                a.e(f"s_cmp_lt_u32 {k}, s{sNTL}")
                a.e(f"s_cselect_b32 s{sOW}, s{sOW}, s{sOOB}")
        fns.append(head)
        for i in range(5):
            def f(i=i):
                a.e(f"s_add_u32 m0, s{sM0}, {base + 1024*i}")
                if i == 0: a.e(f"s_add_u32 s{sTW}, s{sTW}, 1")
                elif i == 1: a.e(f"s_cmp_eq_u32 s{sTW}, s{sHL}")
                else: a.e("s_nop 0")
                a.vmem(f"buffer_load_dwordx4 v{DW+i}, s[{sWr}:{sWr+3}], s{sOW} offen lds", tag)
                if i == 1: a.e(f"s_cselect_b32 s{sTW}, 0, s{sTW}")
            fns.append(f)
        return fns
    def o_loads(k, ks):
        par = k % NSET; fns = []
        if ks == 0:
            def head():
                if ROT == 2 and k in (6, 8):
                    a.e(f"s_lshl_b32 s{sOO}, s{sHL}, 11")
                    a.e(f"s_add_u32 s{sOO}, s{sOO}, s{sOB}")
                    a.e(f"s_cmp_eq_u32 s{sHL}, {k}")
                    a.e(f"s_cselect_b32 s{sOB}, s{sOO}, s{sOB}")
                a.e(f"s_lshl_b32 s{sOO}, s{sTO}, 11")
                a.e(f"s_add_u32 s{sOO}, s{sOO}, s{sOB}")
                a.e(f"s_add_u32 s{sTO}, s{sTO}, 1")
                a.e(f"s_cmp_eq_u32 s{sTO}, s{sHL}")
                a.e(f"s_cselect_b32 s{sTO}, 0, s{sTO}")
                if k >= 12:
                    a.e(f"s_cmp_lt_u32 {k}, s{sNTL}")
                    a.e(f"s_cselect_b32 s{sOO}, s{sOO}, s{sOOB}")
                a.e(f"s_add_u32 s{sOO2}, s{sOO}, {A_MB}")
            fns.append(head)
        for qs in range(2):
            fns.append(lambda qs=qs: a.vmem(f"buffer_load_dwordx4 {vr(OF+16*par+8*ks+4*qs,4)}, v{L16}, s[{sO}:{sO+3}], s{sOO2 if qs else sOO} offen offset:{1024*ks}", ("o", k, ks)))
        return fns
    for f in w_block(0) + o_loads(0, 0) + o_loads(0, 1): f()
    st()
    a.e(f"s_mul_i32 s{sT2}, s{sMBk}, {2*40*1024}")
    a.e(f"s_mul_i32 s{sT}, s{sNT}, {10*1024}")
    a.e(f"s_add_u32 s{sT2}, s{sT2}, s{sT}")
    a.e(f"s_mul_i32 s{sT}, s{sS}, {PB_BYTES}")
    a.e(f"s_add_u32 s{sT2}, s{sT2}, s{sT}")
    a.e(f"s_add_u32 s{sT2}, s{sT2}, {WS_P}")
    srd(a, sP, 26, 27, f"s{sT2}", f"{50*1024}")
    st()
    a.wait_vm(("o", 0, 0))
    a.e("s_barrier")
    st()
    sm = Stream(a, FR)
    started = set()
    def C0(d):
        if d in started: return None
        started.add(d); return "0"
    tfirst = []; tg0 = []
    win = lambda k: 0 if (k % 4) < 2 else 2 * SLOT
    for k in range(16):
        par = k % NSET; so = (k % 4) * SLOT - win(k)
        tfirst.append(len(sm.frags)); tg0.append(sm.n())
        if k == 12:
            def early():
                a.e(f"s_cmp_eq_u32 s{sS}, 3")
                a.e(f"s_cbranch_scc1 L_{K}_red")
            sm.add_pre(sm.n(), early)
        for ks in range(2):
            sm.add_pre(sm.n(), lambda k=k, ks=ks: timed(a, 99, lambda: a.wait_vm(("o", k, ks))))
            for nb in range(10):
                sm.frag([lambda b, tt=tt, ks=ks, nb=nb, so=so: f"ds_read_b64_tr_b16 {vr(b+2*tt,2)}, v{AW+(nb&1)} offset:{so+(32*ks+16*tt)*320+32*nb}" for tt in range(2)],
                        [lambda b, nb=nb, qs=qs, par=par, ks=ks: mfma_t(ACC(nb, qs), b, OF + 16 * par + 8 * ks + 4 * qs, C0(ACC(nb, qs))) for qs in range(2)])
    tfirst.append(len(sm.frags)); tg0.append(sm.n())
    NG = sm.n()
    ramps = {0: [0, 0, 0], 1: [0, 1, 1, 2, 3, 3], 2: [0, 1, 2, 2, 3, 4, 4, 5], 3: [0, 0, 1, 2, 2], 4: [0, 1, 2, 3, 4, 5, 6, 7, 8, 9, 10, 11, 12, 13, 14],
             5: [0, 0, 1, 2, 3, 4, 5, 6, 7, 8, 9, 10, 11, 12, 13]}
    rp = ramps[OPT.get("ramp2", 1)]
    issue = {}
    for k in range(1, 16):
        tk = max(k - 3, rp[k - 1] if k - 1 < len(rp) else 0)
        wb_ = w_block(k) if not (OPT.get("nodma") and k > 3) else []
        ob_ = (o_loads(k, 0) + o_loads(k, 1)) if not (OPT.get("nox") and k > 3) else []
        mix = []
        for n in range(max(len(wb_), len(ob_))):
            if n < len(wb_): mix.append(wb_[n])
            if n < len(ob_): mix.append(ob_[n])
        issue.setdefault(tk, []).extend(mix)
    for tk, fl in issue.items():
        sm.spread(fl, tg0[tk] + (0 if tk == 0 else 1), tg0[tk] + 33)
    if OPT.get("pf2", 0):
        PW = TMP + 2; PO = TMP + 3; DUM = TMP + 8
        sPW, sPO = 65, 66
        a.e(f"v_mov_b32 v{DUM}, s{sOOB}")
        gsh = OPT.get("pfsh", 6)
        a.e(f"v_lshlrev_b32 v{PO}, {gsh}, v{LANE}")
        a.e(f"v_cmp_gt_u32 vcc, {640 >> gsh}, v{LANE}")
        a.e(f"s_and_b32 s{sPW}, s{sW}, 3")
        a.e(f"s_add_u32 s{sPW}, s{sPW}, s{sI4}")
        a.e(f"v_cndmask_b32 v{PW}, v{DUM}, v{PO}, vcc")
        a.e(f"v_cmp_gt_u32 vcc, {1024 >> gsh}, v{LANE}")
        a.e(f"s_mul_i32 s{sPW}, s{sPW}, 640")
        a.e(f"s_add_u32 s{sPW}, s{sPW}, s{sWB}")
        a.e(f"v_cndmask_b32 v{PO}, v{DUM}, v{PO}, vcc")
        a.e(f"s_lshr_b32 s{sPO}, s{sNT}, 1")
        a.e(f"s_mul_i32 s{sPO}, s{sPO}, {A_MB}")
        a.e(f"s_and_b32 s{sT2}, s{sNT}, 1")
        a.e(f"s_lshl_b32 s{sT2}, s{sT2}, 10")
        a.e(f"s_add_u32 s{sPO}, s{sPO}, s{sT2}")
        a.e(f"s_add_u32 s{sPO}, s{sPO}, s{sOB}")
        def pf(k):
            def f1():
                a.e(f"s_add_u32 s{sT}, s{sPW}, {k*64*1280}")
                if k >= 12:
                    a.e(f"s_cmp_lt_u32 {k}, s{sNTL}")
                    a.e(f"s_cselect_b32 s{sT}, s{sT}, s{sOOB}")
                a.vmem(f"buffer_load_dword v{DUM}, v{PW}, s[{sWF}:{sWF+3}], s{sT} offen", "pf")
            def f2():
                a.e(f"s_add_u32 s{sT}, s{sPO}, {k*2048}")
                if k >= 12:
                    a.e(f"s_cmp_lt_u32 {k}, s{sNTL}")
                    a.e(f"s_cselect_b32 s{sT}, s{sT}, s{sOOB}")
                a.vmem(f"buffer_load_dword v{DUM}, v{PO}, s[{sO}:{sO+3}], s{sT} offen", "pf")
            return [f1, f2]
        d2 = OPT.get("pfd2", 7)
        for k in range(4, d2):
            for fn in pf(k): fn()
        for k in range(16):
            if k + d2 < 16: sm.spread(pf(k + d2), tg0[k] + 28, tg0[k] + 33)
    for k in range(15):
        gb = sm.read_gap(tfirst[k + 1])
        def bar(k=k):
            timed(a, 100, lambda: a.wait_vm(("W", k + 1)))
            a.e("s_waitcnt lgkmcnt(0)"); a.lgkm = []
            timed(a, 101, lambda: a.e("s_barrier"))
            st(fine=True)
            if win(k) != win(k + 1):
                for r in range(2): a.e(f"v_add_u32 v{AW+r}, {(win(k+1)-win(k)) & 0xffffffff}, v{AW+r}")
        sm.add_pre(gb, bar)
    sm.emit()
    a.label(f"L_{K}_red")
    a.wait_all()
    st()
    a.e("s_barrier")
    a.e(f"s_mul_i32 s{sT}, s{sW}, 10240")
    a.e(f"v_add_u32 v{TMP}, s{sT}, v{L16}")
    a.e(f"s_xor_b32 s{sT}, s{sW}, 4")
    a.e(f"s_mul_i32 s{sT}, s{sT}, 10240")
    a.e(f"v_add_u32 v{TMP+1}, s{sT}, v{L16}")
    a.e(f"s_cmp_eq_u32 s{sG}, 0")
    a.e(f"s_cbranch_scc0 L_{K}_g1")
    def pstore(reg, qq):
        nb, qs = divmod(qq, 2)
        off = qs * 40 * 1024 + nb * 1024
        a.e(f"s_mov_b32 s{sT}, {off & ~4095}")
        a.e(f"buffer_store_dwordx4 {vr(reg,4)}, v{L16}, s[{sP}:{sP+3}], s{sT} offen offset:{off & 4095}")
    for g in range(2):
        keep = 40 * g; send = 40 * (1 - g)
        for q in range(10): a.e(f"ds_write_b128 v{TMP}, {vr(send+4*q,4)} offset:{1024*q}")
        a.e("s_waitcnt lgkmcnt(0)")
        a.e("s_barrier")
        for q in range(10): a.e(f"ds_read_b128 {vr(OF+4*q,4)}, v{TMP+1} offset:{1024*q}")
        a.e(f"s_cmp_eq_u32 s{sS}, 3")
        a.e(f"s_cbranch_scc1 L_{K}_silu{g}")
        for q in range(10):
            a.e(f"s_waitcnt lgkmcnt({9-q})")
            for r in range(4): a.e(f"v_add_f32 v{keep+4*q+r}, v{keep+4*q+r}, v{OF+4*q+r}")
            pstore(keep + 4 * q, 10 * g + q)
        a.e(f"s_branch L_{K}_fin")
        a.label(f"L_{K}_silu{g}")
        a.e("s_waitcnt lgkmcnt(0)")
        for r in range(40): a.e(f"v_add_f32 v{keep+r}, v{keep+r}, v{OF+r}")
        for r in range(40): a.e(f"v_mul_f32 v{OF+r}, {f32(-LOG2E)}, v{keep+r}")
        for r in range(40): a.e(f"v_exp_f32 v{OF+r}, v{OF+r}")
        for r in range(40): a.e(f"v_add_f32 v{OF+r}, 1.0, v{OF+r}")
        for r in range(40): a.e(f"v_rcp_f32 v{OF+r}, v{OF+r}")
        for r in range(40): a.e(f"v_mul_f32 v{keep+r}, v{keep+r}, v{OF+r}")
        for q in range(10): pstore(keep + 4 * q, 10 * g + q)
        if g == 0:
            a.e(f"s_branch L_{K}_fin")
            a.label(f"L_{K}_g1")
    a.label(f"L_{K}_fin")
    st()
    st.flush(sW, TMP)
    a.label(f"L_{K}_done")
    a.e("s_endpgm")
    return a

def kernel3():
    a = Asm(); K = "k3"
    sP, sX, sOut, sT, sT2, sW, sMB, sNB = 28, 32, 36, 40, 41, 42, 43, 44
    a.e("s_cmp_ge_u32 s2, 320")
    a.e(f"s_cbranch_scc1 L_{K}_done")
    load_ptrs(a)
    a.e("v_lshrrev_b32 v1, 6, v0")
    a.e("v_and_b32 v2, 63, v0")
    a.e(f"v_readfirstlane_b32 s{sW}, v1")
    a.e(f"s_lshl_b32 s{sT}, s2, 2")
    a.e("v_lshlrev_b32 v3, 4, v2")
    a.e(f"s_add_u32 s{sT}, s{sT}, s{sW}")
    a.e(f"s_mul_i32 s{sMB}, s{sT}, 6554")
    a.e(f"s_lshr_b32 s{sMB}, s{sMB}, 16")
    a.e(f"s_mul_i32 s{sT2}, s{sMB}, 10")
    a.e(f"s_sub_u32 s{sNB}, s{sT}, s{sT2}")
    a.e("v_and_b32 v4, 15, v2")
    a.e("v_mul_u32_u24 v4, 1280, v4")
    a.e("v_lshrrev_b32 v5, 4, v2")
    a.e("v_lshl_add_u32 v4, v5, 4, v4")
    a.e("s_waitcnt lgkmcnt(0)")
    a.e(f"s_lshl_b32 s{sT2}, s{sT}, 12")
    a.e(f"s_add_u32 s{sT2}, s{sT2}, {WS_P}")
    srd(a, sP, 26, 27, f"s{sT2}", "0")
    a.e(f"s_sub_u32 s{sP+2}, {WS_P + NPB*PB_BYTES}, s{sT2}")
    a.e(f"s_mul_i32 s{sT2}, s{sMB}, 20480")
    a.e(f"s_lshl_b32 s{sT}, s{sNB}, 7")
    a.e(f"s_add_u32 s{sT2}, s{sT2}, s{sT}")
    srd(a, sX, 4, 5, f"s{sT2}", "0")
    a.e(f"s_sub_u32 s{sX+2}, {2048*1280}, s{sT2}")
    srd(a, sOut, 22, 23, f"s{sT2}", "0")
    a.e(f"s_sub_u32 s{sOut+2}, {2048*1280}, s{sT2}")
    for b in range(4):
        a.e(f"s_mov_b32 s{sT}, {b*PB_BYTES}")
        for q in range(4):
            a.e(f"buffer_load_dwordx4 {vr(8+16*b+4*q,4)}, v3, s[{sP}:{sP+3}], s{sT} offen offset:{1024*q}")
    a.e(f"buffer_load_dwordx4 v[72:75], v4, s[{sX}:{sX+3}], 0 offen")
    a.e(f"buffer_load_dwordx4 v[76:79], v4, s[{sX}:{sX+3}], 0 offen offset:64")
    a.e("s_waitcnt vmcnt(10)")
    for r in range(16): a.e(f"v_add_f32 v{8+r}, v{8+r}, v{24+r}")
    a.e("s_waitcnt vmcnt(6)")
    for r in range(16): a.e(f"v_add_f32 v{8+r}, v{8+r}, v{40+r}")
    a.e("s_waitcnt vmcnt(2)")
    for r in range(16): a.e(f"v_mul_f32 v{8+r}, v{8+r}, v{56+r}")
    a.e("s_nop 1")
    for pr in range(2):
        for r in range(4): a.e(f"v_permlane32_swap_b32 v{8+8*pr+r}, v{12+8*pr+r}")
    a.e("s_nop 0")
    for pr in range(2):
        for r in range(4): a.e(f"v_permlane16_swap_b32 v{8+8*pr+r}, v{12+8*pr+r}")
    a.e("s_waitcnt vmcnt(0)")
    for q in range(8):
        a.e(f"v_lshlrev_b32 v{24+2*q}, 16, v{72+q}")
        a.e(f"v_and_b32 v{24+2*q+1}, 0xffff0000, v{72+q}")
    for r in range(16): a.e(f"v_add_f32 v{8+r}, v{8+r}, v{24+r}")
    for q in range(8): a.e(f"v_cvt_pk_bf16_f32 v{40+q}, v{8+2*q}, v{8+2*q+1}")
    a.e(f"buffer_store_dwordx4 v[40:43], v4, s[{sOut}:{sOut+3}], 0 offen")
    a.e(f"buffer_store_dwordx4 v[44:47], v4, s[{sOut}:{sOut+3}], 0 offen offset:64")
    a.label(f"L_{K}_done")
    a.e("s_endpgm")
    return a

def kd(name, vgpr, sgpr):
    return f""".amdhsa_kernel {name}
  .amdhsa_next_free_vgpr {vgpr}
  .amdhsa_next_free_sgpr {sgpr}
  .amdhsa_accum_offset {(vgpr+3)//4*4}
  .amdhsa_group_segment_fixed_size 0
  .amdhsa_kernarg_size 96
  .amdhsa_user_sgpr_count 2
  .amdhsa_user_sgpr_kernarg_segment_ptr 1
  .amdhsa_system_sgpr_workgroup_id_x 1
.end_amdhsa_kernel
"""

def main(out):
    ks = [("attn_kernel", kernel1(), (256, 512, 163840), 256, 102),
          ("gemm_kernel", kernel2(), (256, 512, 163840), 256, 102),
          ("fin_kernel", kernel3(), (320, 256, 0), 80, 64)]
    hdr = open("cdna_kernels/" + NAME + ".s.ref").read().split("; Override launch geometry")[0]
    s = hdr
    for n, a, (g, b, l), _, _ in ks:
        s += f"; @launch kernel={n} grid=({g},1,1) block=({b},1,1) lds={l}\n"
    s += '.amdgcn_target "amdgcn-amd-amdhsa--gfx950"\n.text\n'
    bad = 0
    for n, a, _, _, _ in ks:
        errs = check_hazards(a.L)
        for e in errs[:20]: print("HAZARD", n, e)
        bad += len(errs)
        s += f".globl {n}\n.p2align 8\n.type {n},@function\n{n}:\n" + a.text()
    s += '.section .rodata,"a"\n'
    for n, a, _, v, sg in ks:
        s += ".p2align 6\n" + kd(n, v, sg)
    open(out, "w").write(s)
    print("wrote", out, "hazards:", bad, "instrs:", [len(a.L) for _, a, _, _, _ in ks])

if __name__ == "__main__":
    args = sys.argv[1:]
    if "--stamps" in args:
        STAMPS = True; args.remove("--stamps")
    for x in list(args):
        if x.startswith("-O"):
            k_, v_ = x[2:].split("=")
            OPT[k_] = int(v_) if v_.lstrip("-").isdigit() else v_.replace("_", " ")
            args.remove(x)
    main(args[0] if args else "cdna_kernels/" + NAME + ".s")
```

```python
import sys, struct, math
from asmlib import *

NAME = "recurrent_scan__sliding_block_cached__glu_gated_geglu__prompt"
def f32(x): return "0x%08x" % struct.unpack("<I", struct.pack("<f", x))[0]
LOG2E = 1.4426950408889634
SCALE_C = (192 ** -0.5) * LOG2E
GELU_C0 = -2.0 * math.sqrt(2.0 / math.pi) * LOG2E
GELU_C1 = GELU_C0 * 0.044715
MF = "v_mfma_f32_16x16x32_bf16"

A_MB = 240 * 1024
WS_A_BYTES = 128 * A_MB
WS_P = WS_A_BYTES
PB_BYTES = 128 * 40 * 1024
NPB = 4
WS_F = WS_P + NPB * PB_BYTES
STAMPS = False
OPT = {}
WS_ST = 200 * 1024 * 1024

class Stamper:
    def __init__(self, a, base=86, kid=0):
        self.a = a; self.n = 0; self.kid = kid
    def __call__(self, real=False, fine=False):
        if not STAMPS: return
        if fine and not OPT.get("fine"): return
        a = self.a
        if self.n == 0: a.e("v_mov_b32 v255, -1")
        a.e("s_memrealtime s[84:85]" if real else "s_memtime s[84:85]")
        a.e("s_waitcnt lgkmcnt(0)"); a.lgkm = []
        a.e(f"v_writelane_b32 v255, s84, {self.n}")
        self.n += 1; assert self.n <= 64
    def flush(self, swave, vtmp):
        if not STAMPS: return
        a = self.a
        a.e("s_waitcnt vmcnt(0)")
        self()
        a.e("s_memrealtime s[84:85]")
        a.e("s_waitcnt lgkmcnt(0)")
        a.e(f"v_writelane_b32 v255, s84, 63")
        a.e(f"s_lshl_b32 s84, s2, 3")
        a.e(f"s_add_u32 s84, s84, s{swave}")
        a.e(f"s_lshl_b32 s84, s84, 8")
        a.e(f"s_add_u32 s84, s84, {WS_ST + self.kid * 1048576}")
        a.e(f"s_add_u32 s28, s26, s84")
        a.e(f"s_addc_u32 s29, s27, 0")
        a.e(f"s_and_b32 s29, s29, 0xffff")
        a.e(f"s_mov_b32 s30, 256")
        a.e(f"s_mov_b32 s31, 0x20000")
        a.e(f"v_mbcnt_lo_u32_b32 v{vtmp}, -1, 0")
        a.e(f"v_mbcnt_hi_u32_b32 v{vtmp}, -1, v{vtmp}")
        a.e(f"v_lshlrev_b32 v{vtmp}, 2, v{vtmp}")
        a.e(f"buffer_store_dword v255, v{vtmp}, s[28:31], 0 offen")

def timed(a, acc, fn):
    if not OPT.get("acc"): fn(); return
    a.e("s_memtime s[82:83]"); a.e("s_waitcnt lgkmcnt(0)"); a.lgkm = []
    a.e(f"s_sub_u32 s{acc}, s{acc}, s82")
    fn()
    a.e("s_memtime s[82:83]"); a.e("s_waitcnt lgkmcnt(0)")
    a.e(f"s_add_u32 s{acc}, s{acc}, s82")

def load_ptrs(a):
    a.e("s_load_dwordx16 s[4:19], s[0:1], 0")
    a.e("s_load_dwordx8 s[20:27], s[0:1], 64")

def srd(a, d, base_lo, base_hi, off_sreg, nbytes_expr):
    if off_sreg is None:
        a.e(f"s_mov_b32 s{d}, s{base_lo}")
        a.e(f"s_and_b32 s{d+1}, s{base_hi}, 0xffff")
    else:
        a.e(f"s_add_u32 s{d}, s{base_lo}, {off_sreg}")
        a.e(f"s_addc_u32 s{d+1}, s{base_hi}, 0")
        a.e(f"s_and_b32 s{d+1}, s{d+1}, 0xffff")
    a.e(f"s_mov_b32 s{d+2}, {nbytes_expr}")
    a.e(f"s_mov_b32 s{d+3}, 0x20000")

def mfma_t(d, A, B, c=None):
    cc = vr(d, 4) if c is None else (c if isinstance(c, str) else vr(c, 4))
    return f"{MF} {vr(d,4)}, {vr(A,4)}, {vr(B,4)}, {cc}"

class Stream:
    def __init__(self, a, FR, ring=4, depth=3):
        self.a = a; self.m = []; self.pre = {}; self.post = {}
        self.FR = FR; self.R = ring; self.D = depth
        self.frags = []
    def n(self): return len(self.m)
    def add_pre(self, g, fn): self.pre.setdefault(g, []).append(fn)
    def add_post(self, g, fn): self.post.setdefault(g, []).append(fn)
    def mfma(self, text): self.m.append(text); return len(self.m) - 1
    def buf(self, f=None):
        f = len(self.frags) if f is None else f
        return self.FR + 4 * (f % self.R)
    def frag(self, reads, mfmas):
        f = len(self.frags); b = self.buf(f)
        g0 = self.n()
        self.frags.append((g0, [r(b) for r in reads], len(mfmas)))
        for m_ in mfmas: self.mfma(m_(b))
        return g0
    def spread(self, fns, g0, g1):
        n = len(fns)
        for k, fn in enumerate(fns):
            self.add_post(g0 + (k * (g1 - g0)) // max(n, 1), fn)
    def read_gap(self, f):
        return self.frags[f - self.D][0] if f >= self.D else -1
    def emit(self, tail_reads=None):
        a = self.a
        rd_at = {}
        nf = len(self.frags)
        for f, (g0, reads, nm) in enumerate(self.frags):
            if f < self.D:
                for t in reads: a.ds(t, ("f", f))
            else:
                hg, _, hn = self.frags[f - self.D]
                for k, t in enumerate(reads):
                    rd_at.setdefault(hg + min(k, hn - 1), []).append((t, f))
        first = {g0: f for f, (g0, _, _) in enumerate(self.frags)}
        for g, mt in enumerate(self.m):
            for fn in self.pre.get(g, []): fn()
            if g in first: a.wait_lgkm(("f", first[g]))
            a.e(mt)
            posts = self.post.get(g, [])
            nv = 0
            if OPT.get("vfirst", 1):
                while nv < len(posts) and getattr(posts[nv], "valu", False): posts[nv](); nv += 1
            for (t, f) in rd_at.get(g, []): a.ds(t, ("f", f))
            for fn in posts[nv:]: fn()

def E(a, text):
    fn = lambda: a.e(text)
    fn.valu = text.startswith("v_") and not text.startswith("v_add_u32")
    return fn

def kernel1():
    a = Asm(); K = "k1"; st = Stamper(a, kid=0)
    ACC = lambda jb, qs: (jb * 2 + qs) * 4
    XS = 144; FR = 176; SUMA = 192; GRAM = 200; CSA = 208
    O = ACC; QP = lambda qs, s: 96 + 24 * qs + 4 * s
    S = lambda kb, qs: 144 + (kb * 2 + qs) * 4
    P = lambda qs, u: 192 + (qs * 2 + u) * 4
    NEGM = lambda qs: 208 + 4 * qs
    LT = lambda qs: 216 + 4 * qs
    ONES = 224; LS = 228; TP = 230
    DUT = 230
    AWQ = 238; AGU = 242; DA = 243; DB = 246; XOFF = 247; L16 = 248; KA = 249; VB = 252
    VR = AWQ; KR = [AGU, DB]
    sX, sWQ, sGU, sK, sV, sWS = 28, 32, 36, 40, 44, 48
    sW, sH, sB = 52, 53, 54
    sTW, sOA, sOB, sOB2, sMB0, sTX = 55, 56, 57, 58, 59, 60
    sEX48 = 62
    sXO, sXO2, sT, sT2, sT3 = 64, 65, 66, 67, 68
    sW3 = 69; sHO = 70; sG1 = 71; sFL = 72; sTHR = 73; sKO = 74; sVO = 75
    sRET = 76
    GOFF = 24576; WSLOT = 24576 + 8 * 1664 - 128
    KSL = [114688, 0, 24576]; VSL = [139264, 49152, 73728]
    CSL = 3 * WSLOT
    assert CSL + 1152 <= KSL[0]
    wslot = lambda k: ((k + 2) % 3) * WSLOT
    ROT = OPT.get("rot", 1)

    a.e("s_cmp_ge_u32 s2, 256")
    a.e(f"s_cbranch_scc1 L_{K}_done")
    st(True); st()
    if OPT.get("acc"):
        for r in (99, 100, 101): a.e(f"s_mov_b32 s{r}, 0")
    load_ptrs(a)
    LANE = 0; t = 2
    a.e(f"v_lshrrev_b32 v1, 6, v0")
    a.e(f"v_and_b32 v{LANE}, 63, v0")
    a.e(f"v_readfirstlane_b32 s{sW}, v1")
    a.e(f"s_and_b32 s{sT}, s2, 7")
    a.e(f"s_lshr_b32 s{sT2}, s2, 3")
    a.e(f"s_lshl_b32 s{sH}, s{sT}, 2")
    a.e(f"s_and_b32 s{sT}, s{sT2}, 3")
    a.e(f"s_add_u32 s{sH}, s{sH}, s{sT}")
    a.e(f"s_lshr_b32 s{sB}, s{sT2}, 2")
    HYB = OPT.get("hyb", 0)
    sR0 = 61
    if HYB:
        a.e(f"s_lshl_b32 s{sT}, s{sT}, 1")
        a.e(f"s_add_u32 s{sR0}, s{sT}, s{sB}")
        a.e(f"s_sub_u32 s{sT}, s{sR0}, 9")
        a.e(f"s_cmp_ge_u32 s{sR0}, 9")
        a.e(f"s_cselect_b32 s{sR0}, s{sT}, s{sR0}")
        a.e(f"s_add_u32 s{sR0}, s{sR0}, 1")
        a.e(f"s_mov_b32 s{sTW}, 0")
    else:
        a.e(f"s_mul_i32 s{sT}, s{sT}, 3")
        a.e(f"s_add_u32 s{sTW}, s{sT}, s{sB}")
        a.e(f"s_sub_u32 s{sT}, s{sTW}, 10")
        a.e(f"s_cmp_ge_u32 s{sTW}, 10")
        a.e(f"s_cselect_b32 s{sTW}, s{sT}, s{sTW}")
    a.e(f"s_mov_b32 s{sTX}, s{sTW}")
    a.e(f"s_mul_i32 s{sW3}, s{sW}, 3072")
    a.e(f"v_lshlrev_b32 v{L16}, 4, v{LANE}")
    a.e(f"s_lshl_b32 s{sT}, s{sW}, 3")
    def voffs(i, which):
        a.e(f"v_add_u32 v{t}, {64*i}, v{LANE}")
        a.e(f"v_mul_u32_u24 v{t+1}, 2731, v{t}")
        a.e(f"v_lshrrev_b32 v{t+1}, 16, v{t+1}")
        a.e(f"v_mul_u32_u24 v{t+2}, 24, v{t+1}")
        a.e(f"v_sub_u32 v{t+2}, v{t}, v{t+2}")
        a.e(f"v_add_u32 v{t+1}, s{sT}, v{t+1}")
        if which == "W":
            a.e(f"v_and_b32 v{t+3}, 2, v{t+1}")
            a.e(f"v_bfe_u32 v{t+4}, v{t+1}, 3, 1")
            a.e(f"v_lshl_or_b32 v{t+3}, v{t+4}, 2, v{t+3}")
            a.e(f"v_xor_b32 v{t+3}, v{t+2}, v{t+3}")
            a.e(f"v_mul_u32_u24 v{t+6}, 12288, v{t+1}")
            a.e(f"v_lshl_add_u32 v{DA+i}, v{t+3}, 4, v{t+6}")
        else:
            a.e(f"v_mul_u32_u24 v{t+6}, 384, v{t+1}")
            a.e(f"v_bfe_u32 v{t+3}, v{t+1}, 1, 3")
            a.e(f"v_xor_b32 v{t+3}, v{t+2}, v{t+3}")
            a.e(f"v_lshl_add_u32 v{KA+i}, v{t+3}, 4, v{t+6}")
            a.e(f"v_and_b32 v{t+3}, 6, v{t+1}")
            a.e(f"v_xor_b32 v{t+3}, v{t+2}, v{t+3}")
            a.e(f"v_lshl_add_u32 v{VB+i}, v{t+3}, 4, v{t+6}")
    for i in range(3): voffs(i, "W")
    a.e(f"s_and_b32 s{sT3}, s{sW}, 3")
    a.e(f"s_lshl_b32 s{sT2}, s{sT3}, 4")
    a.e(f"v_mul_u32_u24 v{t+1}, 10923, v{LANE}")
    a.e(f"v_lshrrev_b32 v{t+1}, 16, v{t+1}")
    a.e(f"v_mul_u32_u24 v{t+2}, 6, v{t+1}")
    a.e(f"v_sub_u32 v{t+2}, v{LANE}, v{t+2}")
    a.e(f"v_add_u32 v{t+1}, s{sT2}, v{t+1}")
    a.e(f"v_mul_u32_u24 v{t+6}, 3072, v{t+1}")
    a.e(f"v_lshl_add_u32 v{DB}, v{t+2}, 4, v{t+6}")
    a.e(f"v_and_b32 v{t}, 15, v{LANE}")
    a.e(f"v_lshrrev_b32 v{t+1}, 4, v{LANE}")
    a.e(f"v_mul_u32_u24 v{XOFF}, 1280, v{t}")
    a.e(f"v_lshl_add_u32 v{XOFF}, v{t+1}, 4, v{XOFF}")
    a.e(f"s_mul_i32 s{sMB0}, s{sT3}, {2*1664}")
    a.e(f"s_cmp_ge_u32 s{sW}, 4")
    a.e(f"s_cselect_b32 s{sT2}, {GOFF+768}, {GOFF}")
    a.e(f"s_add_u32 s{sMB0}, s{sMB0}, s{sT2}")
    a.e(f"s_mov_b32 s{sEX48}, -1")
    a.e(f"s_mov_b32 s{sEX48+1}, 0xffff")
    a.e(f"s_mov_b32 s{sG1}, {f32(GELU_C1)}")
    a.e("s_waitcnt lgkmcnt(0)")
    st()
    a.e(f"s_mul_i32 s{sT2}, s{sH}, 384")
    srd(a, sWQ, 10, 11, f"s{sT2}", "0")
    a.e(f"s_sub_u32 s{sWQ+2}, {640*12288}, s{sT2}")
    a.e(f"s_cmp_ge_u32 s{sW}, 4")
    a.e(f"s_cselect_b32 s14, s18, s16")
    a.e(f"s_cselect_b32 s15, s19, s17")
    a.e(f"s_mul_i32 s{sT2}, s{sH}, 96")
    srd(a, sGU, 14, 15, f"s{sT2}", "0")
    a.e(f"s_sub_u32 s{sGU+2}, {640*3072}, s{sT2}")
    a.e(f"s_lshl_b32 s{sT3}, s{sB}, 3")
    a.e(f"s_add_u32 s{sT3}, s{sT3}, s{sW}")
    a.e(f"s_mul_i32 s{sT2}, s{sT3}, 40960")
    srd(a, sX, 4, 5, f"s{sT2}", "40960")

    def w_block(k):
        base = wslot(k); tag = ("W", k); fns = []
        def head():
            a.e(f"s_mul_i32 s{sOA}, s{sTW}, 786432")
            a.e(f"s_mul_i32 s{sOB}, s{sTW}, 196608")
        fns.append(head)
        for i in range(3):
            def f(i=i):
                a.e(f"s_add_u32 m0, s{sW3}, {base + 1024*i}")
                if i == 0: a.e(f"s_add_u32 s{sOB2}, s{sOB}, 24576")
                elif i == 1: a.e(f"s_add_u32 s{sTW}, s{sTW}, 1")
                else: a.e(f"s_cmp_eq_u32 s{sTW}, 10")
                a.vmem(f"buffer_load_dwordx4 v{DA+i}, s[{sWQ}:{sWQ+3}], s{sOA} offen lds", tag)
                if i == 2:
                    a.e(f"s_cselect_b32 s{sTW}, {1 if HYB else 0}, s{sTW}")
                    if HYB and k == 0: a.e(f"s_mov_b32 s{sTW}, s{sR0}")
            fns.append(f)
        for i in range(2):
            def f(i=i):
                a.e(f"s_add_u32 m0, s{sMB0}, {base + 1664*i}")
                a.e(f"s_mov_b64 exec, s[{sEX48}:{sEX48+1}]")
                a.vmem(f"buffer_load_dwordx4 v{DB}, s[{sGU}:{sGU+3}], s{sOB2 if i else sOB} offen lds", tag)
                a.e("s_mov_b64 exec, -1")
            fns.append(f)
        return fns
    def kv_block(which, j):
        srdr, vo, base, so = (sK, KA, KSL[j % 3], sKO) if which == "K" else (sV, VB, VSL[j % 3], sVO)
        tag = (which, j); fns = []
        def head():
            if ROT:
                a.e(f"s_add_u32 s{so}, s{sB}, {j}")
                a.e(f"s_and_b32 s{so}, s{so}, 7")
                a.e(f"s_mul_i32 s{so}, s{so}, 24576")
            else:
                a.e(f"s_mov_b32 s{so}, {j*24576}")
        fns.append(head)
        for i in range(3):
            def f(i=i):
                a.e(f"s_add_u32 m0, s{sW3}, {base + 1024*i}")
                a.e("s_nop 0")
                a.vmem(f"buffer_load_dwordx4 v{vo+i}, s[{srdr}:{srdr+3}], s{so} offen lds", tag)
            fns.append(f)
        return fns
    def x_loads(k, ks):
        par = k % 2; fns = []
        if ks == 0:
            def head():
                a.e(f"s_lshl_b32 s{sXO}, s{sTX}, 7")
                a.e(f"s_add_u32 s{sTX}, s{sTX}, 1")
                a.e(f"s_add_u32 s{sXO2}, s{sXO}, 20480")
                a.e(f"s_cmp_eq_u32 s{sTX}, 10")
                a.e(f"s_cselect_b32 s{sTX}, {1 if HYB else 0}, s{sTX}")
                if HYB and k == 0: a.e(f"s_mov_b32 s{sTX}, s{sR0}")
            fns.append(head)
        for qs in range(2):
            fns.append(lambda qs=qs: a.vmem(f"buffer_load_dwordx4 {vr(XS+16*par+8*ks+4*qs,4)}, v{XOFF}, s[{sX}:{sX+3}], s{sXO2 if qs else sXO} offen offset:{64*ks}", ("x", k, ks)))
        return fns

    for f in w_block(0) + x_loads(0, 0) + x_loads(0, 1): f()
    st()
    a.e(f"s_mul_i32 s{sT3}, s{sT3}, {2*A_MB}")
    srd(a, sWS, 26, 27, f"s{sT3}", f"{2*A_MB}")
    a.e(f"s_mul_i32 s{sT2}, s{sH}, 786432")
    a.e(f"s_add_u32 s{sT2}, s{sT2}, {1536*384}")
    srd(a, sK, 6, 7, f"s{sT2}", "196608")
    srd(a, sV, 8, 9, f"s{sT2}", "196608")
    for i in range(3): voffs(i, "KV")
    sFG = 88
    sDB_ = 92
    a.e(f"s_mov_b32 s{sT2}, {WS_F}")
    srd(a, sFG, 26, 27, f"s{sT2}", f"{64*128}")
    srd(a, sDB_, 24, 25, None, "256")
    a.e(f"s_lshl_b32 s{sT2}, s{sB}, 3")
    a.e(f"s_add_u32 s{sT2}, s{sT2}, s{sH}")
    a.e(f"s_lshl_b32 s{sT2}, s{sT2}, 7")
    a.e(f"s_cmp_lt_u32 s{sH}, 8")
    a.e(f"s_cselect_b32 s{sT2}, s{sT2}, 0x100000")
    a.e(f"v_mov_b32 v{t}, 0")
    a.e(f"s_mov_b64 exec, 1")
    a.vmem(f"buffer_store_dword v{t}, v{t}, s[{sFG}:{sFG+3}], s{sT2} offen sc1", "fz")
    a.e(f"s_mov_b64 exec, -1")
    a.e(f"v_lshrrev_b32 v{t+1}, 4, v{LANE}")
    a.e(f"v_bfe_u32 v{t+3}, v{LANE}, 2, 2")
    a.e(f"v_and_b32 v{t+4}, 3, v{LANE}")
    a.e(f"v_lshlrev_b32 v{t+4}, 3, v{t+4}")
    a.e(f"v_bfe_u32 v{t+5}, v{LANE}, 3, 2")
    a.e(f"v_lshl_add_u32 v{t+7}, v{t+1}, 3, v{t+3}")
    a.e(f"v_mul_u32_u24 v{t+8}, 384, v{t+7}")
    a.e(f"v_add_u32 v{t+8}, v{t+8}, v{t+4}")
    for i in range(4):
        a.e(f"v_xor_b32 v{t+9}, {i}, v{t+5}")
        a.e(f"v_lshl_add_u32 v{AWQ+i}, v{t+9}, 5, v{t+8}")
    a.e(f"s_and_b32 s{sT}, s{sW}, 3")
    a.e(f"v_xor_b32 v{t+9}, s{sT}, v{t+5}")
    a.e(f"v_lshl_add_u32 v{t+9}, v{t+9}, 5, v{t+8}")
    a.e(f"v_add_u32 v{DUT+1}, 256, v{t+9}")
    a.e(f"s_lshr_b32 s{sT}, s{sW}, 2")
    a.e(f"s_lshl_b32 s{sT}, s{sT}, 7")
    a.e(f"v_add_u32 v{DUT}, s{sT}, v{t+9}")
    a.e(f"v_mul_u32_u24 v{t+8}, 1664, v{t+1}")
    a.e(f"v_mul_u32_u24 v{t+9}, 96, v{t+3}")
    a.e(f"v_add3_u32 v{t+8}, v{t+8}, v{t+9}, v{t+4}")
    a.e(f"v_add_u32 v{AGU}, {GOFF}, v{t+8}")
    a.e(f"s_min_u32 s{sT}, s{sW}, 5")
    a.e(f"s_lshl_b32 s{sT2}, s{sT}, 5")
    a.e(f"s_add_u32 s{sT3}, s{sT2}, {768-96}")
    a.e(f"s_cmp_ge_u32 s{sT}, 3")
    a.e(f"s_cselect_b32 s{sT2}, s{sT3}, s{sT2}")
    a.e(f"v_add_u32 v{DUT+2}, s{sT2}, v{AGU}")
    for i in range(4): a.e(f"v_mov_b32 v{ONES+i}, 0x3f803f80")
    for r in [AWQ, AWQ + 1, AWQ + 2, AWQ + 3, AGU, DUT, DUT + 1, DUT + 2]: a.e(f"v_add_u32 v{r}, {2*WSLOT}, v{r}")
    if HYB:
        a.e("s_barrier")
        for f in w_block(1) + x_loads(1, 0) + x_loads(1, 1): f()
    st()
    a.wait_vm(("x", 0, 0))
    a.e("s_barrier")
    st()

    sa = Stream(a, FR)
    tile_first_frag = []; tile_gap0 = []
    addr_regs = [AWQ, AWQ + 1, AWQ + 2, AWQ + 3, AGU, DUT, DUT + 1, DUT + 2]
    started = set()
    def C0(d):
        if d in started: return None
        started.add(d); return "0"
    T = TP + 3
    DUM = 255
    MEAN = lambda qs: SUMA + 4 * qs
    RSTD = lambda qs: SUMA + 4 * qs + 1
    RSC = lambda qs: SUMA + 4 * qs + 2
    NMS = lambda qs: SUMA + 4 * qs + 3
    NMC = lambda qs: GRAM + 4 * qs + 2
    for k in range(10):
        par = k % 2
        wb = 0 if wslot(k) < 2 * WSLOT else 2 * WSLOT
        so = wslot(k) - wb
        tile_first_frag.append(len(sa.frags)); tile_gap0.append(sa.n())
        def main(ks, jb):
            xb = XS + 16 * par + 8 * ks
            if jb < 12:
                rd = [lambda b, tt=tt: f"ds_read_b64_tr_b16 {vr(b+2*tt,2)}, v{AWQ+(jb&3)} offset:{so+(32*ks+4*tt)*384+(jb>>2)*128}" for tt in range(2)]
            else:
                jj = (jb - 12) % 3; up = (jb - 12) // 3
                rd = [lambda b, tt=tt: f"ds_read_b64_tr_b16 {vr(b+2*tt,2)}, v{AGU} offset:{so+ks*6656+tt*384+up*768+jj*32}" for tt in range(2)]
            sa.frag(rd, [lambda b, qs=qs: mfma_t(ACC(jb, qs), b, xb + 4 * qs, C0(ACC(jb, qs))) for qs in range(2)])
        def duty(ks, d):
            xb = XS + 16 * par + 8 * ks
            if d < 2: rd = [lambda b, tt=tt: f"ds_read_b64_tr_b16 {vr(b+2*tt,2)}, v{DUT+d} offset:{so+(32*ks+4*tt)*384}" for tt in range(2)]
            else: rd = [lambda b, tt=tt: f"ds_read_b64_tr_b16 {vr(b+2*tt,2)}, v{DUT+2} offset:{so+ks*6656+tt*384}" for tt in range(2)]
            second = [lambda b: mfma_t(SUMA, ONES, xb, C0(SUMA)), lambda b: mfma_t(SUMA + 4, ONES, xb + 4, C0(SUMA + 4)),
                      lambda b: mfma_t(GRAM, xb, xb, C0(GRAM))][d]
            sa.frag(rd, [lambda b: mfma_t(CSA + 4 * d, b, ONES, C0(CSA + 4 * d)), second])
            if d == 2: sa.mfma(mfma_t(GRAM + 4, xb + 4, xb + 4, C0(GRAM + 4)))
        if k < 9:
            for ks in range(2):
                sa.add_pre(sa.n(), lambda k=k, ks=ks: timed(a, 99, lambda: a.wait_vm(("x", k, ks))))
                for jb in range(18):
                    main(ks, jb)
                    if jb in (4, 10, 16): duty(ks, (jb - 4) // 6)
                if k + 2 < 10 and not OPT.get("nox"):
                    if OPT.get("xtog"):
                        if ks == 1: sa.spread(x_loads(k + 2, 0) + x_loads(k + 2, 1), sa.n(), sa.n() + 5)
                    elif HYB and k == 0:
                        if ks == 1: sa.spread(x_loads(2, 0) + x_loads(2, 1), sa.n() + 2, sa.n() + 30)
                    else:
                        sa.spread(x_loads(k + 2, ks), sa.n(), sa.n() + 6)
        else:
            sa.add_pre(sa.n(), lambda: a.wait_vm(("x", 9, 1)))
            for ks in range(2):
                for d in range(3): duty(ks, d)
            g_d = sa.n()
            order9 = [12, 15, 13, 16, 14, 17] + list(range(12))
            g_blk = {}
            for jb in order9:
                main(0, jb); main(1, jb); g_blk[jb] = sa.n()
            def cs_addr():
                a.e(f"v_lshrrev_b32 v{T}, 4, v{L16}")
                a.e(f"v_and_b32 v{T+1}, 0x30, v{T}")
                a.e(f"v_add_u32 v{T+1}, {CSL}, v{T+1}")
            def cs_addr2():
                a.e(f"s_lshl_b32 s{sT}, s{sW}, 6")
                a.e(f"v_add_u32 v{DUT}, s{sT}, v{T+1}")
                a.e(f"s_and_b32 s{sT}, s{sT}, 0xc0")
                a.e(f"v_add_u32 v{DUT+1}, s{sT}, v{T+1}")
            def cs_addr3():
                a.e(f"s_min_u32 s{sT}, s{sW}, 5")
                a.e(f"s_lshl_b32 s{sT}, s{sT}, 6")
                a.e(f"v_add_u32 v{DUT+2}, s{sT}, v{T+1}")
                a.e(f"s_mov_b32 s{sT}, 0x00010001")
            def cs_write():
                a.e(f"s_mov_b32 exec_lo, s{sT}")
                a.e(f"s_mov_b32 exec_hi, s{sT}")
                a.ds(f"ds_write_b128 v{DUT}, {vr(CSA,4)}", "csw")
                a.ds(f"ds_write_b128 v{DUT+1}, {vr(CSA+4,4)} offset:512", "csw")
                a.ds(f"ds_write_b128 v{DUT+2}, {vr(CSA+8,4)} offset:768", "csw")
                a.e("s_mov_b64 exec, -1")
            fl = [cs_addr, cs_addr2, cs_addr3, cs_write,
                  E(a, f"v_and_b32 v{T+3}, 3, v{T}"), E(a, f"v_and_b32 v{T+4}, 15, v{T}"),
                  E(a, f"v_lshrrev_b32 v{T+2}, 2, v{T+4}"), E(a, f"v_lshl_add_u32 v{T+4}, v{T+2}, 4, v{T+4}"),
                  E(a, f"v_lshlrev_b32 v{T+4}, 2, v{T+4}")]
            for i in range(1, 4):
                def sel(i=i):
                    a.e(f"v_cmp_eq_u32 vcc, {i}, v{T+3}")
                    a.e("s_nop 1")
                    for qs in range(2): a.e(f"v_cndmask_b32 v{GRAM+4*qs}, v{GRAM+4*qs}, v{GRAM+4*qs+i}, vcc")
                fl.append(sel)
            for qs in range(2):
                fl.append(lambda qs=qs: a.ds(f"ds_bpermute_b32 v{GRAM+4*qs+1}, v{T+4}, v{GRAM+4*qs}", "bp"))
            sa.spread(fl, g_d, g_d + 14)
            def csbar():
                if not OPT.get("kvlate", 1): a.wait_vm(("K", 0))
                a.wait_lgkm("bp")
                a.e("s_barrier")
            sa.add_pre(g_d + 18, csbar)
            fl = []
            for qs in range(2):
                fl += [E(a, f"v_mul_f32 v{MEAN(qs)}, {f32(1.0/640)}, v{SUMA+4*qs}"),
                       E(a, f"v_mul_f32 v{T+2+qs}, {f32(1.0/640)}, v{GRAM+4*qs+1}"),
                       E(a, f"v_fma_f32 v{T+2+qs}, -v{MEAN(qs)}, v{MEAN(qs)}, v{T+2+qs}"),
                       E(a, f"v_max_f32 v{T+2+qs}, 0, v{T+2+qs}"),
                       E(a, f"v_add_f32 v{T+2+qs}, {f32(1e-5)}, v{T+2+qs}"),
                       E(a, f"v_rsq_f32 v{RSTD(qs)}, v{T+2+qs}")]
            for qs in range(2):
                fl += [E(a, f"v_mul_f32 v{RSC(qs)}, {f32(SCALE_C)}, v{RSTD(qs)}"),
                       E(a, f"v_mul_f32 v{NMS(qs)}, -v{MEAN(qs)}, v{RSTD(qs)}"),
                       E(a, f"v_mul_f32 v{NMC(qs)}, -v{MEAN(qs)}, v{RSC(qs)}")]
            fl.append(E(a, f"v_mov_b32 v{T+2}, {f32(GELU_C0)}"))
            fl.append(E(a, f"s_mul_i32 s{sHO}, s{sH}, 3"))
            sa.spread(fl, g_d + 18, g_d + 30)
            g_epi = g_d + 30
    tile_first_frag.append(len(sa.frags)); tile_gap0.append(sa.n())
    NG = sa.n()
    blocks_at = {k: [] for k in range(-1, 10)}
    for k in range(7): blocks_at[k] = w_block(k + 3)
    KVL = OPT.get("kvlate", 1)
    kb0 = kv_block("K", 0); vb0 = kv_block("V", 0)
    if KVL:
        blocks_at[7] = kb0 + vb0
        blocks_at[8] = kv_block("K", 1)
    else:
        pieces = [kb0[:2], kb0[2:3], kb0[3:], vb0[:2], vb0[2:3], vb0[3:]]
        for k in range(6): blocks_at[k] += pieces[k]
        blocks_at[7] = kv_block("K", 1)
        blocks_at[8] = kv_block("V", 1) + kv_block("K", 2)
    if HYB:
        blocks_at[0] = w_block(2) + blocks_at[0]
    else:
        sa.spread(w_block(1) + x_loads(1, 0) + x_loads(1, 1), 0, OPT.get("r1a", 20))
        sa.spread(w_block(2), OPT.get("r1b", 48), 76)
    if OPT.get("pf", 0):
        PX, PW, PG = T, T + 1, T + 2
        sPX, sPW, sPG = 78, 79, 80
        def pf_setup():
            L_ = T + 3; U_ = T + 4
            a.e(f"v_lshrrev_b32 v{L_}, 4, v{L16}")
            a.e(f"v_mov_b32 v{U_}, 0x1000000")
            a.e(f"v_mul_u32_u24 v{PX}, 1280, v{L_}")
            a.e(f"v_cmp_gt_u32 vcc, 8, v{L_}")
            a.e(f"v_lshlrev_b32 v{PW}, 7, v{L_}")
            a.e(f"v_bfe_u32 v{PG}, v{L_}, 1, 1")
            a.e(f"v_cndmask_b32 v{PX}, v{U_}, v{PX}, vcc")
            a.e(f"v_cmp_gt_u32 vcc, 3, v{L_}")
            a.e(f"v_mul_u32_u24 v{PG}, 3072, v{PG}")
            a.e(f"v_and_b32 v{DUM}, 1, v{L_}")
            a.e(f"v_cndmask_b32 v{PW}, v{U_}, v{PW}, vcc")
            a.e(f"v_cmp_gt_u32 vcc, 4, v{L_}")
            a.e(f"v_mul_u32_u24 v{DUM}, 92, v{DUM}")
            a.e(f"v_add_u32 v{PG}, v{PG}, v{DUM}")
            a.e(f"v_cndmask_b32 v{PG}, v{U_}, v{PG}, vcc")
            a.e(f"s_and_b32 s{sPX}, s{sH}, 3")
            a.e(f"s_mul_i32 s{sPX}, s{sPX}, {8*1280}")
            a.e(f"s_lshl_b32 s{sT}, s{sB}, 3")
            a.e(f"s_add_u32 s{sPW}, s{sT}, s{sW}")
            a.e(f"s_mul_i32 s{sPW}, s{sPW}, 12288")
            a.e(f"s_and_b32 s{sPG}, s{sW}, 3")
            a.e(f"s_lshl_b32 s{sPG}, s{sPG}, 1")
            a.e(f"s_add_u32 s{sPG}, s{sPG}, s{sT}")
            a.e(f"s_mul_i32 s{sPG}, s{sPG}, 3072")
        pf_setup()
        def pf_x(k):
            return lambda: a.vmem(f"buffer_load_dword v{DUM}, v{PX}, s[{sX}:{sX+3}], s{sPX} offen offset:{128*k}", "pf")
        def pf_w(k):
            def f1():
                a.e(f"s_add_u32 s{sT}, s{sPW}, {k*786432}")
                a.vmem(f"buffer_load_dword v{DUM}, v{PW}, s[{sWQ}:{sWQ+3}], s{sT} offen", "pf")
            def f2():
                a.e(f"s_add_u32 s{sT}, s{sPG}, {k*196608}")
                a.vmem(f"buffer_load_dword v{DUM}, v{PG}, s[{sGU}:{sGU+3}], s{sT} offen", "pf")
            return [f1, f2]
        dx = OPT.get("pfdx", 4); dw = OPT.get("pfdw", 5)
        sa.spread([pf_x(k) for k in range(2, dx)] + sum([pf_w(k) for k in range(4, dw)], []), 0, 4)
        for k in range(9):
            fl = ([pf_x(k + dx)] if k + dx < 10 else []) + (pf_w(k + dw) if k + dw < 10 else [])
            sa.spread(fl, tile_gap0[k] + 62, tile_gap0[k] + 76)
    for k in range(9):
        gb = sa.read_gap(tile_first_frag[k + 1])
        def bar(k=k):
            timed(a, 100, lambda: a.wait_vm(("W", k + 1)))
            a.e("s_waitcnt lgkmcnt(0)"); a.lgkm = []
            timed(a, 101, lambda: a.e("s_barrier"))
            st(fine=True)
            w0 = 0 if wslot(k) < 2 * WSLOT else 2 * WSLOT
            w1 = 0 if wslot(k + 1) < 2 * WSLOT else 2 * WSLOT
            if w0 != w1:
                for r in addr_regs: a.e(f"v_add_u32 v{r}, {(w1-w0) & 0xffffffff}, v{r}")
        sa.add_pre(gb, bar)
        lo = gb + (16 if (KVL and k == 7) else 2)
        if KVL and k == 8: sa.spread(blocks_at[k], NG - 30, NG - 10)
        elif not OPT.get("nodma"): sa.spread(blocks_at[k], lo, min(gb + (OPT.get('wsp', 78) if k < 8 else 18), NG))
    G0 = T + 2
    HT = CSA
    xfree = XS
    CT = [xfree + 4 * i for i in range(4)]
    order = order9
    epi = []
    def cs_read(n):
        return lambda: a.ds(f"ds_read_b128 {vr(CT[n%4],4)}, v{T+1} offset:{64*order[n]}", ("cs", n))
    for n in range(3): epi.append((cs_read(n), g_epi))
    for n, jb in enumerate(order):
        ge = g_blk[jb] + 3
        ct = CT[n % 4]
        for qs in range(2):
            ac = ACC(jb, qs)
            for r in range(4): epi.append((E(a, f"v_mul_f32 v{ac+r}, v{(RSC if jb < 12 else RSTD)(qs)}, v{ac+r}"), ge))
        if n + 3 < 18: epi.append((cs_read(n + 3), ge))
        epi.append((lambda n=n: a.wait_lgkm(("cs", n)), ge))
        for qs in range(2):
            ac = ACC(jb, qs)
            for r in range(4): epi.append((E(a, f"v_fma_f32 v{ac+r}, v{(NMC if jb < 12 else NMS)(qs)}, v{ct+r}, v{ac+r}"), ge))
        L_ = []
        if jb >= 15:
            jj = jb - 15
            g0 = ACC(12 + jj, 0); u0 = ACC(jb, 0)
            for r in range(8): L_.append(f"v_mul_f32 v{HT+r}, v{g0+r}, v{g0+r}")
            for r in range(8): L_.append(f"v_fma_f32 v{HT+r}, v{HT+r}, s{sG1}, v{G0}")
            for r in range(8): L_.append(f"v_mul_f32 v{HT+r}, v{HT+r}, v{g0+r}")
            for r in range(8): L_.append(f"v_exp_f32 v{HT+r}, v{HT+r}")
            for r in range(8): L_.append(f"v_mul_f32 v{g0+r}, v{g0+r}, v{u0+r}")
            for r in range(8): L_.append(f"v_add_f32 v{HT+r}, 1.0, v{HT+r}")
            for r in range(8): L_.append(f"v_rcp_f32 v{HT+r}, v{HT+r}")
            L_.append(f"s_add_u32 s{sT}, s{sHO}, {jj}")
            for r in range(8): L_.append(f"v_mul_f32 v{g0+r}, v{g0+r}, v{HT+r}")
            hp = 216 + 4 * jj if jj < 2 else u0
            for q in range(4): L_.append(f"v_cvt_pk_bf16_f32 v{hp+q}, v{g0+2*q}, v{g0+2*q+1}")
            for x_ in L_: epi.append((E(a, x_), ge))
            def hstore(hp=hp):
                a.e(f"s_and_b32 s{sT2}, s{sT}, 1")
                a.e(f"s_lshr_b32 s{sT}, s{sT}, 1")
                a.e(f"s_lshl_b32 s{sT}, s{sT}, 10")
                a.e(f"s_lshl_b32 s{sT2}, s{sT2}, 3")
                a.e(f"s_add_u32 s{sT}, s{sT}, s{sT2}")
                a.e(f"s_add_u32 s{sT}, s{sT}, {192*1024}")
                a.e(f"s_add_u32 s{sT2}, s{sT}, {A_MB}")
                a.vmem(f"buffer_store_dwordx2 {vr(hp,2)}, v{L16}, s[{sWS}:{sWS+3}], s{sT} offen sc1", "hst")
                a.vmem(f"buffer_store_dwordx2 {vr(hp+2,2)}, v{L16}, s[{sWS}:{sWS+3}], s{sT2} offen sc1", "hst")
            epi.append((hstore, ge))
        elif jb < 12:
            s_, e_ = divmod(jb, 2)
            for qs in range(2):
                ac = ACC(jb, qs)
                for q in range(2): L_.append(f"v_cvt_pk_bf16_f32 v{QP(qs,s_)+2*e_+q}, v{ac+2*q}, v{ac+2*q+1}")
            if e_ == 1:
                L_.append("s_nop 1")
                for qs in range(2):
                    for q in range(2): L_.append(f"v_permlane32_swap_b32 v{QP(qs,s_)+q}, v{QP(qs,s_)+2+q}")
                L_.append("s_nop 0")
                for qs in range(2):
                    for q in range(2): L_.append(f"v_permlane16_swap_b32 v{QP(qs,s_)+q}, v{QP(qs,s_)+2+q}")
            for x_ in L_: epi.append((E(a, x_), ge))
    per = OPT.get("epi_per", 2)
    g = g_epi; cnt = 0; n_in = 0
    for (fn, ge) in epi:
        if ge > g: g = ge; cnt = 0
        if g >= NG - 1: break
        sa.add_post(g, fn); n_in += 1; cnt += 1
        if cnt >= per: g += 1; cnt = 0
    sa.emit()
    st()
    a.e("s_nop 7")
    for (fn, ge) in epi[n_in:]: fn()
    T = TP
    kwin = lambda j: KSL[0] if j % 3 == 0 else 0
    vwin = lambda j: VSL[0] if j % 3 == 0 else VSL[1]
    a.e(f"v_lshrrev_b32 v{T}, 4, v{L16}")
    a.e(f"v_lshrrev_b32 v{T+1}, 4, v{T}")
    a.e(f"v_bfe_u32 v{T+3}, v{T}, 2, 2")
    a.e(f"v_and_b32 v{T+4}, 3, v{T}")
    a.e(f"v_lshlrev_b32 v{T+4}, 3, v{T+4}")
    a.e(f"v_bfe_u32 v{T+5}, v{T}, 3, 2")
    a.e(f"v_lshl_add_u32 v{T+3}, v{T+1}, 2, v{T+3}")
    a.e(f"v_mul_u32_u24 v{T+3}, 384, v{T+3}")
    a.e(f"v_add_u32 v{T+3}, v{T+3}, v{T+4}")
    a.e(f"v_add_u32 v{T+3}, {vwin(0)}, v{T+3}")
    for i in range(4):
        a.e(f"v_xor_b32 v{T+4}, {i}, v{T+5}")
        a.e(f"v_lshl_add_u32 v{VR+i}, v{T+4}, 5, v{T+3}")
    a.e(f"v_and_b32 v{T+3}, 15, v{T}")
    a.e(f"v_bfe_u32 v{T+5}, v{T}, 1, 3")
    a.e(f"v_mul_u32_u24 v{T+3}, 384, v{T+3}")
    a.e(f"v_add_u32 v{T+3}, {kwin(0)}, v{T+3}")
    for i in range(2):
        a.e(f"v_add_u32 v{T+4}, {4*i}, v{T+1}")
        a.e(f"v_xor_b32 v{T+4}, v{T+4}, v{T+5}")
        a.e(f"v_lshl_add_u32 v{KR[i]}, v{T+4}, 4, v{T+3}")
    a.e(f"v_mov_b32 v{LS}, 0")
    a.e(f"v_mov_b32 v{LS+1}, 0")
    a.e(f"s_mov_b32 s{sTHR}, {f32(2.0**60)}")
    if KVL:
        for f in kv_block("V", 1) + kv_block("K", 2): f()
        a.wait_vm(("K", 0))
        a.e("s_barrier")
    st()

    def exp_ops(kb):
        u, e_ = divmod(kb, 2)
        o = []
        for r in range(4): o.append(f"v_exp_f32 v{TP+r}, v{S(kb,0)+r}")
        o.append(f"v_exp_f32 v{TP+4}, v{S(kb,1)}")
        o.append(f"v_cvt_pk_bf16_f32 v{P(0,u)+2*e_}, v{TP}, v{TP+1}")
        o.append(f"v_exp_f32 v{TP+5}, v{S(kb,1)+1}")
        o.append(f"v_cvt_pk_bf16_f32 v{P(0,u)+2*e_+1}, v{TP+2}, v{TP+3}")
        o.append(f"v_exp_f32 v{TP+6}, v{S(kb,1)+2}")
        o.append(f"v_exp_f32 v{TP+7}, v{S(kb,1)+3}")
        o.append(f"v_cvt_pk_bf16_f32 v{P(1,u)+2*e_}, v{TP+4}, v{TP+5}")
        o.append(f"v_cvt_pk_bf16_f32 v{P(1,u)+2*e_+1}, v{TP+6}, v{TP+7}")
        return o
    def rowmax_ops(u, D, X):
        o = []
        for qs in range(2):
            s0 = S(2 * u, qs); s1 = S(2 * u + 1, qs)
            o.append(f"v_max3_f32 v{D[qs]}, v{s0}, v{s0+1}, v{s0+2}")
            o.append(f"v_max3_f32 v{D[qs]}, v{D[qs]}, v{s0+3}, v{s1}")
            o.append(f"v_max3_f32 v{D[qs]}, v{D[qs]}, v{s1+1}, v{s1+2}")
            o.append(f"v_max_f32 v{D[qs]}, v{D[qs]}, v{s1+3}")
        for sw in ("v_permlane32_swap_b32", "v_permlane16_swap_b32"):
            for qs in range(2): o.append(f"v_mov_b32 v{X+qs}, v{D[qs]}")
            o.append("s_nop 1")
            for qs in range(2): o.append(f"{sw} v{D[qs]}, v{X+qs}")
            for qs in range(2): o.append(f"v_max_f32 v{D[qs]}, v{D[qs]}, v{X+qs}")
        return o
    stubs = []
    def slow_stub(u):
        a.label(f"L_{K}_slow{u}")
        a.e("s_nop 15")
        D = [TP, TP + 1]; AL = [TP + 2, TP + 3]; X = TP + 4
        for tx in rowmax_ops(u, D, X): a.e(tx)
        for qs in range(2):
            a.e(f"v_max_f32 v{D[qs]}, 0, v{D[qs]}")
            a.e(f"v_exp_f32 v{AL[qs]}, -v{D[qs]}")
        for qs in range(2):
            for r in range(4): a.e(f"v_sub_f32 v{NEGM(qs)+r}, v{NEGM(qs)+r}, v{D[qs]}")
            for kb in range(4):
                for r in range(4): a.e(f"v_sub_f32 v{S(kb,qs)+r}, v{S(kb,qs)+r}, v{D[qs]}")
            a.e(f"v_mul_f32 v{LS+qs}, v{LS+qs}, v{AL[qs]}")
            for jb in range(12):
                for r in range(4): a.e(f"v_mul_f32 v{O(jb,qs)+r}, v{O(jb,qs)+r}, v{AL[qs]}")
        for kb in (2 * u, 2 * u + 1):
            for tx in exp_ops(kb): a.e(tx)
        a.e("s_nop 1")
        for qs in range(2): a.e(mfma_t(LT(qs), ONES, P(qs, u), "0"))
        a.e("s_nop 7")
        a.e(f"s_setpc_b64 s[{sRET}:{sRET+1}]")
    def check(j, u):
        def fn():
            a.e(f"v_max_f32 v{LT(0)+1}, v{LT(0)}, v{LT(1)}")
            a.e(f"v_cmp_nge_f32 vcc, s{sTHR}, v{LT(0)+1}")
            a.e(f"s_cbranch_vccnz L_{K}_tr{j}_{u}")
            a.label(f"L_{K}_back{j}_{u}")
        def stub():
            a.label(f"L_{K}_tr{j}_{u}")
            a.e(f"s_call_b64 s[{sRET}:{sRET+1}], L_{K}_slow{u}")
            a.e(f"s_branch L_{K}_back{j}_{u}")
        stubs.append(stub)
        return fn

    sb = Stream(a, FR)
    seg = {}
    def QK(j, u, sum_of=None):
        ko = KSL[j % 3] - kwin(j); g0 = sb.n(); f0 = len(sb.frags)
        for kb in (2 * u, 2 * u + 1):
            for s_ in range(6):
                c0 = ("0" if j == 0 else "negm") if s_ == 0 else None
                sb.frag([lambda b: f"ds_read_b128 {vr(b,4)}, v{KR[s_&1]} offset:{ko+kb*6144+(s_>>1)*128}"],
                        [lambda b, qs=qs: mfma_t(S(kb, qs), b, QP(qs, s_), NEGM(qs) if c0 == "negm" else c0) for qs in range(2)])
                if sum_of is not None and kb == 2 * u + 1 and s_ == 2:
                    seg[("sum", sum_of)] = sb.n()
                    for qs in range(2): sb.mfma(mfma_t(LT(qs), ONES, P(qs, sum_of[1]), "0"))
        seg[("QK", j, u)] = (g0, sb.n(), f0)
    def PV(j, u, sum_of=None):
        vo = VSL[j % 3] - vwin(j); g0 = sb.n(); f0 = len(sb.frags)
        if not (j == 0 and u == 0) and not OPT.get("nocheck"): sb.add_pre(g0, check(j, u))
        sb.add_post(g0, E(a, f"v_add_f32 v{LS}, v{LS}, v{LT(0)}"))
        sb.add_post(g0 + 1, E(a, f"v_add_f32 v{LS+1}, v{LS+1}, v{LT(1)}"))
        for jb in range(12):
            sb.frag([lambda b, tt=tt: f"ds_read_b64_tr_b16 {vr(b+2*tt,2)}, v{VR+(jb&3)} offset:{vo+(32*u+16*tt)*384+(jb>>2)*128}" for tt in range(2)],
                    [lambda b, qs=qs: mfma_t(O(jb, qs), b, P(qs, u), "0" if (j == 0 and u == 0) else None) for qs in range(2)])
            if sum_of is not None and jb == 8:
                seg[("sum", sum_of)] = sb.n()
                for qs in range(2): sb.mfma(mfma_t(LT(qs), ONES, P(qs, sum_of[1]), "0"))
        seg[("PV", j, u)] = (g0, sb.n(), f0)
    QK(0, 0)
    for j in range(8):
        QK(j, 1, sum_of=(j, 0))
        if j < 7:
            PV(j, 0); QK(j + 1, 0, sum_of=(j, 1)); PV(j, 1)
        else:
            PV(j, 0, sum_of=(j, 1)); PV(j, 1)
    NG = sb.n()
    for j in range(8):
        for u in range(2):
            g0 = seg[("QK", j, u)][1] + 3; g1 = seg[("sum", (j, u))] - 2
            ops = exp_ops(2 * u) + exp_ops(2 * u + 1)
            if j == 0 and u == 0:
                D = [LT(0), LT(1)]
                pre = rowmax_ops(0, D, TP)
                for qs in range(2):
                    for kb in range(2):
                        for r in range(4): pre.append(f"v_sub_f32 v{S(kb,qs)+r}, v{S(kb,qs)+r}, v{D[qs]}")
                for qs in range(2):
                    for r in range(4): pre.append(f"v_sub_f32 v{NEGM(qs)+r}, 0, v{D[qs]}")
                ops = pre + ops
            if j == 0 and u == 1:
                pre = []
                for qs in range(2):
                    for kb in range(2, 4):
                        for r in range(4): pre.append(f"v_add_f32 v{S(kb,qs)+r}, v{S(kb,qs)+r}, v{NEGM(qs)}")
                ops = pre + ops
            if not OPT.get("noexp"): sb.spread([E(a, x) for x in ops], g0, g1)
    for j in range(8):
        gb = sb.read_gap(seg[("PV", j, 0)][2])
        def vbar(j=j):
            a.wait_vm(("V", j))
            if not OPT.get("nobar"): a.e("s_barrier")
        sb.add_pre(gb, vbar)
        if j > 0 and vwin(j) != vwin(j - 1):
            sb.spread([E(a, f"v_add_u32 v{VR+r}, {(vwin(j)-vwin(j-1)) & 0xffffffff}, v{VR+r}") for r in range(4)], gb - 9, gb - 1)
        if j + 2 < 8 and not OPT.get("nodma"): sb.spread(kv_block("V", j + 2), gb + 2, gb + 20)
        if j < 7:
            gb = sb.read_gap(seg[("QK", j + 1, 0)][2])
            def kbar(j=j):
                a.wait_vm(("K", j + 1))
                if not OPT.get("nobar"): a.e("s_barrier")
                st(fine=True)
            sb.add_pre(gb, kbar)
            if kwin(j) != kwin(j + 1):
                sb.spread([E(a, f"v_add_u32 v{r}, {(kwin(j+1)-kwin(j)) & 0xffffffff}, v{r}") for r in KR], gb - 6, gb - 1)
            if j + 3 < 8 and not OPT.get("nodma"): sb.spread(kv_block("K", j + 3), gb + 2, gb + 20)
    ACC2 = lambda nb, qs: (nb * 2 + qs) * 4
    ACCF = lambda nb, qs: 176 + (nb * 2 + qs) * 4
    NSET = 4
    OF = 80; FR2 = OF + 16 * NSET
    AW = 160; AF = 162; TM2 = 164
    DF = [243, 244, 245, 247, 254]
    DW = [216, 217, 218, 219, 220]
    ZV, ONEV, PV_ = 221, 222, 223
    sO, sWr, sP = 28, 32, 36
    sS, sMT, sNT, sG, sMBk, sOW, sM0, sOO, sKG, sTW2, sTO = 55, 56, 57, 58, 59, 60, 61, 62, 63, 64, 65
    sOO2, sOB_, sWB, sPER, sR12, sU, sU2 = 78, 79, 80, 81, 96, 97, 98
    sCH, sCO = 86, 87
    sXo, sOut = 40, 44
    SLOT = 40960
    NF, NA = 6, 12; NT2 = NF + NA
    slot2 = lambda k: ((k + 2) % 4) * SLOT
    win = lambda k: 0 if slot2(k) < 2 * SLOT else 2 * SLOT
    su = []
    def S_(tx): su.append(E(a, tx))
    def grp(*txs):
        def f():
            for tx in txs: a.e(tx)
        su.append(f)
    grp(f"s_and_b32 s{sS}, s2, 3", f"s_bfe_u32 s{sU}, s2, 0x10002", f"s_lshr_b32 s{sU2}, s2, 3")
    grp(f"s_and_b32 s{sNT}, s{sU2}, 3", f"s_lshr_b32 s{sMT}, s{sU2}, 2")
    grp(f"s_mul_i32 s{sTW2}, s{sMT}, {NF}", f"s_lshr_b32 s{sTW2}, s{sTW2}, 3", f"s_mov_b32 s{sTO}, s{sTW2}")
    grp(f"s_mul_i32 s{sR12}, s{sMT}, {NA}", f"s_lshr_b32 s{sR12}, s{sR12}, 3")
    grp(f"s_lshl_b32 s{sU}, s{sU}, 3", f"s_add_u32 s{sMT}, s{sMT}, s{sU}", f"s_lshr_b32 s{sG}, s{sW}, 2")
    grp(f"s_and_b32 s{sU}, s{sW}, 3", f"s_lshl_b32 s{sMBk}, s{sMT}, 2", f"s_add_u32 s{sMBk}, s{sMBk}, s{sU}")
    grp(f"s_mul_i32 s{sM0}, s{sW}, 5120", f"s_lshr_b32 s{sKG}, s{sW}, 1")
    grp(f"s_lshr_b32 s{sCO}, s{sMT}, 1", f"s_lshl_b32 s{sCO}, s{sCO}, 5", f"s_add_u32 s{sCH}, s{sCO}, 16")
    su_early = list(su); su.clear()
    grp(f"s_and_b32 s{sU}, s{sW}, 1", f"s_lshl_b32 s{sU}, s{sU}, 5")
    t0, t1, t2 = KA, KA + 1, KA + 2
    for i in range(5):
        S_(f"v_lshrrev_b32 v{t0}, 4, v{L16}")
        S_(f"v_add_u32 v{t0}, {64*i}, v{t0}")
        S_(f"v_mul_u32_u24 v{t1}, 6554, v{t0}")
        S_(f"v_lshrrev_b32 v{t1}, 16, v{t1}")
        S_(f"v_mul_u32_u24 v{t2}, 10, v{t1}")
        S_(f"v_sub_u32 v{t2}, v{t0}, v{t2}")
        S_(f"v_add_u32 v{t1}, s{sU}, v{t1}")
        S_(f"v_mul_u32_u24 v{t1}, 1280, v{t1}")
        S_(f"v_lshl_add_u32 v{DF[i]}, v{t2}, 4, v{t1}")
    grp(f"s_mul_i32 s{sWB}, s{sKG}, {NF*64*1280}", f"s_mul_i32 s{sOB_}, s{sKG}, {NF*2048}", f"s_add_u32 s{sOB_}, s{sOB_}, {192*1024}")
    def f_():
        a.e(f"s_mul_i32 s{sU2}, s{sNT}, 320")
        a.e(f"s_and_b32 s{sU}, s{sS}, 1")
        a.e(f"s_mul_i32 s{sU}, s{sU}, 160")
        a.e(f"s_add_u32 s{sU2}, s{sU2}, s{sU}")
        srd(a, sWr, 20, 21, f"s{sU2}", "0")
        a.e(f"s_sub_u32 s{sWr+2}, {1536*1280}, s{sU2}")
    su.append(f_)
    def f_():
        a.e(f"s_lshl_b32 s{sU2}, s{sMT}, 2")
        a.e(f"s_and_b32 s{sU}, s{sS}, 2")
        a.e(f"s_add_u32 s{sU2}, s{sU2}, s{sU}")
        a.e(f"s_and_b32 s{sU}, s{sW}, 1")
        a.e(f"s_add_u32 s{sU2}, s{sU2}, s{sU}")
        a.e(f"s_mul_i32 s{sU2}, s{sU2}, {2*A_MB}")
        srd(a, sO, 26, 27, f"s{sU2}", f"{2*A_MB}")
    su.append(f_)
    def w2_block(k):
        base = slot2(k); tag = ("W2", k); fns = []
        per = NF if k < NF else NA; vo = DF if k < NF else DW
        def head():
            if k == NF:
                a.e(f"s_mul_i32 s{sU2}, s{sNT}, 320")
                srd(a, sWr, 12, 13, f"s{sU2}", "0")
                a.e(f"s_sub_u32 s{sWr+2}, {6144*1280}, s{sU2}")
                a.e(f"s_lshl_b32 s{sU}, s{sS}, 1")
                a.e(f"s_add_u32 s{sU}, s{sU}, s{sG}")
                a.e(f"s_mul_i32 s{sWB}, s{sU}, {NA*64*1280}")
                a.e(f"s_mov_b32 s{sTW2}, s{sR12}")
            a.e(f"s_mul_i32 s{sOW}, s{sTW2}, {64*1280}")
            a.e(f"s_add_u32 s{sOW}, s{sOW}, s{sWB}")
        fns.append(head)
        for i in range(5):
            def f(i=i):
                a.e(f"s_add_u32 m0, s{sM0}, {base + 1024*i}")
                if i == 0: a.e(f"s_add_u32 s{sTW2}, s{sTW2}, 1")
                elif i == 1: a.e(f"s_cmp_eq_u32 s{sTW2}, {per}")
                else: a.e("s_nop 0")
                a.vmem(f"buffer_load_dwordx4 v{vo[i]}, s[{sWr}:{sWr+3}], s{sOW} offen lds", tag)
                if i == 1: a.e(f"s_cselect_b32 s{sTW2}, 0, s{sTW2}")
            fns.append(f)
        return fns
    def poll_issue(soff, tag):
        return lambda: a.vmem(f"buffer_load_dword v{PV_}, v{ZV}, s[{sDB_}:{sDB_+3}], s{soff} offen sc1", tag)
    def poll_check(name, srdr, soff, target, tag):
        def fn():
            a.wait_vm(tag)
            a.e(f"v_readfirstlane_b32 s{sU2}, v{PV_}")
            a.e("s_nop 3")
            a.e(f"s_cmp_ge_u32 s{sU2}, {target}")
            a.e(f"s_cbranch_scc0 L_{name}_spin")
            a.label(f"L_{name}_ok")
        def stub():
            a.label(f"L_{name}_spin")
            a.e(f"s_mov_b32 s{sU}, 0")
            a.label(f"L_{name}_poll")
            a.e(f"s_sleep {OPT.get('slp', 8)}")
            a.e(f"buffer_load_dword v{PV_}, v{ZV}, s[{srdr}:{srdr+3}], s{soff} offen sc1")
            a.e("s_waitcnt vmcnt(0)")
            a.e(f"v_readfirstlane_b32 s{sU2}, v{PV_}")
            a.e(f"s_add_u32 s{sU}, s{sU}, 1")
            a.e("s_nop 1")
            a.e(f"s_cmp_ge_u32 s{sU2}, {target}")
            a.e(f"s_cbranch_scc1 L_{name}_ok")
            a.e(f"s_cmp_lt_u32 s{sU}, 0x20000")
            a.e(f"s_cbranch_scc1 L_{name}_poll")
            a.e(f"s_branch L_{name}_ok")
        stubs.append(stub)
        return fn
    def signal(name, srdr, soff_expr, zv, onev):
        def fn():
            a.e(f"s_cmp_eq_u32 s{sW}, 0")
            a.e(f"s_cbranch_scc1 L_{name}_sig")
            a.label(f"L_{name}_sigr")
        def stub():
            a.label(f"L_{name}_sig")
            for tx in soff_expr: a.e(tx)
            a.e(f"v_mov_b32 v{zv}, 0")
            a.e(f"v_mov_b32 v{onev}, 1")
            a.e("s_mov_b64 exec, 1")
            a.e(f"buffer_atomic_add v{onev}, v{zv}, s[{srdr}:{srdr+3}], s{sU} offen sc1")
            a.e("s_mov_b64 exec, -1")
            a.e(f"s_branch L_{name}_sigr")
        stubs.append(stub)
        return fn
    def o_loads(k, ks):
        par = k % NSET; fns = []
        per = NF if k < NF else NA
        if ks == 0:
            def head():
                if k == NF:
                    a.e(f"s_mul_i32 s{sU2}, s{sMBk}, {2*A_MB}")
                    srd(a, sO, 26, 27, f"s{sU2}", f"{2*A_MB}")
                    a.e(f"s_lshl_b32 s{sU}, s{sS}, 1")
                    a.e(f"s_add_u32 s{sU}, s{sU}, s{sG}")
                    a.e(f"s_mul_i32 s{sOB_}, s{sU}, {NA*2048}")
                    a.e(f"s_mov_b32 s{sTO}, s{sR12}")
                a.e(f"s_lshl_b32 s{sOO}, s{sTO}, 11")
                a.e(f"s_add_u32 s{sOO}, s{sOO}, s{sOB_}")
                a.e(f"s_add_u32 s{sTO}, s{sTO}, 1")
                a.e(f"s_cmp_eq_u32 s{sTO}, {per}")
                a.e(f"s_cselect_b32 s{sTO}, 0, s{sTO}")
                a.e(f"s_add_u32 s{sOO2}, s{sOO}, {A_MB}")
            fns.append(head)
        for qs in range(2):
            fns.append(lambda qs=qs: a.vmem(f"buffer_load_dwordx4 {vr(OF+16*par+8*ks+4*qs,4)}, v{L16}, s[{sO}:{sO+3}], s{sOO2 if qs else sOO} offen offset:{1024*ks} sc1", ("o", k, ks)))
        return fns
    gk = lambda j: sb.read_gap(seg[("QK", j + 1, 0)][2])
    gv = lambda j: sb.read_gap(seg[("PV", j, 0)][2])
    sb.pre[gk(1)].insert(0, lambda: a.wait_vm("hst"))
    sb.add_pre(gk(1), signal("hs", sDB_, [f"s_lshl_b32 s{sU}, s{sB}, 5", f"s_add_u32 s{sU}, s{sU}, 16"], 243, 244))
    sb.spread(su_early, gk(1) + 22, gk(1) + 40)
    if OPT.get("pfw2", 1):
        PW, PD = 245, 247
        sPF = 36
        def pfs():
            a.e(f"v_lshlrev_b32 v{PW}, 3, v{L16}")
            a.e(f"v_mov_b32 v{PD}, 0x1000000")
            a.e(f"v_cmp_gt_u32 vcc, {15*128}, v{PW}")
            a.e(f"s_lshr_b32 s{sU}, s2, 3")
            a.e(f"s_lshl_b32 s{sU}, s{sU}, 3")
            a.e(f"v_cndmask_b32 v{PW}, v{PD}, v{PW}, vcc")
            a.e(f"s_add_u32 s{sU}, s{sU}, s{sW}")
            a.e(f"s_mul_i32 s{sU}, s{sU}, 7680")
            a.e(f"s_mul_i32 s{sU2}, s{sS}, {1536*1280}")
            a.e(f"s_add_u32 s{sU}, s{sU}, s{sU2}")
            srd(a, sPF, 12, 13, f"s{sU}", "7680")
        sb.add_post(gk(1) + 42, pfs)
        for n in range(4):
            sb.add_post(gk(1 + n) + 60, lambda n=n: a.vmem(f"buffer_load_dword v{PD}, v{PW}, s[{sPF}:{sPF+3}], 0 offen offset:{1920*n if n < 2 else 0}" if n < 2 else
                                                             f"buffer_load_dword v{PD}, v{PW}, s[{sPF}:{sPF+3}], s{sPER} offen offset:{1920*(n-2)}", "pf"))
        sb.add_post(gk(1) + 44, E(a, f"s_mov_b32 s{sPER}, 3840"))
        def pfd():
            a.e(f"s_lshl_b32 s{sU}, s2, 3")
            a.e(f"s_add_u32 s{sU}, s{sU}, s{sW}")
            a.e(f"s_mul_i32 s{sU}, s{sU}, 960")
            srd(a, sPF, 20, 21, f"s{sU}", "960")
            a.vmem(f"buffer_load_dword v{PD}, v{PW}, s[{sPF}:{sPF+3}], 0 offen", "pf")
        sb.add_post(gk(4) + 66, pfd)
        sb.add_pre(gv(5) + 24, lambda: a.wait_vm("pf"))
    sb.spread(su, gv(5) + 24, gk(6) - 2)
    sb.spread(w2_block(0), gk(6) + 2, gv(7) - 2)
    sb.spread(w2_block(1), gv(7) + 2, NG - 4)
    sb.emit()
    st()
    a.e(f"v_mov_b32 v{ZV}, 0")
    for qs in range(2): a.e(f"v_rcp_f32 v{TP+qs}, v{LS+qs}")
    a.e(f"s_mul_i32 s{sHO}, s{sH}, 6144")
    poll_issue(sCH, "ph")()
    a.e("s_nop 1")
    for s_ in range(6):
        for qs in range(2):
            for e_ in range(2):
                ob = O(2 * s_ + e_, qs)
                for r in range(4): a.e(f"v_mul_f32 v{ob+r}, v{TP+qs}, v{ob+r}")
        for qs in range(2):
            dst = S(0, 0) + 4 * ((2 * s_ + qs) % 8)
            for e_ in range(2):
                ob = O(2 * s_ + e_, qs)
                for q in range(2): a.e(f"v_cvt_pk_bf16_f32 v{dst+2*e_+q}, v{ob+2*q}, v{ob+2*q+1}")
            a.e(f"s_add_u32 s{sT}, s{sHO}, {qs*A_MB + (s_//4)*4096}")
            a.vmem(f"buffer_store_dwordx4 {vr(dst,4)}, v{L16}, s[{sWS}:{sWS+3}], s{sT} offen offset:{1024*(s_%4)} sc1", "ost")
        if s_ == 2:
            poll_check("ph", sDB_, sCH, 32, "ph")()
            for f in o_loads(1, 0)[:0]: f()
    st()
    a.e("s_nop 1")
    for f in o_loads(0, 0) + o_loads(0, 1) + o_loads(1, 0) + o_loads(1, 1): f()
    t = TM2
    a.e(f"v_lshrrev_b32 v{t+2}, 4, v{L16}")
    a.e(f"v_lshrrev_b32 v{t}, 2, v{t+2}")
    a.e(f"v_and_b32 v{t+1}, 3, v{t+2}")
    a.e(f"v_lshlrev_b32 v{t+1}, 3, v{t+1}")
    a.e(f"v_mul_u32_u24 v{t+3}, 160, v{t}")
    a.e(f"s_mul_i32 s{sU2}, s{sKG}, 10240")
    a.e(f"s_add_u32 s{sU2}, s{sU2}, {win(0)}")
    a.e(f"v_add3_u32 v{AF}, v{t+3}, v{t+1}, s{sU2}")
    a.wait_vm(("W2", 1))
    a.e("s_waitcnt lgkmcnt(0)"); a.lgkm = []
    a.e("s_barrier")
    st()
    late = []
    L_ = lambda tx: late.append(E(a, tx))
    L_(f"v_mul_u32_u24 v{t+3}, 320, v{t}")
    L_(f"s_mul_i32 s{sU2}, s{sG}, 20480")
    late.append(lambda: (a.e(f"s_mul_i32 s{sU2}, s{sG}, 20480"), a.e(f"s_add_u32 s{sU2}, s{sU2}, {win(NF)}"), a.e(f"v_add3_u32 v{t+3}, v{t+3}, v{t+1}, s{sU2}")))
    L_(f"v_bfe_u32 v{t+4}, v{t+2}, 4, 1")
    L_(f"v_lshlrev_b32 v{t+4}, 5, v{t+4}")
    L_(f"v_add_u32 v{AW}, v{t+3}, v{t+4}")
    L_(f"v_sub_u32 v{AW+1}, v{t+3}, v{t+4}")
    L_(f"v_and_b32 v{t+7}, 0x30, v{t+2}")
    late.append(lambda: (a.e(f"s_and_b32 s{sPER}, s{sW}, 3"), a.e(f"s_lshl_b32 s{sPER}, s{sPER}, 4")))
    for i in range(5):
        L_(f"v_add_u32 v{t+4}, {64*i}, v{t+2}")
        L_(f"v_mul_u32_u24 v{t+5}, 3277, v{t+4}")
        L_(f"v_lshrrev_b32 v{t+5}, 16, v{t+5}")
        L_(f"v_mul_u32_u24 v{t+6}, 20, v{t+5}")
        L_(f"v_sub_u32 v{t+6}, v{t+4}, v{t+6}")
        L_(f"v_add_u32 v{t+5}, s{sPER}, v{t+5}")
        L_(f"v_bfe_u32 v{t+4}, v{t+5}, 2, 1")
        L_(f"v_lshlrev_b32 v{t+4}, 1, v{t+4}")
        L_(f"v_xor_b32 v{t+6}, v{t+6}, v{t+4}")
        L_(f"v_mul_u32_u24 v{t+5}, 1280, v{t+5}")
        L_(f"v_lshl_add_u32 v{DW[i]}, v{t+6}, 4, v{t+5}")
    sm = Stream(a, FR2)
    started = set()
    tfirst = []; tg0 = []
    for k in range(NT2):
        par = k % NSET; so = slot2(k) - win(k)
        tfirst.append(len(sm.frags)); tg0.append(sm.n())
        for ks in range(2):
            sm.add_pre(sm.n(), lambda k=k, ks=ks: a.wait_vm(("o", k, ks)))
            if k < NF:
                for nb in range(5):
                    sm.frag([lambda b, tt=tt: f"ds_read_b64_tr_b16 {vr(b+2*tt,2)}, v{AF} offset:{so+(32*ks+16*tt)*160+32*nb}" for tt in range(2)],
                            [lambda b, qs=qs: mfma_t(ACCF(nb, qs), b, OF + 16 * par + 8 * ks + 4 * qs, C0(ACCF(nb, qs))) for qs in range(2)])
            else:
                for nb in range(10):
                    sm.frag([lambda b, tt=tt: f"ds_read_b64_tr_b16 {vr(b+2*tt,2)}, v{AW+(nb&1)} offset:{so+(32*ks+16*tt)*320+32*nb}" for tt in range(2)],
                            [lambda b, qs=qs: mfma_t(ACC2(nb, qs), b, OF + 16 * par + 8 * ks + 4 * qs, C0(ACC2(nb, qs))) for qs in range(2)])
    tfirst.append(len(sm.frags)); tg0.append(sm.n())
    NG = sm.n()
    sm.spread(late, 0, tg0[2])
    KO = OPT.get("ostep", 5)
    issue = {}
    for k in range(2, NT2):
        tk = max(k - OPT.get("olook", 2), 0) if k < NF else max(k - 3, KO)
        issue.setdefault(tk, {"w": [], "o": []})["o"] += o_loads(k, 0) + o_loads(k, 1)
        issue.setdefault(max(k - OPT.get("wlook", 2), 0) if k < NF + 2 else k - 3, {"w": [], "o": []})["w"] += w2_block(k)
    sm.add_post(tg0[KO] - 8, poll_issue(sCO, "po"))
    sm.add_post(tg0[KO], poll_check("po", sDB_, sCO, 32, "po"))
    for tk in sorted(issue):
        wb_, ob_ = issue[tk]["w"], issue[tk]["o"]
        ln = tg0[tk + 1] - tg0[tk] - 7
        sm.spread(ob_, tg0[tk] + 1, tg0[tk] + ln)
        sm.spread(wb_, tg0[tk] + 1, tg0[tk] + ln)
    for k in range(NT2 - 1):
        gb = sm.read_gap(tfirst[k + 1])
        def bar(k=k):
            if k == 0: a.wait_vm("ost")
            a.wait_vm(("W2", k + 1))
            a.e("s_waitcnt lgkmcnt(0)"); a.lgkm = []
            a.e("s_barrier")
            st(fine=True)
            if win(k) != win(k + 1) and k + 1 != NF:
                for r in ([AF] if k + 1 < NF else [AW, AW + 1]): a.e(f"v_add_u32 v{r}, {(win(k+1)-win(k)) & 0xffffffff}, v{r}")
        sm.add_pre(gb, bar)
        if k == 0: sm.add_pre(gb, signal("os", sDB_, [f"s_lshl_b32 s{sU}, s{sB}, 5"], ZV, ONEV))
    sm.emit()
    a.wait_all()
    st()
    a.e("s_barrier")
    a.e(f"s_mul_i32 s{sU}, s{sW}, 10240")
    a.e(f"v_add_u32 v{t}, s{sU}, v{L16}")
    a.e(f"v_add_u32 v{t+2}, {81920}, v{t}")
    a.e(f"s_xor_b32 s{sU2}, s{sW}, 4")
    a.e(f"s_mul_i32 s{sU2}, s{sU2}, 10240")
    a.e(f"v_add_u32 v{t+1}, s{sU2}, v{L16}")
    PBH = 64 * 40 * 1024
    a.e(f"s_lshl_b32 s{sT}, s{sMT}, 2")
    a.e(f"s_add_u32 s{sT}, s{sT}, s{sNT}")
    a.e(f"s_mul_i32 s{sU2}, s{sT}, {40*1024}")
    a.e(f"s_add_u32 s{sU2}, s{sU2}, {WS_P}")
    srd(a, sP, 26, 27, f"s{sU2}", f"{3*PBH + 40*1024}")
    a.e(f"s_lshl_b32 s{sT}, s{sT}, 7")
    a.e(f"s_and_b32 s{sPER}, s{sW}, 2")
    a.e(f"s_add_u32 s{sPER}, s{sPER}, s{sG}")
    a.e(f"s_lshl_b32 s{sU}, s{sPER}, 1")
    a.e(f"s_and_b32 s{sU2}, s{sW}, 1")
    a.e(f"s_add_u32 s{sU}, s{sU}, s{sU2}")
    a.e(f"s_mul_i32 s{sU}, s{sU}, 5120")
    a.e(f"s_mul_i32 s{sU2}, s{sS}, {PBH}")
    a.e(f"s_add_u32 s{sOW}, s{sU}, s{sU2}")
    a.e(f"s_add_u32 s{sOO}, s{sOW}, 4096")
    a.e(f"s_cmp_eq_u32 s{sG}, 0")
    a.e(f"s_cbranch_scc0 L_p2_g1")
    for g in range(2):
        keep = 40 * g; send = 40 * (1 - g)
        for q in range(10): a.e(f"ds_write_b128 v{t}, {vr(send+4*q,4)} offset:{1024*q}")
        a.e("s_waitcnt lgkmcnt(0)")
        a.e("s_barrier")
        for q in range(10): a.e(f"ds_read_b128 {vr(OF+4*q,4)}, v{t+1} offset:{1024*q}")
        for q in range(10):
            a.e(f"s_waitcnt lgkmcnt({9-q})")
            for r in range(4): a.e(f"v_add_f32 v{OF+4*q+r}, v{keep+4*q+r}, v{OF+4*q+r}")
        if g == 0:
            a.e(f"s_branch L_p2_red2")
            a.label(f"L_p2_g1")
    a.label("L_p2_red2")
    R = OF
    a.e(f"s_cmp_eq_u32 s{sPER}, s{sS}")
    a.e(f"s_cbranch_scc1 L_p2_own")
    for p in range(5):
        for q in range(4): a.e(f"v_cvt_pk_bf16_f32 v{4*p+q}, v{R+8*p+2*q}, v{R+8*p+2*q+1}")
        a.e(f"buffer_store_dwordx4 {vr(4*p,4)}, v{L16}, s[{sP}:{sP+3}], s{sOO if p == 4 else sOW} offen offset:{(p%4)*1024} sc1")
    a.e("s_branch L_p2_pub")
    a.label("L_p2_own")
    for q in range(10): a.e(f"ds_write_b128 v{t+1}, {vr(R+4*q,4)} offset:{1024*q}")
    a.label("L_p2_pub")
    st(fine=True)
    for q in range(10): a.e(f"ds_write_b128 v{t+2}, {vr(176+4*q,4)} offset:{1024*q}")
    a.e(f"s_lshl_b32 s{sU2}, s{sMT}, 1")
    a.e(f"s_lshr_b32 s{sU}, s{sS}, 1")
    a.e(f"s_add_u32 s{sU2}, s{sU2}, s{sU}")
    a.e(f"s_mul_i32 s{sU2}, s{sU2}, {64*1280}")
    a.e(f"s_mul_i32 s{sU}, s{sNT}, 320")
    a.e(f"s_add_u32 s{sU2}, s{sU2}, s{sU}")
    a.e(f"s_and_b32 s{sU}, s{sS}, 1")
    a.e(f"s_mul_i32 s{sU}, s{sU}, 160")
    a.e(f"s_add_u32 s{sU2}, s{sU2}, s{sU}")
    srd(a, sXo, 4, 5, f"s{sU2}", "0")
    a.e(f"s_sub_u32 s{sXo+2}, {2048*1280}, s{sU2}")
    srd(a, sOut, 22, 23, f"s{sU2}", "0")
    a.e(f"s_sub_u32 s{sOut+2}, {2048*1280}, s{sU2}")
    XV = t + 6
    a.e(f"v_bfe_u32 v{XV}, v{L16}, 4, 4")
    a.e(f"v_mul_u32_u24 v{XV}, 1280, v{XV}")
    a.e(f"v_lshrrev_b32 v{t+4}, 8, v{L16}")
    a.e(f"v_lshl_add_u32 v{XV}, v{t+4}, 3, v{XV}")
    a.e(f"v_add_u32 v{XV+1}, 20480, v{XV}")
    a.e(f"s_and_b32 s{sU}, s{sS}, 1")
    a.e(f"s_xor_b32 s{sU}, s{sU}, 1")
    a.e(f"s_lshl_b32 s{sU}, s{sU}, 2")
    a.e(f"s_and_b32 s{sU2}, s{sS}, 2")
    a.e(f"s_add_u32 s{sU}, s{sU}, s{sU2}")
    a.e(f"s_mul_i32 s{sKG}, s{sU}, 10240")
    NU = 2
    sQO = [sOO2, sOB_]; sQP = [sTW2, sTO]; VA = [t + 8, t + 9]; VR_ = [t + 10, t + 11]
    XR = 120
    for n in range(NU):
        a.e(f"s_add_u32 s{sU}, s{sW}, {8*n}")
        a.e(f"s_min_u32 s{sU2}, s{sU}, 9")
        a.e(f"s_lshl_b32 s{sPER}, s{sU2}, 11")
        a.e(f"s_add_u32 s{sWB}, s{sPER}, 81920")
        a.e(f"v_add_u32 v{VA[n]}, s{sWB}, v{L16}")
        a.e(f"s_add_u32 s{sWB}, s{sPER}, s{sKG}")
        a.e(f"v_add_u32 v{VR_[n]}, s{sWB}, v{L16}")
        a.e(f"s_lshl_b32 s{sQO[n]}, s{sU2}, 5")
        a.e(f"s_cmp_ge_u32 s{sU2}, 5")
        a.e(f"s_cselect_b32 s{sPER}, {40960-160}, 0")
        a.e(f"s_add_u32 s{sQO[n]}, s{sQO[n]}, s{sPER}")
        a.e(f"s_mul_i32 s{sPER}, s{sS}, 10240")
        a.e(f"s_lshl_b32 s{sQP[n]}, s{sU2}, 10")
        a.e(f"s_add_u32 s{sQP[n]}, s{sQP[n]}, s{sPER}")
        a.e(f"s_cmp_ge_u32 s{sU}, 10")
        a.e(f"s_cselect_b32 s{sQO[n]}, 0x1000000, s{sQO[n]}")
        a.e(f"s_cselect_b32 s{sQP[n]}, 0x4000000, s{sQP[n]}")
    a.wait_all()
    st(fine=True)
    a.e("s_barrier")
    signal("ps", sFG, [f"s_mov_b32 s{sU}, s{sT}"], ZV, ONEV)()
    for n in range(NU):
        for qs in range(2): a.vmem(f"buffer_load_dwordx2 {vr(XR+4*n+2*qs,2)}, v{XV+qs}, s[{sXo}:{sXo+3}], s{sQO[n]} offen", "xl")
    for n in range(NU):
        for kg in range(4):
            for qs in range(2): a.e(f"ds_read_b128 {vr(32*n+8*kg+4*qs,4)}, v{VA[n]} offset:{20480*kg+1024*qs}")
        a.e(f"s_waitcnt lgkmcnt(0)")
        for qs in range(2): a.e(f"ds_read_b128 {vr(64+8*n+4*qs,4)}, v{VR_[n]} offset:{1024*qs}")
    a.vmem(f"buffer_load_dword v{PV_}, v{ZV}, s[{sFG}:{sFG+3}], s{sT} offen sc1", "pp")
    for n in range(NU):
        b = 32 * n
        for r in range(8): a.e(f"v_add_f32 v{b+r}, v{b+r}, v{b+8+r}")
        for r in range(8): a.e(f"v_add_f32 v{b+16+r}, v{b+16+r}, v{b+24+r}")
        for r in range(8): a.e(f"v_add_f32 v{b+r}, v{b+r}, v{b+16+r}")
        for r in range(8): a.e(f"v_mul_f32 v{b+8+r}, {f32(-LOG2E)}, v{b+r}")
        for r in range(8): a.e(f"v_exp_f32 v{b+8+r}, v{b+8+r}")
        for r in range(8): a.e(f"v_add_f32 v{b+8+r}, 1.0, v{b+8+r}")
        for r in range(8): a.e(f"v_rcp_f32 v{b+8+r}, v{b+8+r}")
        for r in range(8): a.e(f"v_mul_f32 v{b+r}, v{b+r}, v{b+8+r}")
    a.e("s_waitcnt lgkmcnt(0)")
    poll_check("pp", sFG, sT, 4, "pp")()
    st(fine=True)
    PR = 80
    for n in range(NU):
        for m_ in range(3):
            a.e(f"s_add_u32 s{sU}, s{sS}, {m_+1}")
            a.e(f"s_and_b32 s{sU}, s{sU}, 3")
            a.e(f"s_mul_i32 s{sU}, s{sU}, {PBH}")
            a.e(f"s_add_u32 s{sU}, s{sU}, s{sQP[n]}")
            a.e(f"buffer_load_dwordx4 {vr(PR+12*n+4*m_,4)}, v{L16}, s[{sP}:{sP+3}], s{sU} offen sc1")
    for n in range(NU):
        b = 32 * n; X0 = b + 8; T0_ = b + 16; A_ = 64 + 8 * n
        for q in range(4):
            a.e(f"v_lshlrev_b32 v{X0+2*q}, 16, v{XR+4*n+q}")
            a.e(f"v_and_b32 v{X0+2*q+1}, 0xffff0000, v{XR+4*n+q}")
        for m_ in range(3):
            a.e(f"s_waitcnt vmcnt({3*(NU-1-n) + (2-m_) + 2*n})")
            for q in range(4):
                a.e(f"v_lshlrev_b32 v{T0_+2*q}, 16, v{PR+12*n+4*m_+q}")
                a.e(f"v_and_b32 v{T0_+2*q+1}, 0xffff0000, v{PR+12*n+4*m_+q}")
            for r in range(8): a.e(f"v_add_f32 v{A_+r}, v{A_+r}, v{T0_+r}")
        for r in range(8): a.e(f"v_fma_f32 v{X0+r}, v{A_+r}, v{b+r}, v{X0+r}")
        for q in range(4): a.e(f"v_cvt_pk_bf16_f32 v{XR+4*n+q}, v{X0+2*q}, v{X0+2*q+1}")
        for qs in range(2): a.e(f"buffer_store_dwordx2 {vr(XR+4*n+2*qs,2)}, v{XV+qs}, s[{sOut}:{sOut+3}], s{sQO[n]} offen")
    st()
    st.flush(sW, TM2)
    a.label(f"L_{K}_done")
    a.e("s_endpgm")
    for sfn in stubs: sfn()
    slow_stub(0); slow_stub(1)
    return a

def kd(name, vgpr, sgpr):
    return f""".amdhsa_kernel {name}
  .amdhsa_next_free_vgpr {vgpr}
  .amdhsa_next_free_sgpr {sgpr}
  .amdhsa_accum_offset {(vgpr+3)//4*4}
  .amdhsa_group_segment_fixed_size 0
  .amdhsa_kernarg_size 96
  .amdhsa_user_sgpr_count 2
  .amdhsa_user_sgpr_kernarg_segment_ptr 1
  .amdhsa_system_sgpr_workgroup_id_x 1
.end_amdhsa_kernel
"""

def main(out):
    a = kernel1()
    n = NAME + "_kernel"
    hdr = open("cdna_kernels/" + NAME + ".s.ref").read().split("; Override launch geometry")[0]
    s = hdr + "; @launch grid=(256,1,1) block=(512,1,1) lds=163840\n"
    s += '.amdgcn_target "amdgcn-amd-amdhsa--gfx950"\n.text\n'
    errs = check_hazards(a.L)
    for e in errs[:20]: print("HAZARD", e)
    s += f".globl {n}\n.p2align 8\n.type {n},@function\n{n}:\n" + a.text()
    s += '.section .rodata,"a"\n.p2align 6\n' + kd(n, 256, 102)
    open(out, "w").write(s)
    print("wrote", out, "hazards:", len(errs), "instrs:", len(a.L))

if __name__ == "__main__":
    args = sys.argv[1:]
    if "--stamps" in args:
        STAMPS = True; args.remove("--stamps")
    for x in list(args):
        if x.startswith("-O"):
            k_, v_ = x[2:].split("=")
            OPT[k_] = int(v_) if v_.lstrip("-").isdigit() else v_.replace("_", " ")
            args.remove(x)
    main(args[0] if args else "cdna_kernels/" + NAME + ".s")
```

```python
import sys, struct, math
from asmlib import *

NAME = "recurrent_scan__sliding_block_cached__glu_gated_geglu__prompt"
def f32(x): return "0x%08x" % struct.unpack("<I", struct.pack("<f", x))[0]
LOG2E = 1.4426950408889634
SCALE_C = (192 ** -0.5) * LOG2E
GELU_C0 = -2.0 * math.sqrt(2.0 / math.pi) * LOG2E
GELU_C1 = GELU_C0 * 0.044715
MF = "v_mfma_f32_16x16x32_bf16"

A_MB = 240 * 1024
WS_A_BYTES = 128 * A_MB
WS_P = WS_A_BYTES
PB_BYTES = 128 * 40 * 1024
NPB = 4
WS_X = WS_P + NPB * PB_BYTES + 65536
WS_G = WS_P + NPB * PB_BYTES + 16384
WS_F = WS_P + NPB * PB_BYTES
STAMPS = False
OPT = {}
WS_ST = 200 * 1024 * 1024

class Stamper:
    def __init__(self, a, base=86, kid=0):
        self.a = a; self.n = 0; self.kid = kid
    def __call__(self, real=False, fine=False):
        if not STAMPS: return
        if fine and not OPT.get("fine"): return
        a = self.a
        if self.n == 0: a.e("v_mov_b32 v255, -1")
        a.e("s_memrealtime s[84:85]" if real else "s_memtime s[84:85]")
        a.e("s_waitcnt lgkmcnt(0)"); a.lgkm = []
        a.e(f"v_writelane_b32 v255, s84, {self.n}")
        self.n += 1; assert self.n <= 64
    def flush(self, swave, vtmp):
        if not STAMPS: return
        a = self.a
        a.e("s_waitcnt vmcnt(0)")
        self()
        a.e("s_memrealtime s[84:85]")
        a.e("s_waitcnt lgkmcnt(0)")
        a.e(f"v_writelane_b32 v255, s84, 63")
        a.e(f"s_lshl_b32 s84, s2, 3")
        a.e(f"s_add_u32 s84, s84, s{swave}")
        a.e(f"s_lshl_b32 s84, s84, 8")
        a.e(f"s_add_u32 s84, s84, {WS_ST + self.kid * 1048576}")
        a.e(f"s_add_u32 s28, s26, s84")
        a.e(f"s_addc_u32 s29, s27, 0")
        a.e(f"s_and_b32 s29, s29, 0xffff")
        a.e(f"s_mov_b32 s30, 256")
        a.e(f"s_mov_b32 s31, 0x20000")
        a.e(f"v_mbcnt_lo_u32_b32 v{vtmp}, -1, 0")
        a.e(f"v_mbcnt_hi_u32_b32 v{vtmp}, -1, v{vtmp}")
        a.e(f"v_lshlrev_b32 v{vtmp}, 2, v{vtmp}")
        a.e(f"buffer_store_dword v255, v{vtmp}, s[28:31], 0 offen")

def timed(a, acc, fn):
    if not OPT.get("acc"): fn(); return
    a.e("s_memtime s[82:83]"); a.e("s_waitcnt lgkmcnt(0)"); a.lgkm = []
    a.e(f"s_sub_u32 s{acc}, s{acc}, s82")
    fn()
    a.e("s_memtime s[82:83]"); a.e("s_waitcnt lgkmcnt(0)")
    a.e(f"s_add_u32 s{acc}, s{acc}, s82")

def load_ptrs(a):
    a.e("s_load_dwordx16 s[4:19], s[0:1], 0")
    a.e("s_load_dwordx8 s[20:27], s[0:1], 64")

def srd(a, d, base_lo, base_hi, off_sreg, nbytes_expr):
    if off_sreg is None:
        a.e(f"s_mov_b32 s{d}, s{base_lo}")
        a.e(f"s_and_b32 s{d+1}, s{base_hi}, 0xffff")
    else:
        a.e(f"s_add_u32 s{d}, s{base_lo}, {off_sreg}")
        a.e(f"s_addc_u32 s{d+1}, s{base_hi}, 0")
        a.e(f"s_and_b32 s{d+1}, s{d+1}, 0xffff")
    a.e(f"s_mov_b32 s{d+2}, {nbytes_expr}")
    a.e(f"s_mov_b32 s{d+3}, 0x20000")

def mfma_t(d, A, B, c=None):
    cc = vr(d, 4) if c is None else (c if isinstance(c, str) else vr(c, 4))
    return f"{MF} {vr(d,4)}, {vr(A,4)}, {vr(B,4)}, {cc}"

class Stream:
    def __init__(self, a, FR, ring=4, depth=3):
        self.a = a; self.m = []; self.pre = {}; self.post = {}
        self.FR = FR; self.R = ring; self.D = depth
        self.frags = []
    def n(self): return len(self.m)
    def add_pre(self, g, fn): self.pre.setdefault(g, []).append(fn)
    def add_post(self, g, fn): self.post.setdefault(g, []).append(fn)
    def mfma(self, text): self.m.append(text); return len(self.m) - 1
    def buf(self, f=None):
        f = len(self.frags) if f is None else f
        return self.FR + 4 * (f % self.R)
    def frag(self, reads, mfmas):
        f = len(self.frags); b = self.buf(f)
        g0 = self.n()
        self.frags.append((g0, [r(b) for r in reads], len(mfmas)))
        for m_ in mfmas: self.mfma(m_(b))
        return g0
    def spread(self, fns, g0, g1):
        n = len(fns)
        for k, fn in enumerate(fns):
            self.add_post(g0 + (k * (g1 - g0)) // max(n, 1), fn)
    def read_gap(self, f):
        return self.frags[f - self.D][0] if f >= self.D else -1
    def emit(self, tail_reads=None):
        a = self.a
        rd_at = {}
        nf = len(self.frags)
        for f, (g0, reads, nm) in enumerate(self.frags):
            if f < self.D:
                for t in reads: a.ds(t, ("f", f))
            else:
                hg, _, hn = self.frags[f - self.D]
                for k, t in enumerate(reads):
                    rd_at.setdefault(hg + min(k, hn - 1), []).append((t, f))
        first = {g0: f for f, (g0, _, _) in enumerate(self.frags)}
        for g, mt in enumerate(self.m):
            for fn in self.pre.get(g, []): fn()
            if g in first: a.wait_lgkm(("f", first[g]))
            a.e(mt)
            posts = self.post.get(g, [])
            nv = 0
            if OPT.get("vfirst", 1):
                while nv < len(posts) and getattr(posts[nv], "valu", False): posts[nv](); nv += 1
            for (t, f) in rd_at.get(g, []): a.ds(t, ("f", f))
            for fn in posts[nv:]: fn()

def E(a, text):
    fn = lambda: a.e(text)
    fn.valu = text.startswith("v_") and not text.startswith("v_add_u32")
    return fn

def kernel1():
    a = Asm(); K = "k1"; st = Stamper(a, kid=0)
    ACC = lambda jb, qs: (jb * 2 + qs) * 4
    XS = 144; FR = 176; SUMA = 192; GRAM = 200; CSA = 208
    O = ACC; QP = lambda qs, s: 96 + 24 * qs + 4 * s
    S = lambda kb, qs: 144 + (kb * 2 + qs) * 4
    P = lambda qs, u: 192 + (qs * 2 + u) * 4
    NEGM = lambda qs: 208 + 4 * qs
    LT = lambda qs: 216 + 4 * qs
    ONES = 224; LS = 228; TP = 230
    DUT = 230
    AWQ = 238; AGU = 242; DA = 243; DB = 246; XOFF = 247; L16 = 248; KA = 249; VB = 252
    VR = AWQ; KR = [AGU, DB]
    sX, sWQ, sGU, sK, sV, sWS = 28, 32, 36, 40, 44, 48
    sW, sH, sB = 52, 53, 54
    sTW, sOA, sOB, sOB2, sMB0, sTX = 55, 56, 57, 58, 59, 60
    sEX48 = 62
    sXO, sXO2, sT, sT2, sT3 = 64, 65, 66, 67, 68
    sW3 = 69; sHO = 70; sG1 = 71; sFL = 72; sTHR = 73; sKO = 74; sVO = 75
    sRET = 76
    GOFF = 24576; WSLOT = 24576 + 8 * 1664 - 128
    KSL = [114688, 0, 24576]; VSL = [139264, 49152, 73728]
    CSL = 3 * WSLOT
    assert CSL + 1152 <= KSL[0]
    wslot = lambda k: ((k + 2) % 3) * WSLOT
    ROT = OPT.get("rot", 1)

    a.e("s_cmp_ge_u32 s2, 256")
    a.e(f"s_cbranch_scc1 L_{K}_done")
    st(True); st()
    if OPT.get("acc"):
        for r in (99, 100, 101): a.e(f"s_mov_b32 s{r}, 0")
    load_ptrs(a)
    LANE = 0; t = 2
    sFG = 88; sDB_ = 92; sU, sU2 = 97, 98
    NXS = OPT.get("nxs", 3)
    XSET = [144, 160, 192]
    stubs = []
    a.e(f"v_lshrrev_b32 v1, 6, v0")
    a.e(f"v_and_b32 v{LANE}, 63, v0")
    a.e(f"v_readfirstlane_b32 s{sW}, v1")
    a.e(f"s_and_b32 s{sT}, s2, 7")
    a.e(f"s_lshr_b32 s{sT2}, s2, 3")
    a.e(f"s_lshl_b32 s{sH}, s{sT}, 2")
    a.e(f"s_and_b32 s{sT}, s{sT2}, 3")
    a.e(f"s_add_u32 s{sH}, s{sH}, s{sT}")
    a.e(f"s_lshr_b32 s{sB}, s{sT2}, 2")
    HYB = OPT.get("hyb", 1); sR0 = 61
    if HYB:
        a.e(f"s_lshl_b32 s{sT}, s{sT}, 1")
        a.e(f"s_add_u32 s{sR0}, s{sT}, s{sB}")
        a.e(f"s_sub_u32 s{sT}, s{sR0}, 9")
        a.e(f"s_cmp_ge_u32 s{sR0}, 9")
        a.e(f"s_cselect_b32 s{sR0}, s{sT}, s{sR0}")
        a.e(f"s_add_u32 s{sR0}, s{sR0}, 1")
        a.e(f"s_mov_b32 s{sTW}, 0")
    else:
        a.e(f"s_mul_i32 s{sT}, s{sT}, 3")
        a.e(f"s_add_u32 s{sTW}, s{sT}, s{sB}")
        a.e(f"s_sub_u32 s{sT}, s{sTW}, 10")
        a.e(f"s_cmp_ge_u32 s{sTW}, 10")
        a.e(f"s_cselect_b32 s{sTW}, s{sT}, s{sTW}")
    a.e(f"s_mov_b32 s{sTX}, s{sTW}")
    a.e(f"s_mul_i32 s{sW3}, s{sW}, 3072")
    a.e(f"v_lshlrev_b32 v{L16}, 4, v{LANE}")
    a.e(f"s_lshl_b32 s{sT}, s{sB}, 5")
    a.e(f"s_add_u32 s{sT}, s{sT}, s{sH}")
    a.e(f"s_lshl_b32 s{sT}, s{sT}, 3")
    a.e(f"s_add_u32 s{sT}, s{sT}, s{sW}")
    a.e(f"s_mul_i32 s{sT2}, s{sT}, 1280")
    a.e(f"v_lshlrev_b32 v20, 5, v{LANE}")
    a.e("s_waitcnt lgkmcnt(0)")
    srd(a, sX, 4, 5, f"s{sT2}", "1280")
    a.vmem(f"buffer_load_dwordx4 v[24:27], v20, s[{sX}:{sX+3}], 0 offen", "xr")
    a.vmem(f"buffer_load_dwordx4 v[28:31], v20, s[{sX}:{sX+3}], 0 offen offset:16", "xr")
    st()
    a.e(f"s_lshl_b32 s{sT}, s{sW}, 3")
    def voffs(i, which):
        a.e(f"v_add_u32 v{t}, {64*i}, v{LANE}")
        a.e(f"v_mul_u32_u24 v{t+1}, 2731, v{t}")
        a.e(f"v_lshrrev_b32 v{t+1}, 16, v{t+1}")
        a.e(f"v_mul_u32_u24 v{t+2}, 24, v{t+1}")
        a.e(f"v_sub_u32 v{t+2}, v{t}, v{t+2}")
        a.e(f"v_add_u32 v{t+1}, s{sT}, v{t+1}")
        if which == "W":
            a.e(f"v_and_b32 v{t+3}, 2, v{t+1}")
            a.e(f"v_bfe_u32 v{t+4}, v{t+1}, 3, 1")
            a.e(f"v_lshl_or_b32 v{t+3}, v{t+4}, 2, v{t+3}")
            a.e(f"v_xor_b32 v{t+3}, v{t+2}, v{t+3}")
            a.e(f"v_mul_u32_u24 v{t+6}, 12288, v{t+1}")
            a.e(f"v_lshl_add_u32 v{DA+i}, v{t+3}, 4, v{t+6}")
        else:
            a.e(f"v_mul_u32_u24 v{t+6}, 384, v{t+1}")
            a.e(f"v_bfe_u32 v{t+3}, v{t+1}, 1, 3")
            a.e(f"v_xor_b32 v{t+3}, v{t+2}, v{t+3}")
            a.e(f"v_lshl_add_u32 v{KA+i}, v{t+3}, 4, v{t+6}")
            a.e(f"v_and_b32 v{t+3}, 6, v{t+1}")
            a.e(f"v_xor_b32 v{t+3}, v{t+2}, v{t+3}")
            a.e(f"v_lshl_add_u32 v{VB+i}, v{t+3}, 4, v{t+6}")
    for i in range(3): voffs(i, "W")
    a.e(f"s_and_b32 s{sT3}, s{sW}, 3")
    a.e(f"s_lshl_b32 s{sT2}, s{sT3}, 4")
    a.e(f"v_mul_u32_u24 v{t+1}, 10923, v{LANE}")
    a.e(f"v_lshrrev_b32 v{t+1}, 16, v{t+1}")
    a.e(f"v_mul_u32_u24 v{t+2}, 6, v{t+1}")
    a.e(f"v_sub_u32 v{t+2}, v{LANE}, v{t+2}")
    a.e(f"v_add_u32 v{t+1}, s{sT2}, v{t+1}")
    a.e(f"v_mul_u32_u24 v{t+6}, 3072, v{t+1}")
    a.e(f"v_lshl_add_u32 v{DB}, v{t+2}, 4, v{t+6}")
    a.e(f"s_mul_i32 s{sMB0}, s{sT3}, {2*1664}")
    a.e(f"s_cmp_ge_u32 s{sW}, 4")
    a.e(f"s_cselect_b32 s{sT2}, {GOFF+768}, {GOFF}")
    a.e(f"s_add_u32 s{sMB0}, s{sMB0}, s{sT2}")
    a.e(f"s_mov_b32 s{sEX48}, -1")
    a.e(f"s_mov_b32 s{sEX48+1}, 0xffff")
    a.e(f"s_mov_b32 s{sG1}, {f32(GELU_C1)}")
    a.e(f"s_mul_i32 s{sT2}, s{sH}, 384")
    srd(a, sWQ, 10, 11, f"s{sT2}", "0")
    a.e(f"s_sub_u32 s{sWQ+2}, {640*12288}, s{sT2}")
    a.e(f"s_cmp_ge_u32 s{sW}, 4")
    a.e(f"s_cselect_b32 s14, s18, s16")
    a.e(f"s_cselect_b32 s15, s19, s17")
    a.e(f"s_mul_i32 s{sT2}, s{sH}, 96")
    srd(a, sGU, 14, 15, f"s{sT2}", "0")
    a.e(f"s_sub_u32 s{sGU+2}, {640*3072}, s{sT2}")
    a.e(f"s_mov_b32 s{sT2}, {WS_F}")
    srd(a, sFG, 26, 27, f"s{sT2}", f"{16384 + 256*128}")
    srd(a, sDB_, 24, 25, None, "256")
    a.e(f"s_lshl_b32 s{sT2}, s{sB}, 4")
    a.e(f"s_lshr_b32 s{sT3}, s{sH}, 1")
    a.e(f"s_add_u32 s{sT2}, s{sT2}, s{sT3}")
    a.e(f"s_mul_i32 s{sT2}, s{sT2}, 20480")
    a.e(f"s_add_u32 s{sT2}, s{sT2}, {WS_X}")
    srd(a, sK, 26, 27, f"s{sT2}", "20480")
    LNB = KSL[0]
    a.e(f"s_mul_i32 s{sT2}, s{sW}, 10")
    a.e(f"v_lshrrev_b32 v{t}, 3, v{LANE}")
    a.e(f"v_add_u32 v{t}, s{sT2}, v{t}")
    a.e(f"v_and_b32 v{t+1}, 7, v{LANE}")
    a.e(f"v_mul_u32_u24 v21, 1296, v{t+1}")
    a.e(f"v_lshl_add_u32 v21, v{t}, 4, v21")
    a.e(f"v_add_u32 v21, {LNB}, v21")
    a.e(f"s_and_b32 s{sT2}, s{sH}, 1")
    a.e(f"s_lshl_b32 s{sT2}, s{sT2}, 3")
    a.e(f"v_add_u32 v{t+1}, s{sT2}, v{t+1}")
    a.e(f"v_lshlrev_b32 v22, 8, v{t}")
    a.e(f"v_lshl_add_u32 v22, v{t+1}, 4, v22")
    a.e(f"s_mul_i32 s{sT2}, s{sW}, 1296")
    a.e(f"s_add_u32 s{sT2}, s{sT2}, {LNB}")
    a.e(f"v_add_u32 v23, s{sT2}, v20")
    def wave_sum(v, sdst):
        for m_ in ("row_shr:1", "row_shr:2", "row_shr:4", "row_shr:8"):
            a.e("s_nop 1")
            a.e(f"v_add_f32_dpp v{v}, v{v}, v{v} {m_} row_mask:0xf bank_mask:0xf bound_ctrl:0")
        a.e("s_nop 1")
        a.e(f"v_add_f32_dpp v{v}, v{v}, v{v} row_bcast:15 row_mask:0xa bank_mask:0xf")
        a.e("s_nop 1")
        a.e(f"v_add_f32_dpp v{v}, v{v}, v{v} row_bcast:31 row_mask:0xc bank_mask:0xf")
        a.e("s_nop 1")
        a.e(f"v_readlane_b32 s{sdst}, v{v}, 63")
        a.e("s_nop 3")
    def rbf(d, src):
        a.e(f"v_cvt_pk_bf16_f32 v{d}, v{src}, v{src}")
        a.e(f"v_and_b32 v{d}, 0xffff0000, v{d}")
    def w_block(k):
        base = wslot(k); tag = ("W", k); fns = []
        def head():
            a.e(f"s_mul_i32 s{sOA}, s{sTW}, 786432")
            a.e(f"s_mul_i32 s{sOB}, s{sTW}, 196608")
        fns.append(head)
        for i in range(3):
            def f(i=i):
                a.e(f"s_add_u32 m0, s{sW3}, {base + 1024*i}")
                if i == 0: a.e(f"s_add_u32 s{sOB2}, s{sOB}, 24576")
                elif i == 1: a.e(f"s_add_u32 s{sTW}, s{sTW}, 1")
                else: a.e(f"s_cmp_eq_u32 s{sTW}, 10")
                a.vmem(f"buffer_load_dwordx4 v{DA+i}, s[{sWQ}:{sWQ+3}], s{sOA} offen lds", tag)
                if i == 2:
                    a.e(f"s_cselect_b32 s{sTW}, {HYB}, s{sTW}")
                    if HYB and k == 0: a.e(f"s_mov_b32 s{sTW}, s{sR0}")
            fns.append(f)
        for i in range(2):
            def f(i=i):
                a.e(f"s_add_u32 m0, s{sMB0}, {base + 1664*i}")
                a.e(f"s_mov_b64 exec, s[{sEX48}:{sEX48+1}]")
                a.vmem(f"buffer_load_dwordx4 v{DB}, s[{sGU}:{sGU+3}], s{sOB2 if i else sOB} offen lds", tag)
                a.e("s_mov_b64 exec, -1")
            fns.append(f)
        return fns
    W1E = OPT.get("w1e", 0)
    if HYB:
        for f in w_block(0): f()
        if W1E:
            for f in w_block(1): f()
    a.wait_vm("xr")
    XF = 32
    for q in range(8):
        a.e(f"v_lshlrev_b32 v{XF+2*q}, 16, v{24+q}")
        a.e(f"v_and_b32 v{XF+2*q+1}, 0xffff0000, v{24+q}")
    a.e(f"v_add_f32 v48, v{XF}, v{XF+1}")
    a.e(f"v_add_f32 v49, v{XF+2}, v{XF+3}")
    for q in range(4, 16, 2):
        a.e(f"v_add_f32 v48, v48, v{XF+q}")
        a.e(f"v_add_f32 v49, v49, v{XF+q+1}")
    a.e(f"v_add_f32 v48, v48, v49")
    wave_sum(48, sU)
    a.e(f"v_mov_b32 v50, {f32(1.0/640)}")
    a.e(f"v_mul_f32 v50, s{sU}, v50")
    a.e(f"v_cmp_gt_u32 vcc, 40, v{LANE}")
    a.e(f"v_mov_b32 v48, 0")
    a.e(f"v_mov_b32 v49, 0")
    for q in range(16):
        a.e(f"v_sub_f32 v{52+q}, v{XF+q}, v50")
    for q in range(0, 16, 2):
        a.e(f"v_fmac_f32 v48, v{52+q}, v{52+q}")
        a.e(f"v_fmac_f32 v49, v{52+q+1}, v{52+q+1}")
    a.e(f"v_add_f32 v48, v48, v49")
    a.e(f"v_cndmask_b32 v48, 0, v48, vcc")
    wave_sum(48, sU)
    a.e(f"v_mov_b32 v51, {f32(1.0/640)}")
    a.e(f"v_mul_f32 v51, s{sU}, v51")
    rbf(50, 50); rbf(51, 51)
    a.e(f"v_add_f32 v51, {f32(1e-5)}, v51")
    rbf(51, 51)
    a.e(f"v_sqrt_f32 v51, v51")
    a.e("s_nop 0")
    rbf(51, 51)
    a.e(f"v_rcp_f32 v51, v51")
    for q in range(16): a.e(f"v_sub_f32 v{52+q}, v{XF+q}, v50")
    for q in range(8): a.e(f"v_cvt_pk_bf16_f32 v{24+q}, v{52+2*q}, v{52+2*q+1}")
    for q in range(8):
        a.e(f"v_lshlrev_b32 v{XF+2*q}, 16, v{24+q}")
        a.e(f"v_and_b32 v{XF+2*q+1}, 0xffff0000, v{24+q}")
    for q in range(16): a.e(f"v_mul_f32 v{XF+q}, v{XF+q}, v51")
    for q in range(8): a.e(f"v_cvt_pk_bf16_f32 v{24+q}, v{XF+2*q}, v{XF+2*q+1}")
    a.e(f"s_mov_b32 exec_hi, 0xff")
    a.e(f"ds_write_b128 v23, v[24:27]")
    a.e(f"ds_write_b128 v23, v[28:31] offset:16")
    a.e("s_mov_b64 exec, -1")
    a.e("s_waitcnt lgkmcnt(0)")
    a.e("s_barrier")
    a.e(f"ds_read_b128 v[32:35], v21")
    a.e(f"ds_read_b128 v[36:39], v21 offset:128")
    a.e(f"s_lshl_b32 s{sT2}, s{sB}, 3")
    a.e(f"s_add_u32 s{sT2}, s{sT2}, s{sH}")
    a.e(f"s_lshl_b32 s{sT2}, s{sT2}, 7")
    a.e(f"s_cmp_lt_u32 s{sH}, 8")
    a.e(f"s_cselect_b32 s{sT2}, s{sT2}, 0x100000")
    for r in range(40, 44): a.e(f"v_mov_b32 v{r}, 0")
    a.e("s_waitcnt lgkmcnt(0)")
    a.vmem(f"buffer_store_dwordx4 v[32:35], v22, s[{sK}:{sK+3}], 0 offen sc1", "xs")
    a.e("s_mov_b64 exec, 0xffff")
    a.vmem(f"buffer_store_dwordx4 v[36:39], v22, s[{sK}:{sK+3}], 0 offen offset:2048 sc1", "xs")
    a.e(f"s_mov_b64 exec, 1")
    a.vmem(f"buffer_store_dword v40, v40, s[{sFG}:{sFG+3}], s{sT2} offen sc1", "xs")
    a.e(f"s_lshl_b32 s99, s2, 7")
    a.e(f"s_add_u32 s99, s99, 16384")
    a.vmem(f"buffer_store_dwordx4 v[40:43], v40, s[{sFG}:{sFG+3}], s99 offen sc1", "xs")
    a.e(f"s_mov_b64 exec, -1")
    st()

    def kv_block(which, j):
        srdr, vo, base, so = (sK, KA, KSL[j % 3], sKO) if which == "K" else (sV, VB, VSL[j % 3], sVO)
        tag = (which, j); fns = []
        def head():
            a.e(f"s_add_u32 s{so}, s{sB}, {j}")
            a.e(f"s_and_b32 s{so}, s{so}, 7")
            a.e(f"s_mul_i32 s{so}, s{so}, 24576")
        fns.append(head)
        for i in range(3):
            def f(i=i):
                a.e(f"s_add_u32 m0, s{sW3}, {base + 1024*i}")
                a.e("s_nop 0")
                a.vmem(f"buffer_load_dwordx4 v{vo+i}, s[{srdr}:{srdr+3}], s{so} offen lds", tag)
            fns.append(f)
        return fns
    def x_loads(k, ks):
        xb = XSET[k % NXS]; fns = []
        if ks == 0:
            def head():
                a.e(f"s_lshl_b32 s{sXO}, s{sTX}, 11")
                a.e(f"s_add_u32 s{sTX}, s{sTX}, 1")
                a.e(f"s_add_u32 s{sXO2}, s{sXO}, 20480")
                a.e(f"s_cmp_eq_u32 s{sTX}, 10")
                a.e(f"s_cselect_b32 s{sTX}, {HYB}, s{sTX}")
                if HYB and k == 0: a.e(f"s_mov_b32 s{sTX}, s{sR0}")
            fns.append(head)
        for qs in range(2):
            fns.append(lambda qs=qs: a.vmem(f"buffer_load_dwordx4 {vr(xb+8*ks+4*qs,4)}, v{L16}, s[{sX}:{sX+3}], s{sXO2 if qs else sXO} offen offset:{1024*ks} sc1", ("x", k, ks)))
        return fns
    sFO = 99
    def flag_signal(name, stage, tv):
        def fn():
            a.e(f"s_cmp_eq_u32 s{sW}, 0")
            a.e(f"s_cbranch_scc1 L_{name}_sig")
            a.label(f"L_{name}_sigr")
        def stub():
            z, o, ad, pv = tv
            a.label(f"L_{name}_sig")
            a.e(f"v_mov_b32 v{z}, 0")
            a.e(f"v_mov_b32 v{o}, 1")
            a.e(f"s_lshl_b32 s{sU}, s{sB}, 5")
            a.e("s_mov_b64 exec, 1")
            a.e(f"buffer_atomic_add v{o}, v{z}, s[{sDB_}:{sDB_+3}], s{sU} offen offset:{4*stage} sc0 sc1")
            a.e("s_waitcnt vmcnt(0)")
            a.e("s_mov_b64 exec, -1")
            a.e(f"v_readfirstlane_b32 s{sU2}, v{o}")
            a.e("s_nop 3")
            a.e(f"s_cmp_eq_u32 s{sU2}, 31")
            a.e(f"s_cbranch_scc0 L_{name}_sigr")
            a.e(f"v_lshrrev_b32 v{ad}, 4, v{L16}")
            if stage > 0:
                a.e(f"v_lshlrev_b32 v{z}, 5, v{ad}")
                a.e(f"s_mov_b32 s{sU}, 0")
                a.e("s_mov_b64 exec, 0xff")
                a.label(f"L_{name}_chk")
                a.e(f"buffer_load_dword v{pv}, v{z}, s[{sDB_}:{sDB_+3}], 0 offen sc1")
                a.e(f"s_add_u32 s{sU}, s{sU}, 1")
                a.e("s_waitcnt vmcnt(0)")
                a.e(f"v_cmp_ne_u32 vcc, 32, v{pv}")
                a.e(f"s_cbranch_vccz L_{name}_chkd")
                a.e("s_sleep 8")
                a.e(f"s_cmp_lt_u32 s{sU}, 0x20000")
                a.e(f"s_cbranch_scc1 L_{name}_chk")
                a.label(f"L_{name}_chkd")
                a.e("s_mov_b64 exec, -1")
                a.e(f"v_and_b32 v{z}, 3, v{ad}")
                a.e(f"v_lshrrev_b32 v{ad}, 2, v{ad}")
                a.e(f"v_lshl_add_u32 v{ad}, v{ad}, 3, v{z}")
                a.e(f"s_and_b32 s{sU}, s{sB}, 3")
                a.e(f"s_lshl_b32 s{sU}, s{sU}, 6")
                a.e(f"s_and_b32 s{sU2}, s{sB}, 4")
                a.e(f"s_add_u32 s{sU}, s{sU}, s{sU2}")
            else:
                a.e(f"s_lshl_b32 s{sU}, s{sB}, 5")
            a.e(f"s_lshl_b32 s{sU}, s{sU}, 7")
            a.e(f"s_add_u32 s{sU}, s{sU}, 16384")
            a.e(f"v_lshlrev_b32 v{ad}, 7, v{ad}")
            a.e(f"v_mov_b32 v{o}, 1")
            a.e("s_mov_b64 exec, 0xffffffff")
            a.e(f"buffer_store_dword v{o}, v{ad}, s[{sFG}:{sFG+3}], s{sU} offen offset:{4*stage} sc1")
            a.e("s_mov_b64 exec, -1")
            a.e(f"s_branch L_{name}_sigr")
        stubs.append(stub)
        return fn
    def flag_wait(name, stage, pv, zv, after=None):
        def fn():
            a.e(f"s_cmp_eq_u32 s{sW}, 0")
            a.e(f"s_cbranch_scc1 L_{name}_spin")
            a.label(f"L_{name}_ok")
        def stub():
            a.label(f"L_{name}_spin")
            a.e(f"s_mov_b32 s{sU}, 0")
            a.e(f"v_mov_b32 v{zv}, 0")
            a.e("s_mov_b64 exec, 1")
            a.label(f"L_{name}_poll")
            a.e(f"buffer_load_dword v{pv}, v{zv}, s[{sFG}:{sFG+3}], s{sFO} offen offset:{4*stage} sc1")
            a.e(f"s_add_u32 s{sU}, s{sU}, 1")
            a.e("s_waitcnt vmcnt(0)")
            a.e(f"v_cmp_ne_u32 vcc, 1, v{pv}")
            a.e(f"s_cbranch_vccz L_{name}_done")
            a.e(f"s_sleep {OPT.get('slp', 2)}")
            a.e(f"s_cmp_lt_u32 s{sU}, 0x20000")
            a.e(f"s_cbranch_scc1 L_{name}_poll")
            a.label(f"L_{name}_done")
            a.e("s_mov_b64 exec, -1")
            if after: after()
            a.e(f"s_branch L_{name}_ok")
        stubs.append(stub)
        return fn

    if not HYB:
        for f in w_block(0): f()
    a.wait_vm("xs")
    a.e("s_barrier")
    flag_signal("xs", 0, (40, 41, 42, 43))()
    if HYB and not W1E:
        a.e(f"s_cmp_eq_u32 s{sW}, 0")
        a.e(f"s_cbranch_scc1 L_w1_skip")
        for f in w_block(1): f()
        a.label("L_w1_skip")
    st()
    a.e(f"s_lshl_b32 s{sT2}, s{sB}, 3")
    a.e(f"s_add_u32 s{sT2}, s{sT2}, s{sW}")
    a.e(f"s_mul_i32 s{sU}, s{sT2}, 40960")
    a.e(f"s_add_u32 s{sU}, s{sU}, {WS_X}")
    srd(a, sX, 26, 27, f"s{sU}", "40960")
    a.e(f"s_mul_i32 s{sT2}, s{sT2}, {2*A_MB}")
    srd(a, sWS, 26, 27, f"s{sT2}", f"{2*A_MB}")
    a.e(f"s_mul_i32 s{sT2}, s{sH}, 786432")
    a.e(f"s_add_u32 s{sT2}, s{sT2}, {1536*384}")
    srd(a, sK, 6, 7, f"s{sT2}", "196608")
    srd(a, sV, 8, 9, f"s{sT2}", "196608")
    for i in range(3): voffs(i, "KV")
    a.e(f"v_lshrrev_b32 v{t+1}, 4, v{LANE}")
    a.e(f"v_bfe_u32 v{t+3}, v{LANE}, 2, 2")
    a.e(f"v_and_b32 v{t+4}, 3, v{LANE}")
    a.e(f"v_lshlrev_b32 v{t+4}, 3, v{t+4}")
    a.e(f"v_bfe_u32 v{t+5}, v{LANE}, 3, 2")
    a.e(f"v_lshl_add_u32 v{t+7}, v{t+1}, 3, v{t+3}")
    a.e(f"v_mul_u32_u24 v{t+8}, 384, v{t+7}")
    a.e(f"v_add_u32 v{t+8}, v{t+8}, v{t+4}")
    a.e(f"v_add_u32 v{t+8}, {2*WSLOT}, v{t+8}")
    for i in range(4):
        a.e(f"v_xor_b32 v{t+9}, {i}, v{t+5}")
        a.e(f"v_lshl_add_u32 v{AWQ+i}, v{t+9}, 5, v{t+8}")
    a.e(f"v_mul_u32_u24 v{t+8}, 1664, v{t+1}")
    a.e(f"v_mul_u32_u24 v{t+9}, 96, v{t+3}")
    a.e(f"v_add3_u32 v{t+8}, v{t+8}, v{t+9}, v{t+4}")
    a.e(f"v_add_u32 v{AGU}, {GOFF + 2*WSLOT}, v{t+8}")
    for i in range(4): a.e(f"v_mov_b32 v{ONES+i}, 0x3f803f80")
    a.wait_vm(("W", 0))
    st()
    def w1_late():
        if HYB and not W1E:
            for f in w_block(1): f()
    flag_wait("px", 0, 42, 43, w1_late)()
    a.e("s_barrier")
    st()
    for f in x_loads(0, 0) + x_loads(0, 1): f()

    sa = Stream(a, FR)
    tile_first_frag = []; tile_gap0 = []
    addr_regs = [AWQ, AWQ + 1, AWQ + 2, AWQ + 3, AGU]
    started = set()
    def C0(d):
        if d in started: return None
        started.add(d); return "0"
    T = TP + 3
    order9 = [12, 15, 13, 16, 14, 17] + list(range(12))
    g_blk = {}
    for k in range(10):
        xs_ = XSET[k % NXS]
        wb = 0 if wslot(k) < 2 * WSLOT else 2 * WSLOT
        so = wslot(k) - wb
        tile_first_frag.append(len(sa.frags)); tile_gap0.append(sa.n())
        def main(ks, jb):
            xb = xs_ + 8 * ks
            if jb < 12:
                rd = [lambda b, tt=tt: f"ds_read_b64_tr_b16 {vr(b+2*tt,2)}, v{AWQ+(jb&3)} offset:{so+(32*ks+4*tt)*384+(jb>>2)*128}" for tt in range(2)]
            else:
                jj = (jb - 12) % 3; up = (jb - 12) // 3
                rd = [lambda b, tt=tt: f"ds_read_b64_tr_b16 {vr(b+2*tt,2)}, v{AGU} offset:{so+ks*6656+tt*384+up*768+jj*32}" for tt in range(2)]
            sa.frag(rd, [lambda b, qs=qs: mfma_t(ACC(jb, qs), b, xb + 4 * qs, C0(ACC(jb, qs))) for qs in range(2)])
        if k < 9:
            for ks in range(2):
                sa.add_pre(sa.n(), lambda k=k, ks=ks: a.wait_vm(("x", k, ks)))
                for jb in range(18): main(ks, jb)
        else:
            sa.add_pre(sa.n(), lambda: a.wait_vm(("x", 9, 1)))
            for jb in order9:
                main(0, jb); main(1, jb); g_blk[jb] = sa.n()
    tile_first_frag.append(len(sa.frags)); tile_gap0.append(sa.n())
    NG = sa.n()
    KVL = 1
    issue = {k: {"w": [], "x": []} for k in range(10)}
    for k in range(1, 10):
        if not (HYB and k == 1): issue[max(k - 2, 0)]["w"] += w_block(k)
        issue[max(k - (NXS - 1), 1 if k >= 2 else 0)]["x"] += x_loads(k, 0) + x_loads(k, 1)
    KVM = OPT.get("kvm", 1)
    kb0 = kv_block("K", 0); vb0 = kv_block("V", 0)
    if KVM == 0:
        issue[8]["w"] += kb0 + vb0
    elif KVM == 1:
        pieces = [kb0[:2], kb0[2:3], kb0[3:], vb0[:2], vb0[2:3], vb0[3:]]
        for n in range(6): sa.spread(pieces[n], tile_gap0[n + 2] + 63, tile_gap0[n + 2] + 65)
    elif KVM == 2:
        sa.spread(kb0 + vb0, tile_gap0[7] + 30, tile_gap0[7] + 64)
    elif KVM == 3:
        sa.spread(kb0, tile_gap0[7] + 30, tile_gap0[7] + 64)
        issue[8]["w"] += vb0
    for k in range(9):
        g0 = tile_gap0[k]
        if k == 0 and HYB:
            sa.spread(issue[0]["x"][:5], OPT.get("x1a", 0), OPT.get("x1a", 0) + 10)
            sa.spread(issue[0]["w"] + issue[0]["x"][5:], OPT.get("r1b", 36), 64)
        elif k == 0:
            sa.spread(issue[0]["w"][:6] + issue[0]["x"][:5], 0, 18)
            sa.spread(issue[0]["x"][5:] + issue[0]["w"][6:], OPT.get("r1b", 36), 64)
        elif k == 7 and KVM >= 2:
            sa.spread(issue[k]["w"], g0, g0 + 28)
            sa.spread(issue[k]["x"], g0 + 1, g0 + 28)
        else:
            sa.spread(issue[k]["w"], g0 + (OPT.get("kvo", 0) if k == 8 else 0), g0 + 62)
            sa.spread(issue[k]["x"], g0 + 3, g0 + 60)
    sa.spread(kv_block("K", 1), NG - 30, NG - 10)
    for k in range(9):
        gb = sa.read_gap(tile_first_frag[k + 1])
        def bar(k=k):
            a.wait_vm(("W", k + 1))
            a.e("s_waitcnt lgkmcnt(0)"); a.lgkm = []
            a.e("s_barrier")
            st(fine=True)
            w0 = 0 if wslot(k) < 2 * WSLOT else 2 * WSLOT
            w1 = 0 if wslot(k + 1) < 2 * WSLOT else 2 * WSLOT
            if w0 != w1:
                for r in addr_regs: a.e(f"v_add_u32 v{r}, {(w1-w0) & 0xffffffff}, v{r}")
        sa.add_pre(gb, bar)
    G0 = T + 2; HT = 208
    sC = sFL
    epi = [(E(a, f"v_mov_b32 v{G0}, {f32(GELU_C0)}"), tile_gap0[9]), (E(a, f"s_mul_i32 s{sHO}, s{sH}, 3"), tile_gap0[9]),
           (E(a, f"s_mov_b32 s{sC}, {f32(SCALE_C)}"), tile_gap0[9])]
    for n, jb in enumerate(order9):
        ge = g_blk[jb] + 3
        L_ = []
        if jb >= 15:
            jj = jb - 15
            g0 = ACC(12 + jj, 0); u0 = ACC(jb, 0)
            for r in range(8): L_.append(f"v_mul_f32 v{HT+r}, v{g0+r}, v{g0+r}")
            for r in range(8): L_.append(f"v_fma_f32 v{HT+r}, v{HT+r}, s{sG1}, v{G0}")
            for r in range(8): L_.append(f"v_mul_f32 v{HT+r}, v{HT+r}, v{g0+r}")
            for r in range(8): L_.append(f"v_exp_f32 v{HT+r}, v{HT+r}")
            for r in range(8): L_.append(f"v_mul_f32 v{g0+r}, v{g0+r}, v{u0+r}")
            for r in range(8): L_.append(f"v_add_f32 v{HT+r}, 1.0, v{HT+r}")
            for r in range(8): L_.append(f"v_rcp_f32 v{HT+r}, v{HT+r}")
            L_.append(f"s_add_u32 s{sT}, s{sHO}, {jj}")
            for r in range(8): L_.append(f"v_mul_f32 v{g0+r}, v{g0+r}, v{HT+r}")
            hp = 216 + 4 * jj if jj < 2 else u0
            for q in range(4): L_.append(f"v_cvt_pk_bf16_f32 v{hp+q}, v{g0+2*q}, v{g0+2*q+1}")
            for x_ in L_: epi.append((E(a, x_), ge))
            def hstore(hp=hp):
                a.e(f"s_and_b32 s{sT2}, s{sT}, 1")
                a.e(f"s_lshr_b32 s{sT}, s{sT}, 1")
                a.e(f"s_lshl_b32 s{sT}, s{sT}, 10")
                a.e(f"s_lshl_b32 s{sT2}, s{sT2}, 3")
                a.e(f"s_add_u32 s{sT}, s{sT}, s{sT2}")
                a.e(f"s_add_u32 s{sT}, s{sT}, {192*1024}")
                a.e(f"s_add_u32 s{sT2}, s{sT}, {A_MB}")
                a.vmem(f"buffer_store_dwordx2 {vr(hp,2)}, v{L16}, s[{sWS}:{sWS+3}], s{sT} offen sc1", "hst")
                a.vmem(f"buffer_store_dwordx2 {vr(hp+2,2)}, v{L16}, s[{sWS}:{sWS+3}], s{sT2} offen sc1", "hst")
            epi.append((hstore, ge))
        elif jb < 12:
            s_, e_ = divmod(jb, 2)
            for qs in range(2):
                ac = ACC(jb, qs)
                for r in range(4): L_.append(f"v_mul_f32 v{ac+r}, s{sC}, v{ac+r}")
            for qs in range(2):
                ac = ACC(jb, qs)
                for q in range(2): L_.append(f"v_cvt_pk_bf16_f32 v{QP(qs,s_)+2*e_+q}, v{ac+2*q}, v{ac+2*q+1}")
            if e_ == 1:
                L_.append("s_nop 1")
                for qs in range(2):
                    for q in range(2): L_.append(f"v_permlane32_swap_b32 v{QP(qs,s_)+q}, v{QP(qs,s_)+2+q}")
                L_.append("s_nop 0")
                for qs in range(2):
                    for q in range(2): L_.append(f"v_permlane16_swap_b32 v{QP(qs,s_)+q}, v{QP(qs,s_)+2+q}")
            for x_ in L_: epi.append((E(a, x_), ge))
    per = OPT.get("epi_per", 2)
    g = tile_gap0[9]; cnt = 0; n_in = 0
    for (fn, ge) in epi:
        if ge > g: g = ge; cnt = 0
        if g >= NG - 1: break
        sa.add_post(g, fn); n_in += 1; cnt += 1
        if cnt >= per: g += 1; cnt = 0
    sa.emit()
    st()
    a.e("s_nop 7")
    for (fn, ge) in epi[n_in:]: fn()
    T = TP
    kwin = lambda j: KSL[0] if j % 3 == 0 else 0
    vwin = lambda j: VSL[0] if j % 3 == 0 else VSL[1]
    a.e(f"v_lshrrev_b32 v{T}, 4, v{L16}")
    a.e(f"v_lshrrev_b32 v{T+1}, 4, v{T}")
    a.e(f"v_bfe_u32 v{T+3}, v{T}, 2, 2")
    a.e(f"v_and_b32 v{T+4}, 3, v{T}")
    a.e(f"v_lshlrev_b32 v{T+4}, 3, v{T+4}")
    a.e(f"v_bfe_u32 v{T+5}, v{T}, 3, 2")
    a.e(f"v_lshl_add_u32 v{T+3}, v{T+1}, 2, v{T+3}")
    a.e(f"v_mul_u32_u24 v{T+3}, 384, v{T+3}")
    a.e(f"v_add_u32 v{T+3}, v{T+3}, v{T+4}")
    a.e(f"v_add_u32 v{T+3}, {vwin(0)}, v{T+3}")
    for i in range(4):
        a.e(f"v_xor_b32 v{T+4}, {i}, v{T+5}")
        a.e(f"v_lshl_add_u32 v{VR+i}, v{T+4}, 5, v{T+3}")
    a.e(f"v_and_b32 v{T+3}, 15, v{T}")
    a.e(f"v_bfe_u32 v{T+5}, v{T}, 1, 3")
    a.e(f"v_mul_u32_u24 v{T+3}, 384, v{T+3}")
    a.e(f"v_add_u32 v{T+3}, {kwin(0)}, v{T+3}")
    for i in range(2):
        a.e(f"v_add_u32 v{T+4}, {4*i}, v{T+1}")
        a.e(f"v_xor_b32 v{T+4}, v{T+4}, v{T+5}")
        a.e(f"v_lshl_add_u32 v{KR[i]}, v{T+4}, 4, v{T+3}")
    a.e(f"v_mov_b32 v{LS}, 0")
    a.e(f"v_mov_b32 v{LS+1}, 0")
    a.e(f"s_mov_b32 s{sTHR}, {f32(2.0**60)}")
    if KVL:
        for f in kv_block("V", 1) + kv_block("K", 2): f()
        a.wait_vm(("K", 0))
        a.e("s_barrier")
    st()

    def exp_ops(kb):
        u, e_ = divmod(kb, 2)
        o = []
        for r in range(4): o.append(f"v_exp_f32 v{TP+r}, v{S(kb,0)+r}")
        o.append(f"v_exp_f32 v{TP+4}, v{S(kb,1)}")
        o.append(f"v_cvt_pk_bf16_f32 v{P(0,u)+2*e_}, v{TP}, v{TP+1}")
        o.append(f"v_exp_f32 v{TP+5}, v{S(kb,1)+1}")
        o.append(f"v_cvt_pk_bf16_f32 v{P(0,u)+2*e_+1}, v{TP+2}, v{TP+3}")
        o.append(f"v_exp_f32 v{TP+6}, v{S(kb,1)+2}")
        o.append(f"v_exp_f32 v{TP+7}, v{S(kb,1)+3}")
        o.append(f"v_cvt_pk_bf16_f32 v{P(1,u)+2*e_}, v{TP+4}, v{TP+5}")
        o.append(f"v_cvt_pk_bf16_f32 v{P(1,u)+2*e_+1}, v{TP+6}, v{TP+7}")
        return o
    def rowmax_ops(u, D, X):
        o = []
        for qs in range(2):
            s0 = S(2 * u, qs); s1 = S(2 * u + 1, qs)
            o.append(f"v_max3_f32 v{D[qs]}, v{s0}, v{s0+1}, v{s0+2}")
            o.append(f"v_max3_f32 v{D[qs]}, v{D[qs]}, v{s0+3}, v{s1}")
            o.append(f"v_max3_f32 v{D[qs]}, v{D[qs]}, v{s1+1}, v{s1+2}")
            o.append(f"v_max_f32 v{D[qs]}, v{D[qs]}, v{s1+3}")
        for sw in ("v_permlane32_swap_b32", "v_permlane16_swap_b32"):
            for qs in range(2): o.append(f"v_mov_b32 v{X+qs}, v{D[qs]}")
            o.append("s_nop 1")
            for qs in range(2): o.append(f"{sw} v{D[qs]}, v{X+qs}")
            for qs in range(2): o.append(f"v_max_f32 v{D[qs]}, v{D[qs]}, v{X+qs}")
        return o
    def slow_stub(u):
        a.label(f"L_{K}_slow{u}")
        a.e("s_nop 15")
        D = [TP, TP + 1]; AL = [TP + 2, TP + 3]; X = TP + 4
        for tx in rowmax_ops(u, D, X): a.e(tx)
        for qs in range(2):
            a.e(f"v_max_f32 v{D[qs]}, 0, v{D[qs]}")
            a.e(f"v_exp_f32 v{AL[qs]}, -v{D[qs]}")
        for qs in range(2):
            for r in range(4): a.e(f"v_sub_f32 v{NEGM(qs)+r}, v{NEGM(qs)+r}, v{D[qs]}")
            for kb in range(4):
                for r in range(4): a.e(f"v_sub_f32 v{S(kb,qs)+r}, v{S(kb,qs)+r}, v{D[qs]}")
            a.e(f"v_mul_f32 v{LS+qs}, v{LS+qs}, v{AL[qs]}")
            for jb in range(12):
                for r in range(4): a.e(f"v_mul_f32 v{O(jb,qs)+r}, v{O(jb,qs)+r}, v{AL[qs]}")
        for kb in (2 * u, 2 * u + 1):
            for tx in exp_ops(kb): a.e(tx)
        a.e("s_nop 1")
        for qs in range(2): a.e(mfma_t(LT(qs), ONES, P(qs, u), "0"))
        a.e("s_nop 7")
        a.e(f"s_setpc_b64 s[{sRET}:{sRET+1}]")
    def check(j, u):
        def fn():
            a.e(f"v_max_f32 v{LT(0)+1}, v{LT(0)}, v{LT(1)}")
            a.e(f"v_cmp_nge_f32 vcc, s{sTHR}, v{LT(0)+1}")
            a.e(f"s_cbranch_vccnz L_{K}_tr{j}_{u}")
            a.label(f"L_{K}_back{j}_{u}")
        def stub():
            a.label(f"L_{K}_tr{j}_{u}")
            a.e(f"s_call_b64 s[{sRET}:{sRET+1}], L_{K}_slow{u}")
            a.e(f"s_branch L_{K}_back{j}_{u}")
        stubs.append(stub)
        return fn

    sb = Stream(a, FR)
    seg = {}
    def QK(j, u, sum_of=None):
        ko = KSL[j % 3] - kwin(j); g0 = sb.n(); f0 = len(sb.frags)
        for kb in (2 * u, 2 * u + 1):
            for s_ in range(6):
                c0 = ("0" if j == 0 else "negm") if s_ == 0 else None
                sb.frag([lambda b: f"ds_read_b128 {vr(b,4)}, v{KR[s_&1]} offset:{ko+kb*6144+(s_>>1)*128}"],
                        [lambda b, qs=qs: mfma_t(S(kb, qs), b, QP(qs, s_), NEGM(qs) if c0 == "negm" else c0) for qs in range(2)])
                if sum_of is not None and kb == 2 * u + 1 and s_ == 2:
                    seg[("sum", sum_of)] = sb.n()
                    for qs in range(2): sb.mfma(mfma_t(LT(qs), ONES, P(qs, sum_of[1]), "0"))
        seg[("QK", j, u)] = (g0, sb.n(), f0)
    def PV(j, u, sum_of=None):
        vo = VSL[j % 3] - vwin(j); g0 = sb.n(); f0 = len(sb.frags)
        if not (j == 0 and u == 0) and not OPT.get("nocheck"): sb.add_pre(g0, check(j, u))
        sb.add_post(g0, E(a, f"v_add_f32 v{LS}, v{LS}, v{LT(0)}"))
        sb.add_post(g0 + 1, E(a, f"v_add_f32 v{LS+1}, v{LS+1}, v{LT(1)}"))
        for jb in range(12):
            sb.frag([lambda b, tt=tt: f"ds_read_b64_tr_b16 {vr(b+2*tt,2)}, v{VR+(jb&3)} offset:{vo+(32*u+16*tt)*384+(jb>>2)*128}" for tt in range(2)],
                    [lambda b, qs=qs: mfma_t(O(jb, qs), b, P(qs, u), "0" if (j == 0 and u == 0) else None) for qs in range(2)])
            if sum_of is not None and jb == 8:
                seg[("sum", sum_of)] = sb.n()
                for qs in range(2): sb.mfma(mfma_t(LT(qs), ONES, P(qs, sum_of[1]), "0"))
        seg[("PV", j, u)] = (g0, sb.n(), f0)
    QK(0, 0)
    for j in range(8):
        QK(j, 1, sum_of=(j, 0))
        if j < 7:
            PV(j, 0); QK(j + 1, 0, sum_of=(j, 1)); PV(j, 1)
        else:
            PV(j, 0, sum_of=(j, 1)); PV(j, 1)
    NG = sb.n()
    for j in range(8):
        for u in range(2):
            g0 = seg[("QK", j, u)][1] + 3; g1 = seg[("sum", (j, u))] - 2
            ops = exp_ops(2 * u) + exp_ops(2 * u + 1)
            if j == 0 and u == 0:
                D = [LT(0), LT(1)]
                pre = rowmax_ops(0, D, TP)
                for qs in range(2):
                    for kb in range(2):
                        for r in range(4): pre.append(f"v_sub_f32 v{S(kb,qs)+r}, v{S(kb,qs)+r}, v{D[qs]}")
                for qs in range(2):
                    for r in range(4): pre.append(f"v_sub_f32 v{NEGM(qs)+r}, 0, v{D[qs]}")
                ops = pre + ops
            if j == 0 and u == 1:
                pre = []
                for qs in range(2):
                    for kb in range(2, 4):
                        for r in range(4): pre.append(f"v_add_f32 v{S(kb,qs)+r}, v{S(kb,qs)+r}, v{NEGM(qs)}")
                ops = pre + ops
            if not OPT.get("noexp"): sb.spread([E(a, x) for x in ops], g0, g1)
    for j in range(8):
        gb = sb.read_gap(seg[("PV", j, 0)][2])
        def vbar(j=j):
            a.wait_vm(("V", j))
            if not OPT.get("nobar"): a.e("s_barrier")
        sb.add_pre(gb, vbar)
        if j > 0 and vwin(j) != vwin(j - 1):
            sb.spread([E(a, f"v_add_u32 v{VR+r}, {(vwin(j)-vwin(j-1)) & 0xffffffff}, v{VR+r}") for r in range(4)], gb - 9, gb - 1)
        if j + 2 < 8 and not OPT.get("nodma"): sb.spread(kv_block("V", j + 2), gb + 2, gb + 20)
        if j < 7:
            gb = sb.read_gap(seg[("QK", j + 1, 0)][2])
            def kbar(j=j):
                a.wait_vm(("K", j + 1))
                if not OPT.get("nobar"): a.e("s_barrier")
                st(fine=True)
            sb.add_pre(gb, kbar)
            if kwin(j) != kwin(j + 1):
                sb.spread([E(a, f"v_add_u32 v{r}, {(kwin(j+1)-kwin(j)) & 0xffffffff}, v{r}") for r in KR], gb - 6, gb - 1)
            if j + 3 < 8 and not OPT.get("nodma"): sb.spread(kv_block("K", j + 3), gb + 2, gb + 20)
    ACC2 = lambda nb, qs: (nb * 2 + qs) * 4
    ACCF = lambda nb, qs: 176 + (nb * 2 + qs) * 4
    NSET = 4
    OF = 80; FR2 = OF + 16 * NSET
    AW = 160; AF = 162; TM2 = 164
    DF = [243, 244, 245, 247, 254]
    DW = [216, 217, 218, 219, 220]
    ZV, ONEV, PV_ = 221, 222, 223
    sO, sWr, sP = 28, 32, 36
    sS, sMT, sNT, sG, sMBk, sOW, sM0, sOO, sKG, sTW2, sTO = 55, 56, 57, 58, 59, 60, 61, 62, 63, 64, 65
    sOO2, sOB_, sWB, sPER, sR12 = 78, 79, 80, 81, 96
    sCH, sCO = 86, 87
    sXo, sOut = 40, 44
    SLOT = 40960
    NF, NA = 6, 12; NT2 = NF + NA
    slot2 = lambda k: ((k + 2) % 4) * SLOT
    win = lambda k: 0 if slot2(k) < 2 * SLOT else 2 * SLOT
    su = []
    def S_(tx): su.append(E(a, tx))
    def grp(*txs):
        def f():
            for tx in txs: a.e(tx)
        su.append(f)
    grp(f"s_and_b32 s{sS}, s2, 3", f"s_bfe_u32 s{sU}, s2, 0x10002", f"s_lshr_b32 s{sU2}, s2, 3")
    grp(f"s_and_b32 s{sNT}, s{sU2}, 3", f"s_lshr_b32 s{sMT}, s{sU2}, 2")
    grp(f"s_mul_i32 s{sTW2}, s{sMT}, {NF}", f"s_lshr_b32 s{sTW2}, s{sTW2}, 3", f"s_mov_b32 s{sTO}, s{sTW2}")
    grp(f"s_mul_i32 s{sR12}, s{sMT}, {NA}", f"s_lshr_b32 s{sR12}, s{sR12}, 3")
    grp(f"s_lshl_b32 s{sU}, s{sU}, 3", f"s_add_u32 s{sMT}, s{sMT}, s{sU}", f"s_lshr_b32 s{sG}, s{sW}, 2")
    grp(f"s_and_b32 s{sU}, s{sW}, 3", f"s_lshl_b32 s{sMBk}, s{sMT}, 2", f"s_add_u32 s{sMBk}, s{sMBk}, s{sU}")
    grp(f"s_mul_i32 s{sM0}, s{sW}, 5120", f"s_lshr_b32 s{sKG}, s{sW}, 1")
    grp(f"s_lshr_b32 s{sCO}, s{sMT}, 1", f"s_lshl_b32 s{sCO}, s{sCO}, 5", f"s_add_u32 s{sCH}, s{sCO}, 16")
    su_early = list(su); su.clear()
    grp(f"s_and_b32 s{sU}, s{sW}, 1", f"s_lshl_b32 s{sU}, s{sU}, 5")
    t0, t1, t2 = KA, KA + 1, KA + 2
    for i in range(5):
        S_(f"v_lshrrev_b32 v{t0}, 4, v{L16}")
        S_(f"v_add_u32 v{t0}, {64*i}, v{t0}")
        S_(f"v_mul_u32_u24 v{t1}, 6554, v{t0}")
        S_(f"v_lshrrev_b32 v{t1}, 16, v{t1}")
        S_(f"v_mul_u32_u24 v{t2}, 10, v{t1}")
        S_(f"v_sub_u32 v{t2}, v{t0}, v{t2}")
        S_(f"v_add_u32 v{t1}, s{sU}, v{t1}")
        S_(f"v_mul_u32_u24 v{t1}, 1280, v{t1}")
        S_(f"v_lshl_add_u32 v{DF[i]}, v{t2}, 4, v{t1}")
    grp(f"s_mul_i32 s{sWB}, s{sKG}, {NF*64*1280}", f"s_mul_i32 s{sOB_}, s{sKG}, {NF*2048}", f"s_add_u32 s{sOB_}, s{sOB_}, {192*1024}")
    def f_():
        a.e(f"s_mul_i32 s{sU2}, s{sNT}, 320")
        a.e(f"s_and_b32 s{sU}, s{sS}, 1")
        a.e(f"s_mul_i32 s{sU}, s{sU}, 160")
        a.e(f"s_add_u32 s{sU2}, s{sU2}, s{sU}")
        srd(a, sWr, 20, 21, f"s{sU2}", "0")
        a.e(f"s_sub_u32 s{sWr+2}, {1536*1280}, s{sU2}")
    su.append(f_)
    def f_():
        a.e(f"s_lshl_b32 s{sU2}, s{sMT}, 2")
        a.e(f"s_and_b32 s{sU}, s{sS}, 2")
        a.e(f"s_add_u32 s{sU2}, s{sU2}, s{sU}")
        a.e(f"s_and_b32 s{sU}, s{sW}, 1")
        a.e(f"s_add_u32 s{sU2}, s{sU2}, s{sU}")
        a.e(f"s_mul_i32 s{sU2}, s{sU2}, {2*A_MB}")
        srd(a, sO, 26, 27, f"s{sU2}", f"{2*A_MB}")
    su.append(f_)
    def w2_block(k):
        base = slot2(k); tag = ("W2", k); fns = []
        per = NF if k < NF else NA; vo = DF if k < NF else DW
        def head():
            if k == NF:
                a.e(f"s_mul_i32 s{sU2}, s{sNT}, 320")
                srd(a, sWr, 12, 13, f"s{sU2}", "0")
                a.e(f"s_sub_u32 s{sWr+2}, {6144*1280}, s{sU2}")
                a.e(f"s_lshl_b32 s{sU}, s{sS}, 1")
                a.e(f"s_add_u32 s{sU}, s{sU}, s{sG}")
                a.e(f"s_mul_i32 s{sWB}, s{sU}, {NA*64*1280}")
                a.e(f"s_mov_b32 s{sTW2}, s{sR12}")
            a.e(f"s_mul_i32 s{sOW}, s{sTW2}, {64*1280}")
            a.e(f"s_add_u32 s{sOW}, s{sOW}, s{sWB}")
        fns.append(head)
        for i in range(5):
            def f(i=i):
                a.e(f"s_add_u32 m0, s{sM0}, {base + 1024*i}")
                if i == 0: a.e(f"s_add_u32 s{sTW2}, s{sTW2}, 1")
                elif i == 1: a.e(f"s_cmp_eq_u32 s{sTW2}, {per}")
                else: a.e("s_nop 0")
                a.vmem(f"buffer_load_dwordx4 v{vo[i]}, s[{sWr}:{sWr+3}], s{sOW} offen lds", tag)
                if i == 1: a.e(f"s_cselect_b32 s{sTW2}, 0, s{sTW2}")
            fns.append(f)
        return fns
    def poll_issue(soff, tag):
        return lambda: a.vmem(f"buffer_load_dword v{PV_}, v{ZV}, s[{sDB_}:{sDB_+3}], s{soff} offen sc1", tag)
    def poll_check(name, srdr, soff, target, tag):
        def fn():
            a.wait_vm(tag)
            a.e(f"v_readfirstlane_b32 s{sU2}, v{PV_}")
            a.e("s_nop 3")
            a.e(f"s_cmp_ge_u32 s{sU2}, {target}")
            a.e(f"s_cbranch_scc0 L_{name}_spin")
            a.label(f"L_{name}_ok")
        def stub():
            a.label(f"L_{name}_spin")
            a.e(f"s_mov_b32 s{sU}, 0")
            a.label(f"L_{name}_poll")
            a.e(f"s_sleep {OPT.get('slp', 8)}")
            a.e(f"buffer_load_dword v{PV_}, v{ZV}, s[{srdr}:{srdr+3}], s{soff} offen sc1")
            a.e("s_waitcnt vmcnt(0)")
            a.e(f"v_readfirstlane_b32 s{sU2}, v{PV_}")
            a.e(f"s_add_u32 s{sU}, s{sU}, 1")
            a.e("s_nop 1")
            a.e(f"s_cmp_ge_u32 s{sU2}, {target}")
            a.e(f"s_cbranch_scc1 L_{name}_ok")
            a.e(f"s_cmp_lt_u32 s{sU}, 0x20000")
            a.e(f"s_cbranch_scc1 L_{name}_poll")
            a.e(f"s_branch L_{name}_ok")
        stubs.append(stub)
        return fn
    def signal(name, srdr, soff_expr, zv, onev):
        def fn():
            a.e(f"s_cmp_eq_u32 s{sW}, 0")
            a.e(f"s_cbranch_scc1 L_{name}_sig")
            a.label(f"L_{name}_sigr")
        def stub():
            a.label(f"L_{name}_sig")
            for tx in soff_expr: a.e(tx)
            a.e(f"v_mov_b32 v{zv}, 0")
            a.e(f"v_mov_b32 v{onev}, 1")
            a.e("s_mov_b64 exec, 1")
            a.e(f"buffer_atomic_add v{onev}, v{zv}, s[{srdr}:{srdr+3}], s{sU} offen sc1")
            a.e("s_mov_b64 exec, -1")
            a.e(f"s_branch L_{name}_sigr")
        stubs.append(stub)
        return fn
    def o_loads(k, ks):
        par = k % NSET; fns = []
        per = NF if k < NF else NA
        if ks == 0:
            def head():
                if k == NF:
                    a.e(f"s_mul_i32 s{sU2}, s{sMBk}, {2*A_MB}")
                    srd(a, sO, 26, 27, f"s{sU2}", f"{2*A_MB}")
                    a.e(f"s_lshl_b32 s{sU}, s{sS}, 1")
                    a.e(f"s_add_u32 s{sU}, s{sU}, s{sG}")
                    a.e(f"s_mul_i32 s{sOB_}, s{sU}, {NA*2048}")
                    a.e(f"s_mov_b32 s{sTO}, s{sR12}")
                a.e(f"s_lshl_b32 s{sOO}, s{sTO}, 11")
                a.e(f"s_add_u32 s{sOO}, s{sOO}, s{sOB_}")
                a.e(f"s_add_u32 s{sTO}, s{sTO}, 1")
                a.e(f"s_cmp_eq_u32 s{sTO}, {per}")
                a.e(f"s_cselect_b32 s{sTO}, 0, s{sTO}")
                a.e(f"s_add_u32 s{sOO2}, s{sOO}, {A_MB}")
            fns.append(head)
        for qs in range(2):
            fns.append(lambda qs=qs: a.vmem(f"buffer_load_dwordx4 {vr(OF+16*par+8*ks+4*qs,4)}, v{L16}, s[{sO}:{sO+3}], s{sOO2 if qs else sOO} offen offset:{1024*ks} sc1", ("o", k, ks)))
        return fns
    gk = lambda j: sb.read_gap(seg[("QK", j + 1, 0)][2])
    gv = lambda j: sb.read_gap(seg[("PV", j, 0)][2])
    sb.pre[gk(1)].insert(0, lambda: a.wait_vm("hst"))
    sb.add_pre(gk(1), flag_signal("hs", 1, (243, 244, 245, 247)))
    sb.spread(su_early, gk(1) + 22, gk(1) + 40)
    if OPT.get("pfw2", 1):
        PW, PD = 245, 247
        sPF = 36
        def pfs():
            a.e(f"v_lshlrev_b32 v{PW}, 3, v{L16}")
            a.e(f"v_mov_b32 v{PD}, 0x1000000")
            a.e(f"v_cmp_gt_u32 vcc, {15*128}, v{PW}")
            a.e(f"s_lshr_b32 s{sU}, s2, 3")
            a.e(f"s_lshl_b32 s{sU}, s{sU}, 3")
            a.e(f"v_cndmask_b32 v{PW}, v{PD}, v{PW}, vcc")
            a.e(f"s_add_u32 s{sU}, s{sU}, s{sW}")
            a.e(f"s_mul_i32 s{sU}, s{sU}, 7680")
            a.e(f"s_mul_i32 s{sU2}, s{sS}, {1536*1280}")
            a.e(f"s_add_u32 s{sU}, s{sU}, s{sU2}")
            srd(a, sPF, 12, 13, f"s{sU}", "7680")
        sb.add_post(gk(1) + 42, pfs)
        for n in range(4):
            sb.add_post(gk(1 + n) + 60, lambda n=n: a.vmem(f"buffer_load_dword v{PD}, v{PW}, s[{sPF}:{sPF+3}], 0 offen offset:{1920*n if n < 2 else 0}" if n < 2 else
                                                             f"buffer_load_dword v{PD}, v{PW}, s[{sPF}:{sPF+3}], s{sPER} offen offset:{1920*(n-2)}", "pf"))
        sb.add_post(gk(1) + 44, E(a, f"s_mov_b32 s{sPER}, 3840"))
        def pfd():
            a.e(f"s_lshl_b32 s{sU}, s2, 3")
            a.e(f"s_add_u32 s{sU}, s{sU}, s{sW}")
            a.e(f"s_mul_i32 s{sU}, s{sU}, 960")
            srd(a, sPF, 20, 21, f"s{sU}", "960")
            a.vmem(f"buffer_load_dword v{PD}, v{PW}, s[{sPF}:{sPF+3}], 0 offen", "pf")
        sb.add_post(gk(4) + 66, pfd)
        sb.add_pre(gv(5) + 24, lambda: a.wait_vm("pf"))
    sb.pre[gk(6)].insert(0, flag_wait("ph", 1, KA, KA + 1))
    sb.spread(su, gv(5) + 24, gk(6) - 2)
    sb.spread(w2_block(0), gk(6) + 2, gv(7) - 2)
    sb.spread(w2_block(1), gv(7) + 2, NG - 4)
    sb.emit()
    st()
    a.e(f"v_mov_b32 v{ZV}, 0")
    for qs in range(2): a.e(f"v_rcp_f32 v{TP+qs}, v{LS+qs}")
    a.e(f"s_mul_i32 s{sHO}, s{sH}, 6144")
    a.e("s_nop 3")
    for s_ in range(6):
        for qs in range(2):
            for e_ in range(2):
                ob = O(2 * s_ + e_, qs)
                for r in range(4): a.e(f"v_mul_f32 v{ob+r}, v{TP+qs}, v{ob+r}")
        for qs in range(2):
            dst = S(0, 0) + 4 * ((2 * s_ + qs) % 8)
            for e_ in range(2):
                ob = O(2 * s_ + e_, qs)
                for q in range(2): a.e(f"v_cvt_pk_bf16_f32 v{dst+2*e_+q}, v{ob+2*q}, v{ob+2*q+1}")
            a.e(f"s_add_u32 s{sT}, s{sHO}, {qs*A_MB + (s_//4)*4096}")
            a.vmem(f"buffer_store_dwordx4 {vr(dst,4)}, v{L16}, s[{sWS}:{sWS+3}], s{sT} offen offset:{1024*(s_%4)} sc1", "ost")
    st()
    a.e("s_nop 1")
    t = TM2
    a.e(f"v_lshrrev_b32 v{t+2}, 4, v{L16}")
    a.e(f"v_lshrrev_b32 v{t}, 2, v{t+2}")
    a.e(f"v_and_b32 v{t+1}, 3, v{t+2}")
    a.e(f"v_lshlrev_b32 v{t+1}, 3, v{t+1}")
    a.e(f"v_mul_u32_u24 v{t+3}, 160, v{t}")
    a.e(f"s_mul_i32 s{sU2}, s{sKG}, 10240")
    a.e(f"s_add_u32 s{sU2}, s{sU2}, {win(0)}")
    a.e(f"v_add3_u32 v{AF}, v{t+3}, v{t+1}, s{sU2}")
    a.wait_vm(("W2", 1))
    a.e("s_waitcnt lgkmcnt(0)"); a.lgkm = []
    a.e("s_barrier")
    for f in o_loads(0, 0) + o_loads(0, 1) + o_loads(1, 0) + o_loads(1, 1): f()
    st()
    late = []
    L_ = lambda tx: late.append(E(a, tx))
    L_(f"v_mul_u32_u24 v{t+3}, 320, v{t}")
    L_(f"s_mul_i32 s{sU2}, s{sG}, 20480")
    late.append(lambda: (a.e(f"s_mul_i32 s{sU2}, s{sG}, 20480"), a.e(f"s_add_u32 s{sU2}, s{sU2}, {win(NF)}"), a.e(f"v_add3_u32 v{t+3}, v{t+3}, v{t+1}, s{sU2}")))
    L_(f"v_bfe_u32 v{t+4}, v{t+2}, 4, 1")
    L_(f"v_lshlrev_b32 v{t+4}, 5, v{t+4}")
    L_(f"v_add_u32 v{AW}, v{t+3}, v{t+4}")
    L_(f"v_sub_u32 v{AW+1}, v{t+3}, v{t+4}")
    L_(f"v_and_b32 v{t+7}, 0x30, v{t+2}")
    late.append(lambda: (a.e(f"s_and_b32 s{sPER}, s{sW}, 3"), a.e(f"s_lshl_b32 s{sPER}, s{sPER}, 4")))
    for i in range(5):
        L_(f"v_add_u32 v{t+4}, {64*i}, v{t+2}")
        L_(f"v_mul_u32_u24 v{t+5}, 3277, v{t+4}")
        L_(f"v_lshrrev_b32 v{t+5}, 16, v{t+5}")
        L_(f"v_mul_u32_u24 v{t+6}, 20, v{t+5}")
        L_(f"v_sub_u32 v{t+6}, v{t+4}, v{t+6}")
        L_(f"v_add_u32 v{t+5}, s{sPER}, v{t+5}")
        L_(f"v_bfe_u32 v{t+4}, v{t+5}, 2, 1")
        L_(f"v_lshlrev_b32 v{t+4}, 1, v{t+4}")
        L_(f"v_xor_b32 v{t+6}, v{t+6}, v{t+4}")
        L_(f"v_mul_u32_u24 v{t+5}, 1280, v{t+5}")
        L_(f"v_lshl_add_u32 v{DW[i]}, v{t+6}, 4, v{t+5}")
    sm = Stream(a, FR2)
    started = set()
    tfirst = []; tg0 = []
    for k in range(NT2):
        par = k % NSET; so = slot2(k) - win(k)
        tfirst.append(len(sm.frags)); tg0.append(sm.n())
        for ks in range(2):
            sm.add_pre(sm.n(), lambda k=k, ks=ks: a.wait_vm(("o", k, ks)))
            if k < NF:
                for nb in range(5):
                    sm.frag([lambda b, tt=tt: f"ds_read_b64_tr_b16 {vr(b+2*tt,2)}, v{AF} offset:{so+(32*ks+16*tt)*160+32*nb}" for tt in range(2)],
                            [lambda b, qs=qs: mfma_t(ACCF(nb, qs), b, OF + 16 * par + 8 * ks + 4 * qs, C0(ACCF(nb, qs))) for qs in range(2)])
            else:
                for nb in range(10):
                    sm.frag([lambda b, tt=tt: f"ds_read_b64_tr_b16 {vr(b+2*tt,2)}, v{AW+(nb&1)} offset:{so+(32*ks+16*tt)*320+32*nb}" for tt in range(2)],
                            [lambda b, qs=qs: mfma_t(ACC2(nb, qs), b, OF + 16 * par + 8 * ks + 4 * qs, C0(ACC2(nb, qs))) for qs in range(2)])
    tfirst.append(len(sm.frags)); tg0.append(sm.n())
    NG = sm.n()
    sm.spread(late, 0, tg0[2])
    KO = OPT.get("ostep", 5)
    issue = {}
    for k in range(2, NT2):
        tk = max(k - OPT.get("olook", 2), 0) if k < NF else max(k - 3, KO)
        issue.setdefault(tk, {"w": [], "o": []})["o"] += o_loads(k, 0) + o_loads(k, 1)
        issue.setdefault(max(k - OPT.get("wlook", 2), 0) if k < NF + 2 else k - 3, {"w": [], "o": []})["w"] += w2_block(k)
    for tk in sorted(issue):
        wb_, ob_ = issue[tk]["w"], issue[tk]["o"]
        ln = tg0[tk + 1] - tg0[tk] - 7
        sm.spread(ob_, tg0[tk] + 1, tg0[tk] + ln)
        sm.spread(wb_, tg0[tk] + 1, tg0[tk] + ln)
    for k in range(NT2 - 1):
        gb = sm.read_gap(tfirst[k + 1])
        def bar(k=k):
            if k == 0: a.wait_vm("ost")
            if k == KO - 1: flag_wait("po", 2, PV_, ONEV)()
            a.wait_vm(("W2", k + 1))
            a.e("s_waitcnt lgkmcnt(0)"); a.lgkm = []
            a.e("s_barrier")
            st(fine=True)
            if win(k) != win(k + 1) and k + 1 != NF:
                for r in ([AF] if k + 1 < NF else [AW, AW + 1]): a.e(f"v_add_u32 v{r}, {(win(k+1)-win(k)) & 0xffffffff}, v{r}")
        sm.add_pre(gb, bar)
        if k == 0: sm.add_pre(gb, flag_signal("os", 2, (224, 225, 226, 227)))
    sm.emit()
    a.wait_all()
    st()
    a.e("s_barrier")
    a.e(f"s_mul_i32 s{sU}, s{sW}, 10240")
    a.e(f"v_add_u32 v{t}, s{sU}, v{L16}")
    a.e(f"v_add_u32 v{t+2}, {81920}, v{t}")
    a.e(f"s_xor_b32 s{sU2}, s{sW}, 4")
    a.e(f"s_mul_i32 s{sU2}, s{sU2}, 10240")
    a.e(f"v_add_u32 v{t+1}, s{sU2}, v{L16}")
    PBH = 64 * 40 * 1024
    a.e(f"s_lshl_b32 s{sT}, s{sMT}, 2")
    a.e(f"s_add_u32 s{sT}, s{sT}, s{sNT}")
    a.e(f"s_mul_i32 s{sU2}, s{sT}, {40*1024}")
    a.e(f"s_add_u32 s{sU2}, s{sU2}, {WS_P}")
    srd(a, sP, 26, 27, f"s{sU2}", f"{3*PBH + 40*1024}")
    a.e(f"s_lshl_b32 s{sT}, s{sT}, 7")
    a.e(f"s_and_b32 s{sPER}, s{sW}, 2")
    a.e(f"s_add_u32 s{sPER}, s{sPER}, s{sG}")
    a.e(f"s_lshl_b32 s{sU}, s{sPER}, 1")
    a.e(f"s_and_b32 s{sU2}, s{sW}, 1")
    a.e(f"s_add_u32 s{sU}, s{sU}, s{sU2}")
    a.e(f"s_mul_i32 s{sU}, s{sU}, 5120")
    a.e(f"s_mul_i32 s{sU2}, s{sS}, {PBH}")
    a.e(f"s_add_u32 s{sOW}, s{sU}, s{sU2}")
    a.e(f"s_add_u32 s{sOO}, s{sOW}, 4096")
    a.e(f"s_cmp_eq_u32 s{sG}, 0")
    a.e(f"s_cbranch_scc0 L_p2_g1")
    for g in range(2):
        keep = 40 * g; send = 40 * (1 - g)
        for q in range(10): a.e(f"ds_write_b128 v{t}, {vr(send+4*q,4)} offset:{1024*q}")
        a.e("s_waitcnt lgkmcnt(0)")
        a.e("s_barrier")
        for q in range(10): a.e(f"ds_read_b128 {vr(OF+4*q,4)}, v{t+1} offset:{1024*q}")
        for q in range(10):
            a.e(f"s_waitcnt lgkmcnt({9-q})")
            for r in range(4): a.e(f"v_add_f32 v{OF+4*q+r}, v{keep+4*q+r}, v{OF+4*q+r}")
        if g == 0:
            a.e(f"s_branch L_p2_red2")
            a.label(f"L_p2_g1")
    a.label("L_p2_red2")
    R = OF
    a.e(f"s_cmp_eq_u32 s{sPER}, s{sS}")
    a.e(f"s_cbranch_scc1 L_p2_own")
    for p in range(5):
        for q in range(4): a.e(f"v_cvt_pk_bf16_f32 v{4*p+q}, v{R+8*p+2*q}, v{R+8*p+2*q+1}")
        a.e(f"buffer_store_dwordx4 {vr(4*p,4)}, v{L16}, s[{sP}:{sP+3}], s{sOO if p == 4 else sOW} offen offset:{(p%4)*1024} sc1")
    a.e("s_branch L_p2_pub")
    a.label("L_p2_own")
    for q in range(10): a.e(f"ds_write_b128 v{t+1}, {vr(R+4*q,4)} offset:{1024*q}")
    a.label("L_p2_pub")
    st(fine=True)
    for q in range(10): a.e(f"ds_write_b128 v{t+2}, {vr(176+4*q,4)} offset:{1024*q}")
    a.e(f"s_lshl_b32 s{sU2}, s{sMT}, 1")
    a.e(f"s_lshr_b32 s{sU}, s{sS}, 1")
    a.e(f"s_add_u32 s{sU2}, s{sU2}, s{sU}")
    a.e(f"s_mul_i32 s{sU2}, s{sU2}, {64*1280}")
    a.e(f"s_mul_i32 s{sU}, s{sNT}, 320")
    a.e(f"s_add_u32 s{sU2}, s{sU2}, s{sU}")
    a.e(f"s_and_b32 s{sU}, s{sS}, 1")
    a.e(f"s_mul_i32 s{sU}, s{sU}, 160")
    a.e(f"s_add_u32 s{sU2}, s{sU2}, s{sU}")
    srd(a, sXo, 4, 5, f"s{sU2}", "0")
    a.e(f"s_sub_u32 s{sXo+2}, {2048*1280}, s{sU2}")
    srd(a, sOut, 22, 23, f"s{sU2}", "0")
    a.e(f"s_sub_u32 s{sOut+2}, {2048*1280}, s{sU2}")
    XV = t + 6
    a.e(f"v_bfe_u32 v{XV}, v{L16}, 4, 4")
    a.e(f"v_mul_u32_u24 v{XV}, 1280, v{XV}")
    a.e(f"v_lshrrev_b32 v{t+4}, 8, v{L16}")
    a.e(f"v_lshl_add_u32 v{XV}, v{t+4}, 3, v{XV}")
    a.e(f"v_add_u32 v{XV+1}, 20480, v{XV}")
    a.e(f"s_and_b32 s{sU}, s{sS}, 1")
    a.e(f"s_xor_b32 s{sU}, s{sU}, 1")
    a.e(f"s_lshl_b32 s{sU}, s{sU}, 2")
    a.e(f"s_and_b32 s{sU2}, s{sS}, 2")
    a.e(f"s_add_u32 s{sU}, s{sU}, s{sU2}")
    a.e(f"s_mul_i32 s{sKG}, s{sU}, 10240")
    NU = 2
    sQO = [sOO2, sOB_]; sQP = [sTW2, sTO]; VA = [t + 8, t + 9]; VR_ = [t + 10, t + 11]
    XR = 120
    for n in range(NU):
        a.e(f"s_add_u32 s{sU}, s{sW}, {8*n}")
        a.e(f"s_min_u32 s{sU2}, s{sU}, 9")
        a.e(f"s_lshl_b32 s{sPER}, s{sU2}, 11")
        a.e(f"s_add_u32 s{sWB}, s{sPER}, 81920")
        a.e(f"v_add_u32 v{VA[n]}, s{sWB}, v{L16}")
        a.e(f"s_add_u32 s{sWB}, s{sPER}, s{sKG}")
        a.e(f"v_add_u32 v{VR_[n]}, s{sWB}, v{L16}")
        a.e(f"s_lshl_b32 s{sQO[n]}, s{sU2}, 5")
        a.e(f"s_cmp_ge_u32 s{sU2}, 5")
        a.e(f"s_cselect_b32 s{sPER}, {40960-160}, 0")
        a.e(f"s_add_u32 s{sQO[n]}, s{sQO[n]}, s{sPER}")
        a.e(f"s_mul_i32 s{sPER}, s{sS}, 10240")
        a.e(f"s_lshl_b32 s{sQP[n]}, s{sU2}, 10")
        a.e(f"s_add_u32 s{sQP[n]}, s{sQP[n]}, s{sPER}")
        a.e(f"s_cmp_ge_u32 s{sU}, 10")
        a.e(f"s_cselect_b32 s{sQO[n]}, 0x1000000, s{sQO[n]}")
        a.e(f"s_cselect_b32 s{sQP[n]}, 0x4000000, s{sQP[n]}")
    a.wait_all()
    st(fine=True)
    a.e("s_barrier")
    signal("ps", sFG, [f"s_mov_b32 s{sU}, s{sT}"], ZV, ONEV)()
    for n in range(NU):
        for qs in range(2): a.vmem(f"buffer_load_dwordx2 {vr(XR+4*n+2*qs,2)}, v{XV+qs}, s[{sXo}:{sXo+3}], s{sQO[n]} offen", "xl")
    for n in range(NU):
        for kg in range(4):
            for qs in range(2): a.e(f"ds_read_b128 {vr(32*n+8*kg+4*qs,4)}, v{VA[n]} offset:{20480*kg+1024*qs}")
        a.e(f"s_waitcnt lgkmcnt(0)")
        for qs in range(2): a.e(f"ds_read_b128 {vr(64+8*n+4*qs,4)}, v{VR_[n]} offset:{1024*qs}")
    a.vmem(f"buffer_load_dword v{PV_}, v{ZV}, s[{sFG}:{sFG+3}], s{sT} offen sc1", "pp")
    for n in range(NU):
        b = 32 * n
        for r in range(8): a.e(f"v_add_f32 v{b+r}, v{b+r}, v{b+8+r}")
        for r in range(8): a.e(f"v_add_f32 v{b+16+r}, v{b+16+r}, v{b+24+r}")
        for r in range(8): a.e(f"v_add_f32 v{b+r}, v{b+r}, v{b+16+r}")
        for r in range(8): a.e(f"v_mul_f32 v{b+8+r}, {f32(-LOG2E)}, v{b+r}")
        for r in range(8): a.e(f"v_exp_f32 v{b+8+r}, v{b+8+r}")
        for r in range(8): a.e(f"v_add_f32 v{b+8+r}, 1.0, v{b+8+r}")
        for r in range(8): a.e(f"v_rcp_f32 v{b+8+r}, v{b+8+r}")
        for r in range(8): a.e(f"v_mul_f32 v{b+r}, v{b+r}, v{b+8+r}")
    a.e("s_waitcnt lgkmcnt(0)")
    poll_check("pp", sFG, sT, 4, "pp")()
    st(fine=True)
    PR = 80
    for n in range(NU):
        for m_ in range(3):
            a.e(f"s_add_u32 s{sU}, s{sS}, {m_+1}")
            a.e(f"s_and_b32 s{sU}, s{sU}, 3")
            a.e(f"s_mul_i32 s{sU}, s{sU}, {PBH}")
            a.e(f"s_add_u32 s{sU}, s{sU}, s{sQP[n]}")
            a.e(f"buffer_load_dwordx4 {vr(PR+12*n+4*m_,4)}, v{L16}, s[{sP}:{sP+3}], s{sU} offen sc1")
    for n in range(NU):
        b = 32 * n; X0 = b + 8; T0_ = b + 16; A_ = 64 + 8 * n
        for q in range(4):
            a.e(f"v_lshlrev_b32 v{X0+2*q}, 16, v{XR+4*n+q}")
            a.e(f"v_and_b32 v{X0+2*q+1}, 0xffff0000, v{XR+4*n+q}")
        for m_ in range(3):
            a.e(f"s_waitcnt vmcnt({3*(NU-1-n) + (2-m_) + 2*n})")
            for q in range(4):
                a.e(f"v_lshlrev_b32 v{T0_+2*q}, 16, v{PR+12*n+4*m_+q}")
                a.e(f"v_and_b32 v{T0_+2*q+1}, 0xffff0000, v{PR+12*n+4*m_+q}")
            for r in range(8): a.e(f"v_add_f32 v{A_+r}, v{A_+r}, v{T0_+r}")
        for r in range(8): a.e(f"v_fma_f32 v{X0+r}, v{A_+r}, v{b+r}, v{X0+r}")
        for q in range(4): a.e(f"v_cvt_pk_bf16_f32 v{XR+4*n+q}, v{X0+2*q}, v{X0+2*q+1}")
        for qs in range(2): a.e(f"buffer_store_dwordx2 {vr(XR+4*n+2*qs,2)}, v{XV+qs}, s[{sOut}:{sOut+3}], s{sQO[n]} offen")
    st()
    st.flush(sW, TM2)
    a.label(f"L_{K}_done")
    a.e("s_endpgm")
    for sfn in stubs: sfn()
    slow_stub(0); slow_stub(1)
    return a

def kd(name, vgpr, sgpr):
    return f""".amdhsa_kernel {name}
  .amdhsa_next_free_vgpr {vgpr}
  .amdhsa_next_free_sgpr {sgpr}
  .amdhsa_accum_offset {(vgpr+3)//4*4}
  .amdhsa_group_segment_fixed_size 0
  .amdhsa_kernarg_size 96
  .amdhsa_user_sgpr_count 2
  .amdhsa_user_sgpr_kernarg_segment_ptr 1
  .amdhsa_system_sgpr_workgroup_id_x 1
.end_amdhsa_kernel
"""

def main(out):
    a = kernel1()
    n = NAME + "_kernel"
    hdr = open("cdna_kernels/" + NAME + ".s.ref").read().split("; Override launch geometry")[0]
    s = hdr + "; @launch grid=(256,1,1) block=(512,1,1) lds=163840\n"
    s += '.amdgcn_target "amdgcn-amd-amdhsa--gfx950"\n.text\n'
    errs = check_hazards(a.L)
    for e in errs[:20]: print("HAZARD", e)
    s += f".globl {n}\n.p2align 8\n.type {n},@function\n{n}:\n" + a.text()
    s += '.section .rodata,"a"\n.p2align 6\n' + kd(n, 256, 102)
    open(out, "w").write(s)
    print("wrote", out, "hazards:", len(errs), "instrs:", len(a.L))

if __name__ == "__main__":
    args = sys.argv[1:]
    if "--stamps" in args:
        STAMPS = True; args.remove("--stamps")
    for x in list(args):
        if x.startswith("-O"):
            k_, v_ = x[2:].split("=")
            OPT[k_] = int(v_) if v_.lstrip("-").isdigit() else v_.replace("_", " ")
            args.remove(x)
    main(args[0] if args else "cdna_kernels/" + NAME + ".s")
```

```python
import sys, struct, math
from asmlib import *

NAME = "recurrent_scan__sliding_block_cached__glu_gated_geglu__prompt"
def f32(x): return "0x%08x" % struct.unpack("<I", struct.pack("<f", x))[0]
LOG2E = 1.4426950408889634
SCALE_C = (192 ** -0.5) * LOG2E
GELU_C0 = -2.0 * math.sqrt(2.0 / math.pi) * LOG2E
GELU_C1 = GELU_C0 * 0.044715
MF = "v_mfma_f32_16x16x32_bf16"

A_MB = 240 * 1024
WS_A_BYTES = 128 * A_MB
WS_P = WS_A_BYTES
PB_BYTES = 128 * 40 * 1024
NPB = 4
WS_X = WS_P + NPB * PB_BYTES + 65536
WS_G = WS_P + NPB * PB_BYTES + 16384
WS_F = WS_P + NPB * PB_BYTES
STAMPS = False
OPT = {}
WS_ST = 200 * 1024 * 1024

class Stamper:
    def __init__(self, a, base=86, kid=0):
        self.a = a; self.n = 0; self.kid = kid
    def __call__(self, real=False, fine=False):
        if not STAMPS: return
        if fine and not OPT.get("fine"): return
        a = self.a
        if self.n == 0: a.e("v_mov_b32 v255, -1")
        a.e("s_memrealtime s[84:85]" if (real or OPT.get("real")) else "s_memtime s[84:85]")
        a.e("s_waitcnt lgkmcnt(0)"); a.lgkm = []
        a.e(f"v_writelane_b32 v255, s84, {self.n}")
        self.n += 1; assert self.n <= 64
    def flush(self, swave, vtmp):
        if not STAMPS: return
        a = self.a
        a.e("s_waitcnt vmcnt(0)")
        self()
        a.e("s_memrealtime s[84:85]")
        a.e("s_waitcnt lgkmcnt(0)")
        a.e(f"v_writelane_b32 v255, s84, 63")
        a.e(f"s_lshl_b32 s84, s2, 3")
        a.e(f"s_add_u32 s84, s84, s{swave}")
        a.e(f"s_lshl_b32 s84, s84, 8")
        a.e(f"s_add_u32 s84, s84, {WS_ST + self.kid * 1048576}")
        a.e(f"s_add_u32 s28, s26, s84")
        a.e(f"s_addc_u32 s29, s27, 0")
        a.e(f"s_and_b32 s29, s29, 0xffff")
        a.e(f"s_mov_b32 s30, 256")
        a.e(f"s_mov_b32 s31, 0x20000")
        a.e(f"v_mbcnt_lo_u32_b32 v{vtmp}, -1, 0")
        a.e(f"v_mbcnt_hi_u32_b32 v{vtmp}, -1, v{vtmp}")
        a.e(f"v_lshlrev_b32 v{vtmp}, 2, v{vtmp}")
        a.e(f"buffer_store_dword v255, v{vtmp}, s[28:31], 0 offen")

def timed(a, acc, fn):
    if not OPT.get("acc"): fn(); return
    a.e("s_memtime s[82:83]"); a.e("s_waitcnt lgkmcnt(0)"); a.lgkm = []
    a.e(f"s_sub_u32 s{acc}, s{acc}, s82")
    fn()
    a.e("s_memtime s[82:83]"); a.e("s_waitcnt lgkmcnt(0)")
    a.e(f"s_add_u32 s{acc}, s{acc}, s82")

def load_ptrs(a):
    a.e("s_load_dwordx16 s[4:19], s[0:1], 0")
    a.e("s_load_dwordx8 s[20:27], s[0:1], 64")

def srd(a, d, base_lo, base_hi, off_sreg, nbytes_expr):
    if off_sreg is None:
        a.e(f"s_mov_b32 s{d}, s{base_lo}")
        a.e(f"s_and_b32 s{d+1}, s{base_hi}, 0xffff")
    else:
        a.e(f"s_add_u32 s{d}, s{base_lo}, {off_sreg}")
        a.e(f"s_addc_u32 s{d+1}, s{base_hi}, 0")
        a.e(f"s_and_b32 s{d+1}, s{d+1}, 0xffff")
    a.e(f"s_mov_b32 s{d+2}, {nbytes_expr}")
    a.e(f"s_mov_b32 s{d+3}, 0x20000")

def mfma_t(d, A, B, c=None):
    cc = vr(d, 4) if c is None else (c if isinstance(c, str) else vr(c, 4))
    return f"{MF} {vr(d,4)}, {vr(A,4)}, {vr(B,4)}, {cc}"

class Stream:
    def __init__(self, a, FR, ring=4, depth=3):
        self.a = a; self.m = []; self.pre = {}; self.post = {}
        self.FR = FR; self.R = ring; self.D = depth
        self.frags = []
    def n(self): return len(self.m)
    def add_pre(self, g, fn): self.pre.setdefault(g, []).append(fn)
    def add_post(self, g, fn): self.post.setdefault(g, []).append(fn)
    def mfma(self, text): self.m.append(text); return len(self.m) - 1
    def buf(self, f=None):
        f = len(self.frags) if f is None else f
        return self.FR + 4 * (f % self.R)
    def frag(self, reads, mfmas):
        f = len(self.frags); b = self.buf(f)
        g0 = self.n()
        self.frags.append((g0, [r(b) for r in reads], len(mfmas)))
        for m_ in mfmas: self.mfma(m_(b))
        return g0
    def spread(self, fns, g0, g1):
        n = len(fns)
        for k, fn in enumerate(fns):
            self.add_post(g0 + (k * (g1 - g0)) // max(n, 1), fn)
    def read_gap(self, f):
        return self.frags[f - self.D][0] if f >= self.D else -1
    def emit(self, tail_reads=None):
        a = self.a
        rd_at = {}
        nf = len(self.frags)
        for f, (g0, reads, nm) in enumerate(self.frags):
            if f < self.D:
                for t in reads: a.ds(t, ("f", f))
            else:
                hg, _, hn = self.frags[f - self.D]
                for k, t in enumerate(reads):
                    rd_at.setdefault(hg + min(k, hn - 1), []).append((t, f))
        first = {g0: f for f, (g0, _, _) in enumerate(self.frags)}
        for g, mt in enumerate(self.m):
            for fn in self.pre.get(g, []): fn()
            if g in first: a.wait_lgkm(("f", first[g]))
            a.e(mt)
            posts = self.post.get(g, [])
            nv = 0
            if OPT.get("vfirst", 1):
                while nv < len(posts) and getattr(posts[nv], "valu", False): posts[nv](); nv += 1
            for (t, f) in rd_at.get(g, []): a.ds(t, ("f", f))
            for fn in posts[nv:]: fn()

def E(a, text):
    fn = lambda: a.e(text)
    fn.valu = text.startswith("v_") and not text.startswith("v_add_u32")
    return fn

def kernel1():
    a = Asm(); K = "k1"; st = Stamper(a, kid=0)
    ACC = lambda jb, qs: (jb * 2 + qs) * 4
    XS = 144; FR = 176; SUMA = 192; GRAM = 200; CSA = 208
    O = ACC; QP = lambda qs, s: 96 + 24 * qs + 4 * s
    S = lambda kb, qs: 144 + (kb * 2 + qs) * 4
    P = lambda qs, u: 192 + (qs * 2 + u) * 4
    NEGM = lambda qs: 208 + 4 * qs
    LT = lambda qs: 216 + 4 * qs
    ONES = 224; LS = 228; TP = 230
    DUT = 230
    AWQ = 238; AGU = 242; DA = 243; DB = 246; XOFF = 247; L16 = 248; KA = 249; VB = 252
    VR = AWQ; KR = [AGU, DB]
    sX, sWQ, sGU, sK, sV, sWS = 28, 32, 36, 40, 44, 48
    sW, sH, sB = 52, 53, 54
    sTW, sOA, sOB, sOB2, sMB0, sTX = 55, 56, 57, 58, 59, 60
    sEX48 = 62
    sXO, sXO2, sT, sT2, sT3 = 64, 65, 66, 67, 68
    sW3 = 69; sHO = 70; sG1 = 71; sFL = 72; sTHR = 73; sKO = 74; sVO = 75
    sRET = 76
    GOFF = 24576; WSLOT = 24576 + 8 * 1664 - 128
    KSL = [114688, 0, 24576]; VSL = [139264, 49152, 73728]
    CSL = 3 * WSLOT
    assert CSL + 1152 <= KSL[0]
    wslot = lambda k: ((k + 2) % 3) * WSLOT
    ROT = OPT.get("rot", 1)

    a.e("s_cmp_ge_u32 s2, 256")
    a.e(f"s_cbranch_scc1 L_{K}_done")
    st(True); st()
    if OPT.get("acc"):
        for r in (99, 100, 101): a.e(f"s_mov_b32 s{r}, 0")
    load_ptrs(a)
    LANE = 0; t = 2
    sFG = 88; sDB_ = 92; sU, sU2 = 97, 98
    NXS = OPT.get("nxs", 3)
    XSET = [144, 160, 192]
    stubs = []
    a.e(f"v_lshrrev_b32 v1, 6, v0")
    a.e(f"v_and_b32 v{LANE}, 63, v0")
    a.e(f"v_readfirstlane_b32 s{sW}, v1")
    a.e(f"s_and_b32 s{sT}, s2, 7")
    a.e(f"s_lshr_b32 s{sT2}, s2, 3")
    a.e(f"s_lshl_b32 s{sH}, s{sT}, 2")
    a.e(f"s_and_b32 s{sT}, s{sT2}, 3")
    a.e(f"s_add_u32 s{sH}, s{sH}, s{sT}")
    a.e(f"s_lshr_b32 s{sB}, s{sT2}, 2")
    HYB = OPT.get("hyb", 1); sR0 = 61
    if HYB:
        a.e(f"s_lshl_b32 s{sT}, s{sT}, 1")
        a.e(f"s_add_u32 s{sR0}, s{sT}, s{sB}")
        a.e(f"s_sub_u32 s{sT}, s{sR0}, 9")
        a.e(f"s_cmp_ge_u32 s{sR0}, 9")
        a.e(f"s_cselect_b32 s{sR0}, s{sT}, s{sR0}")
        a.e(f"s_add_u32 s{sR0}, s{sR0}, 1")
        a.e(f"s_mov_b32 s{sTW}, 0")
    else:
        a.e(f"s_mul_i32 s{sT}, s{sT}, 3")
        a.e(f"s_add_u32 s{sTW}, s{sT}, s{sB}")
        a.e(f"s_sub_u32 s{sT}, s{sTW}, 10")
        a.e(f"s_cmp_ge_u32 s{sTW}, 10")
        a.e(f"s_cselect_b32 s{sTW}, s{sT}, s{sTW}")
    a.e(f"s_mov_b32 s{sTX}, s{sTW}")
    a.e(f"s_mul_i32 s{sW3}, s{sW}, 3072")
    a.e(f"v_lshlrev_b32 v{L16}, 4, v{LANE}")
    a.e(f"s_lshl_b32 s{sT}, s{sB}, 5")
    a.e(f"s_add_u32 s{sT}, s{sT}, s{sH}")
    a.e(f"s_lshl_b32 s{sT}, s{sT}, 3")
    a.e(f"s_add_u32 s{sT}, s{sT}, s{sW}")
    a.e(f"s_mul_i32 s{sT2}, s{sT}, 1280")
    a.e(f"v_lshlrev_b32 v20, 5, v{LANE}")
    a.e("s_waitcnt lgkmcnt(0)")
    srd(a, sX, 4, 5, f"s{sT2}", "1280")
    a.vmem(f"buffer_load_dwordx4 v[24:27], v20, s[{sX}:{sX+3}], 0 offen", "xr")
    a.vmem(f"buffer_load_dwordx4 v[28:31], v20, s[{sX}:{sX+3}], 0 offen offset:16", "xr")
    st()
    a.e(f"s_lshl_b32 s{sT}, s{sW}, 3")
    def voffs(i, which):
        a.e(f"v_add_u32 v{t}, {64*i}, v{LANE}")
        a.e(f"v_mul_u32_u24 v{t+1}, 2731, v{t}")
        a.e(f"v_lshrrev_b32 v{t+1}, 16, v{t+1}")
        a.e(f"v_mul_u32_u24 v{t+2}, 24, v{t+1}")
        a.e(f"v_sub_u32 v{t+2}, v{t}, v{t+2}")
        a.e(f"v_add_u32 v{t+1}, s{sT}, v{t+1}")
        if which == "W":
            a.e(f"v_and_b32 v{t+3}, 2, v{t+1}")
            a.e(f"v_bfe_u32 v{t+4}, v{t+1}, 3, 1")
            a.e(f"v_lshl_or_b32 v{t+3}, v{t+4}, 2, v{t+3}")
            a.e(f"v_xor_b32 v{t+3}, v{t+2}, v{t+3}")
            a.e(f"v_mul_u32_u24 v{t+6}, 12288, v{t+1}")
            a.e(f"v_lshl_add_u32 v{DA+i}, v{t+3}, 4, v{t+6}")
        else:
            a.e(f"v_mul_u32_u24 v{t+6}, 384, v{t+1}")
            a.e(f"v_bfe_u32 v{t+3}, v{t+1}, 1, 3")
            a.e(f"v_xor_b32 v{t+3}, v{t+2}, v{t+3}")
            a.e(f"v_lshl_add_u32 v{KA+i}, v{t+3}, 4, v{t+6}")
            a.e(f"v_and_b32 v{t+3}, 6, v{t+1}")
            a.e(f"v_xor_b32 v{t+3}, v{t+2}, v{t+3}")
            a.e(f"v_lshl_add_u32 v{VB+i}, v{t+3}, 4, v{t+6}")
    for i in range(3): voffs(i, "W")
    a.e(f"s_and_b32 s{sT3}, s{sW}, 3")
    a.e(f"s_lshl_b32 s{sT2}, s{sT3}, 4")
    a.e(f"v_mul_u32_u24 v{t+1}, 10923, v{LANE}")
    a.e(f"v_lshrrev_b32 v{t+1}, 16, v{t+1}")
    a.e(f"v_mul_u32_u24 v{t+2}, 6, v{t+1}")
    a.e(f"v_sub_u32 v{t+2}, v{LANE}, v{t+2}")
    a.e(f"v_add_u32 v{t+1}, s{sT2}, v{t+1}")
    a.e(f"v_mul_u32_u24 v{t+6}, 3072, v{t+1}")
    a.e(f"v_lshl_add_u32 v{DB}, v{t+2}, 4, v{t+6}")
    a.e(f"s_mul_i32 s{sMB0}, s{sT3}, {2*1664}")
    a.e(f"s_cmp_ge_u32 s{sW}, 4")
    a.e(f"s_cselect_b32 s{sT2}, {GOFF+768}, {GOFF}")
    a.e(f"s_add_u32 s{sMB0}, s{sMB0}, s{sT2}")
    a.e(f"s_mov_b32 s{sEX48}, -1")
    a.e(f"s_mov_b32 s{sEX48+1}, 0xffff")
    a.e(f"s_mov_b32 s{sG1}, {f32(GELU_C1)}")
    a.e(f"s_mul_i32 s{sT2}, s{sH}, 384")
    srd(a, sWQ, 10, 11, f"s{sT2}", "0")
    a.e(f"s_sub_u32 s{sWQ+2}, {640*12288}, s{sT2}")
    a.e(f"s_cmp_ge_u32 s{sW}, 4")
    a.e(f"s_cselect_b32 s14, s18, s16")
    a.e(f"s_cselect_b32 s15, s19, s17")
    a.e(f"s_mul_i32 s{sT2}, s{sH}, 96")
    srd(a, sGU, 14, 15, f"s{sT2}", "0")
    a.e(f"s_sub_u32 s{sGU+2}, {640*3072}, s{sT2}")
    a.e(f"s_mov_b32 s{sT2}, {WS_F}")
    srd(a, sFG, 26, 27, f"s{sT2}", f"{16384 + 256*128}")
    srd(a, sDB_, 24, 25, None, "256")
    a.e(f"s_lshl_b32 s{sT2}, s{sB}, 4")
    a.e(f"s_lshr_b32 s{sT3}, s{sH}, 1")
    a.e(f"s_add_u32 s{sT2}, s{sT2}, s{sT3}")
    a.e(f"s_mul_i32 s{sT2}, s{sT2}, 20480")
    a.e(f"s_add_u32 s{sT2}, s{sT2}, {WS_X}")
    srd(a, sK, 26, 27, f"s{sT2}", "20480")
    LNB = KSL[0]
    a.e(f"s_mul_i32 s{sT2}, s{sW}, 10")
    a.e(f"v_lshrrev_b32 v{t}, 3, v{LANE}")
    a.e(f"v_add_u32 v{t}, s{sT2}, v{t}")
    a.e(f"v_and_b32 v{t+1}, 7, v{LANE}")
    a.e(f"v_mul_u32_u24 v21, 1296, v{t+1}")
    a.e(f"v_lshl_add_u32 v21, v{t}, 4, v21")
    a.e(f"v_add_u32 v21, {LNB}, v21")
    a.e(f"s_and_b32 s{sT2}, s{sH}, 1")
    a.e(f"s_lshl_b32 s{sT2}, s{sT2}, 3")
    a.e(f"v_add_u32 v{t+1}, s{sT2}, v{t+1}")
    a.e(f"v_lshlrev_b32 v22, 8, v{t}")
    a.e(f"v_lshl_add_u32 v22, v{t+1}, 4, v22")
    a.e(f"s_mul_i32 s{sT2}, s{sW}, 1296")
    a.e(f"s_add_u32 s{sT2}, s{sT2}, {LNB}")
    a.e(f"v_add_u32 v23, s{sT2}, v20")
    def wave_sum(v, sdst):
        for m_ in ("row_shr:1", "row_shr:2", "row_shr:4", "row_shr:8"):
            a.e("s_nop 1")
            a.e(f"v_add_f32_dpp v{v}, v{v}, v{v} {m_} row_mask:0xf bank_mask:0xf bound_ctrl:0")
        a.e("s_nop 1")
        a.e(f"v_add_f32_dpp v{v}, v{v}, v{v} row_bcast:15 row_mask:0xa bank_mask:0xf")
        a.e("s_nop 1")
        a.e(f"v_add_f32_dpp v{v}, v{v}, v{v} row_bcast:31 row_mask:0xc bank_mask:0xf")
        a.e("s_nop 1")
        a.e(f"v_readlane_b32 s{sdst}, v{v}, 63")
        a.e("s_nop 3")
    def rbf(d, src):
        a.e(f"v_cvt_pk_bf16_f32 v{d}, v{src}, v{src}")
        a.e(f"v_and_b32 v{d}, 0xffff0000, v{d}")
    def w_block(k):
        base = wslot(k); tag = ("W", k); fns = []
        def head():
            a.e(f"s_mul_i32 s{sOA}, s{sTW}, 786432")
            a.e(f"s_mul_i32 s{sOB}, s{sTW}, 196608")
        fns.append(head)
        for i in range(3):
            def f(i=i):
                a.e(f"s_add_u32 m0, s{sW3}, {base + 1024*i}")
                if i == 0: a.e(f"s_add_u32 s{sOB2}, s{sOB}, 24576")
                elif i == 1: a.e(f"s_add_u32 s{sTW}, s{sTW}, 1")
                else: a.e(f"s_cmp_eq_u32 s{sTW}, 10")
                a.vmem(f"buffer_load_dwordx4 v{DA+i}, s[{sWQ}:{sWQ+3}], s{sOA} offen lds", tag)
                if i == 2:
                    a.e(f"s_cselect_b32 s{sTW}, {HYB}, s{sTW}")
                    if HYB and k == 0: a.e(f"s_mov_b32 s{sTW}, s{sR0}")
            fns.append(f)
        for i in range(2):
            def f(i=i):
                a.e(f"s_add_u32 m0, s{sMB0}, {base + 1664*i}")
                a.e(f"s_mov_b64 exec, s[{sEX48}:{sEX48+1}]")
                a.vmem(f"buffer_load_dwordx4 v{DB}, s[{sGU}:{sGU+3}], s{sOB2 if i else sOB} offen lds", tag)
                a.e("s_mov_b64 exec, -1")
            fns.append(f)
        return fns
    W1E = OPT.get("w1e", 0)
    if HYB:
        for f in w_block(0): f()
        if W1E:
            for f in w_block(1): f()
    a.wait_vm("xr")
    XF = 32
    for q in range(8):
        a.e(f"v_lshlrev_b32 v{XF+2*q}, 16, v{24+q}")
        a.e(f"v_and_b32 v{XF+2*q+1}, 0xffff0000, v{24+q}")
    a.e(f"v_add_f32 v48, v{XF}, v{XF+1}")
    a.e(f"v_add_f32 v49, v{XF+2}, v{XF+3}")
    for q in range(4, 16, 2):
        a.e(f"v_add_f32 v48, v48, v{XF+q}")
        a.e(f"v_add_f32 v49, v49, v{XF+q+1}")
    a.e(f"v_add_f32 v48, v48, v49")
    wave_sum(48, sU)
    a.e(f"v_mov_b32 v50, {f32(1.0/640)}")
    a.e(f"v_mul_f32 v50, s{sU}, v50")
    a.e(f"v_cmp_gt_u32 vcc, 40, v{LANE}")
    a.e(f"v_mov_b32 v48, 0")
    a.e(f"v_mov_b32 v49, 0")
    for q in range(16):
        a.e(f"v_sub_f32 v{52+q}, v{XF+q}, v50")
    for q in range(0, 16, 2):
        a.e(f"v_fmac_f32 v48, v{52+q}, v{52+q}")
        a.e(f"v_fmac_f32 v49, v{52+q+1}, v{52+q+1}")
    a.e(f"v_add_f32 v48, v48, v49")
    a.e(f"v_cndmask_b32 v48, 0, v48, vcc")
    wave_sum(48, sU)
    a.e(f"v_mov_b32 v51, {f32(1.0/640)}")
    a.e(f"v_mul_f32 v51, s{sU}, v51")
    rbf(50, 50); rbf(51, 51)
    a.e(f"v_add_f32 v51, {f32(1e-5)}, v51")
    rbf(51, 51)
    a.e(f"v_sqrt_f32 v51, v51")
    a.e("s_nop 0")
    rbf(51, 51)
    a.e(f"v_rcp_f32 v51, v51")
    for q in range(16): a.e(f"v_sub_f32 v{52+q}, v{XF+q}, v50")
    for q in range(8): a.e(f"v_cvt_pk_bf16_f32 v{24+q}, v{52+2*q}, v{52+2*q+1}")
    for q in range(8):
        a.e(f"v_lshlrev_b32 v{XF+2*q}, 16, v{24+q}")
        a.e(f"v_and_b32 v{XF+2*q+1}, 0xffff0000, v{24+q}")
    for q in range(16): a.e(f"v_mul_f32 v{XF+q}, v{XF+q}, v51")
    for q in range(8): a.e(f"v_cvt_pk_bf16_f32 v{24+q}, v{XF+2*q}, v{XF+2*q+1}")
    a.e(f"s_mov_b32 exec_hi, 0xff")
    a.e(f"ds_write_b128 v23, v[24:27]")
    a.e(f"ds_write_b128 v23, v[28:31] offset:16")
    a.e("s_mov_b64 exec, -1")
    a.e("s_waitcnt lgkmcnt(0)")
    a.e("s_barrier")
    a.e(f"ds_read_b128 v[32:35], v21")
    a.e(f"ds_read_b128 v[36:39], v21 offset:128")
    a.e(f"s_lshl_b32 s{sT2}, s{sB}, 3")
    a.e(f"s_add_u32 s{sT2}, s{sT2}, s{sH}")
    a.e(f"s_lshl_b32 s{sT2}, s{sT2}, 7")
    a.e(f"s_cmp_lt_u32 s{sH}, 8")
    a.e(f"s_cselect_b32 s{sT2}, s{sT2}, 0x100000")
    for r in range(40, 44): a.e(f"v_mov_b32 v{r}, 0")
    a.e("s_waitcnt lgkmcnt(0)")
    a.vmem(f"buffer_store_dwordx4 v[32:35], v22, s[{sK}:{sK+3}], 0 offen sc1", "xs")
    a.e("s_mov_b64 exec, 0xffff")
    a.vmem(f"buffer_store_dwordx4 v[36:39], v22, s[{sK}:{sK+3}], 0 offen offset:2048 sc1", "xs")
    a.e(f"s_mov_b64 exec, 1")
    a.vmem(f"buffer_store_dword v40, v40, s[{sFG}:{sFG+3}], s{sT2} offen sc1", "xs")
    a.e(f"s_lshl_b32 s99, s2, 7")
    a.e(f"s_add_u32 s99, s99, 16384")
    a.vmem(f"buffer_store_dwordx4 v[40:43], v40, s[{sFG}:{sFG+3}], s99 offen sc1", "xs")
    a.e(f"s_mov_b64 exec, -1")
    st()

    def kv_block(which, j):
        srdr, vo, base, so = (sK, KA, KSL[j % 3], sKO) if which == "K" else (sV, VB, VSL[j % 3], sVO)
        tag = (which, j); fns = []
        def head():
            a.e(f"s_add_u32 s{so}, s{sB}, {j}")
            a.e(f"s_and_b32 s{so}, s{so}, 7")
            a.e(f"s_mul_i32 s{so}, s{so}, 24576")
        fns.append(head)
        for i in range(3):
            def f(i=i):
                a.e(f"s_add_u32 m0, s{sW3}, {base + 1024*i}")
                a.e("s_nop 0")
                a.vmem(f"buffer_load_dwordx4 v{vo+i}, s[{srdr}:{srdr+3}], s{so} offen lds", tag)
            fns.append(f)
        return fns
    def x_loads(k, ks):
        xb = XSET[k % NXS]; fns = []
        if ks == 0:
            def head():
                a.e(f"s_lshl_b32 s{sXO}, s{sTX}, 11")
                a.e(f"s_add_u32 s{sTX}, s{sTX}, 1")
                a.e(f"s_add_u32 s{sXO2}, s{sXO}, 20480")
                a.e(f"s_cmp_eq_u32 s{sTX}, 10")
                a.e(f"s_cselect_b32 s{sTX}, {HYB}, s{sTX}")
                if HYB and k == 0: a.e(f"s_mov_b32 s{sTX}, s{sR0}")
            fns.append(head)
        for qs in range(2):
            fns.append(lambda qs=qs: a.vmem(f"buffer_load_dwordx4 {vr(xb+8*ks+4*qs,4)}, v{L16}, s[{sX}:{sX+3}], s{sXO2 if qs else sXO} offen offset:{1024*ks} sc1", ("x", k, ks)))
        return fns
    sFO = 99
    sAO, sPO = 100, 101
    def sig_issue(stage, z, o, tag):
        def fn():
            a.e(f"v_mov_b32 v{z}, 0")
            a.e(f"v_mov_b32 v{o}, 1")
            a.e("s_mov_b64 exec, 1")
            a.vmem(f"buffer_atomic_add v{o}, v{z}, s[{sDB_}:{sDB_+3}], s{sAO} offen offset:{4*stage} sc0 sc1", tag)
            a.e("s_mov_b64 exec, -1")
        return fn
    def sig_check(name, stage, tv, tag):
        z, o, ad, pv = tv
        def fn():
            a.wait_vm(tag)
            a.e(f"v_readfirstlane_b32 s{sU2}, v{o}")
            a.e("s_nop 3")
            a.e(f"s_and_b32 s{sU2}, s{sU2}, 31")
            a.e(f"s_cmp_eq_u32 s{sU2}, 31")
            a.e(f"s_cbranch_scc1 L_{name}_sig")
            a.label(f"L_{name}_sigr")
        def stub():
            a.label(f"L_{name}_sig")
            a.e(f"v_lshrrev_b32 v{ad}, 4, v{L16}")
            if stage > 0:
                a.e(f"v_lshlrev_b32 v{z}, 5, v{ad}")
                a.e(f"s_mov_b32 s{sU}, 0")
                a.e("s_mov_b64 exec, 0xff")
                a.label(f"L_{name}_chk")
                a.e(f"buffer_load_dword v{pv}, v{z}, s[{sDB_}:{sDB_+3}], 0 offen sc1")
                a.e(f"s_add_u32 s{sU}, s{sU}, 1")
                a.e("s_waitcnt vmcnt(0)")
                a.e(f"v_add_u32 v{pv}, -1, v{pv}")
                a.e(f"v_and_b32 v{pv}, 0x8000001f, v{pv}")
                a.e(f"v_cmp_ne_u32 vcc, 31, v{pv}")
                a.e(f"s_cbranch_vccz L_{name}_chkd")
                a.e("s_sleep 8")
                a.e(f"s_cmp_lt_u32 s{sU}, 0x20000")
                a.e(f"s_cbranch_scc1 L_{name}_chk")
                a.label(f"L_{name}_chkd")
                a.e("s_mov_b64 exec, -1")
                a.e(f"v_and_b32 v{z}, 3, v{ad}")
                a.e(f"v_lshrrev_b32 v{ad}, 2, v{ad}")
                a.e(f"v_lshl_add_u32 v{ad}, v{ad}, 3, v{z}")
                a.e(f"s_and_b32 s{sU}, s{sB}, 3")
                a.e(f"s_lshl_b32 s{sU}, s{sU}, 6")
                a.e(f"s_and_b32 s{sU2}, s{sB}, 4")
                a.e(f"s_add_u32 s{sU}, s{sU}, s{sU2}")
            else:
                a.e(f"s_lshl_b32 s{sU}, s{sB}, 5")
            a.e(f"s_lshl_b32 s{sU}, s{sU}, 7")
            a.e(f"s_add_u32 s{sU}, s{sU}, 16384")
            a.e(f"v_lshlrev_b32 v{ad}, 7, v{ad}")
            a.e(f"v_mov_b32 v{o}, 1")
            a.e("s_mov_b64 exec, 0xffffffff")
            a.e(f"buffer_store_dword v{o}, v{ad}, s[{sFG}:{sFG+3}], s{sU} offen offset:{4*stage} sc1")
            a.e("s_mov_b64 exec, -1")
            a.e(f"s_branch L_{name}_sigr")
        stubs.append(stub)
        return fn
    def poll_issue2(stage, pv, zv, tag):
        def fn():
            a.e(f"v_mov_b32 v{zv}, 0")
            a.e("s_mov_b64 exec, 1")
            a.vmem(f"buffer_load_dword v{pv}, v{zv}, s[{sFG}:{sFG+3}], s{sPO} offen offset:{4*stage} sc1", tag)
            a.e("s_mov_b64 exec, -1")
        return fn
    def poll_check2(name, stage, pv, zv, tag):
        spin = flag_wait(name, stage, pv, zv)
        def fn():
            a.wait_vm(tag)
            a.e(f"v_readfirstlane_b32 s{sU2}, v{pv}")
            a.e("s_nop 3")
            a.e(f"s_or_b32 s{sU2}, s{sU2}, s{sW}")
            a.e(f"s_cmp_eq_u32 s{sU2}, 0")
            a.e(f"s_cbranch_scc1 L_{name}_spin")
            a.label(f"L_{name}_ok")
        return fn
    def flag_wait(name, stage, pv, zv, after=None):
        def fn():
            a.e(f"s_cmp_eq_u32 s{sW}, 0")
            a.e(f"s_cbranch_scc1 L_{name}_spin")
            a.label(f"L_{name}_ok")
        def stub():
            a.label(f"L_{name}_spin")
            a.e(f"s_mov_b32 s{sU}, 0")
            a.e(f"v_mov_b32 v{zv}, 0")
            a.e("s_mov_b64 exec, 1")
            a.label(f"L_{name}_poll")
            a.e(f"buffer_load_dword v{pv}, v{zv}, s[{sFG}:{sFG+3}], s{sFO} offen offset:{4*stage} sc1")
            a.e(f"s_add_u32 s{sU}, s{sU}, 1")
            a.e("s_waitcnt vmcnt(0)")
            a.e(f"v_cmp_ne_u32 vcc, 1, v{pv}")
            a.e(f"s_cbranch_vccz L_{name}_done")
            a.e(f"s_sleep {OPT.get('slp', 2)}")
            a.e(f"s_cmp_lt_u32 s{sU}, 0x20000")
            a.e(f"s_cbranch_scc1 L_{name}_poll")
            a.label(f"L_{name}_done")
            a.e("s_mov_b64 exec, -1")
            if after: after()
            a.e(f"s_branch L_{name}_ok")
        stubs.append(stub)
        return fn

    if not HYB:
        for f in w_block(0): f()
    a.wait_vm("xs")
    a.e("s_barrier")
    a.e(f"s_lshl_b32 s{sAO}, s{sB}, 5")
    a.e(f"s_cmp_eq_u32 s{sW}, 0")
    a.e(f"s_cselect_b32 s{sAO}, s{sAO}, 0x100000")
    a.e(f"s_cselect_b32 s{sPO}, s{sFO}, 0x100000")
    sig_issue(0, 40, 41, "ax")()
    sig_check("xs", 0, (40, 41, 42, 43), "ax")()
    if HYB and not W1E:
        a.e(f"s_cmp_eq_u32 s{sW}, 0")
        a.e(f"s_cbranch_scc1 L_w1_skip")
        for f in w_block(1): f()
        a.label("L_w1_skip")
    st()
    a.e(f"s_lshl_b32 s{sT2}, s{sB}, 3")
    a.e(f"s_add_u32 s{sT2}, s{sT2}, s{sW}")
    a.e(f"s_mul_i32 s{sU}, s{sT2}, 40960")
    a.e(f"s_add_u32 s{sU}, s{sU}, {WS_X}")
    srd(a, sX, 26, 27, f"s{sU}", "40960")
    a.e(f"s_mul_i32 s{sT2}, s{sT2}, {2*A_MB}")
    srd(a, sWS, 26, 27, f"s{sT2}", f"{2*A_MB}")
    a.e(f"s_mul_i32 s{sT2}, s{sH}, 786432")
    a.e(f"s_add_u32 s{sT2}, s{sT2}, {1536*384}")
    srd(a, sK, 6, 7, f"s{sT2}", "196608")
    srd(a, sV, 8, 9, f"s{sT2}", "196608")
    for i in range(3): voffs(i, "KV")
    a.e(f"v_lshrrev_b32 v{t+1}, 4, v{LANE}")
    a.e(f"v_bfe_u32 v{t+3}, v{LANE}, 2, 2")
    a.e(f"v_and_b32 v{t+4}, 3, v{LANE}")
    a.e(f"v_lshlrev_b32 v{t+4}, 3, v{t+4}")
    a.e(f"v_bfe_u32 v{t+5}, v{LANE}, 3, 2")
    a.e(f"v_lshl_add_u32 v{t+7}, v{t+1}, 3, v{t+3}")
    a.e(f"v_mul_u32_u24 v{t+8}, 384, v{t+7}")
    a.e(f"v_add_u32 v{t+8}, v{t+8}, v{t+4}")
    a.e(f"v_add_u32 v{t+8}, {2*WSLOT}, v{t+8}")
    for i in range(4):
        a.e(f"v_xor_b32 v{t+9}, {i}, v{t+5}")
        a.e(f"v_lshl_add_u32 v{AWQ+i}, v{t+9}, 5, v{t+8}")
    a.e(f"v_mul_u32_u24 v{t+8}, 1664, v{t+1}")
    a.e(f"v_mul_u32_u24 v{t+9}, 96, v{t+3}")
    a.e(f"v_add3_u32 v{t+8}, v{t+8}, v{t+9}, v{t+4}")
    a.e(f"v_add_u32 v{AGU}, {GOFF + 2*WSLOT}, v{t+8}")
    for i in range(4): a.e(f"v_mov_b32 v{ONES+i}, 0x3f803f80")
    a.wait_vm(("W", 0))
    st()
    def w1_late():
        if HYB and not W1E:
            for f in w_block(1): f()
    flag_wait("px", 0, 42, 43, w1_late)()
    a.e("s_barrier")
    st()
    for f in x_loads(0, 0) + x_loads(0, 1): f()

    sa = Stream(a, FR)
    tile_first_frag = []; tile_gap0 = []
    addr_regs = [AWQ, AWQ + 1, AWQ + 2, AWQ + 3, AGU]
    started = set()
    def C0(d):
        if d in started: return None
        started.add(d); return "0"
    T = TP + 3
    order9 = [12, 15, 13, 16, 14, 17] + list(range(12))
    g_blk = {}
    for k in range(10):
        xs_ = XSET[k % NXS]
        wb = 0 if wslot(k) < 2 * WSLOT else 2 * WSLOT
        so = wslot(k) - wb
        tile_first_frag.append(len(sa.frags)); tile_gap0.append(sa.n())
        def main(ks, jb):
            xb = xs_ + 8 * ks
            if jb < 12:
                rd = [lambda b, tt=tt: f"ds_read_b64_tr_b16 {vr(b+2*tt,2)}, v{AWQ+(jb&3)} offset:{so+(32*ks+4*tt)*384+(jb>>2)*128}" for tt in range(2)]
            else:
                jj = (jb - 12) % 3; up = (jb - 12) // 3
                rd = [lambda b, tt=tt: f"ds_read_b64_tr_b16 {vr(b+2*tt,2)}, v{AGU} offset:{so+ks*6656+tt*384+up*768+jj*32}" for tt in range(2)]
            sa.frag(rd, [lambda b, qs=qs: mfma_t(ACC(jb, qs), b, xb + 4 * qs, C0(ACC(jb, qs))) for qs in range(2)])
        if k < 9:
            for ks in range(2):
                sa.add_pre(sa.n(), lambda k=k, ks=ks: a.wait_vm(("x", k, ks)))
                for jb in range(18): main(ks, jb)
        else:
            sa.add_pre(sa.n(), lambda: a.wait_vm(("x", 9, 1)))
            for jb in order9:
                main(0, jb); main(1, jb); g_blk[jb] = sa.n()
    tile_first_frag.append(len(sa.frags)); tile_gap0.append(sa.n())
    NG = sa.n()
    KVL = 1
    issue = {k: {"w": [], "x": []} for k in range(10)}
    for k in range(1, 10):
        if not (HYB and k == 1): issue[max(k - 2, 0)]["w"] += w_block(k)
        issue[max(k - (NXS - 1), 1 if k >= 2 else 0)]["x"] += x_loads(k, 0) + x_loads(k, 1)
    KVM = OPT.get("kvm", 1)
    kb0 = kv_block("K", 0); vb0 = kv_block("V", 0)
    if KVM == 0:
        issue[8]["w"] += kb0 + vb0
    elif KVM == 1:
        pieces = [kb0[:2], kb0[2:3], kb0[3:], vb0[:2], vb0[2:3], vb0[3:]]
        for n in range(6): sa.spread(pieces[n], tile_gap0[n + 2] + 63, tile_gap0[n + 2] + 65)
    elif KVM == 2:
        sa.spread(kb0 + vb0, tile_gap0[7] + 30, tile_gap0[7] + 64)
    elif KVM == 3:
        sa.spread(kb0, tile_gap0[7] + 30, tile_gap0[7] + 64)
        issue[8]["w"] += vb0
    for k in range(9):
        g0 = tile_gap0[k]
        if k == 0 and HYB:
            sa.spread(issue[0]["x"][:5], OPT.get("x1a", 0), OPT.get("x1a", 0) + 10)
            sa.spread(issue[0]["w"] + issue[0]["x"][5:], OPT.get("r1b", 36), 64)
        elif k == 0:
            sa.spread(issue[0]["w"][:6] + issue[0]["x"][:5], 0, 18)
            sa.spread(issue[0]["x"][5:] + issue[0]["w"][6:], OPT.get("r1b", 36), 64)
        elif k == 7 and KVM >= 2:
            sa.spread(issue[k]["w"], g0, g0 + 28)
            sa.spread(issue[k]["x"], g0 + 1, g0 + 28)
        else:
            sa.spread(issue[k]["w"], g0 + (OPT.get("kvo", 0) if k == 8 else 0), g0 + 62)
            sa.spread(issue[k]["x"], g0 + 3, g0 + 60)
    sa.spread(kv_block("K", 1), NG - 30, NG - 10)
    for k in range(9):
        gb = sa.read_gap(tile_first_frag[k + 1])
        def bar(k=k):
            a.wait_vm(("W", k + 1))
            a.e("s_waitcnt lgkmcnt(0)"); a.lgkm = []
            a.e("s_barrier")
            st(fine=True)
            w0 = 0 if wslot(k) < 2 * WSLOT else 2 * WSLOT
            w1 = 0 if wslot(k + 1) < 2 * WSLOT else 2 * WSLOT
            if w0 != w1:
                for r in addr_regs: a.e(f"v_add_u32 v{r}, {(w1-w0) & 0xffffffff}, v{r}")
        sa.add_pre(gb, bar)
    G0 = T + 2; HT = 208
    sC = sFL
    epi = [(E(a, f"v_mov_b32 v{G0}, {f32(GELU_C0)}"), tile_gap0[9]), (E(a, f"s_mul_i32 s{sHO}, s{sH}, 3"), tile_gap0[9]),
           (E(a, f"s_mov_b32 s{sC}, {f32(SCALE_C)}"), tile_gap0[9])]
    for n, jb in enumerate(order9):
        ge = g_blk[jb] + 3
        L_ = []
        if jb >= 15:
            jj = jb - 15
            g0 = ACC(12 + jj, 0); u0 = ACC(jb, 0)
            for r in range(8): L_.append(f"v_mul_f32 v{HT+r}, v{g0+r}, v{g0+r}")
            for r in range(8): L_.append(f"v_fma_f32 v{HT+r}, v{HT+r}, s{sG1}, v{G0}")
            for r in range(8): L_.append(f"v_mul_f32 v{HT+r}, v{HT+r}, v{g0+r}")
            for r in range(8): L_.append(f"v_exp_f32 v{HT+r}, v{HT+r}")
            for r in range(8): L_.append(f"v_mul_f32 v{g0+r}, v{g0+r}, v{u0+r}")
            for r in range(8): L_.append(f"v_add_f32 v{HT+r}, 1.0, v{HT+r}")
            for r in range(8): L_.append(f"v_rcp_f32 v{HT+r}, v{HT+r}")
            L_.append(f"s_add_u32 s{sT}, s{sHO}, {jj}")
            for r in range(8): L_.append(f"v_mul_f32 v{g0+r}, v{g0+r}, v{HT+r}")
            hp = 216 + 4 * jj if jj < 2 else u0
            for q in range(4): L_.append(f"v_cvt_pk_bf16_f32 v{hp+q}, v{g0+2*q}, v{g0+2*q+1}")
            for x_ in L_: epi.append((E(a, x_), ge))
            def hstore(hp=hp):
                a.e(f"s_and_b32 s{sT2}, s{sT}, 1")
                a.e(f"s_lshr_b32 s{sT}, s{sT}, 1")
                a.e(f"s_lshl_b32 s{sT}, s{sT}, 10")
                a.e(f"s_lshl_b32 s{sT2}, s{sT2}, 3")
                a.e(f"s_add_u32 s{sT}, s{sT}, s{sT2}")
                a.e(f"s_add_u32 s{sT}, s{sT}, {192*1024}")
                a.e(f"s_add_u32 s{sT2}, s{sT}, {A_MB}")
                a.vmem(f"buffer_store_dwordx2 {vr(hp,2)}, v{L16}, s[{sWS}:{sWS+3}], s{sT} offen sc1", "hst")
                a.vmem(f"buffer_store_dwordx2 {vr(hp+2,2)}, v{L16}, s[{sWS}:{sWS+3}], s{sT2} offen sc1", "hst")
            epi.append((hstore, ge))
        elif jb < 12:
            s_, e_ = divmod(jb, 2)
            for qs in range(2):
                ac = ACC(jb, qs)
                for r in range(4): L_.append(f"v_mul_f32 v{ac+r}, s{sC}, v{ac+r}")
            for qs in range(2):
                ac = ACC(jb, qs)
                for q in range(2): L_.append(f"v_cvt_pk_bf16_f32 v{QP(qs,s_)+2*e_+q}, v{ac+2*q}, v{ac+2*q+1}")
            if e_ == 1:
                L_.append("s_nop 1")
                for qs in range(2):
                    for q in range(2): L_.append(f"v_permlane32_swap_b32 v{QP(qs,s_)+q}, v{QP(qs,s_)+2+q}")
                L_.append("s_nop 0")
                for qs in range(2):
                    for q in range(2): L_.append(f"v_permlane16_swap_b32 v{QP(qs,s_)+q}, v{QP(qs,s_)+2+q}")
            for x_ in L_: epi.append((E(a, x_), ge))
    per = OPT.get("epi_per", 2)
    g = tile_gap0[9]; cnt = 0; n_in = 0
    for (fn, ge) in epi:
        if ge > g: g = ge; cnt = 0
        if g >= NG - 1: break
        sa.add_post(g, fn); n_in += 1; cnt += 1
        if cnt >= per: g += 1; cnt = 0
    sa.emit()
    st()
    a.e("s_nop 7")
    for (fn, ge) in epi[n_in:]: fn()
    T = TP
    kwin = lambda j: KSL[0] if j % 3 == 0 else 0
    vwin = lambda j: VSL[0] if j % 3 == 0 else VSL[1]
    a.e(f"v_lshrrev_b32 v{T}, 4, v{L16}")
    a.e(f"v_lshrrev_b32 v{T+1}, 4, v{T}")
    a.e(f"v_bfe_u32 v{T+3}, v{T}, 2, 2")
    a.e(f"v_and_b32 v{T+4}, 3, v{T}")
    a.e(f"v_lshlrev_b32 v{T+4}, 3, v{T+4}")
    a.e(f"v_bfe_u32 v{T+5}, v{T}, 3, 2")
    a.e(f"v_lshl_add_u32 v{T+3}, v{T+1}, 2, v{T+3}")
    a.e(f"v_mul_u32_u24 v{T+3}, 384, v{T+3}")
    a.e(f"v_add_u32 v{T+3}, v{T+3}, v{T+4}")
    a.e(f"v_add_u32 v{T+3}, {vwin(0)}, v{T+3}")
    for i in range(4):
        a.e(f"v_xor_b32 v{T+4}, {i}, v{T+5}")
        a.e(f"v_lshl_add_u32 v{VR+i}, v{T+4}, 5, v{T+3}")
    a.e(f"v_and_b32 v{T+3}, 15, v{T}")
    a.e(f"v_bfe_u32 v{T+5}, v{T}, 1, 3")
    a.e(f"v_mul_u32_u24 v{T+3}, 384, v{T+3}")
    a.e(f"v_add_u32 v{T+3}, {kwin(0)}, v{T+3}")
    for i in range(2):
        a.e(f"v_add_u32 v{T+4}, {4*i}, v{T+1}")
        a.e(f"v_xor_b32 v{T+4}, v{T+4}, v{T+5}")
        a.e(f"v_lshl_add_u32 v{KR[i]}, v{T+4}, 4, v{T+3}")
    a.e(f"v_mov_b32 v{LS}, 0")
    a.e(f"v_mov_b32 v{LS+1}, 0")
    a.e(f"s_mov_b32 s{sTHR}, {f32(2.0**60)}")
    if KVL:
        for f in kv_block("V", 1) + kv_block("K", 2): f()
        a.wait_vm(("K", 0))
        a.e("s_barrier")
    st()

    def exp_ops(kb):
        u, e_ = divmod(kb, 2)
        o = []
        for r in range(4): o.append(f"v_exp_f32 v{TP+r}, v{S(kb,0)+r}")
        o.append(f"v_exp_f32 v{TP+4}, v{S(kb,1)}")
        o.append(f"v_cvt_pk_bf16_f32 v{P(0,u)+2*e_}, v{TP}, v{TP+1}")
        o.append(f"v_exp_f32 v{TP+5}, v{S(kb,1)+1}")
        o.append(f"v_cvt_pk_bf16_f32 v{P(0,u)+2*e_+1}, v{TP+2}, v{TP+3}")
        o.append(f"v_exp_f32 v{TP+6}, v{S(kb,1)+2}")
        o.append(f"v_exp_f32 v{TP+7}, v{S(kb,1)+3}")
        o.append(f"v_cvt_pk_bf16_f32 v{P(1,u)+2*e_}, v{TP+4}, v{TP+5}")
        o.append(f"v_cvt_pk_bf16_f32 v{P(1,u)+2*e_+1}, v{TP+6}, v{TP+7}")
        return o
    def rowmax_ops(u, D, X):
        o = []
        for qs in range(2):
            s0 = S(2 * u, qs); s1 = S(2 * u + 1, qs)
            o.append(f"v_max3_f32 v{D[qs]}, v{s0}, v{s0+1}, v{s0+2}")
            o.append(f"v_max3_f32 v{D[qs]}, v{D[qs]}, v{s0+3}, v{s1}")
            o.append(f"v_max3_f32 v{D[qs]}, v{D[qs]}, v{s1+1}, v{s1+2}")
            o.append(f"v_max_f32 v{D[qs]}, v{D[qs]}, v{s1+3}")
        for sw in ("v_permlane32_swap_b32", "v_permlane16_swap_b32"):
            for qs in range(2): o.append(f"v_mov_b32 v{X+qs}, v{D[qs]}")
            o.append("s_nop 1")
            for qs in range(2): o.append(f"{sw} v{D[qs]}, v{X+qs}")
            for qs in range(2): o.append(f"v_max_f32 v{D[qs]}, v{D[qs]}, v{X+qs}")
        return o
    def slow_stub(u):
        a.label(f"L_{K}_slow{u}")
        a.e("s_nop 15")
        D = [TP, TP + 1]; AL = [TP + 2, TP + 3]; X = TP + 4
        for tx in rowmax_ops(u, D, X): a.e(tx)
        for qs in range(2):
            a.e(f"v_max_f32 v{D[qs]}, 0, v{D[qs]}")
            a.e(f"v_exp_f32 v{AL[qs]}, -v{D[qs]}")
        for qs in range(2):
            for r in range(4): a.e(f"v_sub_f32 v{NEGM(qs)+r}, v{NEGM(qs)+r}, v{D[qs]}")
            for kb in range(4):
                for r in range(4): a.e(f"v_sub_f32 v{S(kb,qs)+r}, v{S(kb,qs)+r}, v{D[qs]}")
            a.e(f"v_mul_f32 v{LS+qs}, v{LS+qs}, v{AL[qs]}")
            for jb in range(12):
                for r in range(4): a.e(f"v_mul_f32 v{O(jb,qs)+r}, v{O(jb,qs)+r}, v{AL[qs]}")
        for kb in (2 * u, 2 * u + 1):
            for tx in exp_ops(kb): a.e(tx)
        a.e("s_nop 1")
        for qs in range(2): a.e(mfma_t(LT(qs), ONES, P(qs, u), "0"))
        a.e("s_nop 7")
        a.e(f"s_setpc_b64 s[{sRET}:{sRET+1}]")
    def check(j, u):
        def fn():
            a.e(f"v_max_f32 v{LT(0)+1}, v{LT(0)}, v{LT(1)}")
            a.e(f"v_cmp_nge_f32 vcc, s{sTHR}, v{LT(0)+1}")
            a.e(f"s_cbranch_vccnz L_{K}_tr{j}_{u}")
            a.label(f"L_{K}_back{j}_{u}")
        def stub():
            a.label(f"L_{K}_tr{j}_{u}")
            a.e(f"s_call_b64 s[{sRET}:{sRET+1}], L_{K}_slow{u}")
            a.e(f"s_branch L_{K}_back{j}_{u}")
        stubs.append(stub)
        return fn

    sb = Stream(a, FR)
    seg = {}
    def QK(j, u, sum_of=None):
        ko = KSL[j % 3] - kwin(j); g0 = sb.n(); f0 = len(sb.frags)
        for kb in (2 * u, 2 * u + 1):
            for s_ in range(6):
                c0 = ("0" if j == 0 else "negm") if s_ == 0 else None
                sb.frag([lambda b: f"ds_read_b128 {vr(b,4)}, v{KR[s_&1]} offset:{ko+kb*6144+(s_>>1)*128}"],
                        [lambda b, qs=qs: mfma_t(S(kb, qs), b, QP(qs, s_), NEGM(qs) if c0 == "negm" else c0) for qs in range(2)])
                if sum_of is not None and kb == 2 * u + 1 and s_ == 2:
                    seg[("sum", sum_of)] = sb.n()
                    for qs in range(2): sb.mfma(mfma_t(LT(qs), ONES, P(qs, sum_of[1]), "0"))
        seg[("QK", j, u)] = (g0, sb.n(), f0)
    def PV(j, u, sum_of=None):
        vo = VSL[j % 3] - vwin(j); g0 = sb.n(); f0 = len(sb.frags)
        if not (j == 0 and u == 0) and not OPT.get("nocheck"): sb.add_pre(g0, check(j, u))
        sb.add_post(g0, E(a, f"v_add_f32 v{LS}, v{LS}, v{LT(0)}"))
        sb.add_post(g0 + 1, E(a, f"v_add_f32 v{LS+1}, v{LS+1}, v{LT(1)}"))
        for jb in range(12):
            sb.frag([lambda b, tt=tt: f"ds_read_b64_tr_b16 {vr(b+2*tt,2)}, v{VR+(jb&3)} offset:{vo+(32*u+16*tt)*384+(jb>>2)*128}" for tt in range(2)],
                    [lambda b, qs=qs: mfma_t(O(jb, qs), b, P(qs, u), "0" if (j == 0 and u == 0) else None) for qs in range(2)])
            if sum_of is not None and jb == 8:
                seg[("sum", sum_of)] = sb.n()
                for qs in range(2): sb.mfma(mfma_t(LT(qs), ONES, P(qs, sum_of[1]), "0"))
        seg[("PV", j, u)] = (g0, sb.n(), f0)
    QK(0, 0)
    for j in range(8):
        QK(j, 1, sum_of=(j, 0))
        if j < 7:
            PV(j, 0); QK(j + 1, 0, sum_of=(j, 1)); PV(j, 1)
        else:
            PV(j, 0, sum_of=(j, 1)); PV(j, 1)
    NG = sb.n()
    for j in range(8):
        for u in range(2):
            g0 = seg[("QK", j, u)][1] + 3; g1 = seg[("sum", (j, u))] - 2
            ops = exp_ops(2 * u) + exp_ops(2 * u + 1)
            if j == 0 and u == 0:
                D = [LT(0), LT(1)]
                pre = rowmax_ops(0, D, TP)
                for qs in range(2):
                    for kb in range(2):
                        for r in range(4): pre.append(f"v_sub_f32 v{S(kb,qs)+r}, v{S(kb,qs)+r}, v{D[qs]}")
                for qs in range(2):
                    for r in range(4): pre.append(f"v_sub_f32 v{NEGM(qs)+r}, 0, v{D[qs]}")
                ops = pre + ops
            if j == 0 and u == 1:
                pre = []
                for qs in range(2):
                    for kb in range(2, 4):
                        for r in range(4): pre.append(f"v_add_f32 v{S(kb,qs)+r}, v{S(kb,qs)+r}, v{NEGM(qs)}")
                ops = pre + ops
            if not OPT.get("noexp"): sb.spread([E(a, x) for x in ops], g0, g1)
    for j in range(8):
        gb = sb.read_gap(seg[("PV", j, 0)][2])
        def vbar(j=j):
            a.wait_vm(("V", j))
            if not OPT.get("nobar"): a.e("s_barrier")
        sb.add_pre(gb, vbar)
        if j > 0 and vwin(j) != vwin(j - 1):
            sb.spread([E(a, f"v_add_u32 v{VR+r}, {(vwin(j)-vwin(j-1)) & 0xffffffff}, v{VR+r}") for r in range(4)], gb - 9, gb - 1)
        if j + 2 < 8 and not OPT.get("nodma"): sb.spread(kv_block("V", j + 2), gb + 2, gb + 20)
        if j < 7:
            gb = sb.read_gap(seg[("QK", j + 1, 0)][2])
            def kbar(j=j):
                a.wait_vm(("K", j + 1))
                if not OPT.get("nobar"): a.e("s_barrier")
                st(fine=True)
            sb.add_pre(gb, kbar)
            if kwin(j) != kwin(j + 1):
                sb.spread([E(a, f"v_add_u32 v{r}, {(kwin(j+1)-kwin(j)) & 0xffffffff}, v{r}") for r in KR], gb - 6, gb - 1)
            if j + 3 < 8 and not OPT.get("nodma"): sb.spread(kv_block("K", j + 3), gb + 2, gb + 20)
    ACC2 = lambda nb, qs: (nb * 2 + qs) * 4
    ACCF = lambda nb, qs: 176 + (nb * 2 + qs) * 4
    NSET = 4
    OF = 80; FR2 = OF + 16 * NSET
    AW = 160; AF = 162; TM2 = 164
    DF = [243, 244, 245, 247, 254]
    DW = [216, 217, 218, 219, 220]
    ZV, ONEV, PV_ = 221, 222, 223
    sO, sWr, sP = 28, 32, 36
    sS, sMT, sNT, sG, sMBk, sOW, sM0, sOO, sKG, sTW2, sTO = 55, 56, 57, 58, 59, 60, 61, 62, 63, 64, 65
    sOO2, sOB_, sWB, sPER, sR12 = 78, 79, 80, 81, 96
    sCH, sCO = 86, 87
    sXo, sOut = 40, 44
    SLOT = 40960
    NF, NA = 6, 12; NT2 = NF + NA
    slot2 = lambda k: ((k + 2) % 4) * SLOT
    win = lambda k: 0 if slot2(k) < 2 * SLOT else 2 * SLOT
    su = []
    def S_(tx): su.append(E(a, tx))
    def grp(*txs):
        def f():
            for tx in txs: a.e(tx)
        su.append(f)
    grp(f"s_and_b32 s{sS}, s2, 3", f"s_bfe_u32 s{sU}, s2, 0x10002", f"s_lshr_b32 s{sU2}, s2, 3")
    grp(f"s_and_b32 s{sNT}, s{sU2}, 3", f"s_lshr_b32 s{sMT}, s{sU2}, 2")
    grp(f"s_mul_i32 s{sTW2}, s{sMT}, {NF}", f"s_lshr_b32 s{sTW2}, s{sTW2}, 3", f"s_mov_b32 s{sTO}, s{sTW2}")
    grp(f"s_mul_i32 s{sR12}, s{sMT}, {NA}", f"s_lshr_b32 s{sR12}, s{sR12}, 3")
    grp(f"s_lshl_b32 s{sU}, s{sU}, 3", f"s_add_u32 s{sMT}, s{sMT}, s{sU}", f"s_lshr_b32 s{sG}, s{sW}, 2")
    grp(f"s_and_b32 s{sU}, s{sW}, 3", f"s_lshl_b32 s{sMBk}, s{sMT}, 2", f"s_add_u32 s{sMBk}, s{sMBk}, s{sU}")
    grp(f"s_mul_i32 s{sM0}, s{sW}, 5120", f"s_lshr_b32 s{sKG}, s{sW}, 1")
    grp(f"s_lshr_b32 s{sCO}, s{sMT}, 1", f"s_lshl_b32 s{sCO}, s{sCO}, 5", f"s_add_u32 s{sCH}, s{sCO}, 16")
    su_early = list(su); su.clear()
    grp(f"s_and_b32 s{sU}, s{sW}, 1", f"s_lshl_b32 s{sU}, s{sU}, 5")
    t0, t1, t2 = KA, KA + 1, KA + 2
    for i in range(5):
        S_(f"v_lshrrev_b32 v{t0}, 4, v{L16}")
        S_(f"v_add_u32 v{t0}, {64*i}, v{t0}")
        S_(f"v_mul_u32_u24 v{t1}, 6554, v{t0}")
        S_(f"v_lshrrev_b32 v{t1}, 16, v{t1}")
        S_(f"v_mul_u32_u24 v{t2}, 10, v{t1}")
        S_(f"v_sub_u32 v{t2}, v{t0}, v{t2}")
        S_(f"v_add_u32 v{t1}, s{sU}, v{t1}")
        S_(f"v_mul_u32_u24 v{t1}, 1280, v{t1}")
        S_(f"v_lshl_add_u32 v{DF[i]}, v{t2}, 4, v{t1}")
    grp(f"s_mul_i32 s{sWB}, s{sKG}, {NF*64*1280}", f"s_mul_i32 s{sOB_}, s{sKG}, {NF*2048}", f"s_add_u32 s{sOB_}, s{sOB_}, {192*1024}")
    def f_():
        a.e(f"s_mul_i32 s{sU2}, s{sNT}, 320")
        a.e(f"s_and_b32 s{sU}, s{sS}, 1")
        a.e(f"s_mul_i32 s{sU}, s{sU}, 160")
        a.e(f"s_add_u32 s{sU2}, s{sU2}, s{sU}")
        srd(a, sWr, 20, 21, f"s{sU2}", "0")
        a.e(f"s_sub_u32 s{sWr+2}, {1536*1280}, s{sU2}")
    su.append(f_)
    def f_():
        a.e(f"s_lshl_b32 s{sU2}, s{sMT}, 2")
        a.e(f"s_and_b32 s{sU}, s{sS}, 2")
        a.e(f"s_add_u32 s{sU2}, s{sU2}, s{sU}")
        a.e(f"s_and_b32 s{sU}, s{sW}, 1")
        a.e(f"s_add_u32 s{sU2}, s{sU2}, s{sU}")
        a.e(f"s_mul_i32 s{sU2}, s{sU2}, {2*A_MB}")
        srd(a, sO, 26, 27, f"s{sU2}", f"{2*A_MB}")
    su.append(f_)
    def w2_block(k):
        base = slot2(k); tag = ("W2", k); fns = []
        per = NF if k < NF else NA; vo = DF if k < NF else DW
        def head():
            if k == NF:
                a.e(f"s_mul_i32 s{sU2}, s{sNT}, 320")
                srd(a, sWr, 12, 13, f"s{sU2}", "0")
                a.e(f"s_sub_u32 s{sWr+2}, {6144*1280}, s{sU2}")
                a.e(f"s_lshl_b32 s{sU}, s{sS}, 1")
                a.e(f"s_add_u32 s{sU}, s{sU}, s{sG}")
                a.e(f"s_mul_i32 s{sWB}, s{sU}, {NA*64*1280}")
                a.e(f"s_mov_b32 s{sTW2}, s{sR12}")
            a.e(f"s_mul_i32 s{sOW}, s{sTW2}, {64*1280}")
            a.e(f"s_add_u32 s{sOW}, s{sOW}, s{sWB}")
        fns.append(head)
        for i in range(5):
            def f(i=i):
                a.e(f"s_add_u32 m0, s{sM0}, {base + 1024*i}")
                if i == 0: a.e(f"s_add_u32 s{sTW2}, s{sTW2}, 1")
                elif i == 1: a.e(f"s_cmp_eq_u32 s{sTW2}, {per}")
                else: a.e("s_nop 0")
                a.vmem(f"buffer_load_dwordx4 v{vo[i]}, s[{sWr}:{sWr+3}], s{sOW} offen lds", tag)
                if i == 1: a.e(f"s_cselect_b32 s{sTW2}, 0, s{sTW2}")
            fns.append(f)
        return fns
    def poll_issue(soff, tag):
        return lambda: a.vmem(f"buffer_load_dword v{PV_}, v{ZV}, s[{sDB_}:{sDB_+3}], s{soff} offen sc1", tag)
    def poll_check(name, srdr, soff, target, tag):
        def fn():
            a.wait_vm(tag)
            a.e(f"v_readfirstlane_b32 s{sU2}, v{PV_}")
            a.e("s_nop 3")
            a.e(f"s_cmp_ge_u32 s{sU2}, {target}")
            a.e(f"s_cbranch_scc0 L_{name}_spin")
            a.label(f"L_{name}_ok")
        def stub():
            a.label(f"L_{name}_spin")
            a.e(f"s_mov_b32 s{sU}, 0")
            a.label(f"L_{name}_poll")
            a.e(f"s_sleep {OPT.get('slp', 8)}")
            a.e(f"buffer_load_dword v{PV_}, v{ZV}, s[{srdr}:{srdr+3}], s{soff} offen sc1")
            a.e("s_waitcnt vmcnt(0)")
            a.e(f"v_readfirstlane_b32 s{sU2}, v{PV_}")
            a.e(f"s_add_u32 s{sU}, s{sU}, 1")
            a.e("s_nop 1")
            a.e(f"s_cmp_ge_u32 s{sU2}, {target}")
            a.e(f"s_cbranch_scc1 L_{name}_ok")
            a.e(f"s_cmp_lt_u32 s{sU}, 0x20000")
            a.e(f"s_cbranch_scc1 L_{name}_poll")
            a.e(f"s_branch L_{name}_ok")
        stubs.append(stub)
        return fn
    def signal(name, srdr, soff_expr, zv, onev):
        def fn():
            a.e(f"s_cmp_eq_u32 s{sW}, 0")
            a.e(f"s_cbranch_scc1 L_{name}_sig")
            a.label(f"L_{name}_sigr")
        def stub():
            a.label(f"L_{name}_sig")
            for tx in soff_expr: a.e(tx)
            a.e(f"v_mov_b32 v{zv}, 0")
            a.e(f"v_mov_b32 v{onev}, 1")
            a.e("s_mov_b64 exec, 1")
            a.e(f"buffer_atomic_add v{onev}, v{zv}, s[{srdr}:{srdr+3}], s{sU} offen sc1")
            a.e("s_mov_b64 exec, -1")
            a.e(f"s_branch L_{name}_sigr")
        stubs.append(stub)
        return fn
    def o_loads(k, ks):
        par = (k + 1) % NSET; fns = []
        per = NF if k < NF else NA
        if ks == 0:
            def head():
                if k == NF:
                    a.e(f"s_mul_i32 s{sU2}, s{sMBk}, {2*A_MB}")
                    srd(a, sO, 26, 27, f"s{sU2}", f"{2*A_MB}")
                    a.e(f"s_lshl_b32 s{sU}, s{sS}, 1")
                    a.e(f"s_add_u32 s{sU}, s{sU}, s{sG}")
                    a.e(f"s_mul_i32 s{sOB_}, s{sU}, {NA*2048}")
                    a.e(f"s_mov_b32 s{sTO}, s{sR12}")
                a.e(f"s_lshl_b32 s{sOO}, s{sTO}, 11")
                a.e(f"s_add_u32 s{sOO}, s{sOO}, s{sOB_}")
                a.e(f"s_add_u32 s{sTO}, s{sTO}, 1")
                a.e(f"s_cmp_eq_u32 s{sTO}, {per}")
                a.e(f"s_cselect_b32 s{sTO}, 0, s{sTO}")
                a.e(f"s_add_u32 s{sOO2}, s{sOO}, {A_MB}")
            fns.append(head)
        for qs in range(2):
            fns.append(lambda qs=qs: a.vmem(f"buffer_load_dwordx4 {vr(OF+16*par+8*ks+4*qs,4)}, v{L16}, s[{sO}:{sO+3}], s{sOO2 if qs else sOO} offen offset:{1024*ks} sc1", ("o", k, ks)))
        return fns
    gk = lambda j: sb.read_gap(seg[("QK", j + 1, 0)][2])
    gv = lambda j: sb.read_gap(seg[("PV", j, 0)][2])
    sb.pre[gk(1)].insert(0, lambda: a.wait_vm("hst"))
    sb.add_pre(gk(1), sig_issue(1, 243, 244, "ah"))
    sb.add_pre(gk(1) + 40, sig_check("hs", 1, (243, 244, 245, 247), "ah"))
    sb.spread(su_early, gk(1) + 22, gk(1) + 39)
    if OPT.get("pfw2", 1):
        PW, PD = 245, 247
        sPF = 36
        def pfs():
            a.e(f"v_lshlrev_b32 v{PW}, 3, v{L16}")
            a.e(f"v_mov_b32 v{PD}, 0x1000000")
            a.e(f"v_cmp_gt_u32 vcc, {15*128}, v{PW}")
            a.e(f"s_lshr_b32 s{sU}, s2, 3")
            a.e(f"s_lshl_b32 s{sU}, s{sU}, 3")
            a.e(f"v_cndmask_b32 v{PW}, v{PD}, v{PW}, vcc")
            a.e(f"s_add_u32 s{sU}, s{sU}, s{sW}")
            a.e(f"s_mul_i32 s{sU}, s{sU}, 7680")
            a.e(f"s_mul_i32 s{sU2}, s{sS}, {1536*1280}")
            a.e(f"s_add_u32 s{sU}, s{sU}, s{sU2}")
            srd(a, sPF, 12, 13, f"s{sU}", "7680")
        sb.add_post(gk(1) + 42, pfs)
        for n in range(4):
            sb.add_post(gk(1 + n) + 60, lambda n=n: a.vmem(f"buffer_load_dword v{PD}, v{PW}, s[{sPF}:{sPF+3}], 0 offen offset:{1920*n if n < 2 else 0}" if n < 2 else
                                                             f"buffer_load_dword v{PD}, v{PW}, s[{sPF}:{sPF+3}], s{sPER} offen offset:{1920*(n-2)}", "pf"))
        sb.add_post(gk(1) + 44, E(a, f"s_mov_b32 s{sPER}, 3840"))
        def pfd():
            a.e(f"s_lshl_b32 s{sU}, s2, 3")
            a.e(f"s_add_u32 s{sU}, s{sU}, s{sW}")
            a.e(f"s_mul_i32 s{sU}, s{sU}, 960")
            srd(a, sPF, 20, 21, f"s{sU}", "960")
            a.vmem(f"buffer_load_dword v{PD}, v{PW}, s[{sPF}:{sPF+3}], 0 offen", "pf")
        sb.add_post(gk(4) + 66, pfd)
        sb.add_pre(gv(5) + 24, lambda: a.wait_vm("pf"))
    sb.add_post(gk(5) + 10, poll_issue2(1, VB, VB + 1, "ph"))
    sb.pre[gk(6)].insert(0, poll_check2("ph", 1, VB, VB + 1, "ph"))
    sb.spread(su, gv(5) + 24, gk(6) - 2)
    sb.spread(w2_block(0), gk(6) + 2, gv(7) - 2)
    gA = seg[("PV", 7, 0)][0]; gB = seg[("PV", 7, 1)][0]
    sb.spread(w2_block(1), gv(7) + 2, gA + 14)
    sb.spread(o_loads(0, 0) + o_loads(0, 1) + o_loads(1, 0) + o_loads(1, 1), gA + 2, gB - 2)
    oe = [(E(a, f"s_mul_i32 s{sHO}, s{sH}, 6144"), gB + 2)]
    for qs in range(2): oe.append((E(a, f"v_rcp_f32 v{TP+qs}, v{LS+qs}"), gB + 3))
    for s_ in range(6):
        ge = gB + 4 * s_ + 7
        for qs in range(2):
            for e_ in range(2):
                ob = O(2 * s_ + e_, qs)
                for r in range(4): oe.append((E(a, f"v_mul_f32 v{ob+r}, v{TP+qs}, v{ob+r}"), ge))
        for qs in range(2):
            dst = S(0, 0) + 4 * ((2 * s_ + qs) % 8)
            for e_ in range(2):
                ob = O(2 * s_ + e_, qs)
                for q in range(2): oe.append((E(a, f"v_cvt_pk_bf16_f32 v{dst+2*e_+q}, v{ob+2*q}, v{ob+2*q+1}"), ge))
            def ost(qs=qs, s_=s_, dst=dst):
                a.e(f"s_add_u32 s{sT}, s{sHO}, {qs*A_MB + (s_//4)*4096}")
                a.vmem(f"buffer_store_dwordx4 {vr(dst,4)}, v{L16}, s[{sWS}:{sWS+3}], s{sT} offen offset:{1024*(s_%4)} sc1", "ost")
            oe.append((ost, ge))
    per = OPT.get("oe_per", 3)
    g = gB; cnt = 0; n_in = 0
    for (fn, ge) in oe:
        if ge > g: g = ge; cnt = 0
        if g >= NG - 1: break
        sb.add_post(g, fn); n_in += 1; cnt += 1
        if cnt >= per: g += 1; cnt = 0
    sb.emit()
    st()
    a.e("s_nop 7")
    for (fn, ge) in oe[n_in:]: fn()
    st()
    a.e("s_nop 1")
    t = TM2
    a.e(f"v_lshrrev_b32 v{t+2}, 4, v{L16}")
    a.e(f"v_lshrrev_b32 v{t}, 2, v{t+2}")
    a.e(f"v_and_b32 v{t+1}, 3, v{t+2}")
    a.e(f"v_lshlrev_b32 v{t+1}, 3, v{t+1}")
    a.e(f"v_mul_u32_u24 v{t+3}, 160, v{t}")
    a.e(f"s_mul_i32 s{sU2}, s{sKG}, 10240")
    a.e(f"s_add_u32 s{sU2}, s{sU2}, {win(0)}")
    a.e(f"v_add3_u32 v{AF}, v{t+3}, v{t+1}, s{sU2}")
    a.wait_vm(("W2", 1))
    a.e("s_waitcnt lgkmcnt(0)"); a.lgkm = []
    a.e("s_barrier")
    st()
    late = []
    L_ = lambda tx: late.append(E(a, tx))
    L_(f"v_mul_u32_u24 v{t+3}, 320, v{t}")
    L_(f"s_mul_i32 s{sU2}, s{sG}, 20480")
    late.append(lambda: (a.e(f"s_mul_i32 s{sU2}, s{sG}, 20480"), a.e(f"s_add_u32 s{sU2}, s{sU2}, {win(NF)}"), a.e(f"v_add3_u32 v{t+3}, v{t+3}, v{t+1}, s{sU2}")))
    L_(f"v_bfe_u32 v{t+4}, v{t+2}, 4, 1")
    L_(f"v_lshlrev_b32 v{t+4}, 5, v{t+4}")
    L_(f"v_add_u32 v{AW}, v{t+3}, v{t+4}")
    L_(f"v_sub_u32 v{AW+1}, v{t+3}, v{t+4}")
    L_(f"v_and_b32 v{t+7}, 0x30, v{t+2}")
    late.append(lambda: (a.e(f"s_and_b32 s{sPER}, s{sW}, 3"), a.e(f"s_lshl_b32 s{sPER}, s{sPER}, 4")))
    for i in range(5):
        L_(f"v_add_u32 v{t+4}, {64*i}, v{t+2}")
        L_(f"v_mul_u32_u24 v{t+5}, 3277, v{t+4}")
        L_(f"v_lshrrev_b32 v{t+5}, 16, v{t+5}")
        L_(f"v_mul_u32_u24 v{t+6}, 20, v{t+5}")
        L_(f"v_sub_u32 v{t+6}, v{t+4}, v{t+6}")
        L_(f"v_add_u32 v{t+5}, s{sPER}, v{t+5}")
        L_(f"v_bfe_u32 v{t+4}, v{t+5}, 2, 1")
        L_(f"v_lshlrev_b32 v{t+4}, 1, v{t+4}")
        L_(f"v_xor_b32 v{t+6}, v{t+6}, v{t+4}")
        L_(f"v_mul_u32_u24 v{t+5}, 1280, v{t+5}")
        L_(f"v_lshl_add_u32 v{DW[i]}, v{t+6}, 4, v{t+5}")
    sm = Stream(a, FR2)
    started = set()
    tfirst = []; tg0 = []
    for k in range(NT2):
        par = (k + 1) % NSET; so = slot2(k) - win(k)
        tfirst.append(len(sm.frags)); tg0.append(sm.n())
        for ks in range(2):
            sm.add_pre(sm.n(), lambda k=k, ks=ks: a.wait_vm(("o", k, ks)))
            if k < NF:
                for nb in range(5):
                    sm.frag([lambda b, tt=tt: f"ds_read_b64_tr_b16 {vr(b+2*tt,2)}, v{AF} offset:{so+(32*ks+16*tt)*160+32*nb}" for tt in range(2)],
                            [lambda b, qs=qs: mfma_t(ACCF(nb, qs), b, OF + 16 * par + 8 * ks + 4 * qs, C0(ACCF(nb, qs))) for qs in range(2)])
            else:
                for nb in range(10):
                    sm.frag([lambda b, tt=tt: f"ds_read_b64_tr_b16 {vr(b+2*tt,2)}, v{AW+(nb&1)} offset:{so+(32*ks+16*tt)*320+32*nb}" for tt in range(2)],
                            [lambda b, qs=qs: mfma_t(ACC2(nb, qs), b, OF + 16 * par + 8 * ks + 4 * qs, C0(ACC2(nb, qs))) for qs in range(2)])
    tfirst.append(len(sm.frags)); tg0.append(sm.n())
    NG = sm.n()
    sm.spread(late, 0, tg0[2])
    KO = OPT.get("ostep", 5)
    issue = {}
    for k in range(2, NT2):
        tk = max(k - OPT.get("olook", 2), 0) if k < NF else max(k - OPT.get("olook2", 1), KO)
        issue.setdefault(tk, {"w": [], "o": []})["o"] += o_loads(k, 0) + o_loads(k, 1)
        issue.setdefault(max(k - OPT.get("wlook", 2), 0) if k < NF + 2 else k - OPT.get("wlook2", 2), {"w": [], "o": []})["w"] += w2_block(k)
    for tk in sorted(issue):
        wb_, ob_ = issue[tk]["w"], issue[tk]["o"]
        ln = tg0[tk + 1] - tg0[tk] - 7
        sm.spread(ob_, tg0[tk] + 1, tg0[tk] + ln)
        sm.spread(wb_, tg0[tk] + 1, tg0[tk] + ln)
    for k in range(NT2 - 1):
        gb = sm.read_gap(tfirst[k + 1])
        def bar(k=k):
            if k == 0: a.wait_vm("ost")
            if k == KO - 1: poll_check2("po", 2, PV_, ZV, "po")()
            a.wait_vm(("W2", k + 1))
            a.e("s_waitcnt lgkmcnt(0)"); a.lgkm = []
            a.e("s_barrier")
            st(fine=True)
            if win(k) != win(k + 1) and k + 1 != NF:
                for r in ([AF] if k + 1 < NF else [AW, AW + 1]): a.e(f"v_add_u32 v{r}, {(win(k+1)-win(k)) & 0xffffffff}, v{r}")
        sm.add_pre(gb, bar)
        if k == 0:
            sm.add_pre(gb, sig_issue(2, 224, 225, "ao"))
            sm.add_pre(gb + OPT.get("aod", 14), sig_check("os", 2, (224, 225, 226, 227), "ao"))
        if k == KO - 1: sm.add_post(gb - OPT.get("pod", 8), poll_issue2(2, PV_, ZV, "po"))
    sm.emit()
    a.wait_all()
    st()
    a.e("s_barrier")
    a.e(f"s_mul_i32 s{sU}, s{sW}, 10240")
    a.e(f"v_add_u32 v{t}, s{sU}, v{L16}")
    a.e(f"v_add_u32 v{t+2}, {81920}, v{t}")
    a.e(f"s_xor_b32 s{sU2}, s{sW}, 4")
    a.e(f"s_mul_i32 s{sU2}, s{sU2}, 10240")
    a.e(f"v_add_u32 v{t+1}, s{sU2}, v{L16}")
    PBH = 64 * 40 * 1024
    a.e(f"s_lshl_b32 s{sT}, s{sMT}, 2")
    a.e(f"s_add_u32 s{sT}, s{sT}, s{sNT}")
    a.e(f"s_mul_i32 s{sU2}, s{sT}, {40*1024}")
    a.e(f"s_add_u32 s{sU2}, s{sU2}, {WS_P}")
    srd(a, sP, 26, 27, f"s{sU2}", f"{3*PBH + 40*1024}")
    a.e(f"s_lshl_b32 s{sT}, s{sT}, 7")
    a.e(f"s_and_b32 s{sPER}, s{sW}, 2")
    a.e(f"s_add_u32 s{sPER}, s{sPER}, s{sG}")
    a.e(f"s_lshl_b32 s{sU}, s{sPER}, 1")
    a.e(f"s_and_b32 s{sU2}, s{sW}, 1")
    a.e(f"s_add_u32 s{sU}, s{sU}, s{sU2}")
    a.e(f"s_mul_i32 s{sU}, s{sU}, 5120")
    a.e(f"s_mul_i32 s{sU2}, s{sS}, {PBH}")
    a.e(f"s_add_u32 s{sOW}, s{sU}, s{sU2}")
    a.e(f"s_add_u32 s{sOO}, s{sOW}, 4096")
    a.e(f"s_cmp_eq_u32 s{sG}, 0")
    a.e(f"s_cbranch_scc0 L_p2_g1")
    for g in range(2):
        keep = 40 * g; send = 40 * (1 - g)
        for q in range(10): a.e(f"ds_write_b128 v{t}, {vr(send+4*q,4)} offset:{1024*q}")
        a.e("s_waitcnt lgkmcnt(0)")
        a.e("s_barrier")
        for q in range(10): a.e(f"ds_read_b128 {vr(OF+4*q,4)}, v{t+1} offset:{1024*q}")
        for q in range(10):
            a.e(f"s_waitcnt lgkmcnt({9-q})")
            for r in range(4): a.e(f"v_add_f32 v{OF+4*q+r}, v{keep+4*q+r}, v{OF+4*q+r}")
        if g == 0:
            a.e(f"s_branch L_p2_red2")
            a.label(f"L_p2_g1")
    a.label("L_p2_red2")
    R = OF
    a.e(f"s_cmp_eq_u32 s{sPER}, s{sS}")
    a.e(f"s_cbranch_scc1 L_p2_own")
    for p in range(5):
        for q in range(4): a.e(f"v_cvt_pk_bf16_f32 v{4*p+q}, v{R+8*p+2*q}, v{R+8*p+2*q+1}")
        a.e(f"buffer_store_dwordx4 {vr(4*p,4)}, v{L16}, s[{sP}:{sP+3}], s{sOO if p == 4 else sOW} offen offset:{(p%4)*1024} sc1")
    a.e("s_branch L_p2_pub")
    a.label("L_p2_own")
    for q in range(10): a.e(f"ds_write_b128 v{t+1}, {vr(R+4*q,4)} offset:{1024*q}")
    a.label("L_p2_pub")
    st(fine=True)
    for q in range(10): a.e(f"ds_write_b128 v{t+2}, {vr(176+4*q,4)} offset:{1024*q}")
    a.e(f"s_lshl_b32 s{sU2}, s{sMT}, 1")
    a.e(f"s_lshr_b32 s{sU}, s{sS}, 1")
    a.e(f"s_add_u32 s{sU2}, s{sU2}, s{sU}")
    a.e(f"s_mul_i32 s{sU2}, s{sU2}, {64*1280}")
    a.e(f"s_mul_i32 s{sU}, s{sNT}, 320")
    a.e(f"s_add_u32 s{sU2}, s{sU2}, s{sU}")
    a.e(f"s_and_b32 s{sU}, s{sS}, 1")
    a.e(f"s_mul_i32 s{sU}, s{sU}, 160")
    a.e(f"s_add_u32 s{sU2}, s{sU2}, s{sU}")
    srd(a, sXo, 4, 5, f"s{sU2}", "0")
    a.e(f"s_sub_u32 s{sXo+2}, {2048*1280}, s{sU2}")
    srd(a, sOut, 22, 23, f"s{sU2}", "0")
    a.e(f"s_sub_u32 s{sOut+2}, {2048*1280}, s{sU2}")
    XV = t + 6
    a.e(f"v_bfe_u32 v{XV}, v{L16}, 4, 4")
    a.e(f"v_mul_u32_u24 v{XV}, 1280, v{XV}")
    a.e(f"v_lshrrev_b32 v{t+4}, 8, v{L16}")
    a.e(f"v_lshl_add_u32 v{XV}, v{t+4}, 3, v{XV}")
    a.e(f"v_add_u32 v{XV+1}, 20480, v{XV}")
    a.e(f"s_and_b32 s{sU}, s{sS}, 1")
    a.e(f"s_xor_b32 s{sU}, s{sU}, 1")
    a.e(f"s_lshl_b32 s{sU}, s{sU}, 2")
    a.e(f"s_and_b32 s{sU2}, s{sS}, 2")
    a.e(f"s_add_u32 s{sU}, s{sU}, s{sU2}")
    a.e(f"s_mul_i32 s{sKG}, s{sU}, 10240")
    NU = 2
    sQO = [sOO2, sOB_]; sQP = [sTW2, sTO]; VA = [t + 8, t + 9]; VR_ = [t + 10, t + 11]
    XR = 120
    for n in range(NU):
        a.e(f"s_add_u32 s{sU}, s{sW}, {8*n}")
        a.e(f"s_min_u32 s{sU2}, s{sU}, 9")
        a.e(f"s_lshl_b32 s{sPER}, s{sU2}, 11")
        a.e(f"s_add_u32 s{sWB}, s{sPER}, 81920")
        a.e(f"v_add_u32 v{VA[n]}, s{sWB}, v{L16}")
        a.e(f"s_add_u32 s{sWB}, s{sPER}, s{sKG}")
        a.e(f"v_add_u32 v{VR_[n]}, s{sWB}, v{L16}")
        a.e(f"s_lshl_b32 s{sQO[n]}, s{sU2}, 5")
        a.e(f"s_cmp_ge_u32 s{sU2}, 5")
        a.e(f"s_cselect_b32 s{sPER}, {40960-160}, 0")
        a.e(f"s_add_u32 s{sQO[n]}, s{sQO[n]}, s{sPER}")
        a.e(f"s_mul_i32 s{sPER}, s{sS}, 10240")
        a.e(f"s_lshl_b32 s{sQP[n]}, s{sU2}, 10")
        a.e(f"s_add_u32 s{sQP[n]}, s{sQP[n]}, s{sPER}")
        a.e(f"s_cmp_ge_u32 s{sU}, 10")
        a.e(f"s_cselect_b32 s{sQO[n]}, 0x1000000, s{sQO[n]}")
        a.e(f"s_cselect_b32 s{sQP[n]}, 0x4000000, s{sQP[n]}")
    a.wait_all()
    st(fine=True)
    a.e("s_barrier")
    a.e(f"v_mov_b32 v{ZV}, 0")
    signal("ps", sFG, [f"s_mov_b32 s{sU}, s{sT}"], ZV, ONEV)()
    for n in range(NU):
        for qs in range(2): a.vmem(f"buffer_load_dwordx2 {vr(XR+4*n+2*qs,2)}, v{XV+qs}, s[{sXo}:{sXo+3}], s{sQO[n]} offen", "xl")
    for n in range(NU):
        for kg in range(4):
            for qs in range(2): a.e(f"ds_read_b128 {vr(32*n+8*kg+4*qs,4)}, v{VA[n]} offset:{20480*kg+1024*qs}")
        a.e(f"s_waitcnt lgkmcnt(0)")
        for qs in range(2): a.e(f"ds_read_b128 {vr(64+8*n+4*qs,4)}, v{VR_[n]} offset:{1024*qs}")
    a.vmem(f"buffer_load_dword v{PV_}, v{ZV}, s[{sFG}:{sFG+3}], s{sT} offen sc1", "pp")
    for n in range(NU):
        b = 32 * n
        for r in range(8): a.e(f"v_add_f32 v{b+r}, v{b+r}, v{b+8+r}")
        for r in range(8): a.e(f"v_add_f32 v{b+16+r}, v{b+16+r}, v{b+24+r}")
        for r in range(8): a.e(f"v_add_f32 v{b+r}, v{b+r}, v{b+16+r}")
        for r in range(8): a.e(f"v_mul_f32 v{b+8+r}, {f32(-LOG2E)}, v{b+r}")
        for r in range(8): a.e(f"v_exp_f32 v{b+8+r}, v{b+8+r}")
        for r in range(8): a.e(f"v_add_f32 v{b+8+r}, 1.0, v{b+8+r}")
        for r in range(8): a.e(f"v_rcp_f32 v{b+8+r}, v{b+8+r}")
        for r in range(8): a.e(f"v_mul_f32 v{b+r}, v{b+r}, v{b+8+r}")
    a.e("s_waitcnt lgkmcnt(0)")
    poll_check("pp", sFG, sT, 4, "pp")()
    st(fine=True)
    PR = 80
    for n in range(NU):
        for m_ in range(3):
            a.e(f"s_add_u32 s{sU}, s{sS}, {m_+1}")
            a.e(f"s_and_b32 s{sU}, s{sU}, 3")
            a.e(f"s_mul_i32 s{sU}, s{sU}, {PBH}")
            a.e(f"s_add_u32 s{sU}, s{sU}, s{sQP[n]}")
            a.e(f"buffer_load_dwordx4 {vr(PR+12*n+4*m_,4)}, v{L16}, s[{sP}:{sP+3}], s{sU} offen sc1")
    for n in range(NU):
        b = 32 * n; X0 = b + 8; T0_ = b + 16; A_ = 64 + 8 * n
        for q in range(4):
            a.e(f"v_lshlrev_b32 v{X0+2*q}, 16, v{XR+4*n+q}")
            a.e(f"v_and_b32 v{X0+2*q+1}, 0xffff0000, v{XR+4*n+q}")
        for m_ in range(3):
            a.e(f"s_waitcnt vmcnt({3*(NU-1-n) + (2-m_) + 2*n})")
            for q in range(4):
                a.e(f"v_lshlrev_b32 v{T0_+2*q}, 16, v{PR+12*n+4*m_+q}")
                a.e(f"v_and_b32 v{T0_+2*q+1}, 0xffff0000, v{PR+12*n+4*m_+q}")
            for r in range(8): a.e(f"v_add_f32 v{A_+r}, v{A_+r}, v{T0_+r}")
        for r in range(8): a.e(f"v_fma_f32 v{X0+r}, v{A_+r}, v{b+r}, v{X0+r}")
        for q in range(4): a.e(f"v_cvt_pk_bf16_f32 v{XR+4*n+q}, v{X0+2*q}, v{X0+2*q+1}")
        for qs in range(2): a.e(f"buffer_store_dwordx2 {vr(XR+4*n+2*qs,2)}, v{XV+qs}, s[{sOut}:{sOut+3}], s{sQO[n]} offen")
    st()
    st.flush(sW, TM2)
    a.label(f"L_{K}_done")
    a.e("s_endpgm")
    for sfn in stubs: sfn()
    slow_stub(0); slow_stub(1)
    return a

def kd(name, vgpr, sgpr):
    return f""".amdhsa_kernel {name}
  .amdhsa_next_free_vgpr {vgpr}
  .amdhsa_next_free_sgpr {sgpr}
  .amdhsa_accum_offset {(vgpr+3)//4*4}
  .amdhsa_group_segment_fixed_size 0
  .amdhsa_kernarg_size 96
  .amdhsa_user_sgpr_count 2
  .amdhsa_user_sgpr_kernarg_segment_ptr 1
  .amdhsa_system_sgpr_workgroup_id_x 1
.end_amdhsa_kernel
"""

def main(out):
    a = kernel1()
    n = NAME + "_kernel"
    hdr = open("cdna_kernels/" + NAME + ".s.ref").read().split("; Override launch geometry")[0]
    s = hdr + "; @launch grid=(256,1,1) block=(512,1,1) lds=163840\n"
    s += '.amdgcn_target "amdgcn-amd-amdhsa--gfx950"\n.text\n'
    errs = check_hazards(a.L)
    for e in errs[:20]: print("HAZARD", e)
    s += f".globl {n}\n.p2align 8\n.type {n},@function\n{n}:\n" + a.text()
    s += '.section .rodata,"a"\n.p2align 6\n' + kd(n, 256, 102)
    open(out, "w").write(s)
    print("wrote", out, "hazards:", len(errs), "instrs:", len(a.L))

if __name__ == "__main__":
    args = sys.argv[1:]
    if "--stamps" in args:
        STAMPS = True; args.remove("--stamps")
    for x in list(args):
        if x.startswith("-O"):
            k_, v_ = x[2:].split("=")
            OPT[k_] = int(v_) if v_.lstrip("-").isdigit() else v_.replace("_", " ")
            args.remove(x)
    main(args[0] if args else "cdna_kernels/" + NAME + ".s")
```

```python
import sys, struct, math
from asmlib import *

NAME = "recurrent_scan__sliding_block_cached__glu_gated_geglu__prompt"
def f32(x): return "0x%08x" % struct.unpack("<I", struct.pack("<f", x))[0]
LOG2E = 1.4426950408889634
SCALE_C = (192 ** -0.5) * LOG2E
GELU_C0 = -2.0 * math.sqrt(2.0 / math.pi) * LOG2E
GELU_C1 = GELU_C0 * 0.044715
MF = "v_mfma_f32_16x16x32_bf16"

A_MB = 240 * 1024
WS_A_BYTES = 128 * A_MB
WS_P = WS_A_BYTES
PB_BYTES = 128 * 40 * 1024
NPB = 4
WS_X = WS_P + NPB * PB_BYTES + 65536
WS_G = WS_P + NPB * PB_BYTES + 16384
WS_F = WS_P + NPB * PB_BYTES
STAMPS = False
OPT = {}
WS_ST = 200 * 1024 * 1024

class Stamper:
    def __init__(self, a, base=86, kid=0):
        self.a = a; self.n = 0; self.kid = kid
    def __call__(self, real=False, fine=False):
        if not STAMPS: return
        if fine and not OPT.get("fine"): return
        a = self.a
        if self.n == 0: a.e("v_mov_b32 v255, -1")
        a.e("s_memrealtime s[84:85]" if (real or OPT.get("real")) else "s_memtime s[84:85]")
        a.e("s_waitcnt lgkmcnt(0)"); a.lgkm = []
        a.e(f"v_writelane_b32 v255, s84, {self.n}")
        self.n += 1; assert self.n <= 64
    def flush(self, swave, vtmp):
        if not STAMPS: return
        a = self.a
        a.e("s_waitcnt vmcnt(0)")
        self()
        a.e("s_memrealtime s[84:85]")
        a.e("s_waitcnt lgkmcnt(0)")
        a.e(f"v_writelane_b32 v255, s84, 63")
        a.e(f"s_lshl_b32 s84, s2, 3")
        a.e(f"s_add_u32 s84, s84, s{swave}")
        a.e(f"s_lshl_b32 s84, s84, 8")
        a.e(f"s_add_u32 s84, s84, {WS_ST + self.kid * 1048576}")
        a.e(f"s_add_u32 s28, s26, s84")
        a.e(f"s_addc_u32 s29, s27, 0")
        a.e(f"s_and_b32 s29, s29, 0xffff")
        a.e(f"s_mov_b32 s30, 256")
        a.e(f"s_mov_b32 s31, 0x20000")
        a.e(f"v_mbcnt_lo_u32_b32 v{vtmp}, -1, 0")
        a.e(f"v_mbcnt_hi_u32_b32 v{vtmp}, -1, v{vtmp}")
        a.e(f"v_lshlrev_b32 v{vtmp}, 2, v{vtmp}")
        a.e(f"buffer_store_dword v255, v{vtmp}, s[28:31], 0 offen")
        if OPT.get("dbgout"):
            a.e(f"s_cmp_eq_u32 s2, {OPT.get('dbgwg', 0)}")
            a.e("s_cbranch_scc0 L_dbg_skip")
            a.e(f"s_cmp_eq_u32 s{swave}, 0")
            a.e("s_cbranch_scc0 L_dbg_skip")
            a.e("v_readlane_b32 s84, v255, 0")
            sel = [int(x) for x in str(OPT["dbgout"]).split(",")]
            slots = [3, 4, 5, 6, 7, 11, 12, 13, 14, 15]
            a.e(f"v_mov_b32 v{vtmp+1}, 0")
            for sl, ix in zip(slots, sel):
                a.e(f"v_readlane_b32 s85, v255, {ix}")
                a.e("s_nop 3")
                a.e("s_sub_u32 s85, s85, s84")
                a.e(f"v_mov_b32 v{vtmp}, s85")
                a.e(f"buffer_store_dword v{vtmp}, v{vtmp+1}, s[92:95], 0 offen offset:{4*sl}")
                a.e("s_nop 1")
            a.label("L_dbg_skip")

def timed(a, acc, fn):
    if not OPT.get("acc"): fn(); return
    a.e("s_memtime s[82:83]"); a.e("s_waitcnt lgkmcnt(0)"); a.lgkm = []
    a.e(f"s_sub_u32 s{acc}, s{acc}, s82")
    fn()
    a.e("s_memtime s[82:83]"); a.e("s_waitcnt lgkmcnt(0)")
    a.e(f"s_add_u32 s{acc}, s{acc}, s82")

def load_ptrs(a):
    a.e("s_load_dwordx16 s[4:19], s[0:1], 0")
    a.e("s_load_dwordx8 s[20:27], s[0:1], 64")

def srd(a, d, base_lo, base_hi, off_sreg, nbytes_expr):
    if off_sreg is None:
        a.e(f"s_mov_b32 s{d}, s{base_lo}")
        a.e(f"s_and_b32 s{d+1}, s{base_hi}, 0xffff")
    else:
        a.e(f"s_add_u32 s{d}, s{base_lo}, {off_sreg}")
        a.e(f"s_addc_u32 s{d+1}, s{base_hi}, 0")
        a.e(f"s_and_b32 s{d+1}, s{d+1}, 0xffff")
    a.e(f"s_mov_b32 s{d+2}, {nbytes_expr}")
    a.e(f"s_mov_b32 s{d+3}, 0x20000")

def mfma_t(d, A, B, c=None):
    cc = vr(d, 4) if c is None else (c if isinstance(c, str) else vr(c, 4))
    return f"{MF} {vr(d,4)}, {vr(A,4)}, {vr(B,4)}, {cc}"

class Stream:
    def __init__(self, a, FR, ring=4, depth=3):
        self.a = a; self.m = []; self.pre = {}; self.post = {}
        self.FR = FR; self.R = ring; self.D = depth
        self.frags = []
    def n(self): return len(self.m)
    def add_pre(self, g, fn): self.pre.setdefault(g, []).append(fn)
    def add_post(self, g, fn): self.post.setdefault(g, []).append(fn)
    def mfma(self, text): self.m.append(text); return len(self.m) - 1
    def buf(self, f=None):
        f = len(self.frags) if f is None else f
        return self.FR + 4 * (f % self.R)
    def frag(self, reads, mfmas):
        f = len(self.frags); b = self.buf(f)
        g0 = self.n()
        self.frags.append((g0, [r(b) for r in reads], len(mfmas)))
        for m_ in mfmas: self.mfma(m_(b))
        return g0
    def spread(self, fns, g0, g1):
        n = len(fns)
        for k, fn in enumerate(fns):
            self.add_post(g0 + (k * (g1 - g0)) // max(n, 1), fn)
    def read_gap(self, f):
        return self.frags[f - self.D][0] if f >= self.D else -1
    def emit(self, tail_reads=None):
        a = self.a
        rd_at = {}
        nf = len(self.frags)
        for f, (g0, reads, nm) in enumerate(self.frags):
            if f < self.D:
                for t in reads: a.ds(t, ("f", f))
            else:
                hg, _, hn = self.frags[f - self.D]
                for k, t in enumerate(reads):
                    rd_at.setdefault(hg + min(k, hn - 1), []).append((t, f))
        first = {g0: f for f, (g0, _, _) in enumerate(self.frags)}
        for g, mt in enumerate(self.m):
            for fn in self.pre.get(g, []): fn()
            if g in first: a.wait_lgkm(("f", first[g]))
            a.e(mt)
            posts = self.post.get(g, [])
            nv = 0
            if OPT.get("vfirst", 1):
                while nv < len(posts) and getattr(posts[nv], "valu", False): posts[nv](); nv += 1
            for (t, f) in rd_at.get(g, []): a.ds(t, ("f", f))
            for fn in posts[nv:]: fn()

def E(a, text):
    fn = lambda: a.e(text)
    fn.valu = text.startswith("v_") and not text.startswith("v_add_u32")
    return fn

def kernel1():
    a = Asm(); K = "k1"; st = Stamper(a, kid=0)
    ACC = lambda jb, qs: (jb * 2 + qs) * 4
    XS = 144; FR = 176; SUMA = 192; GRAM = 200; CSA = 208
    O = ACC; QP = lambda qs, s: 96 + 24 * qs + 4 * s
    S = lambda kb, qs: 144 + (kb * 2 + qs) * 4
    P = lambda qs, u: 192 + (qs * 2 + u) * 4
    NEGM = lambda qs: 208 + 4 * qs
    LT = lambda qs: 216 + 4 * qs
    ONES = 224; LS = 228; TP = 230
    DUT = 230
    AWQ = 238; AGU = 242; DA = 243; DB = 246; XOFF = 247; L16 = 248; KA = 249; VB = 252
    VR = AWQ; KR = [AGU, DB]
    sX, sWQ, sGU, sK, sV, sWS = 28, 32, 36, 40, 44, 48
    sW, sH, sB = 52, 53, 54
    sTW, sOA, sOB, sOB2, sMB0, sTX = 55, 56, 57, 58, 59, 60
    sEX48 = 62
    sXO, sXO2, sT, sT2, sT3 = 64, 65, 66, 67, 68
    sW3 = 69; sHO = 70; sG1 = 71; sFL = 72; sTHR = 73; sKO = 74; sVO = 75
    sRET = 76
    GOFF = 24576; WSLOT = 24576 + 8 * 1664 - 128
    KSL = [114688, 0, 24576]; VSL = [139264, 49152, 73728]
    CSL = 3 * WSLOT
    assert CSL + 1152 <= KSL[0]
    wslot = lambda k: ((k + 2) % 3) * WSLOT
    ROT = OPT.get("rot", 1)

    a.e("s_cmp_ge_u32 s2, 256")
    a.e(f"s_cbranch_scc1 L_{K}_done")
    st(True); st()
    if OPT.get("acc"):
        for r in (99, 100, 101): a.e(f"s_mov_b32 s{r}, 0")
    load_ptrs(a)
    LANE = 0; t = 2
    sFG = 88; sDB_ = 92; sU, sU2 = 97, 98
    NXS = OPT.get("nxs", 3)
    XSET = [144, 160, 192]
    stubs = []
    a.e(f"v_lshrrev_b32 v1, 6, v0")
    a.e(f"v_and_b32 v{LANE}, 63, v0")
    a.e(f"v_readfirstlane_b32 s{sW}, v1")
    a.e(f"s_and_b32 s{sT}, s2, 7")
    a.e(f"s_lshr_b32 s{sT2}, s2, 3")
    a.e(f"s_lshl_b32 s{sH}, s{sT}, 2")
    a.e(f"s_and_b32 s{sT}, s{sT2}, 3")
    a.e(f"s_add_u32 s{sH}, s{sH}, s{sT}")
    a.e(f"s_lshr_b32 s{sB}, s{sT2}, 2")
    HYB = OPT.get("hyb", 1); sR0 = 61
    if HYB:
        a.e(f"s_lshl_b32 s{sT}, s{sT}, 1")
        a.e(f"s_add_u32 s{sR0}, s{sT}, s{sB}")
        a.e(f"s_sub_u32 s{sT}, s{sR0}, 9")
        a.e(f"s_cmp_ge_u32 s{sR0}, 9")
        a.e(f"s_cselect_b32 s{sR0}, s{sT}, s{sR0}")
        a.e(f"s_add_u32 s{sR0}, s{sR0}, 1")
        a.e(f"s_mov_b32 s{sTW}, 0")
    else:
        a.e(f"s_mul_i32 s{sT}, s{sT}, 3")
        a.e(f"s_add_u32 s{sTW}, s{sT}, s{sB}")
        a.e(f"s_sub_u32 s{sT}, s{sTW}, 10")
        a.e(f"s_cmp_ge_u32 s{sTW}, 10")
        a.e(f"s_cselect_b32 s{sTW}, s{sT}, s{sTW}")
    a.e(f"s_mov_b32 s{sTX}, s{sTW}")
    a.e(f"s_mul_i32 s{sW3}, s{sW}, 3072")
    a.e(f"v_lshlrev_b32 v{L16}, 4, v{LANE}")
    a.e(f"s_lshl_b32 s{sT}, s{sB}, 5")
    a.e(f"s_add_u32 s{sT}, s{sT}, s{sH}")
    a.e(f"s_lshl_b32 s{sT}, s{sT}, 3")
    a.e(f"s_add_u32 s{sT}, s{sT}, s{sW}")
    a.e(f"s_mul_i32 s{sT2}, s{sT}, 1280")
    a.e(f"v_lshlrev_b32 v20, 5, v{LANE}")
    a.e("s_waitcnt lgkmcnt(0)")
    srd(a, sX, 4, 5, f"s{sT2}", "1280")
    a.vmem(f"buffer_load_dwordx4 v[24:27], v20, s[{sX}:{sX+3}], 0 offen", "xr")
    a.vmem(f"buffer_load_dwordx4 v[28:31], v20, s[{sX}:{sX+3}], 0 offen offset:16", "xr")
    st()
    a.e(f"s_lshl_b32 s{sT}, s{sW}, 3")
    def voffs(i, which):
        a.e(f"v_add_u32 v{t}, {64*i}, v{LANE}")
        a.e(f"v_mul_u32_u24 v{t+1}, 2731, v{t}")
        a.e(f"v_lshrrev_b32 v{t+1}, 16, v{t+1}")
        a.e(f"v_mul_u32_u24 v{t+2}, 24, v{t+1}")
        a.e(f"v_sub_u32 v{t+2}, v{t}, v{t+2}")
        a.e(f"v_add_u32 v{t+1}, s{sT}, v{t+1}")
        if which == "W":
            a.e(f"v_and_b32 v{t+3}, 2, v{t+1}")
            a.e(f"v_bfe_u32 v{t+4}, v{t+1}, 3, 1")
            a.e(f"v_lshl_or_b32 v{t+3}, v{t+4}, 2, v{t+3}")
            a.e(f"v_xor_b32 v{t+3}, v{t+2}, v{t+3}")
            a.e(f"v_mul_u32_u24 v{t+6}, 12288, v{t+1}")
            a.e(f"v_lshl_add_u32 v{DA+i}, v{t+3}, 4, v{t+6}")
        else:
            a.e(f"v_mul_u32_u24 v{t+6}, 384, v{t+1}")
            a.e(f"v_bfe_u32 v{t+3}, v{t+1}, 1, 3")
            a.e(f"v_xor_b32 v{t+3}, v{t+2}, v{t+3}")
            a.e(f"v_lshl_add_u32 v{KA+i}, v{t+3}, 4, v{t+6}")
            a.e(f"v_and_b32 v{t+3}, 6, v{t+1}")
            a.e(f"v_xor_b32 v{t+3}, v{t+2}, v{t+3}")
            a.e(f"v_lshl_add_u32 v{VB+i}, v{t+3}, 4, v{t+6}")
    for i in range(3): voffs(i, "W")
    a.e(f"s_and_b32 s{sT3}, s{sW}, 3")
    a.e(f"s_lshl_b32 s{sT2}, s{sT3}, 4")
    a.e(f"v_mul_u32_u24 v{t+1}, 10923, v{LANE}")
    a.e(f"v_lshrrev_b32 v{t+1}, 16, v{t+1}")
    a.e(f"v_mul_u32_u24 v{t+2}, 6, v{t+1}")
    a.e(f"v_sub_u32 v{t+2}, v{LANE}, v{t+2}")
    a.e(f"v_add_u32 v{t+1}, s{sT2}, v{t+1}")
    a.e(f"v_mul_u32_u24 v{t+6}, 3072, v{t+1}")
    a.e(f"v_lshl_add_u32 v{DB}, v{t+2}, 4, v{t+6}")
    a.e(f"s_mul_i32 s{sMB0}, s{sT3}, {2*1664}")
    a.e(f"s_cmp_ge_u32 s{sW}, 4")
    a.e(f"s_cselect_b32 s{sT2}, {GOFF+768}, {GOFF}")
    a.e(f"s_add_u32 s{sMB0}, s{sMB0}, s{sT2}")
    a.e(f"s_mov_b32 s{sEX48}, -1")
    a.e(f"s_mov_b32 s{sEX48+1}, 0xffff")
    a.e(f"s_mov_b32 s{sG1}, {f32(GELU_C1)}")
    a.e(f"s_mul_i32 s{sT2}, s{sH}, 384")
    srd(a, sWQ, 10, 11, f"s{sT2}", "0")
    a.e(f"s_sub_u32 s{sWQ+2}, {640*12288}, s{sT2}")
    a.e(f"s_cmp_ge_u32 s{sW}, 4")
    a.e(f"s_cselect_b32 s14, s18, s16")
    a.e(f"s_cselect_b32 s15, s19, s17")
    a.e(f"s_mul_i32 s{sT2}, s{sH}, 96")
    srd(a, sGU, 14, 15, f"s{sT2}", "0")
    a.e(f"s_sub_u32 s{sGU+2}, {640*3072}, s{sT2}")
    a.e(f"s_mov_b32 s{sT2}, {WS_F}")
    srd(a, sFG, 26, 27, f"s{sT2}", f"{16384 + 256*128}")
    srd(a, sDB_, 24, 25, None, "256")
    a.e(f"s_lshl_b32 s{sT2}, s{sB}, 4")
    a.e(f"s_lshr_b32 s{sT3}, s{sH}, 1")
    a.e(f"s_add_u32 s{sT2}, s{sT2}, s{sT3}")
    a.e(f"s_mul_i32 s{sT2}, s{sT2}, 20480")
    a.e(f"s_add_u32 s{sT2}, s{sT2}, {WS_X}")
    srd(a, sK, 26, 27, f"s{sT2}", "20480")
    LNB = KSL[0]
    a.e(f"s_mul_i32 s{sT2}, s{sW}, 10")
    a.e(f"v_lshrrev_b32 v{t}, 3, v{LANE}")
    a.e(f"v_add_u32 v{t}, s{sT2}, v{t}")
    a.e(f"v_and_b32 v{t+1}, 7, v{LANE}")
    a.e(f"v_mul_u32_u24 v21, 1296, v{t+1}")
    a.e(f"v_lshl_add_u32 v21, v{t}, 4, v21")
    a.e(f"v_add_u32 v21, {LNB}, v21")
    a.e(f"s_and_b32 s{sT2}, s{sH}, 1")
    a.e(f"s_lshl_b32 s{sT2}, s{sT2}, 3")
    a.e(f"v_add_u32 v{t+1}, s{sT2}, v{t+1}")
    a.e(f"v_lshlrev_b32 v22, 8, v{t}")
    a.e(f"v_lshl_add_u32 v22, v{t+1}, 4, v22")
    a.e(f"s_mul_i32 s{sT2}, s{sW}, 1296")
    a.e(f"s_add_u32 s{sT2}, s{sT2}, {LNB}")
    a.e(f"v_add_u32 v23, s{sT2}, v20")
    def wave_sum(v, sdst):
        for m_ in ("row_shr:1", "row_shr:2", "row_shr:4", "row_shr:8"):
            a.e("s_nop 1")
            a.e(f"v_add_f32_dpp v{v}, v{v}, v{v} {m_} row_mask:0xf bank_mask:0xf bound_ctrl:0")
        a.e("s_nop 1")
        a.e(f"v_add_f32_dpp v{v}, v{v}, v{v} row_bcast:15 row_mask:0xa bank_mask:0xf")
        a.e("s_nop 1")
        a.e(f"v_add_f32_dpp v{v}, v{v}, v{v} row_bcast:31 row_mask:0xc bank_mask:0xf")
        a.e("s_nop 1")
        a.e(f"v_readlane_b32 s{sdst}, v{v}, 63")
        a.e("s_nop 3")
    def rbf(d, src):
        a.e(f"v_cvt_pk_bf16_f32 v{d}, v{src}, v{src}")
        a.e(f"v_and_b32 v{d}, 0xffff0000, v{d}")
    def w_block(k):
        base = wslot(k); tag = ("W", k); fns = []
        def head():
            a.e(f"s_mul_i32 s{sOA}, s{sTW}, 786432")
            a.e(f"s_mul_i32 s{sOB}, s{sTW}, 196608")
        fns.append(head)
        for i in range(3):
            def f(i=i):
                a.e(f"s_add_u32 m0, s{sW3}, {base + 1024*i}")
                if i == 0: a.e(f"s_add_u32 s{sOB2}, s{sOB}, 24576")
                elif i == 1: a.e(f"s_add_u32 s{sTW}, s{sTW}, 1")
                else: a.e(f"s_cmp_eq_u32 s{sTW}, 10")
                a.vmem(f"buffer_load_dwordx4 v{DA+i}, s[{sWQ}:{sWQ+3}], s{sOA} offen lds", tag)
                if i == 2:
                    a.e(f"s_cselect_b32 s{sTW}, {HYB}, s{sTW}")
                    if HYB and k == 0: a.e(f"s_mov_b32 s{sTW}, s{sR0}")
            fns.append(f)
        for i in range(2):
            def f(i=i):
                a.e(f"s_add_u32 m0, s{sMB0}, {base + 1664*i}")
                a.e(f"s_mov_b64 exec, s[{sEX48}:{sEX48+1}]")
                a.vmem(f"buffer_load_dwordx4 v{DB}, s[{sGU}:{sGU+3}], s{sOB2 if i else sOB} offen lds", tag)
                a.e("s_mov_b64 exec, -1")
            fns.append(f)
        return fns
    W1E = OPT.get("w1e", 0)
    if HYB:
        for f in w_block(0): f()
        if W1E:
            for f in w_block(1): f()
    a.wait_vm("xr")
    XF = 32
    for q in range(8):
        a.e(f"v_lshlrev_b32 v{XF+2*q}, 16, v{24+q}")
        a.e(f"v_and_b32 v{XF+2*q+1}, 0xffff0000, v{24+q}")
    a.e(f"v_add_f32 v48, v{XF}, v{XF+1}")
    a.e(f"v_add_f32 v49, v{XF+2}, v{XF+3}")
    for q in range(4, 16, 2):
        a.e(f"v_add_f32 v48, v48, v{XF+q}")
        a.e(f"v_add_f32 v49, v49, v{XF+q+1}")
    a.e(f"v_add_f32 v48, v48, v49")
    wave_sum(48, sU)
    a.e(f"v_mov_b32 v50, {f32(1.0/640)}")
    a.e(f"v_mul_f32 v50, s{sU}, v50")
    a.e(f"v_cmp_gt_u32 vcc, 40, v{LANE}")
    a.e(f"v_mov_b32 v48, 0")
    a.e(f"v_mov_b32 v49, 0")
    for q in range(16):
        a.e(f"v_sub_f32 v{52+q}, v{XF+q}, v50")
    for q in range(0, 16, 2):
        a.e(f"v_fmac_f32 v48, v{52+q}, v{52+q}")
        a.e(f"v_fmac_f32 v49, v{52+q+1}, v{52+q+1}")
    a.e(f"v_add_f32 v48, v48, v49")
    a.e(f"v_cndmask_b32 v48, 0, v48, vcc")
    wave_sum(48, sU)
    a.e(f"v_mov_b32 v51, {f32(1.0/640)}")
    a.e(f"v_mul_f32 v51, s{sU}, v51")
    rbf(50, 50); rbf(51, 51)
    a.e(f"v_add_f32 v51, {f32(1e-5)}, v51")
    rbf(51, 51)
    a.e(f"v_sqrt_f32 v51, v51")
    a.e("s_nop 0")
    rbf(51, 51)
    a.e(f"v_rcp_f32 v51, v51")
    for q in range(16): a.e(f"v_sub_f32 v{52+q}, v{XF+q}, v50")
    for q in range(8): a.e(f"v_cvt_pk_bf16_f32 v{24+q}, v{52+2*q}, v{52+2*q+1}")
    for q in range(8):
        a.e(f"v_lshlrev_b32 v{XF+2*q}, 16, v{24+q}")
        a.e(f"v_and_b32 v{XF+2*q+1}, 0xffff0000, v{24+q}")
    for q in range(16): a.e(f"v_mul_f32 v{XF+q}, v{XF+q}, v51")
    for q in range(8): a.e(f"v_cvt_pk_bf16_f32 v{24+q}, v{XF+2*q}, v{XF+2*q+1}")
    a.e(f"s_mov_b32 exec_hi, 0xff")
    a.e(f"ds_write_b128 v23, v[24:27]")
    a.e(f"ds_write_b128 v23, v[28:31] offset:16")
    a.e("s_mov_b64 exec, -1")
    a.e("s_waitcnt lgkmcnt(0)")
    a.e("s_barrier")
    a.e(f"ds_read_b128 v[32:35], v21")
    a.e(f"ds_read_b128 v[36:39], v21 offset:128")
    a.e(f"s_lshl_b32 s{sT2}, s{sB}, 3")
    a.e(f"s_add_u32 s{sT2}, s{sT2}, s{sH}")
    a.e(f"s_lshl_b32 s{sT2}, s{sT2}, 7")
    a.e(f"s_cmp_lt_u32 s{sH}, 8")
    a.e(f"s_cselect_b32 s{sT2}, s{sT2}, 0x100000")
    for r in range(40, 44): a.e(f"v_mov_b32 v{r}, 0")
    a.e("s_waitcnt lgkmcnt(0)")
    a.vmem(f"buffer_store_dwordx4 v[32:35], v22, s[{sK}:{sK+3}], 0 offen sc1", "xs")
    a.e("s_mov_b64 exec, 0xffff")
    a.vmem(f"buffer_store_dwordx4 v[36:39], v22, s[{sK}:{sK+3}], 0 offen offset:2048 sc1", "xs")
    a.e(f"s_mov_b64 exec, 1")
    a.vmem(f"buffer_store_dword v40, v40, s[{sFG}:{sFG+3}], s{sT2} offen sc1", "xs")
    a.e(f"s_lshl_b32 s99, s2, 7")
    a.e(f"s_add_u32 s99, s99, 16384")
    a.vmem(f"buffer_store_dwordx4 v[40:43], v40, s[{sFG}:{sFG+3}], s99 offen sc1", "xs")
    a.e(f"s_mov_b64 exec, -1")
    st()

    def kv_block(which, j):
        srdr, vo, base, so = (sK, KA, KSL[j % 3], sKO) if which == "K" else (sV, VB, VSL[j % 3], sVO)
        tag = (which, j); fns = []
        def head():
            a.e(f"s_add_u32 s{so}, s{sB}, {j}")
            a.e(f"s_and_b32 s{so}, s{so}, 7")
            a.e(f"s_mul_i32 s{so}, s{so}, 24576")
        fns.append(head)
        for i in range(3):
            def f(i=i):
                a.e(f"s_add_u32 m0, s{sW3}, {base + 1024*i}")
                a.e("s_nop 0")
                a.vmem(f"buffer_load_dwordx4 v{vo+i}, s[{srdr}:{srdr+3}], s{so} offen lds", tag)
            fns.append(f)
        return fns
    def x_loads(k, ks):
        xb = XSET[k % NXS]; fns = []
        if ks == 0:
            def head():
                a.e(f"s_lshl_b32 s{sXO}, s{sTX}, 11")
                a.e(f"s_add_u32 s{sTX}, s{sTX}, 1")
                a.e(f"s_add_u32 s{sXO2}, s{sXO}, 20480")
                a.e(f"s_cmp_eq_u32 s{sTX}, 10")
                a.e(f"s_cselect_b32 s{sTX}, {HYB}, s{sTX}")
                if HYB and k == 0: a.e(f"s_mov_b32 s{sTX}, s{sR0}")
            fns.append(head)
        for qs in range(2):
            fns.append(lambda qs=qs: a.vmem(f"buffer_load_dwordx4 {vr(xb+8*ks+4*qs,4)}, v{L16}, s[{sX}:{sX+3}], s{sXO2 if qs else sXO} offen offset:{1024*ks} sc1", ("x", k, ks)))
        return fns
    sFO = 99
    sAO, sPO = 100, 101
    def sig_issue(stage, z, o, tag):
        def fn():
            a.e(f"v_mov_b32 v{z}, 0")
            a.e(f"v_mov_b32 v{o}, 1")
            a.e("s_mov_b64 exec, 1")
            a.vmem(f"buffer_atomic_add v{o}, v{z}, s[{sDB_}:{sDB_+3}], s{sAO} offen offset:{4*stage} sc0 sc1", tag)
            a.e("s_mov_b64 exec, -1")
        return fn
    def sig_check(name, stage, tv, tag):
        z, o, ad, pv = tv
        def fn():
            a.wait_vm(tag)
            a.e(f"v_readfirstlane_b32 s{sU2}, v{o}")
            a.e("s_nop 3")
            a.e(f"s_and_b32 s{sU2}, s{sU2}, 31")
            a.e(f"s_cmp_eq_u32 s{sU2}, 31")
            a.e(f"s_cbranch_scc1 L_{name}_sig")
            a.label(f"L_{name}_sigr")
        def stub():
            a.label(f"L_{name}_sig")
            a.e(f"v_lshrrev_b32 v{ad}, 4, v{L16}")
            if stage > 0:
                a.e(f"v_lshlrev_b32 v{z}, 5, v{ad}")
                a.e(f"s_mov_b32 s{sU}, 0")
                a.e("s_mov_b64 exec, 0xff")
                a.label(f"L_{name}_chk")
                a.e(f"buffer_load_dword v{pv}, v{z}, s[{sDB_}:{sDB_+3}], 0 offen sc1")
                a.e(f"s_add_u32 s{sU}, s{sU}, 1")
                a.e("s_waitcnt vmcnt(0)")
                a.e(f"v_add_u32 v{pv}, -1, v{pv}")
                a.e(f"v_and_b32 v{pv}, 0x8000001f, v{pv}")
                a.e(f"v_cmp_ne_u32 vcc, 31, v{pv}")
                a.e(f"s_cbranch_vccz L_{name}_chkd")
                a.e("s_sleep 8")
                a.e(f"s_cmp_lt_u32 s{sU}, 0x20000")
                a.e(f"s_cbranch_scc1 L_{name}_chk")
                a.label(f"L_{name}_chkd")
                a.e("s_mov_b64 exec, -1")
                a.e(f"v_and_b32 v{z}, 3, v{ad}")
                a.e(f"v_lshrrev_b32 v{ad}, 2, v{ad}")
                a.e(f"v_lshl_add_u32 v{ad}, v{ad}, 3, v{z}")
                a.e(f"s_and_b32 s{sU}, s{sB}, 3")
                a.e(f"s_lshl_b32 s{sU}, s{sU}, 6")
                a.e(f"s_and_b32 s{sU2}, s{sB}, 4")
                a.e(f"s_add_u32 s{sU}, s{sU}, s{sU2}")
            else:
                a.e(f"s_lshl_b32 s{sU}, s{sB}, 5")
            a.e(f"s_lshl_b32 s{sU}, s{sU}, 7")
            a.e(f"s_add_u32 s{sU}, s{sU}, 16384")
            a.e(f"v_lshlrev_b32 v{ad}, 7, v{ad}")
            a.e(f"v_mov_b32 v{o}, 1")
            a.e("s_mov_b64 exec, 0xffffffff")
            a.e(f"buffer_store_dword v{o}, v{ad}, s[{sFG}:{sFG+3}], s{sU} offen offset:{4*stage} sc1")
            a.e("s_mov_b64 exec, -1")
            a.e(f"s_branch L_{name}_sigr")
        stubs.append(stub)
        return fn
    def poll_issue2(stage, pv, zv, tag):
        def fn():
            a.e(f"v_mov_b32 v{zv}, 0")
            a.e("s_mov_b64 exec, 1")
            a.vmem(f"buffer_load_dword v{pv}, v{zv}, s[{sFG}:{sFG+3}], s{sPO} offen offset:{4*stage} sc1", tag)
            a.e("s_mov_b64 exec, -1")
        return fn
    def poll_check2(name, stage, pv, zv, tag):
        spin = flag_wait(name, stage, pv, zv)
        def fn():
            a.wait_vm(tag)
            a.e(f"v_readfirstlane_b32 s{sU2}, v{pv}")
            a.e("s_nop 3")
            a.e(f"s_or_b32 s{sU2}, s{sU2}, s{sW}")
            a.e(f"s_cmp_eq_u32 s{sU2}, 0")
            a.e(f"s_cbranch_scc1 L_{name}_spin")
            a.label(f"L_{name}_ok")
        return fn
    def flag_wait(name, stage, pv, zv, after=None):
        def fn():
            a.e(f"s_cmp_eq_u32 s{sW}, 0")
            a.e(f"s_cbranch_scc1 L_{name}_spin")
            a.label(f"L_{name}_ok")
        def stub():
            a.label(f"L_{name}_spin")
            a.e(f"s_mov_b32 s{sU}, 0")
            a.e(f"v_mov_b32 v{zv}, 0")
            a.e("s_mov_b64 exec, 1")
            a.label(f"L_{name}_poll")
            a.e(f"buffer_load_dword v{pv}, v{zv}, s[{sFG}:{sFG+3}], s{sFO} offen offset:{4*stage} sc1")
            a.e(f"s_add_u32 s{sU}, s{sU}, 1")
            a.e("s_waitcnt vmcnt(0)")
            a.e(f"v_cmp_ne_u32 vcc, 1, v{pv}")
            a.e(f"s_cbranch_vccz L_{name}_done")
            a.e(f"s_sleep {OPT.get('slp', 2)}")
            a.e(f"s_cmp_lt_u32 s{sU}, 0x20000")
            a.e(f"s_cbranch_scc1 L_{name}_poll")
            a.label(f"L_{name}_done")
            a.e("s_mov_b64 exec, -1")
            if after: after()
            a.e(f"s_branch L_{name}_ok")
        stubs.append(stub)
        return fn

    if not HYB:
        for f in w_block(0): f()
    a.wait_vm("xs")
    a.e("s_barrier")
    a.e(f"s_lshl_b32 s{sAO}, s{sB}, 5")
    a.e(f"s_cmp_eq_u32 s{sW}, 0")
    a.e(f"s_cselect_b32 s{sAO}, s{sAO}, 0x100000")
    a.e(f"s_cselect_b32 s{sPO}, s{sFO}, 0x100000")
    sig_issue(0, 40, 41, "ax")()
    sig_check("xs", 0, (40, 41, 42, 43), "ax")()
    if HYB and not W1E:
        a.e(f"s_cmp_eq_u32 s{sW}, 0")
        a.e(f"s_cbranch_scc1 L_w1_skip")
        for f in w_block(1): f()
        a.label("L_w1_skip")
    st()
    a.e(f"s_lshl_b32 s{sT2}, s{sB}, 3")
    a.e(f"s_add_u32 s{sT2}, s{sT2}, s{sW}")
    a.e(f"s_mul_i32 s{sU}, s{sT2}, 40960")
    a.e(f"s_add_u32 s{sU}, s{sU}, {WS_X}")
    srd(a, sX, 26, 27, f"s{sU}", "40960")
    a.e(f"s_mul_i32 s{sT2}, s{sT2}, {2*A_MB}")
    srd(a, sWS, 26, 27, f"s{sT2}", f"{2*A_MB}")
    a.e(f"s_mul_i32 s{sT2}, s{sH}, 786432")
    a.e(f"s_add_u32 s{sT2}, s{sT2}, {1536*384}")
    srd(a, sK, 6, 7, f"s{sT2}", "196608")
    srd(a, sV, 8, 9, f"s{sT2}", "196608")
    for i in range(3): voffs(i, "KV")
    a.e(f"v_lshrrev_b32 v{t+1}, 4, v{LANE}")
    a.e(f"v_bfe_u32 v{t+3}, v{LANE}, 2, 2")
    a.e(f"v_and_b32 v{t+4}, 3, v{LANE}")
    a.e(f"v_lshlrev_b32 v{t+4}, 3, v{t+4}")
    a.e(f"v_bfe_u32 v{t+5}, v{LANE}, 3, 2")
    a.e(f"v_lshl_add_u32 v{t+7}, v{t+1}, 3, v{t+3}")
    a.e(f"v_mul_u32_u24 v{t+8}, 384, v{t+7}")
    a.e(f"v_add_u32 v{t+8}, v{t+8}, v{t+4}")
    a.e(f"v_add_u32 v{t+8}, {2*WSLOT}, v{t+8}")
    for i in range(4):
        a.e(f"v_xor_b32 v{t+9}, {i}, v{t+5}")
        a.e(f"v_lshl_add_u32 v{AWQ+i}, v{t+9}, 5, v{t+8}")
    a.e(f"v_mul_u32_u24 v{t+8}, 1664, v{t+1}")
    a.e(f"v_mul_u32_u24 v{t+9}, 96, v{t+3}")
    a.e(f"v_add3_u32 v{t+8}, v{t+8}, v{t+9}, v{t+4}")
    a.e(f"v_add_u32 v{AGU}, {GOFF + 2*WSLOT}, v{t+8}")
    for i in range(4): a.e(f"v_mov_b32 v{ONES+i}, 0x3f803f80")
    a.wait_vm(("W", 0))
    st()
    def w1_late():
        if HYB and not W1E:
            for f in w_block(1): f()
    flag_wait("px", 0, 42, 43, w1_late)()
    a.e("s_barrier")
    st()
    for f in x_loads(0, 0) + x_loads(0, 1): f()

    sa = Stream(a, FR)
    tile_first_frag = []; tile_gap0 = []
    addr_regs = [AWQ, AWQ + 1, AWQ + 2, AWQ + 3, AGU]
    started = set()
    def C0(d):
        if d in started: return None
        started.add(d); return "0"
    T = TP + 3
    order9 = [12, 15, 13, 16, 14, 17] + list(range(12))
    g_blk = {}
    for k in range(10):
        xs_ = XSET[k % NXS]
        wb = 0 if wslot(k) < 2 * WSLOT else 2 * WSLOT
        so = wslot(k) - wb
        tile_first_frag.append(len(sa.frags)); tile_gap0.append(sa.n())
        def main(ks, jb):
            xb = xs_ + 8 * ks
            if jb < 12:
                rd = [lambda b, tt=tt: f"ds_read_b64_tr_b16 {vr(b+2*tt,2)}, v{AWQ+(jb&3)} offset:{so+(32*ks+4*tt)*384+(jb>>2)*128}" for tt in range(2)]
            else:
                jj = (jb - 12) % 3; up = (jb - 12) // 3
                rd = [lambda b, tt=tt: f"ds_read_b64_tr_b16 {vr(b+2*tt,2)}, v{AGU} offset:{so+ks*6656+tt*384+up*768+jj*32}" for tt in range(2)]
            sa.frag(rd, [lambda b, qs=qs: mfma_t(ACC(jb, qs), b, xb + 4 * qs, C0(ACC(jb, qs))) for qs in range(2)])
        if k < 9:
            for ks in range(2):
                sa.add_pre(sa.n(), lambda k=k, ks=ks: a.wait_vm(("x", k, ks)))
                for jb in range(18): main(ks, jb)
        else:
            sa.add_pre(sa.n(), lambda: a.wait_vm(("x", 9, 1)))
            for jb in order9:
                main(0, jb); main(1, jb); g_blk[jb] = sa.n()
    tile_first_frag.append(len(sa.frags)); tile_gap0.append(sa.n())
    NG = sa.n()
    KVL = 1
    issue = {k: {"w": [], "x": []} for k in range(10)}
    for k in range(1, 10):
        if not (HYB and k == 1): issue[max(k - 2, 0)]["w"] += w_block(k)
        issue[max(k - (NXS - 1), 1 if k >= 2 else 0)]["x"] += x_loads(k, 0) + x_loads(k, 1)
    KVM = OPT.get("kvm", 1)
    kb0 = kv_block("K", 0); vb0 = kv_block("V", 0)
    if KVM == 0:
        issue[8]["w"] += kb0 + vb0
    elif KVM == 1:
        pieces = [kb0[:2], kb0[2:3], kb0[3:], vb0[:2], vb0[2:3], vb0[3:]]
        for n in range(6): sa.spread(pieces[n], tile_gap0[n + 2] + 63, tile_gap0[n + 2] + 65)
    elif KVM == 2:
        sa.spread(kb0 + vb0, tile_gap0[7] + 30, tile_gap0[7] + 64)
    elif KVM == 3:
        sa.spread(kb0, tile_gap0[7] + 30, tile_gap0[7] + 64)
        issue[8]["w"] += vb0
    for k in range(9):
        g0 = tile_gap0[k]
        if k == 0 and HYB:
            sa.spread(issue[0]["x"][:5], OPT.get("x1a", 0), OPT.get("x1a", 0) + 10)
            sa.spread(issue[0]["w"] + issue[0]["x"][5:], OPT.get("r1b", 36), 64)
        elif k == 0:
            sa.spread(issue[0]["w"][:6] + issue[0]["x"][:5], 0, 18)
            sa.spread(issue[0]["x"][5:] + issue[0]["w"][6:], OPT.get("r1b", 36), 64)
        elif k == 7 and KVM >= 2:
            sa.spread(issue[k]["w"], g0, g0 + 28)
            sa.spread(issue[k]["x"], g0 + 1, g0 + 28)
        else:
            sa.spread(issue[k]["w"], g0 + (OPT.get("kvo", 0) if k == 8 else 0), g0 + 62)
            sa.spread(issue[k]["x"], g0 + 3, g0 + 60)
    sa.spread(kv_block("K", 1), NG - 30, NG - 10)
    for k in range(9):
        gb = sa.read_gap(tile_first_frag[k + 1])
        def bar(k=k):
            a.wait_vm(("W", k + 1))
            a.e("s_waitcnt lgkmcnt(0)"); a.lgkm = []
            a.e("s_barrier")
            st(fine=True)
            w0 = 0 if wslot(k) < 2 * WSLOT else 2 * WSLOT
            w1 = 0 if wslot(k + 1) < 2 * WSLOT else 2 * WSLOT
            if w0 != w1:
                for r in addr_regs: a.e(f"v_add_u32 v{r}, {(w1-w0) & 0xffffffff}, v{r}")
        sa.add_pre(gb, bar)
    G0 = T + 2; HT = 208
    sC = sFL
    epi = [(E(a, f"v_mov_b32 v{G0}, {f32(GELU_C0)}"), tile_gap0[9]), (E(a, f"s_mul_i32 s{sHO}, s{sH}, 3"), tile_gap0[9]),
           (E(a, f"s_mov_b32 s{sC}, {f32(SCALE_C)}"), tile_gap0[9])]
    for n, jb in enumerate(order9):
        ge = g_blk[jb] + 3
        L_ = []
        if jb >= 15:
            jj = jb - 15
            g0 = ACC(12 + jj, 0); u0 = ACC(jb, 0)
            for r in range(8): L_.append(f"v_mul_f32 v{HT+r}, v{g0+r}, v{g0+r}")
            for r in range(8): L_.append(f"v_fma_f32 v{HT+r}, v{HT+r}, s{sG1}, v{G0}")
            for r in range(8): L_.append(f"v_mul_f32 v{HT+r}, v{HT+r}, v{g0+r}")
            for r in range(8): L_.append(f"v_exp_f32 v{HT+r}, v{HT+r}")
            for r in range(8): L_.append(f"v_mul_f32 v{g0+r}, v{g0+r}, v{u0+r}")
            for r in range(8): L_.append(f"v_add_f32 v{HT+r}, 1.0, v{HT+r}")
            for r in range(8): L_.append(f"v_rcp_f32 v{HT+r}, v{HT+r}")
            L_.append(f"s_add_u32 s{sT}, s{sHO}, {jj}")
            for r in range(8): L_.append(f"v_mul_f32 v{g0+r}, v{g0+r}, v{HT+r}")
            hp = 216 + 4 * jj if jj < 2 else u0
            for q in range(4): L_.append(f"v_cvt_pk_bf16_f32 v{hp+q}, v{g0+2*q}, v{g0+2*q+1}")
            for x_ in L_: epi.append((E(a, x_), ge))
            def hstore(hp=hp):
                a.e(f"s_and_b32 s{sT2}, s{sT}, 1")
                a.e(f"s_lshr_b32 s{sT}, s{sT}, 1")
                a.e(f"s_lshl_b32 s{sT}, s{sT}, 10")
                a.e(f"s_lshl_b32 s{sT2}, s{sT2}, 3")
                a.e(f"s_add_u32 s{sT}, s{sT}, s{sT2}")
                a.e(f"s_add_u32 s{sT}, s{sT}, {192*1024}")
                a.e(f"s_add_u32 s{sT2}, s{sT}, {A_MB}")
                a.vmem(f"buffer_store_dwordx2 {vr(hp,2)}, v{L16}, s[{sWS}:{sWS+3}], s{sT} offen sc1", "hst")
                a.vmem(f"buffer_store_dwordx2 {vr(hp+2,2)}, v{L16}, s[{sWS}:{sWS+3}], s{sT2} offen sc1", "hst")
            epi.append((hstore, ge))
        elif jb < 12:
            s_, e_ = divmod(jb, 2)
            for qs in range(2):
                ac = ACC(jb, qs)
                for r in range(4): L_.append(f"v_mul_f32 v{ac+r}, s{sC}, v{ac+r}")
            for qs in range(2):
                ac = ACC(jb, qs)
                for q in range(2): L_.append(f"v_cvt_pk_bf16_f32 v{QP(qs,s_)+2*e_+q}, v{ac+2*q}, v{ac+2*q+1}")
            if e_ == 1:
                L_.append("s_nop 1")
                for qs in range(2):
                    for q in range(2): L_.append(f"v_permlane32_swap_b32 v{QP(qs,s_)+q}, v{QP(qs,s_)+2+q}")
                L_.append("s_nop 0")
                for qs in range(2):
                    for q in range(2): L_.append(f"v_permlane16_swap_b32 v{QP(qs,s_)+q}, v{QP(qs,s_)+2+q}")
            for x_ in L_: epi.append((E(a, x_), ge))
    per = OPT.get("epi_per", 2)
    g = tile_gap0[9]; cnt = 0; n_in = 0
    for (fn, ge) in epi:
        if ge > g: g = ge; cnt = 0
        if g >= NG - 1: break
        sa.add_post(g, fn); n_in += 1; cnt += 1
        if cnt >= per: g += 1; cnt = 0
    sa.emit()
    st()
    a.e("s_nop 7")
    for (fn, ge) in epi[n_in:]: fn()
    T = TP
    kwin = lambda j: KSL[0] if j % 3 == 0 else 0
    vwin = lambda j: VSL[0] if j % 3 == 0 else VSL[1]
    a.e(f"v_lshrrev_b32 v{T}, 4, v{L16}")
    a.e(f"v_lshrrev_b32 v{T+1}, 4, v{T}")
    a.e(f"v_bfe_u32 v{T+3}, v{T}, 2, 2")
    a.e(f"v_and_b32 v{T+4}, 3, v{T}")
    a.e(f"v_lshlrev_b32 v{T+4}, 3, v{T+4}")
    a.e(f"v_bfe_u32 v{T+5}, v{T}, 3, 2")
    a.e(f"v_lshl_add_u32 v{T+3}, v{T+1}, 2, v{T+3}")
    a.e(f"v_mul_u32_u24 v{T+3}, 384, v{T+3}")
    a.e(f"v_add_u32 v{T+3}, v{T+3}, v{T+4}")
    a.e(f"v_add_u32 v{T+3}, {vwin(0)}, v{T+3}")
    for i in range(4):
        a.e(f"v_xor_b32 v{T+4}, {i}, v{T+5}")
        a.e(f"v_lshl_add_u32 v{VR+i}, v{T+4}, 5, v{T+3}")
    a.e(f"v_and_b32 v{T+3}, 15, v{T}")
    a.e(f"v_bfe_u32 v{T+5}, v{T}, 1, 3")
    a.e(f"v_mul_u32_u24 v{T+3}, 384, v{T+3}")
    a.e(f"v_add_u32 v{T+3}, {kwin(0)}, v{T+3}")
    for i in range(2):
        a.e(f"v_add_u32 v{T+4}, {4*i}, v{T+1}")
        a.e(f"v_xor_b32 v{T+4}, v{T+4}, v{T+5}")
        a.e(f"v_lshl_add_u32 v{KR[i]}, v{T+4}, 4, v{T+3}")
    a.e(f"v_mov_b32 v{LS}, 0")
    a.e(f"v_mov_b32 v{LS+1}, 0")
    a.e(f"s_mov_b32 s{sTHR}, {f32(2.0**60)}")
    if KVL:
        for f in kv_block("V", 1) + kv_block("K", 2): f()
        a.wait_vm(("K", 0))
        a.e("s_barrier")
    st()

    def exp_ops(kb):
        u, e_ = divmod(kb, 2)
        o = []
        for r in range(4): o.append(f"v_exp_f32 v{TP+r}, v{S(kb,0)+r}")
        o.append(f"v_exp_f32 v{TP+4}, v{S(kb,1)}")
        o.append(f"v_cvt_pk_bf16_f32 v{P(0,u)+2*e_}, v{TP}, v{TP+1}")
        o.append(f"v_exp_f32 v{TP+5}, v{S(kb,1)+1}")
        o.append(f"v_cvt_pk_bf16_f32 v{P(0,u)+2*e_+1}, v{TP+2}, v{TP+3}")
        o.append(f"v_exp_f32 v{TP+6}, v{S(kb,1)+2}")
        o.append(f"v_exp_f32 v{TP+7}, v{S(kb,1)+3}")
        o.append(f"v_cvt_pk_bf16_f32 v{P(1,u)+2*e_}, v{TP+4}, v{TP+5}")
        o.append(f"v_cvt_pk_bf16_f32 v{P(1,u)+2*e_+1}, v{TP+6}, v{TP+7}")
        return o
    def rowmax_ops(u, D, X):
        o = []
        for qs in range(2):
            s0 = S(2 * u, qs); s1 = S(2 * u + 1, qs)
            o.append(f"v_max3_f32 v{D[qs]}, v{s0}, v{s0+1}, v{s0+2}")
            o.append(f"v_max3_f32 v{D[qs]}, v{D[qs]}, v{s0+3}, v{s1}")
            o.append(f"v_max3_f32 v{D[qs]}, v{D[qs]}, v{s1+1}, v{s1+2}")
            o.append(f"v_max_f32 v{D[qs]}, v{D[qs]}, v{s1+3}")
        for sw in ("v_permlane32_swap_b32", "v_permlane16_swap_b32"):
            for qs in range(2): o.append(f"v_mov_b32 v{X+qs}, v{D[qs]}")
            o.append("s_nop 1")
            for qs in range(2): o.append(f"{sw} v{D[qs]}, v{X+qs}")
            for qs in range(2): o.append(f"v_max_f32 v{D[qs]}, v{D[qs]}, v{X+qs}")
        return o
    def slow_stub(u):
        a.label(f"L_{K}_slow{u}")
        a.e("s_nop 15")
        D = [TP, TP + 1]; AL = [TP + 2, TP + 3]; X = TP + 4
        for tx in rowmax_ops(u, D, X): a.e(tx)
        for qs in range(2):
            a.e(f"v_max_f32 v{D[qs]}, 0, v{D[qs]}")
            a.e(f"v_exp_f32 v{AL[qs]}, -v{D[qs]}")
        for qs in range(2):
            for r in range(4): a.e(f"v_sub_f32 v{NEGM(qs)+r}, v{NEGM(qs)+r}, v{D[qs]}")
            for kb in range(4):
                for r in range(4): a.e(f"v_sub_f32 v{S(kb,qs)+r}, v{S(kb,qs)+r}, v{D[qs]}")
            a.e(f"v_mul_f32 v{LS+qs}, v{LS+qs}, v{AL[qs]}")
            for jb in range(12):
                for r in range(4): a.e(f"v_mul_f32 v{O(jb,qs)+r}, v{O(jb,qs)+r}, v{AL[qs]}")
        for kb in (2 * u, 2 * u + 1):
            for tx in exp_ops(kb): a.e(tx)
        a.e("s_nop 1")
        for qs in range(2): a.e(mfma_t(LT(qs), ONES, P(qs, u), "0"))
        a.e("s_nop 7")
        a.e(f"s_setpc_b64 s[{sRET}:{sRET+1}]")
    def check(j, u):
        def fn():
            a.e(f"v_max_f32 v{LT(0)+1}, v{LT(0)}, v{LT(1)}")
            a.e(f"v_cmp_nge_f32 vcc, s{sTHR}, v{LT(0)+1}")
            a.e(f"s_cbranch_vccnz L_{K}_tr{j}_{u}")
            a.label(f"L_{K}_back{j}_{u}")
        def stub():
            a.label(f"L_{K}_tr{j}_{u}")
            a.e(f"s_call_b64 s[{sRET}:{sRET+1}], L_{K}_slow{u}")
            a.e(f"s_branch L_{K}_back{j}_{u}")
        stubs.append(stub)
        return fn

    sb = Stream(a, FR)
    seg = {}
    def QK(j, u, sum_of=None):
        ko = KSL[j % 3] - kwin(j); g0 = sb.n(); f0 = len(sb.frags)
        for kb in (2 * u, 2 * u + 1):
            for s_ in range(6):
                c0 = ("0" if j == 0 else "negm") if s_ == 0 else None
                sb.frag([lambda b: f"ds_read_b128 {vr(b,4)}, v{KR[s_&1]} offset:{ko+kb*6144+(s_>>1)*128}"],
                        [lambda b, qs=qs: mfma_t(S(kb, qs), b, QP(qs, s_), NEGM(qs) if c0 == "negm" else c0) for qs in range(2)])
                if sum_of is not None and kb == 2 * u + 1 and s_ == 2:
                    seg[("sum", sum_of)] = sb.n()
                    for qs in range(2): sb.mfma(mfma_t(LT(qs), ONES, P(qs, sum_of[1]), "0"))
        seg[("QK", j, u)] = (g0, sb.n(), f0)
    def PV(j, u, sum_of=None):
        vo = VSL[j % 3] - vwin(j); g0 = sb.n(); f0 = len(sb.frags)
        if not (j == 0 and u == 0) and not OPT.get("nocheck"): sb.add_pre(g0, check(j, u))
        sb.add_post(g0, E(a, f"v_add_f32 v{LS}, v{LS}, v{LT(0)}"))
        sb.add_post(g0 + 1, E(a, f"v_add_f32 v{LS+1}, v{LS+1}, v{LT(1)}"))
        for jb in range(12):
            sb.frag([lambda b, tt=tt: f"ds_read_b64_tr_b16 {vr(b+2*tt,2)}, v{VR+(jb&3)} offset:{vo+(32*u+16*tt)*384+(jb>>2)*128}" for tt in range(2)],
                    [lambda b, qs=qs: mfma_t(O(jb, qs), b, P(qs, u), "0" if (j == 0 and u == 0) else None) for qs in range(2)])
            if sum_of is not None and jb == 8:
                seg[("sum", sum_of)] = sb.n()
                for qs in range(2): sb.mfma(mfma_t(LT(qs), ONES, P(qs, sum_of[1]), "0"))
        seg[("PV", j, u)] = (g0, sb.n(), f0)
    QK(0, 0)
    for j in range(8):
        QK(j, 1, sum_of=(j, 0))
        if j < 7:
            PV(j, 0); QK(j + 1, 0, sum_of=(j, 1)); PV(j, 1)
        else:
            PV(j, 0, sum_of=(j, 1)); PV(j, 1)
    NG = sb.n()
    for j in range(8):
        for u in range(2):
            g0 = seg[("QK", j, u)][1] + 3; g1 = seg[("sum", (j, u))] - 2
            ops = exp_ops(2 * u) + exp_ops(2 * u + 1)
            if j == 0 and u == 0:
                D = [LT(0), LT(1)]
                pre = rowmax_ops(0, D, TP)
                for qs in range(2):
                    for kb in range(2):
                        for r in range(4): pre.append(f"v_sub_f32 v{S(kb,qs)+r}, v{S(kb,qs)+r}, v{D[qs]}")
                for qs in range(2):
                    for r in range(4): pre.append(f"v_sub_f32 v{NEGM(qs)+r}, 0, v{D[qs]}")
                ops = pre + ops
            if j == 0 and u == 1:
                pre = []
                for qs in range(2):
                    for kb in range(2, 4):
                        for r in range(4): pre.append(f"v_add_f32 v{S(kb,qs)+r}, v{S(kb,qs)+r}, v{NEGM(qs)}")
                ops = pre + ops
            if not OPT.get("noexp"): sb.spread([E(a, x) for x in ops], g0, g1)
    for j in range(8):
        gb = sb.read_gap(seg[("PV", j, 0)][2])
        def vbar(j=j):
            a.wait_vm(("V", j))
            if not OPT.get("nobar"): a.e("s_barrier")
        sb.add_pre(gb, vbar)
        if j > 0 and vwin(j) != vwin(j - 1):
            sb.spread([E(a, f"v_add_u32 v{VR+r}, {(vwin(j)-vwin(j-1)) & 0xffffffff}, v{VR+r}") for r in range(4)], gb - 9, gb - 1)
        if j + 2 < 8 and not OPT.get("nodma"): sb.spread(kv_block("V", j + 2), gb + 2, gb + 20)
        if j < 7:
            gb = sb.read_gap(seg[("QK", j + 1, 0)][2])
            def kbar(j=j):
                a.wait_vm(("K", j + 1))
                if not OPT.get("nobar"): a.e("s_barrier")
                st(fine=True)
            sb.add_pre(gb, kbar)
            if kwin(j) != kwin(j + 1):
                sb.spread([E(a, f"v_add_u32 v{r}, {(kwin(j+1)-kwin(j)) & 0xffffffff}, v{r}") for r in KR], gb - 6, gb - 1)
            if j + 3 < 8 and not OPT.get("nodma"): sb.spread(kv_block("K", j + 3), gb + 2, gb + 20)
    ACC2 = lambda nb, qs: (nb * 2 + qs) * 4
    ACCF = lambda nb, qs: 176 + (nb * 2 + qs) * 4
    NSET = 4
    OF = 80; FR2 = OF + 16 * NSET
    AW = 160; AF = 162; TM2 = 164
    DF = [243, 244, 245, 247, 254]
    DW = [216, 217, 218, 219, 220]
    ZV, ONEV, PV_ = 221, 222, 223
    sO, sWr, sP = 28, 32, 36
    sS, sMT, sNT, sG, sMBk, sOW, sM0, sOO, sKG, sTW2, sTO = 55, 56, 57, 58, 59, 60, 61, 62, 63, 64, 65
    sOO2, sOB_, sWB, sPER, sR12 = 78, 79, 80, 81, 96
    sCH, sCO = 86, 87
    sXo, sOut = 40, 44
    SLOT = 40960
    NF, NA = 6, 12; NT2 = NF + NA
    slot2 = lambda k: ((k + 2) % 4) * SLOT
    win = lambda k: 0 if slot2(k) < 2 * SLOT else 2 * SLOT
    su = []
    def S_(tx): su.append(E(a, tx))
    def grp(*txs):
        def f():
            for tx in txs: a.e(tx)
        su.append(f)
    grp(f"s_and_b32 s{sS}, s2, 3", f"s_bfe_u32 s{sU}, s2, 0x10002", f"s_lshr_b32 s{sU2}, s2, 3")
    grp(f"s_and_b32 s{sNT}, s{sU2}, 3", f"s_lshr_b32 s{sMT}, s{sU2}, 2")
    grp(f"s_mul_i32 s{sTW2}, s{sMT}, {NF}", f"s_lshr_b32 s{sTW2}, s{sTW2}, 3", f"s_mov_b32 s{sTO}, s{sTW2}")
    grp(f"s_mul_i32 s{sR12}, s{sMT}, {NA}", f"s_lshr_b32 s{sR12}, s{sR12}, 3")
    grp(f"s_lshl_b32 s{sU}, s{sU}, 3", f"s_add_u32 s{sMT}, s{sMT}, s{sU}", f"s_lshr_b32 s{sG}, s{sW}, 2")
    grp(f"s_and_b32 s{sU}, s{sW}, 3", f"s_lshl_b32 s{sMBk}, s{sMT}, 2", f"s_add_u32 s{sMBk}, s{sMBk}, s{sU}")
    grp(f"s_mul_i32 s{sM0}, s{sW}, 5120", f"s_lshr_b32 s{sKG}, s{sW}, 1")
    grp(f"s_lshr_b32 s{sCO}, s{sMT}, 1", f"s_lshl_b32 s{sCO}, s{sCO}, 5", f"s_add_u32 s{sCH}, s{sCO}, 16")
    su_early = list(su); su.clear()
    grp(f"s_and_b32 s{sU}, s{sW}, 1", f"s_lshl_b32 s{sU}, s{sU}, 5")
    t0, t1, t2 = KA, KA + 1, KA + 2
    for i in range(5):
        S_(f"v_lshrrev_b32 v{t0}, 4, v{L16}")
        S_(f"v_add_u32 v{t0}, {64*i}, v{t0}")
        S_(f"v_mul_u32_u24 v{t1}, 6554, v{t0}")
        S_(f"v_lshrrev_b32 v{t1}, 16, v{t1}")
        S_(f"v_mul_u32_u24 v{t2}, 10, v{t1}")
        S_(f"v_sub_u32 v{t2}, v{t0}, v{t2}")
        S_(f"v_add_u32 v{t1}, s{sU}, v{t1}")
        S_(f"v_mul_u32_u24 v{t1}, 1280, v{t1}")
        S_(f"v_lshl_add_u32 v{DF[i]}, v{t2}, 4, v{t1}")
    grp(f"s_mul_i32 s{sWB}, s{sKG}, {NF*64*1280}", f"s_mul_i32 s{sOB_}, s{sKG}, {NF*2048}", f"s_add_u32 s{sOB_}, s{sOB_}, {192*1024}")
    def f_():
        a.e(f"s_mul_i32 s{sU2}, s{sNT}, 320")
        a.e(f"s_and_b32 s{sU}, s{sS}, 1")
        a.e(f"s_mul_i32 s{sU}, s{sU}, 160")
        a.e(f"s_add_u32 s{sU2}, s{sU2}, s{sU}")
        srd(a, sWr, 20, 21, f"s{sU2}", "0")
        a.e(f"s_sub_u32 s{sWr+2}, {1536*1280}, s{sU2}")
    su.append(f_)
    def f_():
        a.e(f"s_lshl_b32 s{sU2}, s{sMT}, 2")
        a.e(f"s_and_b32 s{sU}, s{sS}, 2")
        a.e(f"s_add_u32 s{sU2}, s{sU2}, s{sU}")
        a.e(f"s_and_b32 s{sU}, s{sW}, 1")
        a.e(f"s_add_u32 s{sU2}, s{sU2}, s{sU}")
        a.e(f"s_mul_i32 s{sU2}, s{sU2}, {2*A_MB}")
        srd(a, sO, 26, 27, f"s{sU2}", f"{2*A_MB}")
    su.append(f_)
    def w2_block(k):
        base = slot2(k); tag = ("W2", k); fns = []
        per = NF if k < NF else NA; vo = DF if k < NF else DW
        def head():
            if k == NF:
                a.e(f"s_mul_i32 s{sU2}, s{sNT}, 320")
                srd(a, sWr, 12, 13, f"s{sU2}", "0")
                a.e(f"s_sub_u32 s{sWr+2}, {6144*1280}, s{sU2}")
                a.e(f"s_lshl_b32 s{sU}, s{sS}, 1")
                a.e(f"s_add_u32 s{sU}, s{sU}, s{sG}")
                a.e(f"s_mul_i32 s{sWB}, s{sU}, {NA*64*1280}")
                a.e(f"s_mov_b32 s{sTW2}, s{sR12}")
            a.e(f"s_mul_i32 s{sOW}, s{sTW2}, {64*1280}")
            a.e(f"s_add_u32 s{sOW}, s{sOW}, s{sWB}")
        fns.append(head)
        for i in range(5):
            def f(i=i):
                a.e(f"s_add_u32 m0, s{sM0}, {base + 1024*i}")
                if i == 0: a.e(f"s_add_u32 s{sTW2}, s{sTW2}, 1")
                elif i == 1: a.e(f"s_cmp_eq_u32 s{sTW2}, {per}")
                else: a.e("s_nop 0")
                a.vmem(f"buffer_load_dwordx4 v{vo[i]}, s[{sWr}:{sWr+3}], s{sOW} offen lds", tag)
                if i == 1: a.e(f"s_cselect_b32 s{sTW2}, 0, s{sTW2}")
            fns.append(f)
        return fns
    def poll_issue(soff, tag):
        return lambda: a.vmem(f"buffer_load_dword v{PV_}, v{ZV}, s[{sDB_}:{sDB_+3}], s{soff} offen sc1", tag)
    def poll_check(name, srdr, soff, target, tag):
        def fn():
            a.wait_vm(tag)
            a.e(f"v_readfirstlane_b32 s{sU2}, v{PV_}")
            a.e("s_nop 3")
            a.e(f"s_cmp_ge_u32 s{sU2}, {target}")
            a.e(f"s_cbranch_scc0 L_{name}_spin")
            a.label(f"L_{name}_ok")
        def stub():
            a.label(f"L_{name}_spin")
            a.e(f"s_mov_b32 s{sU}, 0")
            a.label(f"L_{name}_poll")
            a.e(f"s_sleep {OPT.get('slp', 8)}")
            a.e(f"buffer_load_dword v{PV_}, v{ZV}, s[{srdr}:{srdr+3}], s{soff} offen sc1")
            a.e("s_waitcnt vmcnt(0)")
            a.e(f"v_readfirstlane_b32 s{sU2}, v{PV_}")
            a.e(f"s_add_u32 s{sU}, s{sU}, 1")
            a.e("s_nop 1")
            a.e(f"s_cmp_ge_u32 s{sU2}, {target}")
            a.e(f"s_cbranch_scc1 L_{name}_ok")
            a.e(f"s_cmp_lt_u32 s{sU}, 0x20000")
            a.e(f"s_cbranch_scc1 L_{name}_poll")
            a.e(f"s_branch L_{name}_ok")
        stubs.append(stub)
        return fn
    def signal(name, srdr, soff_expr, zv, onev):
        def fn():
            a.e(f"s_cmp_eq_u32 s{sW}, 0")
            a.e(f"s_cbranch_scc1 L_{name}_sig")
            a.label(f"L_{name}_sigr")
        def stub():
            a.label(f"L_{name}_sig")
            for tx in soff_expr: a.e(tx)
            a.e(f"v_mov_b32 v{zv}, 0")
            a.e(f"v_mov_b32 v{onev}, 1")
            a.e("s_mov_b64 exec, 1")
            a.e(f"buffer_atomic_add v{onev}, v{zv}, s[{srdr}:{srdr+3}], s{sU} offen sc1")
            a.e("s_mov_b64 exec, -1")
            a.e(f"s_branch L_{name}_sigr")
        stubs.append(stub)
        return fn
    def o_loads(k, ks):
        par = (k + 1) % NSET; fns = []
        per = NF if k < NF else NA
        if ks == 0:
            def head():
                if k == NF:
                    a.e(f"s_mul_i32 s{sU2}, s{sMBk}, {2*A_MB}")
                    srd(a, sO, 26, 27, f"s{sU2}", f"{2*A_MB}")
                    a.e(f"s_lshl_b32 s{sU}, s{sS}, 1")
                    a.e(f"s_add_u32 s{sU}, s{sU}, s{sG}")
                    a.e(f"s_mul_i32 s{sOB_}, s{sU}, {NA*2048}")
                    a.e(f"s_mov_b32 s{sTO}, s{sR12}")
                a.e(f"s_lshl_b32 s{sOO}, s{sTO}, 11")
                a.e(f"s_add_u32 s{sOO}, s{sOO}, s{sOB_}")
                a.e(f"s_add_u32 s{sTO}, s{sTO}, 1")
                a.e(f"s_cmp_eq_u32 s{sTO}, {per}")
                a.e(f"s_cselect_b32 s{sTO}, 0, s{sTO}")
                a.e(f"s_add_u32 s{sOO2}, s{sOO}, {A_MB}")
            fns.append(head)
        for qs in range(2):
            fns.append(lambda qs=qs: a.vmem(f"buffer_load_dwordx4 {vr(OF+16*par+8*ks+4*qs,4)}, v{L16}, s[{sO}:{sO+3}], s{sOO2 if qs else sOO} offen offset:{1024*ks} sc1", ("o", k, ks)))
        return fns
    gk = lambda j: sb.read_gap(seg[("QK", j + 1, 0)][2])
    gv = lambda j: sb.read_gap(seg[("PV", j, 0)][2])
    sb.pre[gk(1)].insert(0, lambda: a.wait_vm("hst"))
    sb.add_pre(gk(1), sig_issue(1, 243, 244, "ah"))
    sb.add_pre(gk(1) + 40, sig_check("hs", 1, (243, 244, 245, 247), "ah"))
    sb.spread(su_early, gk(1) + 22, gk(1) + 39)
    if OPT.get("pfw2", 1):
        PW, PD = 245, 247
        sPF = 36
        def pfs():
            a.e(f"v_lshlrev_b32 v{PW}, 3, v{L16}")
            a.e(f"v_mov_b32 v{PD}, 0x1000000")
            a.e(f"v_cmp_gt_u32 vcc, {15*128}, v{PW}")
            a.e(f"s_lshr_b32 s{sU}, s2, 3")
            a.e(f"s_lshl_b32 s{sU}, s{sU}, 3")
            a.e(f"v_cndmask_b32 v{PW}, v{PD}, v{PW}, vcc")
            a.e(f"s_add_u32 s{sU}, s{sU}, s{sW}")
            a.e(f"s_mul_i32 s{sU}, s{sU}, 7680")
            a.e(f"s_mul_i32 s{sU2}, s{sS}, {1536*1280}")
            a.e(f"s_add_u32 s{sU}, s{sU}, s{sU2}")
            srd(a, sPF, 12, 13, f"s{sU}", "7680")
        sb.add_post(gk(1) + 42, pfs)
        for n in range(4):
            sb.add_post(gk(1 + n) + 60, lambda n=n: a.vmem(f"buffer_load_dword v{PD}, v{PW}, s[{sPF}:{sPF+3}], 0 offen offset:{1920*n if n < 2 else 0}" if n < 2 else
                                                             f"buffer_load_dword v{PD}, v{PW}, s[{sPF}:{sPF+3}], s{sPER} offen offset:{1920*(n-2)}", "pf"))
        sb.add_post(gk(1) + 44, E(a, f"s_mov_b32 s{sPER}, 3840"))
        def pfd():
            a.e(f"s_lshl_b32 s{sU}, s2, 3")
            a.e(f"s_add_u32 s{sU}, s{sU}, s{sW}")
            a.e(f"s_mul_i32 s{sU}, s{sU}, 960")
            srd(a, sPF, 20, 21, f"s{sU}", "960")
            a.vmem(f"buffer_load_dword v{PD}, v{PW}, s[{sPF}:{sPF+3}], 0 offen", "pf")
        sb.add_post(gk(4) + 66, pfd)
        sb.add_pre(gv(5) + 24, lambda: a.wait_vm("pf"))
    sb.add_post(gk(5) + 10, poll_issue2(1, VB, VB + 1, "ph"))
    sb.pre[gk(6)].insert(0, poll_check2("ph", 1, VB, VB + 1, "ph"))
    sb.spread(su, gv(5) + 24, gk(6) - 2)
    sb.spread(w2_block(0), gk(6) + 2, gv(7) - 2)
    gA = seg[("PV", 7, 0)][0]; gB = seg[("PV", 7, 1)][0]
    sb.spread(w2_block(1), gv(7) + 2, gA + 14)
    sb.spread(o_loads(0, 0) + o_loads(0, 1) + o_loads(1, 0) + o_loads(1, 1), gA + 2, gB - 2)
    oe = [(E(a, f"s_mul_i32 s{sHO}, s{sH}, 6144"), gB + 2)]
    for qs in range(2): oe.append((E(a, f"v_rcp_f32 v{TP+qs}, v{LS+qs}"), gB + 3))
    for s_ in range(6):
        ge = gB + 4 * s_ + 7
        for qs in range(2):
            for e_ in range(2):
                ob = O(2 * s_ + e_, qs)
                for r in range(4): oe.append((E(a, f"v_mul_f32 v{ob+r}, v{TP+qs}, v{ob+r}"), ge))
        for qs in range(2):
            dst = S(0, 0) + 4 * ((2 * s_ + qs) % 8)
            for e_ in range(2):
                ob = O(2 * s_ + e_, qs)
                for q in range(2): oe.append((E(a, f"v_cvt_pk_bf16_f32 v{dst+2*e_+q}, v{ob+2*q}, v{ob+2*q+1}"), ge))
            def ost(qs=qs, s_=s_, dst=dst):
                a.e(f"s_add_u32 s{sT}, s{sHO}, {qs*A_MB + (s_//4)*4096}")
                a.vmem(f"buffer_store_dwordx4 {vr(dst,4)}, v{L16}, s[{sWS}:{sWS+3}], s{sT} offen offset:{1024*(s_%4)} sc1", "ost")
            oe.append((ost, ge))
    per = OPT.get("oe_per", 3)
    g = gB; cnt = 0; n_in = 0
    for (fn, ge) in oe:
        if ge > g: g = ge; cnt = 0
        if g >= NG - 1: break
        sb.add_post(g, fn); n_in += 1; cnt += 1
        if cnt >= per: g += 1; cnt = 0
    sb.emit()
    st()
    a.e("s_nop 7")
    for (fn, ge) in oe[n_in:]: fn()
    st()
    a.e("s_nop 1")
    t = TM2
    a.e(f"v_lshrrev_b32 v{t+2}, 4, v{L16}")
    a.e(f"v_lshrrev_b32 v{t}, 2, v{t+2}")
    a.e(f"v_and_b32 v{t+1}, 3, v{t+2}")
    a.e(f"v_lshlrev_b32 v{t+1}, 3, v{t+1}")
    a.e(f"v_mul_u32_u24 v{t+3}, 160, v{t}")
    a.e(f"s_mul_i32 s{sU2}, s{sKG}, 10240")
    a.e(f"s_add_u32 s{sU2}, s{sU2}, {win(0)}")
    a.e(f"v_add3_u32 v{AF}, v{t+3}, v{t+1}, s{sU2}")
    a.wait_vm(("W2", 1))
    a.e("s_waitcnt lgkmcnt(0)"); a.lgkm = []
    a.e("s_barrier")
    st()
    late = []
    L_ = lambda tx: late.append(E(a, tx))
    L_(f"v_mul_u32_u24 v{t+3}, 320, v{t}")
    L_(f"s_mul_i32 s{sU2}, s{sG}, 20480")
    late.append(lambda: (a.e(f"s_mul_i32 s{sU2}, s{sG}, 20480"), a.e(f"s_add_u32 s{sU2}, s{sU2}, {win(NF)}"), a.e(f"v_add3_u32 v{t+3}, v{t+3}, v{t+1}, s{sU2}")))
    L_(f"v_bfe_u32 v{t+4}, v{t+2}, 4, 1")
    L_(f"v_lshlrev_b32 v{t+4}, 5, v{t+4}")
    L_(f"v_add_u32 v{AW}, v{t+3}, v{t+4}")
    L_(f"v_sub_u32 v{AW+1}, v{t+3}, v{t+4}")
    L_(f"v_and_b32 v{t+7}, 0x30, v{t+2}")
    late.append(lambda: (a.e(f"s_and_b32 s{sPER}, s{sW}, 3"), a.e(f"s_lshl_b32 s{sPER}, s{sPER}, 4")))
    for i in range(5):
        L_(f"v_add_u32 v{t+4}, {64*i}, v{t+2}")
        L_(f"v_mul_u32_u24 v{t+5}, 3277, v{t+4}")
        L_(f"v_lshrrev_b32 v{t+5}, 16, v{t+5}")
        L_(f"v_mul_u32_u24 v{t+6}, 20, v{t+5}")
        L_(f"v_sub_u32 v{t+6}, v{t+4}, v{t+6}")
        L_(f"v_add_u32 v{t+5}, s{sPER}, v{t+5}")
        L_(f"v_bfe_u32 v{t+4}, v{t+5}, 2, 1")
        L_(f"v_lshlrev_b32 v{t+4}, 1, v{t+4}")
        L_(f"v_xor_b32 v{t+6}, v{t+6}, v{t+4}")
        L_(f"v_mul_u32_u24 v{t+5}, 1280, v{t+5}")
        L_(f"v_lshl_add_u32 v{DW[i]}, v{t+6}, 4, v{t+5}")
    sm = Stream(a, FR2)
    started = set()
    tfirst = []; tg0 = []
    for k in range(NT2):
        par = (k + 1) % NSET; so = slot2(k) - win(k)
        tfirst.append(len(sm.frags)); tg0.append(sm.n())
        for ks in range(2):
            sm.add_pre(sm.n(), lambda k=k, ks=ks: a.wait_vm(("o", k, ks)))
            if k < NF:
                for nb in range(5):
                    sm.frag([lambda b, tt=tt: f"ds_read_b64_tr_b16 {vr(b+2*tt,2)}, v{AF} offset:{so+(32*ks+16*tt)*160+32*nb}" for tt in range(2)],
                            [lambda b, qs=qs: mfma_t(ACCF(nb, qs), b, OF + 16 * par + 8 * ks + 4 * qs, C0(ACCF(nb, qs))) for qs in range(2)])
            else:
                for nb in range(10):
                    sm.frag([lambda b, tt=tt: f"ds_read_b64_tr_b16 {vr(b+2*tt,2)}, v{AW+(nb&1)} offset:{so+(32*ks+16*tt)*320+32*nb}" for tt in range(2)],
                            [lambda b, qs=qs: mfma_t(ACC2(nb, qs), b, OF + 16 * par + 8 * ks + 4 * qs, C0(ACC2(nb, qs))) for qs in range(2)])
    tfirst.append(len(sm.frags)); tg0.append(sm.n())
    NG = sm.n()
    sm.spread(late, 0, tg0[2])
    KO = OPT.get("ostep", 5)
    issue = {}
    for k in range(2, NT2):
        tk = max(k - OPT.get("olook", 2), 0) if k < NF else max(k - OPT.get("olook2", 1), KO)
        issue.setdefault(tk, {"w": [], "o": []})["o"] += o_loads(k, 0) + o_loads(k, 1)
        issue.setdefault(max(k - OPT.get("wlook", 2), 0) if k < NF + 2 else k - OPT.get("wlook2", 2), {"w": [], "o": []})["w"] += w2_block(k)
    for tk in sorted(issue):
        wb_, ob_ = issue[tk]["w"], issue[tk]["o"]
        ln = tg0[tk + 1] - tg0[tk] - 7
        sm.spread(ob_, tg0[tk] + 1, tg0[tk] + ln)
        sm.spread(wb_, tg0[tk] + 1, tg0[tk] + ln)
    for k in range(NT2 - 1):
        gb = sm.read_gap(tfirst[k + 1])
        def bar(k=k):
            if k == 0: a.wait_vm("ost")
            if k == KO - 1: poll_check2("po", 2, PV_, ZV, "po")()
            a.wait_vm(("W2", k + 1))
            a.e("s_waitcnt lgkmcnt(0)"); a.lgkm = []
            a.e("s_barrier")
            st(fine=True)
            if win(k) != win(k + 1) and k + 1 != NF:
                for r in ([AF] if k + 1 < NF else [AW, AW + 1]): a.e(f"v_add_u32 v{r}, {(win(k+1)-win(k)) & 0xffffffff}, v{r}")
        sm.add_pre(gb, bar)
        if k == 0:
            sm.add_pre(gb, sig_issue(2, 224, 225, "ao"))
            sm.add_pre(gb + OPT.get("aod", 14), sig_check("os", 2, (224, 225, 226, 227), "ao"))
        if k == KO - 1: sm.add_post(gb - OPT.get("pod", 8), poll_issue2(2, PV_, ZV, "po"))
    sm.emit()
    a.wait_all()
    st()
    a.e("s_barrier")
    a.e(f"s_mul_i32 s{sU}, s{sW}, 10240")
    a.e(f"v_add_u32 v{t}, s{sU}, v{L16}")
    a.e(f"v_add_u32 v{t+2}, {81920}, v{t}")
    a.e(f"s_xor_b32 s{sU2}, s{sW}, 4")
    a.e(f"s_mul_i32 s{sU2}, s{sU2}, 10240")
    a.e(f"v_add_u32 v{t+1}, s{sU2}, v{L16}")
    PBH = 64 * 40 * 1024
    a.e(f"s_lshl_b32 s{sT}, s{sMT}, 2")
    a.e(f"s_add_u32 s{sT}, s{sT}, s{sNT}")
    a.e(f"s_mul_i32 s{sU2}, s{sT}, {40*1024}")
    a.e(f"s_add_u32 s{sU2}, s{sU2}, {WS_P}")
    srd(a, sP, 26, 27, f"s{sU2}", f"{3*PBH + 40*1024}")
    a.e(f"s_lshl_b32 s{sT}, s{sT}, 7")
    a.e(f"s_and_b32 s{sPER}, s{sW}, 2")
    a.e(f"s_add_u32 s{sPER}, s{sPER}, s{sG}")
    a.e(f"s_lshl_b32 s{sU}, s{sPER}, 1")
    a.e(f"s_and_b32 s{sU2}, s{sW}, 1")
    a.e(f"s_add_u32 s{sU}, s{sU}, s{sU2}")
    a.e(f"s_mul_i32 s{sU}, s{sU}, 5120")
    a.e(f"s_mul_i32 s{sU2}, s{sS}, {PBH}")
    a.e(f"s_add_u32 s{sOW}, s{sU}, s{sU2}")
    a.e(f"s_add_u32 s{sOO}, s{sOW}, 4096")
    a.e(f"s_cmp_eq_u32 s{sG}, 0")
    a.e(f"s_cbranch_scc0 L_p2_g1")
    for g in range(2):
        keep = 40 * g; send = 40 * (1 - g)
        for q in range(10): a.e(f"ds_write_b128 v{t}, {vr(send+4*q,4)} offset:{1024*q}")
        a.e("s_waitcnt lgkmcnt(0)")
        a.e("s_barrier")
        for q in range(10): a.e(f"ds_read_b128 {vr(OF+4*q,4)}, v{t+1} offset:{1024*q}")
        for q in range(10):
            a.e(f"s_waitcnt lgkmcnt({9-q})")
            for r in range(4): a.e(f"v_add_f32 v{OF+4*q+r}, v{keep+4*q+r}, v{OF+4*q+r}")
        if g == 0:
            a.e(f"s_branch L_p2_red2")
            a.label(f"L_p2_g1")
    a.label("L_p2_red2")
    R = OF
    a.e(f"s_cmp_eq_u32 s{sPER}, s{sS}")
    a.e(f"s_cbranch_scc1 L_p2_own")
    for p in range(5):
        for q in range(4): a.e(f"v_cvt_pk_bf16_f32 v{4*p+q}, v{R+8*p+2*q}, v{R+8*p+2*q+1}")
        a.e(f"buffer_store_dwordx4 {vr(4*p,4)}, v{L16}, s[{sP}:{sP+3}], s{sOO if p == 4 else sOW} offen offset:{(p%4)*1024} sc1")
    a.e("s_branch L_p2_pub")
    a.label("L_p2_own")
    for q in range(10): a.e(f"ds_write_b128 v{t+1}, {vr(R+4*q,4)} offset:{1024*q}")
    a.label("L_p2_pub")
    st(fine=True)
    for q in range(10): a.e(f"ds_write_b128 v{t+2}, {vr(176+4*q,4)} offset:{1024*q}")
    a.e(f"s_lshl_b32 s{sU2}, s{sMT}, 1")
    a.e(f"s_lshr_b32 s{sU}, s{sS}, 1")
    a.e(f"s_add_u32 s{sU2}, s{sU2}, s{sU}")
    a.e(f"s_mul_i32 s{sU2}, s{sU2}, {64*1280}")
    a.e(f"s_mul_i32 s{sU}, s{sNT}, 320")
    a.e(f"s_add_u32 s{sU2}, s{sU2}, s{sU}")
    a.e(f"s_and_b32 s{sU}, s{sS}, 1")
    a.e(f"s_mul_i32 s{sU}, s{sU}, 160")
    a.e(f"s_add_u32 s{sU2}, s{sU2}, s{sU}")
    srd(a, sXo, 4, 5, f"s{sU2}", "0")
    a.e(f"s_sub_u32 s{sXo+2}, {2048*1280}, s{sU2}")
    srd(a, sOut, 22, 23, f"s{sU2}", "0")
    a.e(f"s_sub_u32 s{sOut+2}, {2048*1280}, s{sU2}")
    XV = t + 6
    a.e(f"v_bfe_u32 v{XV}, v{L16}, 4, 4")
    a.e(f"v_mul_u32_u24 v{XV}, 1280, v{XV}")
    a.e(f"v_lshrrev_b32 v{t+4}, 8, v{L16}")
    a.e(f"v_lshl_add_u32 v{XV}, v{t+4}, 3, v{XV}")
    a.e(f"v_add_u32 v{XV+1}, 20480, v{XV}")
    a.e(f"s_and_b32 s{sU}, s{sS}, 1")
    a.e(f"s_xor_b32 s{sU}, s{sU}, 1")
    a.e(f"s_lshl_b32 s{sU}, s{sU}, 2")
    a.e(f"s_and_b32 s{sU2}, s{sS}, 2")
    a.e(f"s_add_u32 s{sU}, s{sU}, s{sU2}")
    a.e(f"s_mul_i32 s{sKG}, s{sU}, 10240")
    NU = 2
    sQO = [sOO2, sOB_]; sQP = [sTW2, sTO]; VA = [t + 8, t + 9]; VR_ = [t + 10, t + 11]
    XR = 120
    for n in range(NU):
        a.e(f"s_add_u32 s{sU}, s{sW}, {8*n}")
        a.e(f"s_min_u32 s{sU2}, s{sU}, 9")
        a.e(f"s_lshl_b32 s{sPER}, s{sU2}, 11")
        a.e(f"s_add_u32 s{sWB}, s{sPER}, 81920")
        a.e(f"v_add_u32 v{VA[n]}, s{sWB}, v{L16}")
        a.e(f"s_add_u32 s{sWB}, s{sPER}, s{sKG}")
        a.e(f"v_add_u32 v{VR_[n]}, s{sWB}, v{L16}")
        a.e(f"s_lshl_b32 s{sQO[n]}, s{sU2}, 5")
        a.e(f"s_cmp_ge_u32 s{sU2}, 5")
        a.e(f"s_cselect_b32 s{sPER}, {40960-160}, 0")
        a.e(f"s_add_u32 s{sQO[n]}, s{sQO[n]}, s{sPER}")
        a.e(f"s_mul_i32 s{sPER}, s{sS}, 10240")
        a.e(f"s_lshl_b32 s{sQP[n]}, s{sU2}, 10")
        a.e(f"s_add_u32 s{sQP[n]}, s{sQP[n]}, s{sPER}")
        a.e(f"s_cmp_ge_u32 s{sU}, 10")
        a.e(f"s_cselect_b32 s{sQO[n]}, 0x1000000, s{sQO[n]}")
        a.e(f"s_cselect_b32 s{sQP[n]}, 0x4000000, s{sQP[n]}")
    a.wait_all()
    st(fine=True)
    a.e("s_barrier")
    a.e(f"v_mov_b32 v{ZV}, 0")
    signal("ps", sFG, [f"s_mov_b32 s{sU}, s{sT}"], ZV, ONEV)()
    for n in range(NU):
        for qs in range(2): a.vmem(f"buffer_load_dwordx2 {vr(XR+4*n+2*qs,2)}, v{XV+qs}, s[{sXo}:{sXo+3}], s{sQO[n]} offen", "xl")
    for n in range(NU):
        for kg in range(4):
            for qs in range(2): a.e(f"ds_read_b128 {vr(32*n+8*kg+4*qs,4)}, v{VA[n]} offset:{20480*kg+1024*qs}")
        a.e(f"s_waitcnt lgkmcnt(0)")
        for qs in range(2): a.e(f"ds_read_b128 {vr(64+8*n+4*qs,4)}, v{VR_[n]} offset:{1024*qs}")
    a.vmem(f"buffer_load_dword v{PV_}, v{ZV}, s[{sFG}:{sFG+3}], s{sT} offen sc1", "pp")
    for n in range(NU):
        b = 32 * n
        for r in range(8): a.e(f"v_add_f32 v{b+r}, v{b+r}, v{b+8+r}")
        for r in range(8): a.e(f"v_add_f32 v{b+16+r}, v{b+16+r}, v{b+24+r}")
        for r in range(8): a.e(f"v_add_f32 v{b+r}, v{b+r}, v{b+16+r}")
        for r in range(8): a.e(f"v_mul_f32 v{b+8+r}, {f32(-LOG2E)}, v{b+r}")
        for r in range(8): a.e(f"v_exp_f32 v{b+8+r}, v{b+8+r}")
        for r in range(8): a.e(f"v_add_f32 v{b+8+r}, 1.0, v{b+8+r}")
        for r in range(8): a.e(f"v_rcp_f32 v{b+8+r}, v{b+8+r}")
        for r in range(8): a.e(f"v_mul_f32 v{b+r}, v{b+r}, v{b+8+r}")
    a.e("s_waitcnt lgkmcnt(0)")
    poll_check("pp", sFG, sT, 4, "pp")()
    st(fine=True)
    PR = 80
    for n in range(NU):
        for m_ in range(3):
            a.e(f"s_add_u32 s{sU}, s{sS}, {m_+1}")
            a.e(f"s_and_b32 s{sU}, s{sU}, 3")
            a.e(f"s_mul_i32 s{sU}, s{sU}, {PBH}")
            a.e(f"s_add_u32 s{sU}, s{sU}, s{sQP[n]}")
            a.e(f"buffer_load_dwordx4 {vr(PR+12*n+4*m_,4)}, v{L16}, s[{sP}:{sP+3}], s{sU} offen sc1")
    for n in range(NU):
        b = 32 * n; X0 = b + 8; T0_ = b + 16; A_ = 64 + 8 * n
        for q in range(4):
            a.e(f"v_lshlrev_b32 v{X0+2*q}, 16, v{XR+4*n+q}")
            a.e(f"v_and_b32 v{X0+2*q+1}, 0xffff0000, v{XR+4*n+q}")
        for m_ in range(3):
            a.e(f"s_waitcnt vmcnt({3*(NU-1-n) + (2-m_) + 2*n})")
            for q in range(4):
                a.e(f"v_lshlrev_b32 v{T0_+2*q}, 16, v{PR+12*n+4*m_+q}")
                a.e(f"v_and_b32 v{T0_+2*q+1}, 0xffff0000, v{PR+12*n+4*m_+q}")
            for r in range(8): a.e(f"v_add_f32 v{A_+r}, v{A_+r}, v{T0_+r}")
        for r in range(8): a.e(f"v_fma_f32 v{X0+r}, v{A_+r}, v{b+r}, v{X0+r}")
        for q in range(4): a.e(f"v_cvt_pk_bf16_f32 v{XR+4*n+q}, v{X0+2*q}, v{X0+2*q+1}")
        for qs in range(2): a.e(f"buffer_store_dwordx2 {vr(XR+4*n+2*qs,2)}, v{XV+qs}, s[{sOut}:{sOut+3}], s{sQO[n]} offen")
    st()
    st.flush(sW, TM2)
    a.label(f"L_{K}_done")
    a.e("s_endpgm")
    for sfn in stubs: sfn()
    slow_stub(0); slow_stub(1)
    return a

def kd(name, vgpr, sgpr):
    return f""".amdhsa_kernel {name}
  .amdhsa_next_free_vgpr {vgpr}
  .amdhsa_next_free_sgpr {sgpr}
  .amdhsa_accum_offset {(vgpr+3)//4*4}
  .amdhsa_group_segment_fixed_size 0
  .amdhsa_kernarg_size 96
  .amdhsa_user_sgpr_count 2
  .amdhsa_user_sgpr_kernarg_segment_ptr 1
  .amdhsa_system_sgpr_workgroup_id_x 1
.end_amdhsa_kernel
"""

def main(out):
    a = kernel1()
    n = NAME + "_kernel"
    hdr = open("cdna_kernels/" + NAME + ".s.ref").read().split("; Override launch geometry")[0]
    s = hdr + "; @launch grid=(256,1,1) block=(512,1,1) lds=163840\n"
    s += '.amdgcn_target "amdgcn-amd-amdhsa--gfx950"\n.text\n'
    errs = check_hazards(a.L)
    for e in errs[:20]: print("HAZARD", e)
    s += f".globl {n}\n.p2align 8\n.type {n},@function\n{n}:\n" + a.text()
    s += '.section .rodata,"a"\n.p2align 6\n' + kd(n, 256, 102)
    open(out, "w").write(s)
    print("wrote", out, "hazards:", len(errs), "instrs:", len(a.L))

if __name__ == "__main__":
    args = sys.argv[1:]
    if "--stamps" in args:
        STAMPS = True; args.remove("--stamps")
    for x in list(args):
        if x.startswith("-O"):
            k_, v_ = x[2:].split("=")
            OPT[k_] = int(v_) if v_.lstrip("-").isdigit() else v_.replace("_", " ")
            args.remove(x)
    main(args[0] if args else "cdna_kernels/" + NAME + ".s")
```

```python
import sys, struct, math
from asmlib import *

NAME = "recurrent_scan__sliding_block_cached__glu_gated_geglu__prompt"
def f32(x): return "0x%08x" % struct.unpack("<I", struct.pack("<f", x))[0]
LOG2E = 1.4426950408889634
SCALE_C = (192 ** -0.5) * LOG2E
GELU_C0 = -2.0 * math.sqrt(2.0 / math.pi) * LOG2E
GELU_C1 = GELU_C0 * 0.044715
MF = "v_mfma_f32_16x16x32_bf16"

A_MB = 240 * 1024
WS_A_BYTES = 128 * A_MB
WS_P = WS_A_BYTES
PB_BYTES = 128 * 40 * 1024
NPB = 4
WS_X = WS_P + NPB * PB_BYTES + 65536
WS_D = WS_P + NPB * PB_BYTES + 65536 + 128 * 20480
WS_G = WS_P + NPB * PB_BYTES + 16384
WS_F = WS_P + NPB * PB_BYTES
STAMPS = False
OPT = {}
WS_ST = 200 * 1024 * 1024

class Stamper:
    def __init__(self, a, base=86, kid=0):
        self.a = a; self.n = 0; self.kid = kid
    def __call__(self, real=False, fine=False):
        if not STAMPS: return
        if fine and not OPT.get("fine"): return
        a = self.a
        if self.n == 0: a.e("v_mov_b32 v255, -1")
        a.e("s_memrealtime s[84:85]" if (real or OPT.get("real")) else "s_memtime s[84:85]")
        a.e("s_waitcnt lgkmcnt(0)"); a.lgkm = []
        a.e(f"v_writelane_b32 v255, s84, {self.n}")
        self.n += 1; assert self.n <= 64
    def flush(self, swave, vtmp):
        if not STAMPS: return
        a = self.a
        a.e("s_waitcnt vmcnt(0)")
        self()
        a.e("s_memrealtime s[84:85]")
        a.e("s_waitcnt lgkmcnt(0)")
        a.e(f"v_writelane_b32 v255, s84, 63")
        a.e(f"s_lshl_b32 s84, s2, 3")
        a.e(f"s_add_u32 s84, s84, s{swave}")
        a.e(f"s_lshl_b32 s84, s84, 8")
        a.e(f"s_add_u32 s84, s84, {WS_ST + self.kid * 1048576}")
        a.e(f"s_add_u32 s28, s26, s84")
        a.e(f"s_addc_u32 s29, s27, 0")
        a.e(f"s_and_b32 s29, s29, 0xffff")
        a.e(f"s_mov_b32 s30, 256")
        a.e(f"s_mov_b32 s31, 0x20000")
        a.e(f"v_mbcnt_lo_u32_b32 v{vtmp}, -1, 0")
        a.e(f"v_mbcnt_hi_u32_b32 v{vtmp}, -1, v{vtmp}")
        a.e(f"v_lshlrev_b32 v{vtmp}, 2, v{vtmp}")
        a.e(f"buffer_store_dword v255, v{vtmp}, s[28:31], 0 offen")
        if OPT.get("dbgout"):
            a.e(f"s_cmp_eq_u32 s2, {OPT.get('dbgwg', 0)}")
            a.e("s_cbranch_scc0 L_dbg_skip")
            a.e(f"s_cmp_eq_u32 s{swave}, 0")
            a.e("s_cbranch_scc0 L_dbg_skip")
            a.e("v_readlane_b32 s84, v255, 0")
            sel = [int(x) for x in str(OPT["dbgout"]).split(",")]
            slots = [3, 4, 5, 6, 7, 11, 12, 13, 14, 15]
            a.e(f"v_mov_b32 v{vtmp+1}, 0")
            for sl, ix in zip(slots, sel):
                a.e(f"v_readlane_b32 s85, v255, {ix}")
                a.e("s_nop 3")
                a.e("s_sub_u32 s85, s85, s84")
                a.e(f"v_mov_b32 v{vtmp}, s85")
                a.e(f"buffer_store_dword v{vtmp}, v{vtmp+1}, s[92:95], 0 offen offset:{4*sl}")
                a.e("s_nop 1")
            a.label("L_dbg_skip")

def timed(a, acc, fn):
    if not OPT.get("acc"): fn(); return
    a.e("s_memtime s[82:83]"); a.e("s_waitcnt lgkmcnt(0)"); a.lgkm = []
    a.e(f"s_sub_u32 s{acc}, s{acc}, s82")
    fn()
    a.e("s_memtime s[82:83]"); a.e("s_waitcnt lgkmcnt(0)")
    a.e(f"s_add_u32 s{acc}, s{acc}, s82")

def load_ptrs(a):
    a.e("s_load_dwordx16 s[4:19], s[0:1], 0")
    a.e("s_load_dwordx8 s[20:27], s[0:1], 64")

def srd(a, d, base_lo, base_hi, off_sreg, nbytes_expr):
    if off_sreg is None:
        a.e(f"s_mov_b32 s{d}, s{base_lo}")
        a.e(f"s_and_b32 s{d+1}, s{base_hi}, 0xffff")
    else:
        a.e(f"s_add_u32 s{d}, s{base_lo}, {off_sreg}")
        a.e(f"s_addc_u32 s{d+1}, s{base_hi}, 0")
        a.e(f"s_and_b32 s{d+1}, s{d+1}, 0xffff")
    a.e(f"s_mov_b32 s{d+2}, {nbytes_expr}")
    a.e(f"s_mov_b32 s{d+3}, 0x20000")

def mfma_t(d, A, B, c=None):
    cc = vr(d, 4) if c is None else (c if isinstance(c, str) else vr(c, 4))
    return f"{MF} {vr(d,4)}, {vr(A,4)}, {vr(B,4)}, {cc}"

class Stream:
    def __init__(self, a, FR, ring=4, depth=3):
        self.a = a; self.m = []; self.pre = {}; self.post = {}
        self.FR = FR; self.R = ring; self.D = depth
        self.frags = []
    def n(self): return len(self.m)
    def add_pre(self, g, fn): self.pre.setdefault(g, []).append(fn)
    def add_post(self, g, fn): self.post.setdefault(g, []).append(fn)
    def mfma(self, text): self.m.append(text); return len(self.m) - 1
    def buf(self, f=None):
        f = len(self.frags) if f is None else f
        return self.FR + 4 * (f % self.R)
    def frag(self, reads, mfmas):
        f = len(self.frags); b = self.buf(f)
        g0 = self.n()
        self.frags.append((g0, [r(b) for r in reads], len(mfmas)))
        for m_ in mfmas: self.mfma(m_(b))
        return g0
    def spread(self, fns, g0, g1):
        n = len(fns)
        for k, fn in enumerate(fns):
            self.add_post(g0 + (k * (g1 - g0)) // max(n, 1), fn)
    def read_gap(self, f):
        return self.frags[f - self.D][0] if f >= self.D else -1
    def emit(self, tail_reads=None):
        a = self.a
        rd_at = {}
        nf = len(self.frags)
        for f, (g0, reads, nm) in enumerate(self.frags):
            if f < self.D:
                for t in reads: a.ds(t, ("f", f))
            else:
                hg, _, hn = self.frags[f - self.D]
                for k, t in enumerate(reads):
                    rd_at.setdefault(hg + min(k, hn - 1), []).append((t, f))
        first = {g0: f for f, (g0, _, _) in enumerate(self.frags)}
        for g, mt in enumerate(self.m):
            for fn in self.pre.get(g, []): fn()
            if g in first: a.wait_lgkm(("f", first[g]))
            a.e(mt)
            posts = self.post.get(g, [])
            nv = 0
            if OPT.get("vfirst", 1):
                while nv < len(posts) and getattr(posts[nv], "valu", False): posts[nv](); nv += 1
            for (t, f) in rd_at.get(g, []): a.ds(t, ("f", f))
            for fn in posts[nv:]: fn()

def E(a, text):
    fn = lambda: a.e(text)
    fn.valu = text.startswith("v_") and not text.startswith("v_add_u32")
    return fn

def kernel1():
    a = Asm(); K = "k1"; st = Stamper(a, kid=0)
    ACC = lambda jb, qs: (jb * 2 + qs) * 4
    XS = 144; FR = 176; SUMA = 192; GRAM = 200; CSA = 208
    O = ACC; QP = lambda qs, s: 96 + 24 * qs + 4 * s
    S = lambda kb, qs: 144 + (kb * 2 + qs) * 4
    P = lambda qs, u: 192 + (qs * 2 + u) * 4
    NEGM = lambda qs: 208 + 4 * qs
    LT = lambda qs: 216 + 4 * qs
    ONES = 224; LS = 228; TP = 230
    DUT = 230
    AWQ = 238; AGU = 242; DA = 244; DB = 243; XOFF = 247; L16 = 248; KA = 249; VB = 252
    VR = AWQ; KR = [AGU, DB]
    sX, sWQ, sGU, sK, sV, sWS = 28, 32, 36, 40, 44, 48
    sW, sH, sB = 52, 53, 54
    sTW, sOA, sOB, sOB2, sMB0, sTX = 55, 56, 57, 58, 59, 60
    sEX48 = 62
    sXO, sXO2, sT, sT2, sT3 = 64, 65, 66, 67, 68
    sW3 = 69; sHO = 70; sG1 = 71; sFL = 72; sTHR = 73; sKO = 74; sVO = 75
    sRET = 76
    GOFF = 24576; WSLOT = 24576 + 8 * 1664 - 128
    KSL = [114688, 0, 24576]; VSL = [139264, 49152, 73728]
    CSL = 3 * WSLOT
    assert CSL + 1152 <= KSL[0]
    wslot = lambda k: ((k + 2) % 3) * WSLOT
    ROT = OPT.get("rot", 1)

    a.e("s_cmp_ge_u32 s2, 256")
    a.e(f"s_cbranch_scc1 L_{K}_done")
    st(True); st()
    if OPT.get("acc"):
        for r in (99, 100, 101): a.e(f"s_mov_b32 s{r}, 0")
    load_ptrs(a)
    LANE = 0; t = 2
    sFG = 88; sDB_ = 92; sU, sU2 = 97, 98
    NXS = OPT.get("nxs", 3)
    XSET = [144, 160, 192]
    stubs = []
    a.e(f"v_lshrrev_b32 v1, 6, v0")
    a.e(f"v_and_b32 v{LANE}, 63, v0")
    a.e(f"v_readfirstlane_b32 s{sW}, v1")
    a.e(f"s_and_b32 s{sT}, s2, 7")
    a.e(f"s_lshr_b32 s{sT2}, s2, 3")
    a.e(f"s_lshl_b32 s{sH}, s{sT}, 2")
    a.e(f"s_and_b32 s{sT}, s{sT2}, 3")
    a.e(f"s_add_u32 s{sH}, s{sH}, s{sT}")
    a.e(f"s_lshr_b32 s{sB}, s{sT2}, 2")
    HYB = OPT.get("hyb", 1); sR0 = 61
    if HYB:
        a.e(f"s_lshl_b32 s{sT}, s{sT}, 1")
        a.e(f"s_add_u32 s{sR0}, s{sT}, s{sB}")
        a.e(f"s_sub_u32 s{sT}, s{sR0}, 9")
        a.e(f"s_cmp_ge_u32 s{sR0}, 9")
        a.e(f"s_cselect_b32 s{sR0}, s{sT}, s{sR0}")
        a.e(f"s_add_u32 s{sR0}, s{sR0}, 1")
        a.e(f"s_mov_b32 s{sTW}, 0")
    else:
        a.e(f"s_mul_i32 s{sT}, s{sT}, 3")
        a.e(f"s_add_u32 s{sTW}, s{sT}, s{sB}")
        a.e(f"s_sub_u32 s{sT}, s{sTW}, 10")
        a.e(f"s_cmp_ge_u32 s{sTW}, 10")
        a.e(f"s_cselect_b32 s{sTW}, s{sT}, s{sTW}")
    a.e(f"s_mov_b32 s{sTX}, s{sTW}")
    a.e(f"s_mul_i32 s{sW3}, s{sW}, 3072")
    a.e(f"v_lshlrev_b32 v{L16}, 4, v{LANE}")
    a.e(f"s_lshl_b32 s{sT}, s{sB}, 5")
    a.e(f"s_add_u32 s{sT}, s{sT}, s{sH}")
    a.e(f"s_lshl_b32 s{sT}, s{sT}, 3")
    a.e(f"s_add_u32 s{sT}, s{sT}, s{sW}")
    a.e(f"s_mul_i32 s{sT2}, s{sT}, 1280")
    a.e(f"v_lshlrev_b32 v20, 5, v{LANE}")
    a.e("s_waitcnt lgkmcnt(0)")
    srd(a, sX, 4, 5, f"s{sT2}", "1280")
    a.vmem(f"buffer_load_dwordx4 v[24:27], v20, s[{sX}:{sX+3}], 0 offen", "xr")
    a.vmem(f"buffer_load_dwordx4 v[28:31], v20, s[{sX}:{sX+3}], 0 offen offset:16", "xr")
    st()
    a.e(f"s_lshl_b32 s{sT}, s{sW}, 3")
    def voffs(i, which):
        a.e(f"v_add_u32 v{t}, {64*i}, v{LANE}")
        a.e(f"v_mul_u32_u24 v{t+1}, 2731, v{t}")
        a.e(f"v_lshrrev_b32 v{t+1}, 16, v{t+1}")
        a.e(f"v_mul_u32_u24 v{t+2}, 24, v{t+1}")
        a.e(f"v_sub_u32 v{t+2}, v{t}, v{t+2}")
        a.e(f"v_add_u32 v{t+1}, s{sT}, v{t+1}")
        if which == "W":
            a.e(f"v_and_b32 v{t+3}, 2, v{t+1}")
            a.e(f"v_bfe_u32 v{t+4}, v{t+1}, 3, 1")
            a.e(f"v_lshl_or_b32 v{t+3}, v{t+4}, 2, v{t+3}")
            a.e(f"v_xor_b32 v{t+3}, v{t+2}, v{t+3}")
            a.e(f"v_mul_u32_u24 v{t+6}, 12288, v{t+1}")
            a.e(f"v_lshl_add_u32 v{DA+i}, v{t+3}, 4, v{t+6}")
        else:
            a.e(f"v_mul_u32_u24 v{t+6}, 384, v{t+1}")
            a.e(f"v_bfe_u32 v{t+3}, v{t+1}, 1, 3")
            a.e(f"v_xor_b32 v{t+3}, v{t+2}, v{t+3}")
            a.e(f"v_lshl_add_u32 v{KA+i}, v{t+3}, 4, v{t+6}")
            a.e(f"v_and_b32 v{t+3}, 6, v{t+1}")
            a.e(f"v_xor_b32 v{t+3}, v{t+2}, v{t+3}")
            a.e(f"v_lshl_add_u32 v{VB+i}, v{t+3}, 4, v{t+6}")
    for i in range(3): voffs(i, "W")
    a.e(f"s_and_b32 s{sT3}, s{sW}, 3")
    a.e(f"s_lshl_b32 s{sT2}, s{sT3}, 4")
    a.e(f"v_mul_u32_u24 v{t+1}, 10923, v{LANE}")
    a.e(f"v_lshrrev_b32 v{t+1}, 16, v{t+1}")
    a.e(f"v_mul_u32_u24 v{t+2}, 6, v{t+1}")
    a.e(f"v_sub_u32 v{t+2}, v{LANE}, v{t+2}")
    a.e(f"v_add_u32 v{t+1}, s{sT2}, v{t+1}")
    a.e(f"v_mul_u32_u24 v{t+6}, 3072, v{t+1}")
    a.e(f"v_lshl_add_u32 v{DB}, v{t+2}, 4, v{t+6}")
    a.e(f"s_mul_i32 s{sMB0}, s{sT3}, {2*1664}")
    a.e(f"s_cmp_ge_u32 s{sW}, 4")
    a.e(f"s_cselect_b32 s{sT2}, {GOFF+768}, {GOFF}")
    a.e(f"s_add_u32 s{sMB0}, s{sMB0}, s{sT2}")
    a.e(f"s_mov_b32 s{sEX48}, -1")
    a.e(f"s_mov_b32 s{sEX48+1}, 0xffff")
    a.e(f"s_mov_b32 s{sG1}, {f32(GELU_C1)}")
    a.e(f"s_mul_i32 s{sT2}, s{sH}, 384")
    srd(a, sWQ, 10, 11, f"s{sT2}", "0")
    a.e(f"s_sub_u32 s{sWQ+2}, {640*12288}, s{sT2}")
    a.e(f"s_cmp_ge_u32 s{sW}, 4")
    a.e(f"s_cselect_b32 s14, s18, s16")
    a.e(f"s_cselect_b32 s15, s19, s17")
    a.e(f"s_mul_i32 s{sT2}, s{sH}, 96")
    srd(a, sGU, 14, 15, f"s{sT2}", "0")
    a.e(f"s_sub_u32 s{sGU+2}, {640*3072}, s{sT2}")
    a.e(f"s_mov_b32 s{sT2}, {WS_F}")
    srd(a, sFG, 26, 27, f"s{sT2}", f"{16384 + 256*128}")
    srd(a, sDB_, 24, 25, None, "256")
    a.e(f"s_lshl_b32 s{sT2}, s{sB}, 4")
    a.e(f"s_lshr_b32 s{sT3}, s{sH}, 1")
    a.e(f"s_add_u32 s{sT2}, s{sT2}, s{sT3}")
    a.e(f"s_mul_i32 s{sT2}, s{sT2}, 20480")
    a.e(f"s_add_u32 s{sT2}, s{sT2}, {WS_X}")
    srd(a, sK, 26, 27, f"s{sT2}", "20480")
    LNB = KSL[0]
    a.e(f"s_mul_i32 s{sT2}, s{sW}, 10")
    a.e(f"v_lshrrev_b32 v{t}, 3, v{LANE}")
    a.e(f"v_add_u32 v{t}, s{sT2}, v{t}")
    a.e(f"v_and_b32 v{t+1}, 7, v{LANE}")
    a.e(f"v_mul_u32_u24 v21, 1296, v{t+1}")
    a.e(f"v_lshl_add_u32 v21, v{t}, 4, v21")
    a.e(f"v_add_u32 v21, {LNB}, v21")
    a.e(f"s_and_b32 s{sT2}, s{sH}, 1")
    a.e(f"s_lshl_b32 s{sT2}, s{sT2}, 3")
    a.e(f"v_add_u32 v{t+1}, s{sT2}, v{t+1}")
    a.e(f"v_lshlrev_b32 v22, 8, v{t}")
    a.e(f"v_lshl_add_u32 v22, v{t+1}, 4, v22")
    a.e(f"s_mul_i32 s{sT2}, s{sW}, 1296")
    a.e(f"s_add_u32 s{sT2}, s{sT2}, {LNB}")
    a.e(f"v_add_u32 v23, s{sT2}, v20")
    def wave_sum(v, sdst):
        for m_ in ("row_shr:1", "row_shr:2", "row_shr:4", "row_shr:8"):
            a.e("s_nop 1")
            a.e(f"v_add_f32_dpp v{v}, v{v}, v{v} {m_} row_mask:0xf bank_mask:0xf bound_ctrl:0")
        a.e("s_nop 1")
        a.e(f"v_add_f32_dpp v{v}, v{v}, v{v} row_bcast:15 row_mask:0xa bank_mask:0xf")
        a.e("s_nop 1")
        a.e(f"v_add_f32_dpp v{v}, v{v}, v{v} row_bcast:31 row_mask:0xc bank_mask:0xf")
        a.e("s_nop 1")
        a.e(f"v_readlane_b32 s{sdst}, v{v}, 63")
        a.e("s_nop 3")
    def rbf(d, src):
        a.e(f"v_cvt_pk_bf16_f32 v{d}, v{src}, v{src}")
        a.e(f"v_and_b32 v{d}, 0xffff0000, v{d}")
    def w_block(k):
        base = wslot(k); tag = ("W", k); fns = []
        def head():
            a.e(f"s_mul_i32 s{sOA}, s{sTW}, 786432")
            a.e(f"s_mul_i32 s{sOB}, s{sTW}, 196608")
        fns.append(head)
        for i in range(3):
            def f(i=i):
                a.e(f"s_add_u32 m0, s{sW3}, {base + 1024*i}")
                if i == 0: a.e(f"s_add_u32 s{sOB2}, s{sOB}, 24576")
                elif i == 1: a.e(f"s_add_u32 s{sTW}, s{sTW}, 1")
                else: a.e(f"s_cmp_eq_u32 s{sTW}, 10")
                a.vmem(f"buffer_load_dwordx4 v{DA+i}, s[{sWQ}:{sWQ+3}], s{sOA} offen lds", tag)
                if i == 2:
                    a.e(f"s_cselect_b32 s{sTW}, {HYB}, s{sTW}")
                    if HYB and k == 0: a.e(f"s_mov_b32 s{sTW}, s{sR0}")
            fns.append(f)
        for i in range(2):
            def f(i=i):
                a.e(f"s_add_u32 m0, s{sMB0}, {base + 1664*i}")
                a.e(f"s_mov_b64 exec, s[{sEX48}:{sEX48+1}]")
                a.vmem(f"buffer_load_dwordx4 v{DB}, s[{sGU}:{sGU+3}], s{sOB2 if i else sOB} offen lds", tag)
                a.e("s_mov_b64 exec, -1")
            fns.append(f)
        return fns
    W1E = OPT.get("w1e", 0)
    if HYB:
        for f in w_block(0): f()
        if W1E:
            for f in w_block(1): f()
    a.wait_vm("xr")
    XF = 32
    for q in range(8):
        a.e(f"v_lshlrev_b32 v{XF+2*q}, 16, v{24+q}")
        a.e(f"v_and_b32 v{XF+2*q+1}, 0xffff0000, v{24+q}")
    a.e(f"v_add_f32 v48, v{XF}, v{XF+1}")
    a.e(f"v_add_f32 v49, v{XF+2}, v{XF+3}")
    for q in range(4, 16, 2):
        a.e(f"v_add_f32 v48, v48, v{XF+q}")
        a.e(f"v_add_f32 v49, v49, v{XF+q+1}")
    a.e(f"v_add_f32 v48, v48, v49")
    wave_sum(48, sU)
    a.e(f"v_mov_b32 v50, {f32(1.0/640)}")
    a.e(f"v_mul_f32 v50, s{sU}, v50")
    a.e(f"v_cmp_gt_u32 vcc, 40, v{LANE}")
    a.e(f"v_mov_b32 v48, 0")
    a.e(f"v_mov_b32 v49, 0")
    for q in range(16):
        a.e(f"v_sub_f32 v{52+q}, v{XF+q}, v50")
    for q in range(0, 16, 2):
        a.e(f"v_fmac_f32 v48, v{52+q}, v{52+q}")
        a.e(f"v_fmac_f32 v49, v{52+q+1}, v{52+q+1}")
    a.e(f"v_add_f32 v48, v48, v49")
    a.e(f"v_cndmask_b32 v48, 0, v48, vcc")
    wave_sum(48, sU)
    a.e(f"v_mov_b32 v51, {f32(1.0/640)}")
    a.e(f"v_mul_f32 v51, s{sU}, v51")
    rbf(50, 50); rbf(51, 51)
    a.e(f"v_add_f32 v51, {f32(1e-5)}, v51")
    rbf(51, 51)
    a.e(f"v_sqrt_f32 v51, v51")
    a.e("s_nop 0")
    rbf(51, 51)
    a.e(f"v_rcp_f32 v51, v51")
    for q in range(16): a.e(f"v_sub_f32 v{52+q}, v{XF+q}, v50")
    for q in range(8): a.e(f"v_cvt_pk_bf16_f32 v{24+q}, v{52+2*q}, v{52+2*q+1}")
    for q in range(8):
        a.e(f"v_lshlrev_b32 v{XF+2*q}, 16, v{24+q}")
        a.e(f"v_and_b32 v{XF+2*q+1}, 0xffff0000, v{24+q}")
    for q in range(16): a.e(f"v_mul_f32 v{XF+q}, v{XF+q}, v51")
    for q in range(8): a.e(f"v_cvt_pk_bf16_f32 v{24+q}, v{XF+2*q}, v{XF+2*q+1}")
    a.e(f"s_mov_b32 exec_hi, 0xff")
    a.e(f"ds_write_b128 v23, v[24:27]")
    a.e(f"ds_write_b128 v23, v[28:31] offset:16")
    a.e("s_mov_b64 exec, -1")
    a.e("s_waitcnt lgkmcnt(0)")
    a.e("s_barrier")
    a.e(f"ds_read_b128 v[32:35], v21")
    a.e(f"ds_read_b128 v[36:39], v21 offset:128")
    a.e(f"s_lshl_b32 s{sT2}, s{sB}, 3")
    a.e(f"s_add_u32 s{sT2}, s{sT2}, s{sH}")
    a.e(f"s_lshl_b32 s{sT2}, s{sT2}, 7")
    a.e(f"s_cmp_lt_u32 s{sH}, 8")
    a.e(f"s_cselect_b32 s{sT2}, s{sT2}, 0x100000")
    for r in range(40, 44): a.e(f"v_mov_b32 v{r}, 0")
    a.e("s_waitcnt lgkmcnt(0)")
    a.vmem(f"buffer_store_dwordx4 v[32:35], v22, s[{sK}:{sK+3}], 0 offen sc1", "xs")
    a.e("s_mov_b64 exec, 0xffff")
    a.vmem(f"buffer_store_dwordx4 v[36:39], v22, s[{sK}:{sK+3}], 0 offen offset:2048 sc1", "xs")
    a.e(f"s_mov_b64 exec, 1")
    a.vmem(f"buffer_store_dword v40, v40, s[{sFG}:{sFG+3}], s{sT2} offen sc1", "xs")
    a.e(f"s_lshl_b32 s99, s2, 7")
    a.e(f"s_add_u32 s99, s99, 16384")
    a.vmem(f"buffer_store_dwordx4 v[40:43], v40, s[{sFG}:{sFG+3}], s99 offen sc1", "xs")
    a.e(f"s_mov_b64 exec, -1")
    st()

    def kv_block(which, j):
        srdr, vo, base, so = (sK, KA, KSL[j % 3], sKO) if which == "K" else (sV, VB, VSL[j % 3], sVO)
        tag = (which, j); fns = []
        def head():
            a.e(f"s_add_u32 s{so}, s{sB}, {j}")
            a.e(f"s_and_b32 s{so}, s{so}, 7")
            a.e(f"s_mul_i32 s{so}, s{so}, 24576")
        fns.append(head)
        for i in range(3):
            def f(i=i):
                a.e(f"s_add_u32 m0, s{sW3}, {base + 1024*i}")
                a.e("s_nop 0")
                a.vmem(f"buffer_load_dwordx4 v{vo+i}, s[{srdr}:{srdr+3}], s{so} offen lds", tag)
            fns.append(f)
        return fns
    def x_loads(k, ks):
        xb = XSET[k % NXS]; fns = []
        if ks == 0:
            def head():
                a.e(f"s_lshl_b32 s{sXO}, s{sTX}, 11")
                a.e(f"s_add_u32 s{sTX}, s{sTX}, 1")
                a.e(f"s_add_u32 s{sXO2}, s{sXO}, 20480")
                a.e(f"s_cmp_eq_u32 s{sTX}, 10")
                a.e(f"s_cselect_b32 s{sTX}, {HYB}, s{sTX}")
                if HYB and k == 0: a.e(f"s_mov_b32 s{sTX}, s{sR0}")
            fns.append(head)
        for qs in range(2):
            fns.append(lambda qs=qs: a.vmem(f"buffer_load_dwordx4 {vr(xb+8*ks+4*qs,4)}, v{L16}, s[{sX}:{sX+3}], s{sXO2 if qs else sXO} offen offset:{1024*ks} sc1", ("x", k, ks)))
        return fns
    sFO = 99
    sAO, sPO = 100, 101
    def sig_issue(stage, z, o, tag):
        def fn():
            a.e(f"v_mov_b32 v{z}, 0")
            a.e(f"v_mov_b32 v{o}, 1")
            a.e("s_mov_b64 exec, 1")
            a.vmem(f"buffer_atomic_add v{o}, v{z}, s[{sDB_}:{sDB_+3}], s{sAO} offen offset:{4*stage} sc0 sc1", tag)
            a.e("s_mov_b64 exec, -1")
        return fn
    def sig_check(name, stage, tv, tag):
        z, o, ad, pv = tv
        def fn():
            a.wait_vm(tag)
            a.e(f"v_readfirstlane_b32 s{sU2}, v{o}")
            a.e("s_nop 3")
            a.e(f"s_and_b32 s{sU2}, s{sU2}, 31")
            a.e(f"s_cmp_eq_u32 s{sU2}, 31")
            a.e(f"s_cbranch_scc1 L_{name}_sig")
            a.label(f"L_{name}_sigr")
        def stub():
            a.label(f"L_{name}_sig")
            a.e(f"v_lshrrev_b32 v{ad}, 4, v{L16}")
            if stage == 1:
                a.e(f"v_mov_b32 v{z}, 0")
                a.e(f"v_mov_b32 v{o}, 1")
                a.e("s_mov_b64 exec, 1")
                a.e(f"buffer_atomic_add v{o}, v{z}, s[{sDB_}:{sDB_+3}], 0 offen offset:12 sc0 sc1")
                a.e("s_waitcnt vmcnt(0)")
                a.e("s_mov_b64 exec, -1")
                a.e(f"v_readfirstlane_b32 s{sU2}, v{o}")
                a.e("s_nop 3")
                a.e(f"s_and_b32 s{sU2}, s{sU2}, 7")
                a.e(f"s_cmp_eq_u32 s{sU2}, 7")
                a.e(f"s_cbranch_scc0 L_{name}_sigr")
                a.e(f"v_lshlrev_b32 v{ad}, 7, v{ad}")
                a.e(f"v_mov_b32 v{o}, 1")
                for q in range(4):
                    a.e(f"s_mov_b32 s{sU}, {16384 + 8192*q}")
                    a.e(f"buffer_store_dword v{o}, v{ad}, s[{sFG}:{sFG+3}], s{sU} offen offset:4 sc1")
                a.e(f"s_branch L_{name}_sigr")
                return
            if stage == 2:
                a.e(f"v_and_b32 v{z}, 3, v{ad}")
                a.e(f"v_lshrrev_b32 v{ad}, 2, v{ad}")
                a.e(f"v_lshl_add_u32 v{ad}, v{ad}, 3, v{z}")
                a.e(f"s_and_b32 s{sU}, s{sB}, 3")
                a.e(f"s_lshl_b32 s{sU}, s{sU}, 6")
                a.e(f"s_and_b32 s{sU2}, s{sB}, 4")
                a.e(f"s_add_u32 s{sU}, s{sU}, s{sU2}")
            else:
                a.e(f"s_lshl_b32 s{sU}, s{sB}, 5")
            a.e(f"s_lshl_b32 s{sU}, s{sU}, 7")
            a.e(f"s_add_u32 s{sU}, s{sU}, 16384")
            a.e(f"v_lshlrev_b32 v{ad}, 7, v{ad}")
            a.e(f"v_mov_b32 v{o}, 1")
            a.e("s_mov_b64 exec, 0xffffffff")
            a.e(f"buffer_store_dword v{o}, v{ad}, s[{sFG}:{sFG+3}], s{sU} offen offset:{4*stage} sc1")
            a.e("s_mov_b64 exec, -1")
            a.e(f"s_branch L_{name}_sigr")
        stubs.append(stub)
        return fn
    def poll_issue2(stage, pv, zv, tag):
        def fn():
            a.e(f"v_mov_b32 v{zv}, 0")
            a.e("s_mov_b64 exec, 1")
            a.vmem(f"buffer_load_dword v{pv}, v{zv}, s[{sFG}:{sFG+3}], s{sPO} offen offset:{4*stage} sc1", tag)
            a.e("s_mov_b64 exec, -1")
        return fn
    def poll_check2(name, stage, pv, zv, tag):
        spin = flag_wait(name, stage, pv, zv)
        def fn():
            a.wait_vm(tag)
            a.e(f"v_readfirstlane_b32 s{sU2}, v{pv}")
            a.e("s_nop 3")
            a.e(f"s_or_b32 s{sU2}, s{sU2}, s{sW}")
            a.e(f"s_cmp_eq_u32 s{sU2}, 0")
            a.e(f"s_cbranch_scc1 L_{name}_spin")
            a.label(f"L_{name}_ok")
        return fn
    def flag_wait(name, stage, pv, zv, after=None):
        def fn():
            a.e(f"s_cmp_eq_u32 s{sW}, 0")
            a.e(f"s_cbranch_scc1 L_{name}_spin")
            a.label(f"L_{name}_ok")
        def stub():
            a.label(f"L_{name}_spin")
            a.e(f"s_mov_b32 s{sU}, 0")
            a.e(f"v_mov_b32 v{zv}, 0")
            a.e("s_mov_b64 exec, 1")
            a.label(f"L_{name}_poll")
            a.e(f"buffer_load_dword v{pv}, v{zv}, s[{sFG}:{sFG+3}], s{sFO} offen offset:{4*stage} sc1")
            a.e(f"s_add_u32 s{sU}, s{sU}, 1")
            a.e("s_waitcnt vmcnt(0)")
            a.e(f"v_cmp_ne_u32 vcc, 1, v{pv}")
            a.e(f"s_cbranch_vccz L_{name}_done")
            a.e(f"s_sleep {OPT.get('slp', 2)}")
            a.e(f"s_cmp_lt_u32 s{sU}, 0x20000")
            a.e(f"s_cbranch_scc1 L_{name}_poll")
            a.label(f"L_{name}_done")
            a.e("s_mov_b64 exec, -1")
            if after: after()
            a.e(f"s_branch L_{name}_ok")
        stubs.append(stub)
        return fn

    if not HYB:
        for f in w_block(0): f()
    a.wait_vm("xs")
    a.e("s_barrier")
    a.e(f"s_lshl_b32 s{sAO}, s{sB}, 5")
    a.e(f"s_cmp_eq_u32 s{sW}, 0")
    a.e(f"s_cselect_b32 s{sAO}, s{sAO}, 0x100000")
    a.e(f"s_cselect_b32 s{sPO}, s{sFO}, 0x100000")
    sig_issue(0, 40, 41, "ax")()
    sig_check("xs", 0, (40, 41, 42, 43), "ax")()
    if HYB and not W1E:
        a.e(f"s_cmp_eq_u32 s{sW}, 0")
        a.e(f"s_cbranch_scc1 L_w1_skip")
        for f in w_block(1): f()
        a.label("L_w1_skip")
    st()
    a.e(f"s_lshl_b32 s{sT2}, s{sB}, 3")
    a.e(f"s_add_u32 s{sT2}, s{sT2}, s{sW}")
    a.e(f"s_mul_i32 s{sU}, s{sT2}, 40960")
    a.e(f"s_add_u32 s{sU}, s{sU}, {WS_X}")
    srd(a, sX, 26, 27, f"s{sU}", "40960")
    a.e(f"s_mul_i32 s{sT2}, s{sT2}, {2*A_MB}")
    srd(a, sWS, 26, 27, f"s{sT2}", f"{2*A_MB}")
    a.e(f"s_mul_i32 s{sT2}, s{sH}, 786432")
    a.e(f"s_add_u32 s{sT2}, s{sT2}, {1536*384}")
    srd(a, sK, 6, 7, f"s{sT2}", "196608")
    srd(a, sV, 8, 9, f"s{sT2}", "196608")
    for i in range(3): voffs(i, "KV")
    a.e(f"v_lshrrev_b32 v{t+1}, 4, v{LANE}")
    a.e(f"v_bfe_u32 v{t+3}, v{LANE}, 2, 2")
    a.e(f"v_and_b32 v{t+4}, 3, v{LANE}")
    a.e(f"v_lshlrev_b32 v{t+4}, 3, v{t+4}")
    a.e(f"v_bfe_u32 v{t+5}, v{LANE}, 3, 2")
    a.e(f"v_lshl_add_u32 v{t+7}, v{t+1}, 3, v{t+3}")
    a.e(f"v_mul_u32_u24 v{t+8}, 384, v{t+7}")
    a.e(f"v_add_u32 v{t+8}, v{t+8}, v{t+4}")
    a.e(f"v_add_u32 v{t+8}, {2*WSLOT}, v{t+8}")
    for i in range(4):
        a.e(f"v_xor_b32 v{t+9}, {i}, v{t+5}")
        a.e(f"v_lshl_add_u32 v{AWQ+i}, v{t+9}, 5, v{t+8}")
    a.e(f"v_mul_u32_u24 v{t+8}, 1664, v{t+1}")
    a.e(f"v_mul_u32_u24 v{t+9}, 96, v{t+3}")
    a.e(f"v_add3_u32 v{t+8}, v{t+8}, v{t+9}, v{t+4}")
    a.e(f"v_add_u32 v{AGU}, {GOFF + 2*WSLOT}, v{t+8}")
    for i in range(4): a.e(f"v_mov_b32 v{ONES+i}, 0x3f803f80")
    a.wait_vm(("W", 0))
    st()
    def w1_late():
        if HYB and not W1E:
            for f in w_block(1): f()
    flag_wait("px", 0, 42, 43, w1_late)()
    a.e("s_barrier")
    st()
    for f in x_loads(0, 0) + x_loads(0, 1): f()

    sa = Stream(a, FR)
    tile_first_frag = []; tile_gap0 = []
    addr_regs = [AWQ, AWQ + 1, AWQ + 2, AWQ + 3, AGU]
    started = set()
    def C0(d):
        if d in started: return None
        started.add(d); return "0"
    T = TP + 3
    order9 = [12, 15, 13, 16, 14, 17] + list(range(12))
    g_blk = {}
    for k in range(10):
        xs_ = XSET[k % NXS]
        wb = 0 if wslot(k) < 2 * WSLOT else 2 * WSLOT
        so = wslot(k) - wb
        tile_first_frag.append(len(sa.frags)); tile_gap0.append(sa.n())
        def main(ks, jb):
            xb = xs_ + 8 * ks
            if jb < 12:
                rd = [lambda b, tt=tt: f"ds_read_b64_tr_b16 {vr(b+2*tt,2)}, v{AWQ+(jb&3)} offset:{so+(32*ks+4*tt)*384+(jb>>2)*128}" for tt in range(2)]
            else:
                jj = (jb - 12) % 3; up = (jb - 12) // 3
                rd = [lambda b, tt=tt: f"ds_read_b64_tr_b16 {vr(b+2*tt,2)}, v{AGU} offset:{so+ks*6656+tt*384+up*768+jj*32}" for tt in range(2)]
            sa.frag(rd, [lambda b, qs=qs: mfma_t(ACC(jb, qs), b, xb + 4 * qs, C0(ACC(jb, qs))) for qs in range(2)])
        if k < 9:
            for ks in range(2):
                sa.add_pre(sa.n(), lambda k=k, ks=ks: a.wait_vm(("x", k, ks)))
                for jb in range(18): main(ks, jb)
        else:
            sa.add_pre(sa.n(), lambda: a.wait_vm(("x", 9, 1)))
            for jb in order9:
                main(0, jb); main(1, jb); g_blk[jb] = sa.n()
    tile_first_frag.append(len(sa.frags)); tile_gap0.append(sa.n())
    NG = sa.n()
    KVL = 1
    issue = {k: {"w": [], "x": []} for k in range(10)}
    for k in range(1, 10):
        if not (HYB and k == 1): issue[max(k - 2, 0)]["w"] += w_block(k)
        issue[max(k - (NXS - 1), 1 if k >= 2 else 0)]["x"] += x_loads(k, 0) + x_loads(k, 1)
    KVM = OPT.get("kvm", 1)
    kb0 = kv_block("K", 0); vb0 = kv_block("V", 0)
    if KVM == 0:
        issue[8]["w"] += kb0 + vb0
    elif KVM == 1:
        pieces = [kb0[:2], kb0[2:3], kb0[3:], vb0[:2], vb0[2:3], vb0[3:]]
        for n in range(6): sa.spread(pieces[n], tile_gap0[n + 2] + 63, tile_gap0[n + 2] + 65)
    elif KVM == 2:
        sa.spread(kb0 + vb0, tile_gap0[7] + 30, tile_gap0[7] + 64)
    elif KVM == 3:
        sa.spread(kb0, tile_gap0[7] + 30, tile_gap0[7] + 64)
        issue[8]["w"] += vb0
    for k in range(9):
        g0 = tile_gap0[k]
        if k == 0 and HYB:
            sa.spread(issue[0]["x"][:5], OPT.get("x1a", 0), OPT.get("x1a", 0) + 10)
            sa.spread(issue[0]["w"] + issue[0]["x"][5:], OPT.get("r1b", 36), 64)
        elif k == 0:
            sa.spread(issue[0]["w"][:6] + issue[0]["x"][:5], 0, 18)
            sa.spread(issue[0]["x"][5:] + issue[0]["w"][6:], OPT.get("r1b", 36), 64)
        elif k == 7 and KVM >= 2:
            sa.spread(issue[k]["w"], g0, g0 + 28)
            sa.spread(issue[k]["x"], g0 + 1, g0 + 28)
        else:
            sa.spread(issue[k]["w"], g0 + (OPT.get("kvo", 0) if k == 8 else 0), g0 + 62)
            sa.spread(issue[k]["x"], g0 + 3, g0 + 60)
    sa.spread(kv_block("K", 1) + kv_block("V", 1) + kv_block("K", 2), tile_gap0[9] + 1, tile_gap0[9] + 26)
    for k in range(9):
        gb = sa.read_gap(tile_first_frag[k + 1])
        def bar(k=k):
            a.wait_vm(("W", k + 1))
            a.e("s_waitcnt lgkmcnt(0)"); a.lgkm = []
            a.e("s_barrier")
            st(fine=True)
            w0 = 0 if wslot(k) < 2 * WSLOT else 2 * WSLOT
            w1 = 0 if wslot(k + 1) < 2 * WSLOT else 2 * WSLOT
            if w0 != w1:
                for r in addr_regs: a.e(f"v_add_u32 v{r}, {(w1-w0) & 0xffffffff}, v{r}")
        sa.add_pre(gb, bar)
    G0 = T + 2; HT = 208
    sC = sFL
    epi = [(E(a, f"v_mov_b32 v{G0}, {f32(GELU_C0)}"), tile_gap0[9]), (E(a, f"s_mul_i32 s{sHO}, s{sH}, 3"), tile_gap0[9]),
           (E(a, f"s_mov_b32 s{sC}, {f32(SCALE_C)}"), tile_gap0[9])]
    for n, jb in enumerate(order9):
        ge = g_blk[jb] + 3
        L_ = []
        if jb >= 15:
            jj = jb - 15
            g0 = ACC(12 + jj, 0); u0 = ACC(jb, 0)
            for r in range(8): L_.append(f"v_mul_f32 v{HT+r}, v{g0+r}, v{g0+r}")
            for r in range(8): L_.append(f"v_fma_f32 v{HT+r}, v{HT+r}, s{sG1}, v{G0}")
            for r in range(8): L_.append(f"v_mul_f32 v{HT+r}, v{HT+r}, v{g0+r}")
            for r in range(8): L_.append(f"v_exp_f32 v{HT+r}, v{HT+r}")
            for r in range(8): L_.append(f"v_mul_f32 v{g0+r}, v{g0+r}, v{u0+r}")
            for r in range(8): L_.append(f"v_add_f32 v{HT+r}, 1.0, v{HT+r}")
            for r in range(8): L_.append(f"v_rcp_f32 v{HT+r}, v{HT+r}")
            L_.append(f"s_add_u32 s{sT}, s{sHO}, {jj}")
            for r in range(8): L_.append(f"v_mul_f32 v{g0+r}, v{g0+r}, v{HT+r}")
            hp = 216 + 4 * jj if jj < 2 else u0
            for q in range(4): L_.append(f"v_cvt_pk_bf16_f32 v{hp+q}, v{g0+2*q}, v{g0+2*q+1}")
            for x_ in L_: epi.append((E(a, x_), ge))
            def hstore(hp=hp):
                a.e(f"s_and_b32 s{sT2}, s{sT}, 1")
                a.e(f"s_lshr_b32 s{sT}, s{sT}, 1")
                a.e(f"s_lshl_b32 s{sT}, s{sT}, 10")
                a.e(f"s_lshl_b32 s{sT2}, s{sT2}, 3")
                a.e(f"s_add_u32 s{sT}, s{sT}, s{sT2}")
                a.e(f"s_add_u32 s{sT}, s{sT}, {192*1024}")
                a.e(f"s_add_u32 s{sT2}, s{sT}, {A_MB}")
                a.vmem(f"buffer_store_dwordx2 {vr(hp,2)}, v{L16}, s[{sWS}:{sWS+3}], s{sT} offen{OPT.get('hsf',' sc1')}", "hst")
                a.vmem(f"buffer_store_dwordx2 {vr(hp+2,2)}, v{L16}, s[{sWS}:{sWS+3}], s{sT2} offen{OPT.get('hsf',' sc1')}", "hst")
            epi.append((hstore, ge))
        elif jb < 12:
            s_, e_ = divmod(jb, 2)
            for qs in range(2):
                ac = ACC(jb, qs)
                for r in range(4): L_.append(f"v_mul_f32 v{ac+r}, s{sC}, v{ac+r}")
            for qs in range(2):
                ac = ACC(jb, qs)
                for q in range(2): L_.append(f"v_cvt_pk_bf16_f32 v{QP(qs,s_)+2*e_+q}, v{ac+2*q}, v{ac+2*q+1}")
            if e_ == 1:
                L_.append("s_nop 1")
                for qs in range(2):
                    for q in range(2): L_.append(f"v_permlane32_swap_b32 v{QP(qs,s_)+q}, v{QP(qs,s_)+2+q}")
                L_.append("s_nop 0")
                for qs in range(2):
                    for q in range(2): L_.append(f"v_permlane16_swap_b32 v{QP(qs,s_)+q}, v{QP(qs,s_)+2+q}")
            for x_ in L_: epi.append((E(a, x_), ge))
    per = OPT.get("epi_per", 2)
    g = tile_gap0[9]; cnt = 0; n_in = 0
    for (fn, ge) in epi:
        if ge > g: g = ge; cnt = 0
        if g >= NG - 1: break
        sa.add_post(g, fn); n_in += 1; cnt += 1
        if cnt >= per: g += 1; cnt = 0
    sa.emit()
    st()
    a.e("s_nop 7")
    for (fn, ge) in epi[n_in:]: fn()
    T = TP
    kwin = lambda j: KSL[0] if j % 3 == 0 else 0
    vwin = lambda j: VSL[0] if j % 3 == 0 else VSL[1]
    a.e(f"v_lshrrev_b32 v{T}, 4, v{L16}")
    a.e(f"v_lshrrev_b32 v{T+1}, 4, v{T}")
    a.e(f"v_bfe_u32 v{T+3}, v{T}, 2, 2")
    a.e(f"v_and_b32 v{T+4}, 3, v{T}")
    a.e(f"v_lshlrev_b32 v{T+4}, 3, v{T+4}")
    a.e(f"v_bfe_u32 v{T+5}, v{T}, 3, 2")
    a.e(f"v_lshl_add_u32 v{T+3}, v{T+1}, 2, v{T+3}")
    a.e(f"v_mul_u32_u24 v{T+3}, 384, v{T+3}")
    a.e(f"v_add_u32 v{T+3}, v{T+3}, v{T+4}")
    a.e(f"v_add_u32 v{T+3}, {vwin(0)}, v{T+3}")
    for i in range(4):
        a.e(f"v_xor_b32 v{T+4}, {i}, v{T+5}")
        a.e(f"v_lshl_add_u32 v{VR+i}, v{T+4}, 5, v{T+3}")
    a.e(f"v_and_b32 v{T+3}, 15, v{T}")
    a.e(f"v_bfe_u32 v{T+5}, v{T}, 1, 3")
    a.e(f"v_mul_u32_u24 v{T+3}, 384, v{T+3}")
    a.e(f"v_add_u32 v{T+3}, {kwin(0)}, v{T+3}")
    for i in range(2):
        a.e(f"v_add_u32 v{T+4}, {4*i}, v{T+1}")
        a.e(f"v_xor_b32 v{T+4}, v{T+4}, v{T+5}")
        a.e(f"v_lshl_add_u32 v{KR[i]}, v{T+4}, 4, v{T+3}")
    a.e(f"v_mov_b32 v{LS}, 0")
    a.e(f"v_mov_b32 v{LS+1}, 0")
    a.e(f"s_mov_b32 s{sTHR}, {f32(2.0**60)}")
    if KVL:
        a.wait_vm(("K", 0))
        a.e("s_barrier")
    st()

    def exp_ops(kb):
        u, e_ = divmod(kb, 2)
        o = []
        for r in range(4): o.append(f"v_exp_f32 v{TP+r}, v{S(kb,0)+r}")
        o.append(f"v_exp_f32 v{TP+4}, v{S(kb,1)}")
        o.append(f"v_cvt_pk_bf16_f32 v{P(0,u)+2*e_}, v{TP}, v{TP+1}")
        o.append(f"v_exp_f32 v{TP+5}, v{S(kb,1)+1}")
        o.append(f"v_cvt_pk_bf16_f32 v{P(0,u)+2*e_+1}, v{TP+2}, v{TP+3}")
        o.append(f"v_exp_f32 v{TP+6}, v{S(kb,1)+2}")
        o.append(f"v_exp_f32 v{TP+7}, v{S(kb,1)+3}")
        o.append(f"v_cvt_pk_bf16_f32 v{P(1,u)+2*e_}, v{TP+4}, v{TP+5}")
        o.append(f"v_cvt_pk_bf16_f32 v{P(1,u)+2*e_+1}, v{TP+6}, v{TP+7}")
        return o
    def rowmax_ops(u, D, X):
        o = []
        for qs in range(2):
            s0 = S(2 * u, qs); s1 = S(2 * u + 1, qs)
            o.append(f"v_max3_f32 v{D[qs]}, v{s0}, v{s0+1}, v{s0+2}")
            o.append(f"v_max3_f32 v{D[qs]}, v{D[qs]}, v{s0+3}, v{s1}")
            o.append(f"v_max3_f32 v{D[qs]}, v{D[qs]}, v{s1+1}, v{s1+2}")
            o.append(f"v_max_f32 v{D[qs]}, v{D[qs]}, v{s1+3}")
        for sw in ("v_permlane32_swap_b32", "v_permlane16_swap_b32"):
            for qs in range(2): o.append(f"v_mov_b32 v{X+qs}, v{D[qs]}")
            o.append("s_nop 1")
            for qs in range(2): o.append(f"{sw} v{D[qs]}, v{X+qs}")
            for qs in range(2): o.append(f"v_max_f32 v{D[qs]}, v{D[qs]}, v{X+qs}")
        return o
    def slow_stub(u):
        a.label(f"L_{K}_slow{u}")
        a.e("s_nop 15")
        D = [TP, TP + 1]; AL = [TP + 2, TP + 3]; X = TP + 4
        for tx in rowmax_ops(u, D, X): a.e(tx)
        for qs in range(2):
            a.e(f"v_max_f32 v{D[qs]}, 0, v{D[qs]}")
            a.e(f"v_exp_f32 v{AL[qs]}, -v{D[qs]}")
        for qs in range(2):
            for r in range(4): a.e(f"v_sub_f32 v{NEGM(qs)+r}, v{NEGM(qs)+r}, v{D[qs]}")
            for kb in range(4):
                for r in range(4): a.e(f"v_sub_f32 v{S(kb,qs)+r}, v{S(kb,qs)+r}, v{D[qs]}")
            a.e(f"v_mul_f32 v{LS+qs}, v{LS+qs}, v{AL[qs]}")
            for jb in range(12):
                for r in range(4): a.e(f"v_mul_f32 v{O(jb,qs)+r}, v{O(jb,qs)+r}, v{AL[qs]}")
        for kb in (2 * u, 2 * u + 1):
            for tx in exp_ops(kb): a.e(tx)
        a.e("s_nop 1")
        for qs in range(2): a.e(mfma_t(LT(qs), ONES, P(qs, u), "0"))
        a.e("s_nop 7")
        a.e(f"s_setpc_b64 s[{sRET}:{sRET+1}]")
    def check(j, u):
        def fn():
            a.e(f"v_max_f32 v{LT(0)+1}, v{LT(0)}, v{LT(1)}")
            a.e(f"v_cmp_nge_f32 vcc, s{sTHR}, v{LT(0)+1}")
            a.e(f"s_cbranch_vccnz L_{K}_tr{j}_{u}")
            a.label(f"L_{K}_back{j}_{u}")
        def stub():
            a.label(f"L_{K}_tr{j}_{u}")
            a.e(f"s_call_b64 s[{sRET}:{sRET+1}], L_{K}_slow{u}")
            a.e(f"s_branch L_{K}_back{j}_{u}")
        stubs.append(stub)
        return fn

    sb = Stream(a, FR)
    seg = {}
    def QK(j, u, sum_of=None):
        ko = KSL[j % 3] - kwin(j); g0 = sb.n(); f0 = len(sb.frags)
        for kb in (2 * u, 2 * u + 1):
            for s_ in range(6):
                c0 = ("0" if j == 0 else "negm") if s_ == 0 else None
                sb.frag([lambda b: f"ds_read_b128 {vr(b,4)}, v{KR[s_&1]} offset:{ko+kb*6144+(s_>>1)*128}"],
                        [lambda b, qs=qs: mfma_t(S(kb, qs), b, QP(qs, s_), NEGM(qs) if c0 == "negm" else c0) for qs in range(2)])
                if sum_of is not None and kb == 2 * u + 1 and s_ == 2:
                    seg[("sum", sum_of)] = sb.n()
                    for qs in range(2): sb.mfma(mfma_t(LT(qs), ONES, P(qs, sum_of[1]), "0"))
        seg[("QK", j, u)] = (g0, sb.n(), f0)
    def PV(j, u, sum_of=None):
        vo = VSL[j % 3] - vwin(j); g0 = sb.n(); f0 = len(sb.frags)
        if not (j == 0 and u == 0) and not OPT.get("nocheck"): sb.add_pre(g0, check(j, u))
        sb.add_post(g0, E(a, f"v_add_f32 v{LS}, v{LS}, v{LT(0)}"))
        sb.add_post(g0 + 1, E(a, f"v_add_f32 v{LS+1}, v{LS+1}, v{LT(1)}"))
        for jb in range(12):
            sb.frag([lambda b, tt=tt: f"ds_read_b64_tr_b16 {vr(b+2*tt,2)}, v{VR+(jb&3)} offset:{vo+(32*u+16*tt)*384+(jb>>2)*128}" for tt in range(2)],
                    [lambda b, qs=qs: mfma_t(O(jb, qs), b, P(qs, u), "0" if (j == 0 and u == 0) else None) for qs in range(2)])
            if sum_of is not None and jb == 8:
                seg[("sum", sum_of)] = sb.n()
                for qs in range(2): sb.mfma(mfma_t(LT(qs), ONES, P(qs, sum_of[1]), "0"))
        seg[("PV", j, u)] = (g0, sb.n(), f0)
    QK(0, 0)
    for j in range(8):
        QK(j, 1, sum_of=(j, 0))
        if j < 7:
            PV(j, 0); QK(j + 1, 0, sum_of=(j, 1)); PV(j, 1)
        else:
            PV(j, 0, sum_of=(j, 1)); PV(j, 1)
    NG = sb.n()
    for j in range(8):
        for u in range(2):
            g0 = seg[("QK", j, u)][1] + 3; g1 = seg[("sum", (j, u))] - 2
            ops = exp_ops(2 * u) + exp_ops(2 * u + 1)
            if j == 0 and u == 0:
                D = [LT(0), LT(1)]
                pre = rowmax_ops(0, D, TP)
                for qs in range(2):
                    for kb in range(2):
                        for r in range(4): pre.append(f"v_sub_f32 v{S(kb,qs)+r}, v{S(kb,qs)+r}, v{D[qs]}")
                for qs in range(2):
                    for r in range(4): pre.append(f"v_sub_f32 v{NEGM(qs)+r}, 0, v{D[qs]}")
                ops = pre + ops
            if j == 0 and u == 1:
                pre = []
                for qs in range(2):
                    for kb in range(2, 4):
                        for r in range(4): pre.append(f"v_add_f32 v{S(kb,qs)+r}, v{S(kb,qs)+r}, v{NEGM(qs)}")
                ops = pre + ops
            if not OPT.get("noexp"): sb.spread([E(a, x) for x in ops], g0, g1)
    for j in range(8):
        gb = sb.read_gap(seg[("PV", j, 0)][2])
        def vbar(j=j):
            a.wait_vm(("V", j))
            if not OPT.get("nobar"): a.e("s_barrier")
        sb.add_pre(gb, vbar)
        if j > 0 and vwin(j) != vwin(j - 1):
            sb.spread([E(a, f"v_add_u32 v{VR+r}, {(vwin(j)-vwin(j-1)) & 0xffffffff}, v{VR+r}") for r in range(4)], gb - 9, gb - 1)
        if j + 2 < 8 and not OPT.get("nodma"): sb.spread(kv_block("V", j + 2), gb + 2, gb + 20)
        if j < 7:
            gb = sb.read_gap(seg[("QK", j + 1, 0)][2])
            def kbar(j=j):
                a.wait_vm(("K", j + 1))
                if not OPT.get("nobar"): a.e("s_barrier")
                st(fine=True)
            sb.add_pre(gb, kbar)
            if kwin(j) != kwin(j + 1):
                sb.spread([E(a, f"v_add_u32 v{r}, {(kwin(j+1)-kwin(j)) & 0xffffffff}, v{r}") for r in KR], gb - 6, gb - 1)
            if j + 3 < 8 and not OPT.get("nodma"): sb.spread(kv_block("K", j + 3), gb + 2, gb + 20)
    ACC2 = lambda nb, qs: (nb * 2 + qs) * 4
    ACCF = lambda nb, qs: 176 + (nb * 2 + qs) * 4
    NSET = 4
    OF = 80; FR2 = OF + 16 * NSET
    AW = 160; AF = 162; TM2 = 164
    DF = [243, 244, 245, 247, 254]
    DW = [216, 217, 218, 219, 220]
    ZV, ONEV, PV_ = 221, 222, 223
    sO, sWr, sP = 28, 32, 36
    sS, sMT, sNT, sG, sMBk, sOW, sM0, sOO, sKG, sTW2, sTO = 55, 56, 57, 58, 59, 60, 61, 62, 63, 64, 65
    sOO2, sOB_, sWB, sPER, sR12 = 78, 79, 80, 81, 96
    sCH, sCO = 86, 87
    sXo, sOut = 40, 44
    SLOT = 40960
    NF, NA = 6, 12; NT2 = NF + NA
    slot2 = lambda k: ((k + 2) % 4) * SLOT
    win = lambda k: 0 if slot2(k) < 2 * SLOT else 2 * SLOT
    su = []
    def S_(tx): su.append(E(a, tx))
    def grp(*txs):
        def f():
            for tx in txs: a.e(tx)
        su.append(f)
    grp(f"s_and_b32 s{sS}, s2, 3", f"s_bfe_u32 s{sU}, s2, 0x10002", f"s_lshr_b32 s{sU2}, s2, 3")
    grp(f"s_and_b32 s{sNT}, s{sU2}, 3", f"s_lshr_b32 s{sMT}, s{sU2}, 2")
    grp(f"s_mul_i32 s{sTW2}, s{sMT}, {NF}", f"s_lshr_b32 s{sTW2}, s{sTW2}, 3", f"s_mov_b32 s{sTO}, s{sTW2}")
    grp(f"s_mul_i32 s{sR12}, s{sMT}, {NA}", f"s_lshr_b32 s{sR12}, s{sR12}, 3")
    grp(f"s_lshl_b32 s{sU}, s{sU}, 3", f"s_add_u32 s{sMT}, s{sMT}, s{sU}", f"s_lshr_b32 s{sG}, s{sW}, 2")
    grp(f"s_and_b32 s{sU}, s{sW}, 3", f"s_lshl_b32 s{sMBk}, s{sMT}, 2", f"s_add_u32 s{sMBk}, s{sMBk}, s{sU}")
    grp(f"s_mul_i32 s{sM0}, s{sW}, 5120", f"s_lshr_b32 s{sKG}, s{sW}, 1")
    grp(f"s_lshr_b32 s{sCO}, s{sMT}, 1", f"s_lshl_b32 s{sCO}, s{sCO}, 5", f"s_add_u32 s{sCH}, s{sCO}, 16")
    su_early = list(su); su.clear()
    su_v = list(su); su.clear()
    grp(f"s_mul_i32 s{sWB}, s{sKG}, {NF*10240}", f"s_and_b32 s{sU}, s{sW}, 1", f"s_mul_i32 s{sU}, s{sU}, 5120", f"s_add_u32 s{sWB}, s{sWB}, s{sU}", f"s_mul_i32 s{sOB_}, s{sKG}, {NF*2048}", f"s_add_u32 s{sOB_}, s{sOB_}, {192*1024}")
    def f_():
        a.e(f"s_lshl_b32 s{sU2}, s{sNT}, 1")
        a.e(f"s_and_b32 s{sU}, s{sS}, 1")
        a.e(f"s_add_u32 s{sU2}, s{sU2}, s{sU}")
        a.e(f"s_mul_i32 s{sU2}, s{sU2}, {1536*160}")
        a.e(f"s_add_u32 s{sU2}, s{sU2}, {WS_D}")
        srd(a, sWr, 26, 27, f"s{sU2}", f"{1536*160}")
    su.append(f_)
    def f_():
        a.e(f"s_lshl_b32 s{sU2}, s{sMT}, 2")
        a.e(f"s_and_b32 s{sU}, s{sS}, 2")
        a.e(f"s_add_u32 s{sU2}, s{sU2}, s{sU}")
        a.e(f"s_and_b32 s{sU}, s{sW}, 1")
        a.e(f"s_add_u32 s{sU2}, s{sU2}, s{sU}")
        a.e(f"s_mul_i32 s{sU2}, s{sU2}, {2*A_MB}")
        srd(a, sO, 26, 27, f"s{sU2}", f"{2*A_MB}")
    su.append(f_)
    su_s = list(su); su.clear(); su.extend(su_v)
    def w2_block(k):
        base = slot2(k); tag = ("W2", k); fns = []
        per = NF if k < NF else NA; vo = DF if k < NF else DW
        def head():
            if k == NF:
                a.e(f"s_mul_i32 s{sU2}, s{sNT}, 320")
                srd(a, sWr, 12, 13, f"s{sU2}", "0")
                a.e(f"s_sub_u32 s{sWr+2}, {6144*1280}, s{sU2}")
                a.e(f"s_lshl_b32 s{sU}, s{sS}, 1")
                a.e(f"s_add_u32 s{sU}, s{sU}, s{sG}")
                a.e(f"s_mul_i32 s{sWB}, s{sU}, {NA*64*1280}")
                a.e(f"s_mov_b32 s{sTW2}, s{sR12}")
            a.e(f"s_mul_i32 s{sOW}, s{sTW2}, {10240 if k < NF else 64*1280}")
            a.e(f"s_add_u32 s{sOW}, s{sOW}, s{sWB}")
        fns.append(head)
        for i in range(5):
            def f(i=i):
                a.e(f"s_add_u32 m0, s{sM0}, {base + 1024*i}")
                if i == 0: a.e(f"s_add_u32 s{sTW2}, s{sTW2}, 1")
                elif i == 1: a.e(f"s_cmp_eq_u32 s{sTW2}, {per}")
                else: a.e("s_nop 0")
                if k < NF: a.vmem(f"buffer_load_dwordx4 v{L16}, s[{sWr}:{sWr+3}], s{sOW} offen sc1 lds", tag)
                else: a.vmem(f"buffer_load_dwordx4 v{vo[i]}, s[{sWr}:{sWr+3}], s{sOW} offen lds", tag)
                if i == 1: a.e(f"s_cselect_b32 s{sTW2}, 0, s{sTW2}")
                if k < NF: a.e(f"s_add_u32 s{sOW}, s{sOW}, 1024")
            fns.append(f)
        return fns
    def poll_issue(soff, tag):
        return lambda: a.vmem(f"buffer_load_dword v{PV_}, v{ZV}, s[{sDB_}:{sDB_+3}], s{soff} offen sc1", tag)
    def poll_check(name, srdr, soff, target, tag):
        def fn():
            a.wait_vm(tag)
            a.e(f"v_readfirstlane_b32 s{sU2}, v{PV_}")
            a.e("s_nop 3")
            a.e(f"s_cmp_ge_u32 s{sU2}, {target}")
            a.e(f"s_cbranch_scc0 L_{name}_spin")
            a.label(f"L_{name}_ok")
        def stub():
            a.label(f"L_{name}_spin")
            a.e(f"s_mov_b32 s{sU}, 0")
            a.label(f"L_{name}_poll")
            a.e(f"s_sleep {OPT.get('slp', 8)}")
            a.e(f"buffer_load_dword v{PV_}, v{ZV}, s[{srdr}:{srdr+3}], s{soff} offen sc1")
            a.e("s_waitcnt vmcnt(0)")
            a.e(f"v_readfirstlane_b32 s{sU2}, v{PV_}")
            a.e(f"s_add_u32 s{sU}, s{sU}, 1")
            a.e("s_nop 1")
            a.e(f"s_cmp_ge_u32 s{sU2}, {target}")
            a.e(f"s_cbranch_scc1 L_{name}_ok")
            a.e(f"s_cmp_lt_u32 s{sU}, 0x20000")
            a.e(f"s_cbranch_scc1 L_{name}_poll")
            a.e(f"s_branch L_{name}_ok")
        stubs.append(stub)
        return fn
    def signal(name, srdr, soff_expr, zv, onev):
        def fn():
            a.e(f"s_cmp_eq_u32 s{sW}, 0")
            a.e(f"s_cbranch_scc1 L_{name}_sig")
            a.label(f"L_{name}_sigr")
        def stub():
            a.label(f"L_{name}_sig")
            for tx in soff_expr: a.e(tx)
            a.e(f"v_mov_b32 v{zv}, 0")
            a.e(f"v_mov_b32 v{onev}, 1")
            a.e("s_mov_b64 exec, 1")
            a.e(f"buffer_atomic_add v{onev}, v{zv}, s[{srdr}:{srdr+3}], s{sU} offen sc1")
            a.e("s_mov_b64 exec, -1")
            a.e(f"s_branch L_{name}_sigr")
        stubs.append(stub)
        return fn
    def o_loads(k, ks):
        par = (k + 1) % NSET; fns = []
        per = NF if k < NF else NA
        if ks == 0:
            def head():
                if k == NF:
                    a.e(f"s_mul_i32 s{sU2}, s{sMBk}, {2*A_MB}")
                    srd(a, sO, 26, 27, f"s{sU2}", f"{2*A_MB}")
                    a.e(f"s_lshl_b32 s{sU}, s{sS}, 1")
                    a.e(f"s_add_u32 s{sU}, s{sU}, s{sG}")
                    a.e(f"s_mul_i32 s{sOB_}, s{sU}, {NA*2048}")
                    a.e(f"s_mov_b32 s{sTO}, s{sR12}")
                a.e(f"s_lshl_b32 s{sOO}, s{sTO}, 11")
                a.e(f"s_add_u32 s{sOO}, s{sOO}, s{sOB_}")
                a.e(f"s_add_u32 s{sTO}, s{sTO}, 1")
                a.e(f"s_cmp_eq_u32 s{sTO}, {per}")
                a.e(f"s_cselect_b32 s{sTO}, 0, s{sTO}")
                a.e(f"s_add_u32 s{sOO2}, s{sOO}, {A_MB}")
            fns.append(head)
        for qs in range(2):
            fns.append(lambda qs=qs: a.vmem(f"buffer_load_dwordx4 {vr(OF+16*par+8*ks+4*qs,4)}, v{L16}, s[{sO}:{sO+3}], s{sOO2 if qs else sOO} offen offset:{1024*ks} sc1", ("o", k, ks)))
        return fns
    gk = lambda j: sb.read_gap(seg[("QK", j + 1, 0)][2])
    gv = lambda j: sb.read_gap(seg[("PV", j, 0)][2])
    sRD = 36; RQ = 244
    def rd_load():
        a.e(f"v_lshrrev_b32 v{RQ}, 4, v{L16}")
        a.e(f"v_mul_u32_u24 v{RQ+1}, 6554, v{RQ}")
        a.e(f"v_lshrrev_b32 v{RQ+1}, 16, v{RQ+1}")
        a.e(f"v_mul_u32_u24 v{RQ+2}, {1280-160}, v{RQ+1}")
        a.e(f"v_add_u32 v{RQ}, v{RQ+2}, v{L16}")
        a.e(f"s_lshl_b32 s{sU}, s2, 3")
        a.e(f"s_add_u32 s{sU}, s{sU}, s{sW}")
        a.e(f"s_and_b32 s{sU2}, s{sU}, 255")
        a.e(f"s_mul_i32 s{sU2}, s{sU2}, {6*1280}")
        a.e(f"s_lshr_b32 s{sPER}, s{sU}, 8")
        a.e(f"s_mul_i32 s{sPER}, s{sPER}, 160")
        a.e(f"s_add_u32 s{sU2}, s{sU2}, s{sPER}")
        srd(a, sRD, 20, 21, None, f"{1536*1280}")
        a.e("s_mov_b32 exec_hi, 0xfffffff")
        a.vmem(f"buffer_load_dwordx4 {vr(RQ,4)}, v{RQ}, s[{sRD}:{sRD+3}], s{sU2} offen", "rd")
        a.e("s_mov_b64 exec, -1")
        a.e(f"s_mul_i32 s{sPER}, s{sU}, 960")
        a.e(f"s_add_u32 s{sPER}, s{sPER}, {WS_D}")
    def rd_store():
        srd(a, sRD, 26, 27, f"s{sPER}", "960")
        a.wait_vm("rd")
        a.vmem(f"buffer_store_dwordx4 {vr(RQ,4)}, v{L16}, s[{sRD}:{sRD+3}], 0 offen sc1", "hst")
    sb.add_post(gk(0) + 26, rd_load)
    sb.add_post(gk(1) - 12, rd_store)
    HS = 2
    sb.pre[gk(HS)].insert(0, lambda: a.wait_vm("hst"))
    sb.add_pre(gk(HS), sig_issue(1, 244, 246, "ah"))
    sb.spread(su_early, gk(1) + 22, gk(1) + 39)
    if OPT.get("pfw2", 1):
        PW, PD = 245, 247
        sPF = 36
        def pfs():
            a.e(f"v_lshlrev_b32 v{PW}, 3, v{L16}")
            a.e(f"v_mov_b32 v{PD}, 0x1000000")
            a.e(f"v_cmp_gt_u32 vcc, {15*128}, v{PW}")
            a.e(f"s_lshr_b32 s{sU}, s2, 3")
            a.e(f"s_lshl_b32 s{sU}, s{sU}, 3")
            a.e(f"v_cndmask_b32 v{PW}, v{PD}, v{PW}, vcc")
            a.e(f"s_add_u32 s{sU}, s{sU}, s{sW}")
            a.e(f"s_mul_i32 s{sU}, s{sU}, 7680")
            a.e(f"s_mul_i32 s{sU2}, s{sS}, {1536*1280}")
            a.e(f"s_add_u32 s{sU}, s{sU}, s{sU2}")
            srd(a, sPF, 12, 13, f"s{sU}", "7680")
        sb.add_post(gk(1) + 42, pfs)
        for n in range(4):
            sb.add_post(gk(1 + n) + 60, lambda n=n: a.vmem(f"buffer_load_dword v{PD}, v{PW}, s[{sPF}:{sPF+3}], 0 offen offset:{1920*n if n < 2 else 0}" if n < 2 else
                                                             f"buffer_load_dword v{PD}, v{PW}, s[{sPF}:{sPF+3}], s{sPER} offen offset:{1920*(n-2)}", "pf"))
        sb.add_post(gk(1) + 44, E(a, f"s_mov_b32 s{sPER}, 3840"))
        def pfd():
            a.e(f"s_lshl_b32 s{sU}, s2, 3")
            a.e(f"s_add_u32 s{sU}, s{sU}, s{sW}")
            a.e(f"s_mul_i32 s{sU}, s{sU}, 960")
            srd(a, sPF, 20, 21, f"s{sU}", "960")
            a.vmem(f"buffer_load_dword v{PD}, v{PW}, s[{sPF}:{sPF+3}], 0 offen", "pf")

        sb.add_pre(gv(5) + 24, lambda: a.wait_vm("pf"))
    sb.spread(su_s, gk(2) + 24, gk(2) + 40)
    def ctr_issue():
        a.e(f"v_lshlrev_b32 v244, 1, v{L16}")
        a.e(f"s_cmp_eq_u32 s{sW}, 0")
        a.e(f"s_cselect_b32 s{sU}, 0, 0x100000")
        a.e("s_mov_b64 exec, 0xff")
        a.vmem(f"buffer_load_dword v246, v244, s[{sDB_}:{sDB_+3}], s{sU} offen offset:4 sc1", "ph")
        a.e("s_mov_b64 exec, -1")
    def ctr_test():
        a.e(f"v_add_u32 v246, -1, v246")
        a.e(f"v_and_b32 v246, 0x8000001f, v246")
        a.e(f"v_cmp_ne_u32 vcc, 31, v246")
    def ctr_check():
        a.wait_vm("ph")
        ctr_test()
        a.e(f"s_cmp_eq_u32 s{sW}, 0")
        a.e(f"s_cselect_b32 s{sU}, 0xff, 0")
        a.e("s_nop 1")
        a.e(f"s_and_b32 s{sU}, s{sU}, vcc_lo")
        a.e(f"s_cbranch_scc1 L_ph_spin")
        a.label("L_ph_ok")
    def ctr_stub():
        a.label("L_ph_spin")
        a.e(f"s_mov_b32 s{sU}, 0")
        a.e("s_mov_b64 exec, 0xff")
        a.label("L_ph_poll")
        a.e("s_sleep 16")
        a.e(f"buffer_load_dword v246, v244, s[{sDB_}:{sDB_+3}], 0 offen offset:4 sc1")
        a.e(f"s_add_u32 s{sU}, s{sU}, 1")
        a.e("s_waitcnt vmcnt(0)")
        ctr_test()
        a.e(f"s_cbranch_vccz L_ph_done")
        a.e(f"s_cmp_lt_u32 s{sU}, 0x20000")
        a.e(f"s_cbranch_scc1 L_ph_poll")
        a.label("L_ph_done")
        a.e("s_mov_b64 exec, -1")
        a.e("s_branch L_ph_ok")
    stubs.append(ctr_stub)
    HK = OPT.get("hk", 6)
    sb.add_post(gk(HK) - 40, ctr_issue)
    sb.pre[gk(HK)].insert(0, ctr_check)
    if OPT.get("pff", 0):
        q0, q1, q2 = KA, KA + 1, KA + 2
        def pf_h():
            a.e(f"v_lshrrev_b32 v{q0}, 4, v{L16}")
            a.e(f"s_mul_i32 s{sU}, s{sNT}, 48")
            a.e(f"v_cmp_gt_u32 vcc, 48, v{q0}")
            a.e(f"v_add_u32 v{q0}, s{sU}, v{q0}")
            a.e(f"v_and_b32 v{q1}, 7, v{q0}")
            a.e(f"v_lshlrev_b32 v{q1}, 7, v{q1}")
            a.e(f"v_lshrrev_b32 v{q2}, 4, v{q0}")
            a.e(f"v_lshl_add_u32 v{q1}, v{q2}, 10, v{q1}")
            a.e(f"v_bfe_u32 v{q2}, v{q0}, 3, 1")
            a.e(f"v_mul_u32_u24 v{q2}, {A_MB}, v{q2}")
            a.e(f"v_add_u32 v{q1}, v{q1}, v{q2}")
            a.e(f"v_mov_b32 v{q2}, 0x1000000")
            a.e(f"v_cndmask_b32 v{q1}, v{q2}, v{q1}, vcc")
            a.vmem(f"buffer_load_dword v243, v{q1}, s[{sO}:{sO+3}], s{sOB_} offen sc1", "pf")
        def pf_d():
            a.e(f"v_lshrrev_b32 v{q0}, 4, v{L16}")
            a.e(f"s_and_b32 s{sU}, s{sMT}, 7")
            a.e(f"s_mul_i32 s{sU}, s{sU}, 24")
            a.e(f"v_cmp_gt_u32 vcc, 48, v{q0}")
            a.e(f"v_lshrrev_b32 v{q1}, 1, v{q0}")
            a.e(f"v_add_u32 v{q1}, s{sU}, v{q1}")
            a.e(f"v_lshrrev_b32 v{q2}, 5, v{q1}")
            a.e(f"v_lshl_add_u32 v{q1}, v{q2}, 5, v{q1}")
            a.e(f"v_mul_u32_u24 v{q1}, 1280, v{q1}")
            a.e(f"v_and_b32 v{q0}, 1, v{q0}")
            a.e(f"v_mul_u32_u24 v{q0}, 156, v{q0}")
            a.e(f"v_add_u32 v{q1}, v{q1}, v{q0}")
            a.e(f"v_mov_b32 v{q2}, 0x1000000")
            a.e(f"v_cndmask_b32 v{q1}, v{q2}, v{q1}, vcc")
            a.e(f"s_and_b32 s{sU}, s{sW}, 1")
            a.e(f"s_mul_i32 s{sU}, s{sU}, {32*1280}")
            a.e(f"s_add_u32 s{sU}, s{sU}, s{sWB}")
            a.vmem(f"buffer_load_dword v244, v{q1}, s[{sWr}:{sWr+3}], s{sU} offen", "pf")
        sb.add_post(gk(4) + 26, pf_d)
        sb.add_post(gk(4) + 44, pf_h)
    sb.spread(su, gv(5) + 24, gk(6) - 2)
    sb.spread(w2_block(0), gk(6) + 2, gv(7) - 2)
    gA = seg[("PV", 7, 0)][0]; gB = seg[("PV", 7, 1)][0]
    sb.spread(w2_block(1), gv(7) + 2, gA + 14)
    sb.spread(o_loads(0, 0) + o_loads(0, 1) + o_loads(1, 0) + o_loads(1, 1), gA + 2, gB - 2)
    oe = [(E(a, f"s_mul_i32 s{sHO}, s{sH}, 6144"), gB + 2)]
    for qs in range(2): oe.append((E(a, f"v_rcp_f32 v{TP+qs}, v{LS+qs}"), gB + 3))
    for s_ in range(6):
        ge = gB + 4 * s_ + 7
        for qs in range(2):
            for e_ in range(2):
                ob = O(2 * s_ + e_, qs)
                for r in range(4): oe.append((E(a, f"v_mul_f32 v{ob+r}, v{TP+qs}, v{ob+r}"), ge))
        for qs in range(2):
            dst = S(0, 0) + 4 * ((2 * s_ + qs) % 8)
            for e_ in range(2):
                ob = O(2 * s_ + e_, qs)
                for q in range(2): oe.append((E(a, f"v_cvt_pk_bf16_f32 v{dst+2*e_+q}, v{ob+2*q}, v{ob+2*q+1}"), ge))
            def ost(qs=qs, s_=s_, dst=dst):
                a.e(f"s_add_u32 s{sT}, s{sHO}, {qs*A_MB + (s_//4)*4096}")
                a.vmem(f"buffer_store_dwordx4 {vr(dst,4)}, v{L16}, s[{sWS}:{sWS+3}], s{sT} offen offset:{1024*(s_%4)} sc1", "ost")
            oe.append((ost, ge))
    per = OPT.get("oe_per", 3)
    g = gB; cnt = 0; n_in = 0
    for (fn, ge) in oe:
        if ge > g: g = ge; cnt = 0
        if g >= NG - 1: break
        sb.add_post(g, fn); n_in += 1; cnt += 1
        if cnt >= per: g += 1; cnt = 0
    sb.emit()
    st()
    a.e("s_nop 7")
    for (fn, ge) in oe[n_in:]: fn()
    st()
    a.e("s_nop 1")
    t = TM2
    a.e(f"v_lshrrev_b32 v{t+2}, 4, v{L16}")
    a.e(f"v_lshrrev_b32 v{t}, 2, v{t+2}")
    a.e(f"v_and_b32 v{t+1}, 3, v{t+2}")
    a.e(f"v_lshlrev_b32 v{t+1}, 3, v{t+1}")
    a.e(f"v_mul_u32_u24 v{t+3}, 160, v{t}")
    a.e(f"s_mul_i32 s{sU2}, s{sKG}, 10240")
    a.e(f"s_add_u32 s{sU2}, s{sU2}, {win(0)}")
    a.e(f"v_add3_u32 v{AF}, v{t+3}, v{t+1}, s{sU2}")
    a.wait_vm(("W2", 1))
    a.e("s_waitcnt lgkmcnt(0)"); a.lgkm = []
    a.e("s_barrier")
    st()
    late = []
    L_ = lambda tx: late.append(E(a, tx))
    L_(f"v_mul_u32_u24 v{t+3}, 320, v{t}")
    L_(f"s_mul_i32 s{sU2}, s{sG}, 20480")
    late.append(lambda: (a.e(f"s_mul_i32 s{sU2}, s{sG}, 20480"), a.e(f"s_add_u32 s{sU2}, s{sU2}, {win(NF)}"), a.e(f"v_add3_u32 v{t+3}, v{t+3}, v{t+1}, s{sU2}")))
    L_(f"v_bfe_u32 v{t+4}, v{t+2}, 4, 1")
    L_(f"v_lshlrev_b32 v{t+4}, 5, v{t+4}")
    L_(f"v_add_u32 v{AW}, v{t+3}, v{t+4}")
    L_(f"v_sub_u32 v{AW+1}, v{t+3}, v{t+4}")
    L_(f"v_and_b32 v{t+7}, 0x30, v{t+2}")
    late.append(lambda: (a.e(f"s_and_b32 s{sPER}, s{sW}, 3"), a.e(f"s_lshl_b32 s{sPER}, s{sPER}, 4")))
    for i in range(5):
        L_(f"v_add_u32 v{t+4}, {64*i}, v{t+2}")
        L_(f"v_mul_u32_u24 v{t+5}, 3277, v{t+4}")
        L_(f"v_lshrrev_b32 v{t+5}, 16, v{t+5}")
        L_(f"v_mul_u32_u24 v{t+6}, 20, v{t+5}")
        L_(f"v_sub_u32 v{t+6}, v{t+4}, v{t+6}")
        L_(f"v_add_u32 v{t+5}, s{sPER}, v{t+5}")
        L_(f"v_bfe_u32 v{t+4}, v{t+5}, 2, 1")
        L_(f"v_lshlrev_b32 v{t+4}, 1, v{t+4}")
        L_(f"v_xor_b32 v{t+6}, v{t+6}, v{t+4}")
        L_(f"v_mul_u32_u24 v{t+5}, 1280, v{t+5}")
        L_(f"v_lshl_add_u32 v{DW[i]}, v{t+6}, 4, v{t+5}")
    sm = Stream(a, FR2)
    started = set()
    tfirst = []; tg0 = []
    for k in range(NT2):
        par = (k + 1) % NSET; so = slot2(k) - win(k)
        tfirst.append(len(sm.frags)); tg0.append(sm.n())
        for ks in range(2):
            sm.add_pre(sm.n(), lambda k=k, ks=ks: a.wait_vm(("o", k, ks)))
            if k < NF:
                for nb in range(5):
                    sm.frag([lambda b, tt=tt: f"ds_read_b64_tr_b16 {vr(b+2*tt,2)}, v{AF} offset:{so+(32*ks+16*tt)*160+32*nb}" for tt in range(2)],
                            [lambda b, qs=qs: mfma_t(ACCF(nb, qs), b, OF + 16 * par + 8 * ks + 4 * qs, C0(ACCF(nb, qs))) for qs in range(2)])
            else:
                for nb in range(10):
                    sm.frag([lambda b, tt=tt: f"ds_read_b64_tr_b16 {vr(b+2*tt,2)}, v{AW+(nb&1)} offset:{so+(32*ks+16*tt)*320+32*nb}" for tt in range(2)],
                            [lambda b, qs=qs: mfma_t(ACC2(nb, qs), b, OF + 16 * par + 8 * ks + 4 * qs, C0(ACC2(nb, qs))) for qs in range(2)])
    tfirst.append(len(sm.frags)); tg0.append(sm.n())
    NG = sm.n()
    sm.spread(late, 0, tg0[2])
    OSG = OPT.get("osg", 0)
    KO = OPT.get("ostep", 5)
    issue = {}
    for k in range(2, NT2):
        tk = max(k - OPT.get("olook", 2), 0) if k < NF else max(k - OPT.get("olook2", 1), KO)
        issue.setdefault(tk, {"w": [], "o": []})["o"] += o_loads(k, 0) + o_loads(k, 1)
        issue.setdefault(max(k - OPT.get("wlook", 2), 0) if k < NF + 2 else k - OPT.get("wlook2", 2), {"w": [], "o": []})["w"] += w2_block(k)
    for tk in sorted(issue):
        wb_, ob_ = issue[tk]["w"], issue[tk]["o"]
        ln = tg0[tk + 1] - tg0[tk] - 7
        sm.spread(ob_, tg0[tk] + 1, tg0[tk] + ln)
        sm.spread(wb_, tg0[tk] + 1, tg0[tk] + ln)
    for k in range(NT2 - 1):
        gb = sm.read_gap(tfirst[k + 1])
        def bar(k=k):
            if k == 0 and not OSG: a.wait_vm("ost")
            if k == KO - 1: poll_check2("po", 2, PV_, ZV, "po")()
            a.wait_vm(("W2", k + 1))
            a.e("s_waitcnt lgkmcnt(0)"); a.lgkm = []
            a.e("s_barrier")
            st(fine=True)
            if win(k) != win(k + 1) and k + 1 != NF:
                for r in ([AF] if k + 1 < NF else [AW, AW + 1]): a.e(f"v_add_u32 v{r}, {(win(k+1)-win(k)) & 0xffffffff}, v{r}")
        sm.add_pre(gb, bar)
        if k == 0:
            gs = OSG if OSG else gb
            if OSG: sm.add_pre(gs, lambda: (a.wait_vm("ost"), a.e("s_barrier")))
            sm.add_pre(gs, sig_issue(2, 224, 225, "ao"))
            sm.add_pre(gs + OPT.get("aod", 14), sig_check("os", 2, (224, 225, 226, 227), "ao"))
        if k == KO - 1: sm.add_post(gb - OPT.get("pod", 8), poll_issue2(2, PV_, ZV, "po"))
    sm.emit()
    a.wait_all()
    st()
    a.e("s_barrier")
    a.e(f"s_mul_i32 s{sU}, s{sW}, 10240")
    a.e(f"v_add_u32 v{t}, s{sU}, v{L16}")
    a.e(f"v_add_u32 v{t+2}, {81920}, v{t}")
    a.e(f"s_xor_b32 s{sU2}, s{sW}, 4")
    a.e(f"s_mul_i32 s{sU2}, s{sU2}, 10240")
    a.e(f"v_add_u32 v{t+1}, s{sU2}, v{L16}")
    PBH = 64 * 40 * 1024
    a.e(f"s_lshl_b32 s{sT}, s{sMT}, 2")
    a.e(f"s_add_u32 s{sT}, s{sT}, s{sNT}")
    a.e(f"s_mul_i32 s{sU2}, s{sT}, {40*1024}")
    a.e(f"s_add_u32 s{sU2}, s{sU2}, {WS_P}")
    srd(a, sP, 26, 27, f"s{sU2}", f"{3*PBH + 40*1024}")
    a.e(f"s_lshl_b32 s{sT}, s{sT}, 7")
    a.e(f"s_and_b32 s{sPER}, s{sW}, 2")
    a.e(f"s_add_u32 s{sPER}, s{sPER}, s{sG}")
    a.e(f"s_lshl_b32 s{sU}, s{sPER}, 1")
    a.e(f"s_and_b32 s{sU2}, s{sW}, 1")
    a.e(f"s_add_u32 s{sU}, s{sU}, s{sU2}")
    a.e(f"s_mul_i32 s{sU}, s{sU}, 5120")
    a.e(f"s_mul_i32 s{sU2}, s{sS}, {PBH}")
    a.e(f"s_add_u32 s{sOW}, s{sU}, s{sU2}")
    a.e(f"s_add_u32 s{sOO}, s{sOW}, 4096")
    a.e(f"s_cmp_eq_u32 s{sG}, 0")
    a.e(f"s_cbranch_scc0 L_p2_g1")
    for g in range(2):
        keep = 40 * g; send = 40 * (1 - g)
        for q in range(10): a.e(f"ds_write_b128 v{t}, {vr(send+4*q,4)} offset:{1024*q}")
        a.e("s_waitcnt lgkmcnt(0)")
        a.e("s_barrier")
        for q in range(10): a.e(f"ds_read_b128 {vr(OF+4*q,4)}, v{t+1} offset:{1024*q}")
        for q in range(10):
            a.e(f"s_waitcnt lgkmcnt({9-q})")
            for r in range(4): a.e(f"v_add_f32 v{OF+4*q+r}, v{keep+4*q+r}, v{OF+4*q+r}")
        if g == 0:
            a.e(f"s_branch L_p2_red2")
            a.label(f"L_p2_g1")
    a.label("L_p2_red2")
    R = OF
    a.e(f"s_cmp_eq_u32 s{sPER}, s{sS}")
    a.e(f"s_cbranch_scc1 L_p2_own")
    for p in range(5):
        for q in range(4): a.e(f"v_cvt_pk_bf16_f32 v{4*p+q}, v{R+8*p+2*q}, v{R+8*p+2*q+1}")
        a.e(f"buffer_store_dwordx4 {vr(4*p,4)}, v{L16}, s[{sP}:{sP+3}], s{sOO if p == 4 else sOW} offen offset:{(p%4)*1024} sc1")
    a.e("s_branch L_p2_pub")
    a.label("L_p2_own")
    for q in range(10): a.e(f"ds_write_b128 v{t+1}, {vr(R+4*q,4)} offset:{1024*q}")
    a.label("L_p2_pub")
    st(fine=True)
    for q in range(10): a.e(f"ds_write_b128 v{t+2}, {vr(176+4*q,4)} offset:{1024*q}")
    a.e(f"s_lshl_b32 s{sU2}, s{sMT}, 1")
    a.e(f"s_lshr_b32 s{sU}, s{sS}, 1")
    a.e(f"s_add_u32 s{sU2}, s{sU2}, s{sU}")
    a.e(f"s_mul_i32 s{sU2}, s{sU2}, {64*1280}")
    a.e(f"s_mul_i32 s{sU}, s{sNT}, 320")
    a.e(f"s_add_u32 s{sU2}, s{sU2}, s{sU}")
    a.e(f"s_and_b32 s{sU}, s{sS}, 1")
    a.e(f"s_mul_i32 s{sU}, s{sU}, 160")
    a.e(f"s_add_u32 s{sU2}, s{sU2}, s{sU}")
    srd(a, sXo, 4, 5, f"s{sU2}", "0")
    a.e(f"s_sub_u32 s{sXo+2}, {2048*1280}, s{sU2}")
    srd(a, sOut, 22, 23, f"s{sU2}", "0")
    a.e(f"s_sub_u32 s{sOut+2}, {2048*1280}, s{sU2}")
    XV = t + 6
    a.e(f"v_bfe_u32 v{XV}, v{L16}, 4, 4")
    a.e(f"v_mul_u32_u24 v{XV}, 1280, v{XV}")
    a.e(f"v_lshrrev_b32 v{t+4}, 8, v{L16}")
    a.e(f"v_lshl_add_u32 v{XV}, v{t+4}, 3, v{XV}")
    a.e(f"v_add_u32 v{XV+1}, 20480, v{XV}")
    a.e(f"s_and_b32 s{sU}, s{sS}, 1")
    a.e(f"s_xor_b32 s{sU}, s{sU}, 1")
    a.e(f"s_lshl_b32 s{sU}, s{sU}, 2")
    a.e(f"s_and_b32 s{sU2}, s{sS}, 2")
    a.e(f"s_add_u32 s{sU}, s{sU}, s{sU2}")
    a.e(f"s_mul_i32 s{sKG}, s{sU}, 10240")
    NU = 2
    sQO = [sOO2, sOB_]; sQP = [sTW2, sTO]; VA = [t + 8, t + 9]; VR_ = [t + 10, t + 11]
    XR = 120
    for n in range(NU):
        a.e(f"s_add_u32 s{sU}, s{sW}, {8*n}")
        a.e(f"s_min_u32 s{sU2}, s{sU}, 9")
        a.e(f"s_lshl_b32 s{sPER}, s{sU2}, 11")
        a.e(f"s_add_u32 s{sWB}, s{sPER}, 81920")
        a.e(f"v_add_u32 v{VA[n]}, s{sWB}, v{L16}")
        a.e(f"s_add_u32 s{sWB}, s{sPER}, s{sKG}")
        a.e(f"v_add_u32 v{VR_[n]}, s{sWB}, v{L16}")
        a.e(f"s_lshl_b32 s{sQO[n]}, s{sU2}, 5")
        a.e(f"s_cmp_ge_u32 s{sU2}, 5")
        a.e(f"s_cselect_b32 s{sPER}, {40960-160}, 0")
        a.e(f"s_add_u32 s{sQO[n]}, s{sQO[n]}, s{sPER}")
        a.e(f"s_mul_i32 s{sPER}, s{sS}, 10240")
        a.e(f"s_lshl_b32 s{sQP[n]}, s{sU2}, 10")
        a.e(f"s_add_u32 s{sQP[n]}, s{sQP[n]}, s{sPER}")
        a.e(f"s_cmp_ge_u32 s{sU}, 10")
        a.e(f"s_cselect_b32 s{sQO[n]}, 0x1000000, s{sQO[n]}")
        a.e(f"s_cselect_b32 s{sQP[n]}, 0x4000000, s{sQP[n]}")
    a.wait_all()
    st(fine=True)
    a.e("s_barrier")
    a.e(f"v_mov_b32 v{ZV}, 0")
    signal("ps", sFG, [f"s_mov_b32 s{sU}, s{sT}"], ZV, ONEV)()
    for n in range(NU):
        for qs in range(2): a.vmem(f"buffer_load_dwordx2 {vr(XR+4*n+2*qs,2)}, v{XV+qs}, s[{sXo}:{sXo+3}], s{sQO[n]} offen", "xl")
    for n in range(NU):
        for kg in range(4):
            for qs in range(2): a.e(f"ds_read_b128 {vr(32*n+8*kg+4*qs,4)}, v{VA[n]} offset:{20480*kg+1024*qs}")
        a.e(f"s_waitcnt lgkmcnt(0)")
        for qs in range(2): a.e(f"ds_read_b128 {vr(64+8*n+4*qs,4)}, v{VR_[n]} offset:{1024*qs}")
    a.vmem(f"buffer_load_dword v{PV_}, v{ZV}, s[{sFG}:{sFG+3}], s{sT} offen sc1", "pp")
    for n in range(NU):
        b = 32 * n
        for r in range(8): a.e(f"v_add_f32 v{b+r}, v{b+r}, v{b+8+r}")
        for r in range(8): a.e(f"v_add_f32 v{b+16+r}, v{b+16+r}, v{b+24+r}")
        for r in range(8): a.e(f"v_add_f32 v{b+r}, v{b+r}, v{b+16+r}")
        for r in range(8): a.e(f"v_mul_f32 v{b+8+r}, {f32(-LOG2E)}, v{b+r}")
        for r in range(8): a.e(f"v_exp_f32 v{b+8+r}, v{b+8+r}")
        for r in range(8): a.e(f"v_add_f32 v{b+8+r}, 1.0, v{b+8+r}")
        for r in range(8): a.e(f"v_rcp_f32 v{b+8+r}, v{b+8+r}")
        for r in range(8): a.e(f"v_mul_f32 v{b+r}, v{b+r}, v{b+8+r}")
    a.e("s_waitcnt lgkmcnt(0)")
    poll_check("pp", sFG, sT, 4, "pp")()
    st(fine=True)
    PR = 80
    for n in range(NU):
        for m_ in range(3):
            a.e(f"s_add_u32 s{sU}, s{sS}, {m_+1}")
            a.e(f"s_and_b32 s{sU}, s{sU}, 3")
            a.e(f"s_mul_i32 s{sU}, s{sU}, {PBH}")
            a.e(f"s_add_u32 s{sU}, s{sU}, s{sQP[n]}")
            a.e(f"buffer_load_dwordx4 {vr(PR+12*n+4*m_,4)}, v{L16}, s[{sP}:{sP+3}], s{sU} offen sc1")
    for n in range(NU):
        b = 32 * n; X0 = b + 8; T0_ = b + 16; A_ = 64 + 8 * n
        for q in range(4):
            a.e(f"v_lshlrev_b32 v{X0+2*q}, 16, v{XR+4*n+q}")
            a.e(f"v_and_b32 v{X0+2*q+1}, 0xffff0000, v{XR+4*n+q}")
        for m_ in range(3):
            a.e(f"s_waitcnt vmcnt({3*(NU-1-n) + (2-m_) + 2*n})")
            for q in range(4):
                a.e(f"v_lshlrev_b32 v{T0_+2*q}, 16, v{PR+12*n+4*m_+q}")
                a.e(f"v_and_b32 v{T0_+2*q+1}, 0xffff0000, v{PR+12*n+4*m_+q}")
            for r in range(8): a.e(f"v_add_f32 v{A_+r}, v{A_+r}, v{T0_+r}")
        for r in range(8): a.e(f"v_fma_f32 v{X0+r}, v{A_+r}, v{b+r}, v{X0+r}")
        for q in range(4): a.e(f"v_cvt_pk_bf16_f32 v{XR+4*n+q}, v{X0+2*q}, v{X0+2*q+1}")
        for qs in range(2): a.e(f"buffer_store_dwordx2 {vr(XR+4*n+2*qs,2)}, v{XV+qs}, s[{sOut}:{sOut+3}], s{sQO[n]} offen{OPT.get('outf','')}")
    st()
    st.flush(sW, TM2)
    a.label(f"L_{K}_done")
    a.e("s_endpgm")
    for sfn in stubs: sfn()
    slow_stub(0); slow_stub(1)
    return a

def kd(name, vgpr, sgpr):
    return f""".amdhsa_kernel {name}
  .amdhsa_next_free_vgpr {vgpr}
  .amdhsa_next_free_sgpr {sgpr}
  .amdhsa_accum_offset {(vgpr+3)//4*4}
  .amdhsa_group_segment_fixed_size 0
  .amdhsa_kernarg_size 96
  .amdhsa_user_sgpr_count 2
  .amdhsa_user_sgpr_kernarg_segment_ptr 1
  .amdhsa_system_sgpr_workgroup_id_x 1
.end_amdhsa_kernel
"""

def main(out):
    a = kernel1()
    n = NAME + "_kernel"
    hdr = open("cdna_kernels/" + NAME + ".s.ref").read().split("; Override launch geometry")[0]
    s = hdr + "; @launch grid=(256,1,1) block=(512,1,1) lds=163840\n"
    s += '.amdgcn_target "amdgcn-amd-amdhsa--gfx950"\n.text\n'
    errs = check_hazards(a.L)
    for e in errs[:20]: print("HAZARD", e)
    s += f".globl {n}\n.p2align 8\n.type {n},@function\n{n}:\n" + a.text()
    s += '.section .rodata,"a"\n.p2align 6\n' + kd(n, 256, 102)
    open(out, "w").write(s)
    print("wrote", out, "hazards:", len(errs), "instrs:", len(a.L))

if __name__ == "__main__":
    args = sys.argv[1:]
    if "--stamps" in args:
        STAMPS = True; args.remove("--stamps")
    for x in list(args):
        if x.startswith("-O"):
            k_, v_ = x[2:].split("=")
            OPT[k_] = int(v_) if v_.lstrip("-").isdigit() else v_.replace("_", " ")
            args.remove(x)
    main(args[0] if args else "cdna_kernels/" + NAME + ".s")
```

```python
import sys, struct, math
from asmlib import *

NAME = "recurrent_scan__sliding_block_cached__glu_gated_geglu__prompt"
def f32(x): return "0x%08x" % struct.unpack("<I", struct.pack("<f", x))[0]
LOG2E = 1.4426950408889634
SCALE_C = (192 ** -0.5) * LOG2E
GELU_C0 = -2.0 * math.sqrt(2.0 / math.pi) * LOG2E
GELU_C1 = GELU_C0 * 0.044715
MF = "v_mfma_f32_16x16x32_bf16"

A_MB = 240 * 1024
WS_A_BYTES = 128 * A_MB
WS_P = WS_A_BYTES
PB_BYTES = 128 * 40 * 1024
NPB = 4
WS_X = WS_P + NPB * PB_BYTES + 65536
WS_G = WS_P + NPB * PB_BYTES + 16384
WS_F = WS_P + NPB * PB_BYTES
STAMPS = False
OPT = {}
WS_ST = 200 * 1024 * 1024

class Stamper:
    def __init__(self, a, base=86, kid=0):
        self.a = a; self.n = 0; self.kid = kid
    def __call__(self, real=False, fine=False):
        if not STAMPS: return
        if fine and not OPT.get("fine"): return
        a = self.a
        if self.n == 0: a.e("v_mov_b32 v255, -1")
        a.e("s_memrealtime s[84:85]" if (real or OPT.get("real")) else "s_memtime s[84:85]")
        a.e("s_waitcnt lgkmcnt(0)"); a.lgkm = []
        a.e(f"v_writelane_b32 v255, s84, {self.n}")
        self.n += 1; assert self.n <= 64
    def flush(self, swave, vtmp):
        if not STAMPS: return
        a = self.a
        a.e("s_waitcnt vmcnt(0)")
        self()
        a.e("s_memrealtime s[84:85]")
        a.e("s_waitcnt lgkmcnt(0)")
        a.e(f"v_writelane_b32 v255, s84, 63")
        a.e(f"s_lshl_b32 s84, s2, 3")
        a.e(f"s_add_u32 s84, s84, s{swave}")
        a.e(f"s_lshl_b32 s84, s84, 8")
        a.e(f"s_add_u32 s84, s84, {WS_ST + self.kid * 1048576}")
        a.e(f"s_add_u32 s28, s26, s84")
        a.e(f"s_addc_u32 s29, s27, 0")
        a.e(f"s_and_b32 s29, s29, 0xffff")
        a.e(f"s_mov_b32 s30, 256")
        a.e(f"s_mov_b32 s31, 0x20000")
        a.e(f"v_mbcnt_lo_u32_b32 v{vtmp}, -1, 0")
        a.e(f"v_mbcnt_hi_u32_b32 v{vtmp}, -1, v{vtmp}")
        a.e(f"v_lshlrev_b32 v{vtmp}, 2, v{vtmp}")
        a.e(f"buffer_store_dword v255, v{vtmp}, s[28:31], 0 offen")
        if OPT.get("dbgout"):
            a.e(f"s_cmp_eq_u32 s2, {OPT.get('dbgwg', 0)}")
            a.e("s_cbranch_scc0 L_dbg_skip")
            a.e(f"s_cmp_eq_u32 s{swave}, 0")
            a.e("s_cbranch_scc0 L_dbg_skip")
            a.e("v_readlane_b32 s84, v255, 0")
            sel = [int(x) for x in str(OPT["dbgout"]).split(",")]
            slots = [3, 4, 5, 6, 7, 11, 12, 13, 14, 15]
            a.e(f"v_mov_b32 v{vtmp+1}, 0")
            for sl, ix in zip(slots, sel):
                a.e(f"v_readlane_b32 s85, v255, {ix}")
                a.e("s_nop 3")
                a.e("s_sub_u32 s85, s85, s84")
                a.e(f"v_mov_b32 v{vtmp}, s85")
                a.e(f"buffer_store_dword v{vtmp}, v{vtmp+1}, s[92:95], 0 offen offset:{4*sl}")
                a.e("s_nop 1")
            a.label("L_dbg_skip")

def timed(a, acc, fn):
    if not OPT.get("acc"): fn(); return
    a.e("s_memtime s[82:83]"); a.e("s_waitcnt lgkmcnt(0)"); a.lgkm = []
    a.e(f"s_sub_u32 s{acc}, s{acc}, s82")
    fn()
    a.e("s_memtime s[82:83]"); a.e("s_waitcnt lgkmcnt(0)")
    a.e(f"s_add_u32 s{acc}, s{acc}, s82")

def load_ptrs(a):
    a.e("s_load_dwordx16 s[4:19], s[0:1], 0")
    a.e("s_load_dwordx8 s[20:27], s[0:1], 64")

def srd(a, d, base_lo, base_hi, off_sreg, nbytes_expr):
    if off_sreg is None:
        a.e(f"s_mov_b32 s{d}, s{base_lo}")
        a.e(f"s_and_b32 s{d+1}, s{base_hi}, 0xffff")
    else:
        a.e(f"s_add_u32 s{d}, s{base_lo}, {off_sreg}")
        a.e(f"s_addc_u32 s{d+1}, s{base_hi}, 0")
        a.e(f"s_and_b32 s{d+1}, s{d+1}, 0xffff")
    a.e(f"s_mov_b32 s{d+2}, {nbytes_expr}")
    a.e(f"s_mov_b32 s{d+3}, 0x20000")

def mfma_t(d, A, B, c=None):
    cc = vr(d, 4) if c is None else (c if isinstance(c, str) else vr(c, 4))
    return f"{MF} {vr(d,4)}, {vr(A,4)}, {vr(B,4)}, {cc}"

class Stream:
    def __init__(self, a, FR, ring=4, depth=3):
        self.a = a; self.m = []; self.pre = {}; self.post = {}
        self.FR = FR; self.R = ring; self.D = depth
        self.frags = []
    def n(self): return len(self.m)
    def add_pre(self, g, fn): self.pre.setdefault(g, []).append(fn)
    def add_post(self, g, fn): self.post.setdefault(g, []).append(fn)
    def mfma(self, text): self.m.append(text); return len(self.m) - 1
    def buf(self, f=None):
        f = len(self.frags) if f is None else f
        return self.FR + 4 * (f % self.R)
    def frag(self, reads, mfmas):
        f = len(self.frags); b = self.buf(f)
        g0 = self.n()
        self.frags.append((g0, [r(b) for r in reads], len(mfmas)))
        for m_ in mfmas: self.mfma(m_(b))
        return g0
    def spread(self, fns, g0, g1):
        n = len(fns)
        for k, fn in enumerate(fns):
            self.add_post(g0 + (k * (g1 - g0)) // max(n, 1), fn)
    def read_gap(self, f):
        return self.frags[f - self.D][0] if f >= self.D else -1
    def emit(self, tail_reads=None):
        a = self.a
        rd_at = {}
        nf = len(self.frags)
        for f, (g0, reads, nm) in enumerate(self.frags):
            if f < self.D:
                for t in reads: a.ds(t, ("f", f))
            else:
                hg, _, hn = self.frags[f - self.D]
                for k, t in enumerate(reads):
                    rd_at.setdefault(hg + min(k, hn - 1), []).append((t, f))
        first = {g0: f for f, (g0, _, _) in enumerate(self.frags)}
        for g, mt in enumerate(self.m):
            for fn in self.pre.get(g, []): fn()
            if g in first: a.wait_lgkm(("f", first[g]))
            a.e(mt)
            posts = self.post.get(g, [])
            nv = 0
            if OPT.get("vfirst", 1):
                while nv < len(posts) and getattr(posts[nv], "valu", False): posts[nv](); nv += 1
            for (t, f) in rd_at.get(g, []): a.ds(t, ("f", f))
            for fn in posts[nv:]: fn()

def E(a, text):
    fn = lambda: a.e(text)
    fn.valu = text.startswith("v_") and not text.startswith("v_add_u32")
    return fn

def kernel1():
    a = Asm(); K = "k1"; st = Stamper(a, kid=0)
    ACC = lambda jb, qs: (jb * 2 + qs) * 4
    XS = 144; FR = 176; SUMA = 192; GRAM = 200; CSA = 208
    O = ACC; QP = lambda qs, s: 96 + 24 * qs + 4 * s
    S = lambda kb, qs: 144 + (kb * 2 + qs) * 4
    P = lambda qs, u: 192 + (qs * 2 + u) * 4
    NEGM = lambda qs: 208 + 4 * qs
    LT = lambda qs: 216 + 4 * qs
    ONES = 224; LS = 228; TP = 230
    DUT = 230
    AWQ = 238; AGU = 242; DA = 243; DB = 246; XOFF = 247; L16 = 248; KA = 249; VB = 252
    VR = AWQ; KR = [AGU, DB]
    sX, sWQ, sGU, sK, sV, sWS = 28, 32, 36, 40, 44, 48
    sW, sH, sB = 52, 53, 54
    sTW, sOA, sOB, sOB2, sMB0, sTX = 55, 56, 57, 58, 59, 60
    sEX48 = 62
    sXO, sXO2, sT, sT2, sT3 = 64, 65, 66, 67, 68
    sW3 = 69; sHO = 70; sG1 = 71; sFL = 72; sTHR = 73; sKO = 74; sVO = 75
    sRET = 76
    GOFF = 24576; WSLOT = 24576 + 8 * 1664 - 128
    KSL = [114688, 0, 24576]; VSL = [139264, 49152, 73728]
    CSL = 3 * WSLOT
    assert CSL + 1152 <= KSL[0]
    wslot = lambda k: ((k + 2) % 3) * WSLOT
    ROT = OPT.get("rot", 1)

    a.e("s_cmp_ge_u32 s2, 256")
    a.e(f"s_cbranch_scc1 L_{K}_done")
    st(True); st()
    if OPT.get("acc"):
        for r in (99, 100, 101): a.e(f"s_mov_b32 s{r}, 0")
    load_ptrs(a)
    LANE = 0; t = 2
    sFG = 88; sDB_ = 92; sU, sU2 = 97, 98
    NXS = OPT.get("nxs", 3)
    XSET = [144, 160, 192]
    stubs = []
    a.e(f"v_lshrrev_b32 v1, 6, v0")
    a.e(f"v_and_b32 v{LANE}, 63, v0")
    a.e(f"v_readfirstlane_b32 s{sW}, v1")
    a.e(f"s_and_b32 s{sT}, s2, 7")
    a.e(f"s_lshr_b32 s{sT2}, s2, 3")
    a.e(f"s_lshl_b32 s{sH}, s{sT}, 2")
    a.e(f"s_and_b32 s{sT}, s{sT2}, 3")
    a.e(f"s_add_u32 s{sH}, s{sH}, s{sT}")
    a.e(f"s_lshr_b32 s{sB}, s{sT2}, 2")
    HYB = OPT.get("hyb", 1); sR0 = 61
    if HYB:
        a.e(f"s_lshl_b32 s{sT}, s{sT}, 1")
        a.e(f"s_add_u32 s{sR0}, s{sT}, s{sB}")
        a.e(f"s_sub_u32 s{sT}, s{sR0}, 9")
        a.e(f"s_cmp_ge_u32 s{sR0}, 9")
        a.e(f"s_cselect_b32 s{sR0}, s{sT}, s{sR0}")
        a.e(f"s_add_u32 s{sR0}, s{sR0}, 1")
        a.e(f"s_mov_b32 s{sTW}, 0")
    else:
        a.e(f"s_mul_i32 s{sT}, s{sT}, 3")
        a.e(f"s_add_u32 s{sTW}, s{sT}, s{sB}")
        a.e(f"s_sub_u32 s{sT}, s{sTW}, 10")
        a.e(f"s_cmp_ge_u32 s{sTW}, 10")
        a.e(f"s_cselect_b32 s{sTW}, s{sT}, s{sTW}")
    a.e(f"s_mov_b32 s{sTX}, s{sTW}")
    a.e(f"s_mul_i32 s{sW3}, s{sW}, 3072")
    a.e(f"v_lshlrev_b32 v{L16}, 4, v{LANE}")
    a.e(f"s_lshl_b32 s{sT}, s{sB}, 5")
    a.e(f"s_add_u32 s{sT}, s{sT}, s{sH}")
    a.e(f"s_lshl_b32 s{sT}, s{sT}, 3")
    a.e(f"s_add_u32 s{sT}, s{sT}, s{sW}")
    a.e(f"s_mul_i32 s{sT2}, s{sT}, 1280")
    a.e(f"v_lshlrev_b32 v20, 5, v{LANE}")
    a.e("s_waitcnt lgkmcnt(0)")
    srd(a, sX, 4, 5, f"s{sT2}", "1280")
    a.vmem(f"buffer_load_dwordx4 v[24:27], v20, s[{sX}:{sX+3}], 0 offen", "xr")
    a.vmem(f"buffer_load_dwordx4 v[28:31], v20, s[{sX}:{sX+3}], 0 offen offset:16", "xr")
    st()
    a.e(f"s_lshl_b32 s{sT}, s{sW}, 3")
    def voffs(i, which):
        a.e(f"v_add_u32 v{t}, {64*i}, v{LANE}")
        a.e(f"v_mul_u32_u24 v{t+1}, 2731, v{t}")
        a.e(f"v_lshrrev_b32 v{t+1}, 16, v{t+1}")
        a.e(f"v_mul_u32_u24 v{t+2}, 24, v{t+1}")
        a.e(f"v_sub_u32 v{t+2}, v{t}, v{t+2}")
        a.e(f"v_add_u32 v{t+1}, s{sT}, v{t+1}")
        if which == "W":
            a.e(f"v_and_b32 v{t+3}, 2, v{t+1}")
            a.e(f"v_bfe_u32 v{t+4}, v{t+1}, 3, 1")
            a.e(f"v_lshl_or_b32 v{t+3}, v{t+4}, 2, v{t+3}")
            a.e(f"v_xor_b32 v{t+3}, v{t+2}, v{t+3}")
            a.e(f"v_mul_u32_u24 v{t+6}, 12288, v{t+1}")
            a.e(f"v_lshl_add_u32 v{DA+i}, v{t+3}, 4, v{t+6}")
        else:
            a.e(f"v_mul_u32_u24 v{t+6}, 384, v{t+1}")
            a.e(f"v_bfe_u32 v{t+3}, v{t+1}, 1, 3")
            a.e(f"v_xor_b32 v{t+3}, v{t+2}, v{t+3}")
            a.e(f"v_lshl_add_u32 v{KA+i}, v{t+3}, 4, v{t+6}")
            a.e(f"v_and_b32 v{t+3}, 6, v{t+1}")
            a.e(f"v_xor_b32 v{t+3}, v{t+2}, v{t+3}")
            a.e(f"v_lshl_add_u32 v{VB+i}, v{t+3}, 4, v{t+6}")
    for i in range(3): voffs(i, "W")
    a.e(f"s_and_b32 s{sT3}, s{sW}, 3")
    a.e(f"s_lshl_b32 s{sT2}, s{sT3}, 4")
    a.e(f"v_mul_u32_u24 v{t+1}, 10923, v{LANE}")
    a.e(f"v_lshrrev_b32 v{t+1}, 16, v{t+1}")
    a.e(f"v_mul_u32_u24 v{t+2}, 6, v{t+1}")
    a.e(f"v_sub_u32 v{t+2}, v{LANE}, v{t+2}")
    a.e(f"v_add_u32 v{t+1}, s{sT2}, v{t+1}")
    a.e(f"v_mul_u32_u24 v{t+6}, 3072, v{t+1}")
    a.e(f"v_lshl_add_u32 v{DB}, v{t+2}, 4, v{t+6}")
    a.e(f"s_mul_i32 s{sMB0}, s{sT3}, {2*1664}")
    a.e(f"s_cmp_ge_u32 s{sW}, 4")
    a.e(f"s_cselect_b32 s{sT2}, {GOFF+768}, {GOFF}")
    a.e(f"s_add_u32 s{sMB0}, s{sMB0}, s{sT2}")
    a.e(f"s_mov_b32 s{sEX48}, -1")
    a.e(f"s_mov_b32 s{sEX48+1}, 0xffff")
    a.e(f"s_mov_b32 s{sG1}, {f32(GELU_C1)}")
    a.e(f"s_mul_i32 s{sT2}, s{sH}, 384")
    srd(a, sWQ, 10, 11, f"s{sT2}", "0")
    a.e(f"s_sub_u32 s{sWQ+2}, {640*12288}, s{sT2}")
    a.e(f"s_cmp_ge_u32 s{sW}, 4")
    a.e(f"s_cselect_b32 s14, s18, s16")
    a.e(f"s_cselect_b32 s15, s19, s17")
    a.e(f"s_mul_i32 s{sT2}, s{sH}, 96")
    srd(a, sGU, 14, 15, f"s{sT2}", "0")
    a.e(f"s_sub_u32 s{sGU+2}, {640*3072}, s{sT2}")
    a.e(f"s_mov_b32 s{sT2}, {WS_F}")
    srd(a, sFG, 26, 27, f"s{sT2}", f"{16384 + 256*128}")
    srd(a, sDB_, 24, 25, None, "256")
    a.e(f"s_lshl_b32 s{sT2}, s{sB}, 4")
    a.e(f"s_lshr_b32 s{sT3}, s{sH}, 1")
    a.e(f"s_add_u32 s{sT2}, s{sT2}, s{sT3}")
    a.e(f"s_mul_i32 s{sT2}, s{sT2}, 20480")
    a.e(f"s_add_u32 s{sT2}, s{sT2}, {WS_X}")
    srd(a, sK, 26, 27, f"s{sT2}", "20480")
    LNB = KSL[0]
    a.e(f"s_mul_i32 s{sT2}, s{sW}, 10")
    a.e(f"v_lshrrev_b32 v{t}, 3, v{LANE}")
    a.e(f"v_add_u32 v{t}, s{sT2}, v{t}")
    a.e(f"v_and_b32 v{t+1}, 7, v{LANE}")
    a.e(f"v_mul_u32_u24 v21, 1296, v{t+1}")
    a.e(f"v_lshl_add_u32 v21, v{t}, 4, v21")
    a.e(f"v_add_u32 v21, {LNB}, v21")
    a.e(f"s_and_b32 s{sT2}, s{sH}, 1")
    a.e(f"s_lshl_b32 s{sT2}, s{sT2}, 3")
    a.e(f"v_add_u32 v{t+1}, s{sT2}, v{t+1}")
    a.e(f"v_lshlrev_b32 v22, 8, v{t}")
    a.e(f"v_lshl_add_u32 v22, v{t+1}, 4, v22")
    a.e(f"s_mul_i32 s{sT2}, s{sW}, 1296")
    a.e(f"s_add_u32 s{sT2}, s{sT2}, {LNB}")
    a.e(f"v_add_u32 v23, s{sT2}, v20")
    def wave_sum(v, sdst):
        for m_ in ("row_shr:1", "row_shr:2", "row_shr:4", "row_shr:8"):
            a.e("s_nop 1")
            a.e(f"v_add_f32_dpp v{v}, v{v}, v{v} {m_} row_mask:0xf bank_mask:0xf bound_ctrl:0")
        a.e("s_nop 1")
        a.e(f"v_add_f32_dpp v{v}, v{v}, v{v} row_bcast:15 row_mask:0xa bank_mask:0xf")
        a.e("s_nop 1")
        a.e(f"v_add_f32_dpp v{v}, v{v}, v{v} row_bcast:31 row_mask:0xc bank_mask:0xf")
        a.e("s_nop 1")
        a.e(f"v_readlane_b32 s{sdst}, v{v}, 63")
        a.e("s_nop 3")
    def rbf(d, src):
        a.e(f"v_cvt_pk_bf16_f32 v{d}, v{src}, v{src}")
        a.e(f"v_and_b32 v{d}, 0xffff0000, v{d}")
    def w_block(k):
        base = wslot(k); tag = ("W", k); fns = []
        def head():
            a.e(f"s_mul_i32 s{sOA}, s{sTW}, 786432")
            a.e(f"s_mul_i32 s{sOB}, s{sTW}, 196608")
        fns.append(head)
        for i in range(3):
            def f(i=i):
                a.e(f"s_add_u32 m0, s{sW3}, {base + 1024*i}")
                if i == 0: a.e(f"s_add_u32 s{sOB2}, s{sOB}, 24576")
                elif i == 1: a.e(f"s_add_u32 s{sTW}, s{sTW}, 1")
                else: a.e(f"s_cmp_eq_u32 s{sTW}, 10")
                a.vmem(f"buffer_load_dwordx4 v{DA+i}, s[{sWQ}:{sWQ+3}], s{sOA} offen lds", tag)
                if i == 2:
                    a.e(f"s_cselect_b32 s{sTW}, {HYB}, s{sTW}")
                    if HYB and k == 0: a.e(f"s_mov_b32 s{sTW}, s{sR0}")
            fns.append(f)
        for i in range(2):
            def f(i=i):
                a.e(f"s_add_u32 m0, s{sMB0}, {base + 1664*i}")
                a.e(f"s_mov_b64 exec, s[{sEX48}:{sEX48+1}]")
                a.vmem(f"buffer_load_dwordx4 v{DB}, s[{sGU}:{sGU+3}], s{sOB2 if i else sOB} offen lds", tag)
                a.e("s_mov_b64 exec, -1")
            fns.append(f)
        return fns
    W1E = OPT.get("w1e", 0)
    if HYB:
        for f in w_block(0): f()
        if W1E:
            for f in w_block(1): f()
    a.wait_vm("xr")
    XF = 32
    for q in range(8):
        a.e(f"v_lshlrev_b32 v{XF+2*q}, 16, v{24+q}")
        a.e(f"v_and_b32 v{XF+2*q+1}, 0xffff0000, v{24+q}")
    a.e(f"v_add_f32 v48, v{XF}, v{XF+1}")
    a.e(f"v_add_f32 v49, v{XF+2}, v{XF+3}")
    for q in range(4, 16, 2):
        a.e(f"v_add_f32 v48, v48, v{XF+q}")
        a.e(f"v_add_f32 v49, v49, v{XF+q+1}")
    a.e(f"v_add_f32 v48, v48, v49")
    wave_sum(48, sU)
    a.e(f"v_mov_b32 v50, {f32(1.0/640)}")
    a.e(f"v_mul_f32 v50, s{sU}, v50")
    a.e(f"v_cmp_gt_u32 vcc, 40, v{LANE}")
    a.e(f"v_mov_b32 v48, 0")
    a.e(f"v_mov_b32 v49, 0")
    for q in range(16):
        a.e(f"v_sub_f32 v{52+q}, v{XF+q}, v50")
    for q in range(0, 16, 2):
        a.e(f"v_fmac_f32 v48, v{52+q}, v{52+q}")
        a.e(f"v_fmac_f32 v49, v{52+q+1}, v{52+q+1}")
    a.e(f"v_add_f32 v48, v48, v49")
    a.e(f"v_cndmask_b32 v48, 0, v48, vcc")
    wave_sum(48, sU)
    a.e(f"v_mov_b32 v51, {f32(1.0/640)}")
    a.e(f"v_mul_f32 v51, s{sU}, v51")
    rbf(50, 50); rbf(51, 51)
    a.e(f"v_add_f32 v51, {f32(1e-5)}, v51")
    rbf(51, 51)
    a.e(f"v_sqrt_f32 v51, v51")
    a.e("s_nop 0")
    rbf(51, 51)
    a.e(f"v_rcp_f32 v51, v51")
    for q in range(16): a.e(f"v_sub_f32 v{52+q}, v{XF+q}, v50")
    for q in range(8): a.e(f"v_cvt_pk_bf16_f32 v{24+q}, v{52+2*q}, v{52+2*q+1}")
    for q in range(8):
        a.e(f"v_lshlrev_b32 v{XF+2*q}, 16, v{24+q}")
        a.e(f"v_and_b32 v{XF+2*q+1}, 0xffff0000, v{24+q}")
    for q in range(16): a.e(f"v_mul_f32 v{XF+q}, v{XF+q}, v51")
    for q in range(8): a.e(f"v_cvt_pk_bf16_f32 v{24+q}, v{XF+2*q}, v{XF+2*q+1}")
    a.e(f"s_mov_b32 exec_hi, 0xff")
    a.e(f"ds_write_b128 v23, v[24:27]")
    a.e(f"ds_write_b128 v23, v[28:31] offset:16")
    a.e("s_mov_b64 exec, -1")
    a.e("s_waitcnt lgkmcnt(0)")
    a.e("s_barrier")
    a.e(f"ds_read_b128 v[32:35], v21")
    a.e(f"ds_read_b128 v[36:39], v21 offset:128")
    a.e(f"s_lshl_b32 s{sT2}, s{sB}, 3")
    a.e(f"s_add_u32 s{sT2}, s{sT2}, s{sH}")
    a.e(f"s_lshl_b32 s{sT2}, s{sT2}, 7")
    a.e(f"s_cmp_lt_u32 s{sH}, 8")
    a.e(f"s_cselect_b32 s{sT2}, s{sT2}, 0x100000")
    for r in range(40, 44): a.e(f"v_mov_b32 v{r}, 0")
    a.e("s_waitcnt lgkmcnt(0)")
    a.vmem(f"buffer_store_dwordx4 v[32:35], v22, s[{sK}:{sK+3}], 0 offen sc1", "xs")
    a.e("s_mov_b64 exec, 0xffff")
    a.vmem(f"buffer_store_dwordx4 v[36:39], v22, s[{sK}:{sK+3}], 0 offen offset:2048 sc1", "xs")
    a.e(f"s_mov_b64 exec, 1")
    a.vmem(f"buffer_store_dword v40, v40, s[{sFG}:{sFG+3}], s{sT2} offen sc1", "xs")
    a.e(f"s_lshl_b32 s99, s2, 7")
    a.e(f"s_add_u32 s99, s99, 16384")
    a.vmem(f"buffer_store_dwordx4 v[40:43], v40, s[{sFG}:{sFG+3}], s99 offen sc1", "xs")
    a.e(f"s_mov_b64 exec, -1")
    st()

    def kv_block(which, j):
        srdr, vo, base, so = (sK, KA, KSL[j % 3], sKO) if which == "K" else (sV, VB, VSL[j % 3], sVO)
        tag = (which, j); fns = []
        def head():
            a.e(f"s_add_u32 s{so}, s{sB}, {j}")
            a.e(f"s_and_b32 s{so}, s{so}, 7")
            a.e(f"s_mul_i32 s{so}, s{so}, 24576")
        fns.append(head)
        for i in range(3):
            def f(i=i):
                a.e(f"s_add_u32 m0, s{sW3}, {base + 1024*i}")
                a.e("s_nop 0")
                a.vmem(f"buffer_load_dwordx4 v{vo+i}, s[{srdr}:{srdr+3}], s{so} offen lds", tag)
            fns.append(f)
        return fns
    def x_loads(k, ks):
        xb = XSET[k % NXS]; fns = []
        if ks == 0:
            def head():
                a.e(f"s_lshl_b32 s{sXO}, s{sTX}, 11")
                a.e(f"s_add_u32 s{sTX}, s{sTX}, 1")
                a.e(f"s_add_u32 s{sXO2}, s{sXO}, 20480")
                a.e(f"s_cmp_eq_u32 s{sTX}, 10")
                a.e(f"s_cselect_b32 s{sTX}, {HYB}, s{sTX}")
                if HYB and k == 0: a.e(f"s_mov_b32 s{sTX}, s{sR0}")
            fns.append(head)
        for qs in range(2):
            fns.append(lambda qs=qs: a.vmem(f"buffer_load_dwordx4 {vr(xb+8*ks+4*qs,4)}, v{L16}, s[{sX}:{sX+3}], s{sXO2 if qs else sXO} offen offset:{1024*ks} sc1", ("x", k, ks)))
        return fns
    sFO = 99
    sAO, sPO = 100, 101
    def sig_issue(stage, z, o, tag):
        def fn():
            a.e(f"v_mov_b32 v{z}, 0")
            a.e(f"v_mov_b32 v{o}, 1")
            a.e("s_mov_b64 exec, 1")
            a.vmem(f"buffer_atomic_add v{o}, v{z}, s[{sDB_}:{sDB_+3}], s{sAO} offen offset:{4*stage} sc0 sc1", tag)
            a.e("s_mov_b64 exec, -1")
        return fn
    def sig_check(name, stage, tv, tag):
        z, o, ad, pv = tv
        def fn():
            a.wait_vm(tag)
            a.e(f"v_readfirstlane_b32 s{sU2}, v{o}")
            a.e("s_nop 3")
            a.e(f"s_and_b32 s{sU2}, s{sU2}, 31")
            a.e(f"s_cmp_eq_u32 s{sU2}, 31")
            a.e(f"s_cbranch_scc1 L_{name}_sig")
            a.label(f"L_{name}_sigr")
        def stub():
            a.label(f"L_{name}_sig")
            a.e(f"v_lshrrev_b32 v{ad}, 4, v{L16}")
            if stage > 0:
                a.e(f"v_lshlrev_b32 v{z}, 5, v{ad}")
                a.e(f"s_mov_b32 s{sU}, 0")
                a.e("s_mov_b64 exec, 0xff")
                a.label(f"L_{name}_chk")
                a.e(f"buffer_load_dword v{pv}, v{z}, s[{sDB_}:{sDB_+3}], 0 offen sc1")
                a.e(f"s_add_u32 s{sU}, s{sU}, 1")
                a.e("s_waitcnt vmcnt(0)")
                a.e(f"v_add_u32 v{pv}, -1, v{pv}")
                a.e(f"v_and_b32 v{pv}, 0x8000001f, v{pv}")
                a.e(f"v_cmp_ne_u32 vcc, 31, v{pv}")
                a.e(f"s_cbranch_vccz L_{name}_chkd")
                a.e("s_sleep 8")
                a.e(f"s_cmp_lt_u32 s{sU}, 0x20000")
                a.e(f"s_cbranch_scc1 L_{name}_chk")
                a.label(f"L_{name}_chkd")
                a.e("s_mov_b64 exec, -1")
                a.e(f"v_and_b32 v{z}, 3, v{ad}")
                a.e(f"v_lshrrev_b32 v{ad}, 2, v{ad}")
                a.e(f"v_lshl_add_u32 v{ad}, v{ad}, 3, v{z}")
                a.e(f"s_and_b32 s{sU}, s{sB}, 3")
                a.e(f"s_lshl_b32 s{sU}, s{sU}, 6")
                a.e(f"s_and_b32 s{sU2}, s{sB}, 4")
                a.e(f"s_add_u32 s{sU}, s{sU}, s{sU2}")
            else:
                a.e(f"s_lshl_b32 s{sU}, s{sB}, 5")
            a.e(f"s_lshl_b32 s{sU}, s{sU}, 7")
            a.e(f"s_add_u32 s{sU}, s{sU}, 16384")
            a.e(f"v_lshlrev_b32 v{ad}, 7, v{ad}")
            a.e(f"v_mov_b32 v{o}, 1")
            a.e("s_mov_b64 exec, 0xffffffff")
            a.e(f"buffer_store_dword v{o}, v{ad}, s[{sFG}:{sFG+3}], s{sU} offen offset:{4*stage} sc1")
            a.e("s_mov_b64 exec, -1")
            a.e(f"s_branch L_{name}_sigr")
        stubs.append(stub)
        return fn
    def poll_issue2(stage, pv, zv, tag):
        def fn():
            a.e(f"v_mov_b32 v{zv}, 0")
            a.e("s_mov_b64 exec, 1")
            a.vmem(f"buffer_load_dword v{pv}, v{zv}, s[{sFG}:{sFG+3}], s{sPO} offen offset:{4*stage} sc1", tag)
            a.e("s_mov_b64 exec, -1")
        return fn
    def poll_check2(name, stage, pv, zv, tag):
        spin = flag_wait(name, stage, pv, zv)
        def fn():
            a.wait_vm(tag)
            a.e(f"v_readfirstlane_b32 s{sU2}, v{pv}")
            a.e("s_nop 3")
            a.e(f"s_or_b32 s{sU2}, s{sU2}, s{sW}")
            a.e(f"s_cmp_eq_u32 s{sU2}, 0")
            a.e(f"s_cbranch_scc1 L_{name}_spin")
            a.label(f"L_{name}_ok")
        return fn
    def flag_wait(name, stage, pv, zv, after=None):
        def fn():
            a.e(f"s_cmp_eq_u32 s{sW}, 0")
            a.e(f"s_cbranch_scc1 L_{name}_spin")
            a.label(f"L_{name}_ok")
        def stub():
            a.label(f"L_{name}_spin")
            a.e(f"s_mov_b32 s{sU}, 0")
            a.e(f"v_mov_b32 v{zv}, 0")
            a.e("s_mov_b64 exec, 1")
            a.label(f"L_{name}_poll")
            a.e(f"buffer_load_dword v{pv}, v{zv}, s[{sFG}:{sFG+3}], s{sFO} offen offset:{4*stage} sc1")
            a.e(f"s_add_u32 s{sU}, s{sU}, 1")
            a.e("s_waitcnt vmcnt(0)")
            a.e(f"v_cmp_ne_u32 vcc, 1, v{pv}")
            a.e(f"s_cbranch_vccz L_{name}_done")
            a.e(f"s_sleep {OPT.get('slp', 2)}")
            a.e(f"s_cmp_lt_u32 s{sU}, 0x20000")
            a.e(f"s_cbranch_scc1 L_{name}_poll")
            a.label(f"L_{name}_done")
            a.e("s_mov_b64 exec, -1")
            if after: after()
            a.e(f"s_branch L_{name}_ok")
        stubs.append(stub)
        return fn

    if not HYB:
        for f in w_block(0): f()
    a.wait_vm("xs")
    a.e("s_barrier")
    a.e(f"s_lshl_b32 s{sAO}, s{sB}, 5")
    a.e(f"s_cmp_eq_u32 s{sW}, 0")
    a.e(f"s_cselect_b32 s{sAO}, s{sAO}, 0x100000")
    a.e(f"s_cselect_b32 s{sPO}, s{sFO}, 0x100000")
    sig_issue(0, 40, 41, "ax")()
    sig_check("xs", 0, (40, 41, 42, 43), "ax")()
    if HYB and not W1E:
        a.e(f"s_cmp_eq_u32 s{sW}, 0")
        a.e(f"s_cbranch_scc1 L_w1_skip")
        for f in w_block(1): f()
        a.label("L_w1_skip")
    st()
    a.e(f"s_lshl_b32 s{sT2}, s{sB}, 3")
    a.e(f"s_add_u32 s{sT2}, s{sT2}, s{sW}")
    a.e(f"s_mul_i32 s{sU}, s{sT2}, 40960")
    a.e(f"s_add_u32 s{sU}, s{sU}, {WS_X}")
    srd(a, sX, 26, 27, f"s{sU}", "40960")
    a.e(f"s_mul_i32 s{sT2}, s{sT2}, {2*A_MB}")
    srd(a, sWS, 26, 27, f"s{sT2}", f"{2*A_MB}")
    a.e(f"s_mul_i32 s{sT2}, s{sH}, 786432")
    a.e(f"s_add_u32 s{sT2}, s{sT2}, {1536*384}")
    srd(a, sK, 6, 7, f"s{sT2}", "196608")
    srd(a, sV, 8, 9, f"s{sT2}", "196608")
    for i in range(3): voffs(i, "KV")
    a.e(f"v_lshrrev_b32 v{t+1}, 4, v{LANE}")
    a.e(f"v_bfe_u32 v{t+3}, v{LANE}, 2, 2")
    a.e(f"v_and_b32 v{t+4}, 3, v{LANE}")
    a.e(f"v_lshlrev_b32 v{t+4}, 3, v{t+4}")
    a.e(f"v_bfe_u32 v{t+5}, v{LANE}, 3, 2")
    a.e(f"v_lshl_add_u32 v{t+7}, v{t+1}, 3, v{t+3}")
    a.e(f"v_mul_u32_u24 v{t+8}, 384, v{t+7}")
    a.e(f"v_add_u32 v{t+8}, v{t+8}, v{t+4}")
    a.e(f"v_add_u32 v{t+8}, {2*WSLOT}, v{t+8}")
    for i in range(4):
        a.e(f"v_xor_b32 v{t+9}, {i}, v{t+5}")
        a.e(f"v_lshl_add_u32 v{AWQ+i}, v{t+9}, 5, v{t+8}")
    a.e(f"v_mul_u32_u24 v{t+8}, 1664, v{t+1}")
    a.e(f"v_mul_u32_u24 v{t+9}, 96, v{t+3}")
    a.e(f"v_add3_u32 v{t+8}, v{t+8}, v{t+9}, v{t+4}")
    a.e(f"v_add_u32 v{AGU}, {GOFF + 2*WSLOT}, v{t+8}")
    for i in range(4): a.e(f"v_mov_b32 v{ONES+i}, 0x3f803f80")
    a.wait_vm(("W", 0))
    st()
    def w1_late():
        if HYB and not W1E:
            for f in w_block(1): f()
    flag_wait("px", 0, 42, 43, w1_late)()
    a.e("s_barrier")
    st()
    for f in x_loads(0, 0) + x_loads(0, 1): f()

    sa = Stream(a, FR)
    tile_first_frag = []; tile_gap0 = []
    addr_regs = [AWQ, AWQ + 1, AWQ + 2, AWQ + 3, AGU]
    started = set()
    def C0(d):
        if d in started: return None
        started.add(d); return "0"
    T = TP + 3
    order9 = [12, 15, 13, 16, 14, 17] + list(range(12))
    g_blk = {}
    for k in range(10):
        xs_ = XSET[k % NXS]
        wb = 0 if wslot(k) < 2 * WSLOT else 2 * WSLOT
        so = wslot(k) - wb
        tile_first_frag.append(len(sa.frags)); tile_gap0.append(sa.n())
        def main(ks, jb):
            xb = xs_ + 8 * ks
            if jb < 12:
                rd = [lambda b, tt=tt: f"ds_read_b64_tr_b16 {vr(b+2*tt,2)}, v{AWQ+(jb&3)} offset:{so+(32*ks+4*tt)*384+(jb>>2)*128}" for tt in range(2)]
            else:
                jj = (jb - 12) % 3; up = (jb - 12) // 3
                rd = [lambda b, tt=tt: f"ds_read_b64_tr_b16 {vr(b+2*tt,2)}, v{AGU} offset:{so+ks*6656+tt*384+up*768+jj*32}" for tt in range(2)]
            sa.frag(rd, [lambda b, qs=qs: mfma_t(ACC(jb, qs), b, xb + 4 * qs, C0(ACC(jb, qs))) for qs in range(2)])
        if k < 9:
            for ks in range(2):
                sa.add_pre(sa.n(), lambda k=k, ks=ks: a.wait_vm(("x", k, ks)))
                for jb in range(18): main(ks, jb)
        else:
            sa.add_pre(sa.n(), lambda: a.wait_vm(("x", 9, 1)))
            for jb in order9:
                main(0, jb); main(1, jb); g_blk[jb] = sa.n()
    tile_first_frag.append(len(sa.frags)); tile_gap0.append(sa.n())
    NG = sa.n()
    KVL = 1
    issue = {k: {"w": [], "x": []} for k in range(10)}
    for k in range(1, 10):
        if not (HYB and k == 1): issue[max(k - 2, 0)]["w"] += w_block(k)
        issue[max(k - (NXS - 1), 1 if k >= 2 else 0)]["x"] += x_loads(k, 0) + x_loads(k, 1)
    KVM = OPT.get("kvm", 1)
    kb0 = kv_block("K", 0); vb0 = kv_block("V", 0)
    if KVM == 0:
        issue[8]["w"] += kb0 + vb0
    elif KVM == 1:
        pieces = [kb0[:2], kb0[2:3], kb0[3:], vb0[:2], vb0[2:3], vb0[3:]]
        for n in range(6): sa.spread(pieces[n], tile_gap0[n + 2] + 63, tile_gap0[n + 2] + 65)
    elif KVM == 2:
        sa.spread(kb0 + vb0, tile_gap0[7] + 30, tile_gap0[7] + 64)
    elif KVM == 3:
        sa.spread(kb0, tile_gap0[7] + 30, tile_gap0[7] + 64)
        issue[8]["w"] += vb0
    for k in range(9):
        g0 = tile_gap0[k]
        if k == 0 and HYB:
            sa.spread(issue[0]["x"][:5], OPT.get("x1a", 0), OPT.get("x1a", 0) + 10)
            sa.spread(issue[0]["w"] + issue[0]["x"][5:], OPT.get("r1b", 36), 64)
        elif k == 0:
            sa.spread(issue[0]["w"][:6] + issue[0]["x"][:5], 0, 18)
            sa.spread(issue[0]["x"][5:] + issue[0]["w"][6:], OPT.get("r1b", 36), 64)
        elif k == 7 and KVM >= 2:
            sa.spread(issue[k]["w"], g0, g0 + 28)
            sa.spread(issue[k]["x"], g0 + 1, g0 + 28)
        else:
            sa.spread(issue[k]["w"], g0 + (OPT.get("kvo", 0) if k == 8 else 0), g0 + 62)
            sa.spread(issue[k]["x"], g0 + 3, g0 + 60)
    sa.spread(kv_block("K", 1) + kv_block("V", 1) + kv_block("K", 2), tile_gap0[9] + 1, tile_gap0[9] + 26)
    for k in range(9):
        gb = sa.read_gap(tile_first_frag[k + 1])
        def bar(k=k):
            a.wait_vm(("W", k + 1))
            a.e("s_waitcnt lgkmcnt(0)"); a.lgkm = []
            a.e("s_barrier")
            st(fine=True)
            w0 = 0 if wslot(k) < 2 * WSLOT else 2 * WSLOT
            w1 = 0 if wslot(k + 1) < 2 * WSLOT else 2 * WSLOT
            if w0 != w1:
                for r in addr_regs: a.e(f"v_add_u32 v{r}, {(w1-w0) & 0xffffffff}, v{r}")
        sa.add_pre(gb, bar)
    G0 = T + 2; HT = 208
    sC = sFL
    epi = [(E(a, f"v_mov_b32 v{G0}, {f32(GELU_C0)}"), tile_gap0[9]), (E(a, f"s_mul_i32 s{sHO}, s{sH}, 3"), tile_gap0[9]),
           (E(a, f"s_mov_b32 s{sC}, {f32(SCALE_C)}"), tile_gap0[9])]
    for n, jb in enumerate(order9):
        ge = g_blk[jb] + 3
        L_ = []
        if jb >= 15:
            jj = jb - 15
            g0 = ACC(12 + jj, 0); u0 = ACC(jb, 0)
            for r in range(8): L_.append(f"v_mul_f32 v{HT+r}, v{g0+r}, v{g0+r}")
            for r in range(8): L_.append(f"v_fma_f32 v{HT+r}, v{HT+r}, s{sG1}, v{G0}")
            for r in range(8): L_.append(f"v_mul_f32 v{HT+r}, v{HT+r}, v{g0+r}")
            for r in range(8): L_.append(f"v_exp_f32 v{HT+r}, v{HT+r}")
            for r in range(8): L_.append(f"v_mul_f32 v{g0+r}, v{g0+r}, v{u0+r}")
            for r in range(8): L_.append(f"v_add_f32 v{HT+r}, 1.0, v{HT+r}")
            for r in range(8): L_.append(f"v_rcp_f32 v{HT+r}, v{HT+r}")
            L_.append(f"s_add_u32 s{sT}, s{sHO}, {jj}")
            for r in range(8): L_.append(f"v_mul_f32 v{g0+r}, v{g0+r}, v{HT+r}")
            hp = 216 + 4 * jj if jj < 2 else u0
            for q in range(4): L_.append(f"v_cvt_pk_bf16_f32 v{hp+q}, v{g0+2*q}, v{g0+2*q+1}")
            for x_ in L_: epi.append((E(a, x_), ge))
            def hstore(hp=hp):
                a.e(f"s_and_b32 s{sT2}, s{sT}, 1")
                a.e(f"s_lshr_b32 s{sT}, s{sT}, 1")
                a.e(f"s_lshl_b32 s{sT}, s{sT}, 10")
                a.e(f"s_lshl_b32 s{sT2}, s{sT2}, 3")
                a.e(f"s_add_u32 s{sT}, s{sT}, s{sT2}")
                a.e(f"s_add_u32 s{sT}, s{sT}, {192*1024}")
                a.e(f"s_add_u32 s{sT2}, s{sT}, {A_MB}")
                a.vmem(f"buffer_store_dwordx2 {vr(hp,2)}, v{L16}, s[{sWS}:{sWS+3}], s{sT} offen{OPT.get('hsf',' sc1')}", "hst")
                a.vmem(f"buffer_store_dwordx2 {vr(hp+2,2)}, v{L16}, s[{sWS}:{sWS+3}], s{sT2} offen{OPT.get('hsf',' sc1')}", "hst")
            epi.append((hstore, ge))
        elif jb < 12:
            s_, e_ = divmod(jb, 2)
            for qs in range(2):
                ac = ACC(jb, qs)
                for r in range(4): L_.append(f"v_mul_f32 v{ac+r}, s{sC}, v{ac+r}")
            for qs in range(2):
                ac = ACC(jb, qs)
                for q in range(2): L_.append(f"v_cvt_pk_bf16_f32 v{QP(qs,s_)+2*e_+q}, v{ac+2*q}, v{ac+2*q+1}")
            if e_ == 1:
                L_.append("s_nop 1")
                for qs in range(2):
                    for q in range(2): L_.append(f"v_permlane32_swap_b32 v{QP(qs,s_)+q}, v{QP(qs,s_)+2+q}")
                L_.append("s_nop 0")
                for qs in range(2):
                    for q in range(2): L_.append(f"v_permlane16_swap_b32 v{QP(qs,s_)+q}, v{QP(qs,s_)+2+q}")
            for x_ in L_: epi.append((E(a, x_), ge))
    per = OPT.get("epi_per", 2)
    g = tile_gap0[9]; cnt = 0; n_in = 0
    for (fn, ge) in epi:
        if ge > g: g = ge; cnt = 0
        if g >= NG - 1: break
        sa.add_post(g, fn); n_in += 1; cnt += 1
        if cnt >= per: g += 1; cnt = 0
    sa.emit()
    st()
    a.e("s_nop 7")
    for (fn, ge) in epi[n_in:]: fn()
    T = TP
    kwin = lambda j: KSL[0] if j % 3 == 0 else 0
    vwin = lambda j: VSL[0] if j % 3 == 0 else VSL[1]
    a.e(f"v_lshrrev_b32 v{T}, 4, v{L16}")
    a.e(f"v_lshrrev_b32 v{T+1}, 4, v{T}")
    a.e(f"v_bfe_u32 v{T+3}, v{T}, 2, 2")
    a.e(f"v_and_b32 v{T+4}, 3, v{T}")
    a.e(f"v_lshlrev_b32 v{T+4}, 3, v{T+4}")
    a.e(f"v_bfe_u32 v{T+5}, v{T}, 3, 2")
    a.e(f"v_lshl_add_u32 v{T+3}, v{T+1}, 2, v{T+3}")
    a.e(f"v_mul_u32_u24 v{T+3}, 384, v{T+3}")
    a.e(f"v_add_u32 v{T+3}, v{T+3}, v{T+4}")
    a.e(f"v_add_u32 v{T+3}, {vwin(0)}, v{T+3}")
    for i in range(4):
        a.e(f"v_xor_b32 v{T+4}, {i}, v{T+5}")
        a.e(f"v_lshl_add_u32 v{VR+i}, v{T+4}, 5, v{T+3}")
    a.e(f"v_and_b32 v{T+3}, 15, v{T}")
    a.e(f"v_bfe_u32 v{T+5}, v{T}, 1, 3")
    a.e(f"v_mul_u32_u24 v{T+3}, 384, v{T+3}")
    a.e(f"v_add_u32 v{T+3}, {kwin(0)}, v{T+3}")
    for i in range(2):
        a.e(f"v_add_u32 v{T+4}, {4*i}, v{T+1}")
        a.e(f"v_xor_b32 v{T+4}, v{T+4}, v{T+5}")
        a.e(f"v_lshl_add_u32 v{KR[i]}, v{T+4}, 4, v{T+3}")
    a.e(f"v_mov_b32 v{LS}, 0")
    a.e(f"v_mov_b32 v{LS+1}, 0")
    a.e(f"s_mov_b32 s{sTHR}, {f32(2.0**60)}")
    if KVL:
        a.wait_vm(("K", 0))
        a.e("s_barrier")
    st()

    def exp_ops(kb):
        u, e_ = divmod(kb, 2)
        o = []
        for r in range(4): o.append(f"v_exp_f32 v{TP+r}, v{S(kb,0)+r}")
        o.append(f"v_exp_f32 v{TP+4}, v{S(kb,1)}")
        o.append(f"v_cvt_pk_bf16_f32 v{P(0,u)+2*e_}, v{TP}, v{TP+1}")
        o.append(f"v_exp_f32 v{TP+5}, v{S(kb,1)+1}")
        o.append(f"v_cvt_pk_bf16_f32 v{P(0,u)+2*e_+1}, v{TP+2}, v{TP+3}")
        o.append(f"v_exp_f32 v{TP+6}, v{S(kb,1)+2}")
        o.append(f"v_exp_f32 v{TP+7}, v{S(kb,1)+3}")
        o.append(f"v_cvt_pk_bf16_f32 v{P(1,u)+2*e_}, v{TP+4}, v{TP+5}")
        o.append(f"v_cvt_pk_bf16_f32 v{P(1,u)+2*e_+1}, v{TP+6}, v{TP+7}")
        return o
    def rowmax_ops(u, D, X):
        o = []
        for qs in range(2):
            s0 = S(2 * u, qs); s1 = S(2 * u + 1, qs)
            o.append(f"v_max3_f32 v{D[qs]}, v{s0}, v{s0+1}, v{s0+2}")
            o.append(f"v_max3_f32 v{D[qs]}, v{D[qs]}, v{s0+3}, v{s1}")
            o.append(f"v_max3_f32 v{D[qs]}, v{D[qs]}, v{s1+1}, v{s1+2}")
            o.append(f"v_max_f32 v{D[qs]}, v{D[qs]}, v{s1+3}")
        for sw in ("v_permlane32_swap_b32", "v_permlane16_swap_b32"):
            for qs in range(2): o.append(f"v_mov_b32 v{X+qs}, v{D[qs]}")
            o.append("s_nop 1")
            for qs in range(2): o.append(f"{sw} v{D[qs]}, v{X+qs}")
            for qs in range(2): o.append(f"v_max_f32 v{D[qs]}, v{D[qs]}, v{X+qs}")
        return o
    def slow_stub(u):
        a.label(f"L_{K}_slow{u}")
        a.e("s_nop 15")
        D = [TP, TP + 1]; AL = [TP + 2, TP + 3]; X = TP + 4
        for tx in rowmax_ops(u, D, X): a.e(tx)
        for qs in range(2):
            a.e(f"v_max_f32 v{D[qs]}, 0, v{D[qs]}")
            a.e(f"v_exp_f32 v{AL[qs]}, -v{D[qs]}")
        for qs in range(2):
            for r in range(4): a.e(f"v_sub_f32 v{NEGM(qs)+r}, v{NEGM(qs)+r}, v{D[qs]}")
            for kb in range(4):
                for r in range(4): a.e(f"v_sub_f32 v{S(kb,qs)+r}, v{S(kb,qs)+r}, v{D[qs]}")
            a.e(f"v_mul_f32 v{LS+qs}, v{LS+qs}, v{AL[qs]}")
            for jb in range(12):
                for r in range(4): a.e(f"v_mul_f32 v{O(jb,qs)+r}, v{O(jb,qs)+r}, v{AL[qs]}")
        for kb in (2 * u, 2 * u + 1):
            for tx in exp_ops(kb): a.e(tx)
        a.e("s_nop 1")
        for qs in range(2): a.e(mfma_t(LT(qs), ONES, P(qs, u), "0"))
        a.e("s_nop 7")
        a.e(f"s_setpc_b64 s[{sRET}:{sRET+1}]")
    def check(j, u):
        def fn():
            a.e(f"v_max_f32 v{LT(0)+1}, v{LT(0)}, v{LT(1)}")
            a.e(f"v_cmp_nge_f32 vcc, s{sTHR}, v{LT(0)+1}")
            a.e(f"s_cbranch_vccnz L_{K}_tr{j}_{u}")
            a.label(f"L_{K}_back{j}_{u}")
        def stub():
            a.label(f"L_{K}_tr{j}_{u}")
            a.e(f"s_call_b64 s[{sRET}:{sRET+1}], L_{K}_slow{u}")
            a.e(f"s_branch L_{K}_back{j}_{u}")
        stubs.append(stub)
        return fn

    sb = Stream(a, FR)
    seg = {}
    def QK(j, u, sum_of=None):
        ko = KSL[j % 3] - kwin(j); g0 = sb.n(); f0 = len(sb.frags)
        for kb in (2 * u, 2 * u + 1):
            for s_ in range(6):
                c0 = ("0" if j == 0 else "negm") if s_ == 0 else None
                sb.frag([lambda b: f"ds_read_b128 {vr(b,4)}, v{KR[s_&1]} offset:{ko+kb*6144+(s_>>1)*128}"],
                        [lambda b, qs=qs: mfma_t(S(kb, qs), b, QP(qs, s_), NEGM(qs) if c0 == "negm" else c0) for qs in range(2)])
                if sum_of is not None and kb == 2 * u + 1 and s_ == 2:
                    seg[("sum", sum_of)] = sb.n()
                    for qs in range(2): sb.mfma(mfma_t(LT(qs), ONES, P(qs, sum_of[1]), "0"))
        seg[("QK", j, u)] = (g0, sb.n(), f0)
    def PV(j, u, sum_of=None):
        vo = VSL[j % 3] - vwin(j); g0 = sb.n(); f0 = len(sb.frags)
        if not (j == 0 and u == 0) and not OPT.get("nocheck"): sb.add_pre(g0, check(j, u))
        sb.add_post(g0, E(a, f"v_add_f32 v{LS}, v{LS}, v{LT(0)}"))
        sb.add_post(g0 + 1, E(a, f"v_add_f32 v{LS+1}, v{LS+1}, v{LT(1)}"))
        for jb in range(12):
            sb.frag([lambda b, tt=tt: f"ds_read_b64_tr_b16 {vr(b+2*tt,2)}, v{VR+(jb&3)} offset:{vo+(32*u+16*tt)*384+(jb>>2)*128}" for tt in range(2)],
                    [lambda b, qs=qs: mfma_t(O(jb, qs), b, P(qs, u), "0" if (j == 0 and u == 0) else None) for qs in range(2)])
            if sum_of is not None and jb == 8:
                seg[("sum", sum_of)] = sb.n()
                for qs in range(2): sb.mfma(mfma_t(LT(qs), ONES, P(qs, sum_of[1]), "0"))
        seg[("PV", j, u)] = (g0, sb.n(), f0)
    QK(0, 0)
    for j in range(8):
        QK(j, 1, sum_of=(j, 0))
        if j < 7:
            PV(j, 0); QK(j + 1, 0, sum_of=(j, 1)); PV(j, 1)
        else:
            PV(j, 0, sum_of=(j, 1)); PV(j, 1)
    NG = sb.n()
    for j in range(8):
        for u in range(2):
            g0 = seg[("QK", j, u)][1] + 3; g1 = seg[("sum", (j, u))] - 2
            ops = exp_ops(2 * u) + exp_ops(2 * u + 1)
            if j == 0 and u == 0:
                D = [LT(0), LT(1)]
                pre = rowmax_ops(0, D, TP)
                for qs in range(2):
                    for kb in range(2):
                        for r in range(4): pre.append(f"v_sub_f32 v{S(kb,qs)+r}, v{S(kb,qs)+r}, v{D[qs]}")
                for qs in range(2):
                    for r in range(4): pre.append(f"v_sub_f32 v{NEGM(qs)+r}, 0, v{D[qs]}")
                ops = pre + ops
            if j == 0 and u == 1:
                pre = []
                for qs in range(2):
                    for kb in range(2, 4):
                        for r in range(4): pre.append(f"v_add_f32 v{S(kb,qs)+r}, v{S(kb,qs)+r}, v{NEGM(qs)}")
                ops = pre + ops
            if not OPT.get("noexp"): sb.spread([E(a, x) for x in ops], g0, g1)
    for j in range(8):
        gb = sb.read_gap(seg[("PV", j, 0)][2])
        def vbar(j=j):
            a.wait_vm(("V", j))
            if not OPT.get("nobar"): a.e("s_barrier")
        sb.add_pre(gb, vbar)
        if j > 0 and vwin(j) != vwin(j - 1):
            sb.spread([E(a, f"v_add_u32 v{VR+r}, {(vwin(j)-vwin(j-1)) & 0xffffffff}, v{VR+r}") for r in range(4)], gb - 9, gb - 1)
        if j + 2 < 8 and not OPT.get("nodma"): sb.spread(kv_block("V", j + 2), gb + 2, gb + 20)
        if j < 7:
            gb = sb.read_gap(seg[("QK", j + 1, 0)][2])
            def kbar(j=j):
                a.wait_vm(("K", j + 1))
                if not OPT.get("nobar"): a.e("s_barrier")
                st(fine=True)
            sb.add_pre(gb, kbar)
            if kwin(j) != kwin(j + 1):
                sb.spread([E(a, f"v_add_u32 v{r}, {(kwin(j+1)-kwin(j)) & 0xffffffff}, v{r}") for r in KR], gb - 6, gb - 1)
            if j + 3 < 8 and not OPT.get("nodma"): sb.spread(kv_block("K", j + 3), gb + 2, gb + 20)
    ACC2 = lambda nb, qs: (nb * 2 + qs) * 4
    ACCF = lambda nb, qs: 176 + (nb * 2 + qs) * 4
    NSET = 4
    OF = 80; FR2 = OF + 16 * NSET
    AW = 160; AF = 162; TM2 = 164
    DF = [243, 244, 245, 247, 254]
    DW = [216, 217, 218, 219, 220]
    ZV, ONEV, PV_ = 221, 222, 223
    sO, sWr, sP = 28, 32, 36
    sS, sMT, sNT, sG, sMBk, sOW, sM0, sOO, sKG, sTW2, sTO = 55, 56, 57, 58, 59, 60, 61, 62, 63, 64, 65
    sOO2, sOB_, sWB, sPER, sR12 = 78, 79, 80, 81, 96
    sCH, sCO = 86, 87
    sXo, sOut = 40, 44
    SLOT = 40960
    NF, NA = 6, 12; NT2 = NF + NA
    slot2 = lambda k: ((k + 2) % 4) * SLOT
    win = lambda k: 0 if slot2(k) < 2 * SLOT else 2 * SLOT
    su = []
    def S_(tx): su.append(E(a, tx))
    def grp(*txs):
        def f():
            for tx in txs: a.e(tx)
        su.append(f)
    grp(f"s_and_b32 s{sS}, s2, 3", f"s_bfe_u32 s{sU}, s2, 0x10002", f"s_lshr_b32 s{sU2}, s2, 3")
    grp(f"s_and_b32 s{sNT}, s{sU2}, 3", f"s_lshr_b32 s{sMT}, s{sU2}, 2")
    grp(f"s_mul_i32 s{sTW2}, s{sMT}, {NF}", f"s_lshr_b32 s{sTW2}, s{sTW2}, 3", f"s_mov_b32 s{sTO}, s{sTW2}")
    grp(f"s_mul_i32 s{sR12}, s{sMT}, {NA}", f"s_lshr_b32 s{sR12}, s{sR12}, 3")
    grp(f"s_lshl_b32 s{sU}, s{sU}, 3", f"s_add_u32 s{sMT}, s{sMT}, s{sU}", f"s_lshr_b32 s{sG}, s{sW}, 2")
    grp(f"s_and_b32 s{sU}, s{sW}, 3", f"s_lshl_b32 s{sMBk}, s{sMT}, 2", f"s_add_u32 s{sMBk}, s{sMBk}, s{sU}")
    grp(f"s_mul_i32 s{sM0}, s{sW}, 5120", f"s_lshr_b32 s{sKG}, s{sW}, 1")
    grp(f"s_lshr_b32 s{sCO}, s{sMT}, 1", f"s_lshl_b32 s{sCO}, s{sCO}, 5", f"s_add_u32 s{sCH}, s{sCO}, 16")
    su_early = list(su); su.clear()
    grp(f"s_and_b32 s{sU}, s{sW}, 1", f"s_lshl_b32 s{sU}, s{sU}, 5")
    t0, t1, t2 = KA, KA + 1, KA + 2
    for i in range(5):
        S_(f"v_lshrrev_b32 v{t0}, 4, v{L16}")
        S_(f"v_add_u32 v{t0}, {64*i}, v{t0}")
        S_(f"v_mul_u32_u24 v{t1}, 6554, v{t0}")
        S_(f"v_lshrrev_b32 v{t1}, 16, v{t1}")
        S_(f"v_mul_u32_u24 v{t2}, 10, v{t1}")
        S_(f"v_sub_u32 v{t2}, v{t0}, v{t2}")
        S_(f"v_add_u32 v{t1}, s{sU}, v{t1}")
        S_(f"v_mul_u32_u24 v{t1}, 1280, v{t1}")
        S_(f"v_lshl_add_u32 v{DF[i]}, v{t2}, 4, v{t1}")
    su_v = list(su); su.clear()
    grp(f"s_mul_i32 s{sWB}, s{sKG}, {NF*64*1280}", f"s_mul_i32 s{sOB_}, s{sKG}, {NF*2048}", f"s_add_u32 s{sOB_}, s{sOB_}, {192*1024}")
    def f_():
        a.e(f"s_mul_i32 s{sU2}, s{sNT}, 320")
        a.e(f"s_and_b32 s{sU}, s{sS}, 1")
        a.e(f"s_mul_i32 s{sU}, s{sU}, 160")
        a.e(f"s_add_u32 s{sU2}, s{sU2}, s{sU}")
        srd(a, sWr, 20, 21, f"s{sU2}", "0")
        a.e(f"s_sub_u32 s{sWr+2}, {1536*1280}, s{sU2}")
    su.append(f_)
    def f_():
        a.e(f"s_lshl_b32 s{sU2}, s{sMT}, 2")
        a.e(f"s_and_b32 s{sU}, s{sS}, 2")
        a.e(f"s_add_u32 s{sU2}, s{sU2}, s{sU}")
        a.e(f"s_and_b32 s{sU}, s{sW}, 1")
        a.e(f"s_add_u32 s{sU2}, s{sU2}, s{sU}")
        a.e(f"s_mul_i32 s{sU2}, s{sU2}, {2*A_MB}")
        srd(a, sO, 26, 27, f"s{sU2}", f"{2*A_MB}")
    su.append(f_)
    su_s = list(su); su.clear(); su.extend(su_v)
    def w2_block(k):
        base = slot2(k); tag = ("W2", k); fns = []
        per = NF if k < NF else NA; vo = DF if k < NF else DW
        def head():
            if k == NF:
                a.e(f"s_mul_i32 s{sU2}, s{sNT}, 320")
                srd(a, sWr, 12, 13, f"s{sU2}", "0")
                a.e(f"s_sub_u32 s{sWr+2}, {6144*1280}, s{sU2}")
                a.e(f"s_lshl_b32 s{sU}, s{sS}, 1")
                a.e(f"s_add_u32 s{sU}, s{sU}, s{sG}")
                a.e(f"s_mul_i32 s{sWB}, s{sU}, {NA*64*1280}")
                a.e(f"s_mov_b32 s{sTW2}, s{sR12}")
            a.e(f"s_mul_i32 s{sOW}, s{sTW2}, {64*1280}")
            a.e(f"s_add_u32 s{sOW}, s{sOW}, s{sWB}")
        fns.append(head)
        for i in range(5):
            def f(i=i):
                a.e(f"s_add_u32 m0, s{sM0}, {base + 1024*i}")
                if i == 0: a.e(f"s_add_u32 s{sTW2}, s{sTW2}, 1")
                elif i == 1: a.e(f"s_cmp_eq_u32 s{sTW2}, {per}")
                else: a.e("s_nop 0")
                a.vmem(f"buffer_load_dwordx4 v{vo[i]}, s[{sWr}:{sWr+3}], s{sOW} offen lds", tag)
                if i == 1: a.e(f"s_cselect_b32 s{sTW2}, 0, s{sTW2}")
            fns.append(f)
        return fns
    def poll_issue(soff, tag):
        return lambda: a.vmem(f"buffer_load_dword v{PV_}, v{ZV}, s[{sDB_}:{sDB_+3}], s{soff} offen sc1", tag)
    def poll_check(name, srdr, soff, target, tag):
        def fn():
            a.wait_vm(tag)
            a.e(f"v_readfirstlane_b32 s{sU2}, v{PV_}")
            a.e("s_nop 3")
            a.e(f"s_cmp_ge_u32 s{sU2}, {target}")
            a.e(f"s_cbranch_scc0 L_{name}_spin")
            a.label(f"L_{name}_ok")
        def stub():
            a.label(f"L_{name}_spin")
            a.e(f"s_mov_b32 s{sU}, 0")
            a.label(f"L_{name}_poll")
            a.e(f"s_sleep {OPT.get('slp', 8)}")
            a.e(f"buffer_load_dword v{PV_}, v{ZV}, s[{srdr}:{srdr+3}], s{soff} offen sc1")
            a.e("s_waitcnt vmcnt(0)")
            a.e(f"v_readfirstlane_b32 s{sU2}, v{PV_}")
            a.e(f"s_add_u32 s{sU}, s{sU}, 1")
            a.e("s_nop 1")
            a.e(f"s_cmp_ge_u32 s{sU2}, {target}")
            a.e(f"s_cbranch_scc1 L_{name}_ok")
            a.e(f"s_cmp_lt_u32 s{sU}, 0x20000")
            a.e(f"s_cbranch_scc1 L_{name}_poll")
            a.e(f"s_branch L_{name}_ok")
        stubs.append(stub)
        return fn
    def signal(name, srdr, soff_expr, zv, onev):
        def fn():
            a.e(f"s_cmp_eq_u32 s{sW}, 0")
            a.e(f"s_cbranch_scc1 L_{name}_sig")
            a.label(f"L_{name}_sigr")
        def stub():
            a.label(f"L_{name}_sig")
            for tx in soff_expr: a.e(tx)
            a.e(f"v_mov_b32 v{zv}, 0")
            a.e(f"v_mov_b32 v{onev}, 1")
            a.e("s_mov_b64 exec, 1")
            a.e(f"buffer_atomic_add v{onev}, v{zv}, s[{srdr}:{srdr+3}], s{sU} offen sc1")
            a.e("s_mov_b64 exec, -1")
            a.e(f"s_branch L_{name}_sigr")
        stubs.append(stub)
        return fn
    def o_loads(k, ks):
        par = (k + 1) % NSET; fns = []
        per = NF if k < NF else NA
        if ks == 0:
            def head():
                if k == NF:
                    a.e(f"s_mul_i32 s{sU2}, s{sMBk}, {2*A_MB}")
                    srd(a, sO, 26, 27, f"s{sU2}", f"{2*A_MB}")
                    a.e(f"s_lshl_b32 s{sU}, s{sS}, 1")
                    a.e(f"s_add_u32 s{sU}, s{sU}, s{sG}")
                    a.e(f"s_mul_i32 s{sOB_}, s{sU}, {NA*2048}")
                    a.e(f"s_mov_b32 s{sTO}, s{sR12}")
                a.e(f"s_lshl_b32 s{sOO}, s{sTO}, 11")
                a.e(f"s_add_u32 s{sOO}, s{sOO}, s{sOB_}")
                a.e(f"s_add_u32 s{sTO}, s{sTO}, 1")
                a.e(f"s_cmp_eq_u32 s{sTO}, {per}")
                a.e(f"s_cselect_b32 s{sTO}, 0, s{sTO}")
                a.e(f"s_add_u32 s{sOO2}, s{sOO}, {A_MB}")
            fns.append(head)
        for qs in range(2):
            fns.append(lambda qs=qs: a.vmem(f"buffer_load_dwordx4 {vr(OF+16*par+8*ks+4*qs,4)}, v{L16}, s[{sO}:{sO+3}], s{sOO2 if qs else sOO} offen offset:{1024*ks} sc1", ("o", k, ks)))
        return fns
    gk = lambda j: sb.read_gap(seg[("QK", j + 1, 0)][2])
    gv = lambda j: sb.read_gap(seg[("PV", j, 0)][2])
    sb.pre[gk(1)].insert(0, lambda: a.wait_vm("hst"))
    sb.add_pre(gk(1), sig_issue(1, 243, 244, "ah"))
    sb.add_pre(gk(1) + 40, sig_check("hs", 1, (243, 244, 245, 247), "ah"))
    sb.spread(su_early, gk(1) + 22, gk(1) + 39)
    if OPT.get("pfw2", 1):
        PW, PD = 245, 247
        sPF = 36
        def pfs():
            a.e(f"v_lshlrev_b32 v{PW}, 3, v{L16}")
            a.e(f"v_mov_b32 v{PD}, 0x1000000")
            a.e(f"v_cmp_gt_u32 vcc, {15*128}, v{PW}")
            a.e(f"s_lshr_b32 s{sU}, s2, 3")
            a.e(f"s_lshl_b32 s{sU}, s{sU}, 3")
            a.e(f"v_cndmask_b32 v{PW}, v{PD}, v{PW}, vcc")
            a.e(f"s_add_u32 s{sU}, s{sU}, s{sW}")
            a.e(f"s_mul_i32 s{sU}, s{sU}, 7680")
            a.e(f"s_mul_i32 s{sU2}, s{sS}, {1536*1280}")
            a.e(f"s_add_u32 s{sU}, s{sU}, s{sU2}")
            srd(a, sPF, 12, 13, f"s{sU}", "7680")
        sb.add_post(gk(1) + 42, pfs)
        for n in range(4):
            sb.add_post(gk(1 + n) + 60, lambda n=n: a.vmem(f"buffer_load_dword v{PD}, v{PW}, s[{sPF}:{sPF+3}], 0 offen offset:{1920*n if n < 2 else 0}" if n < 2 else
                                                             f"buffer_load_dword v{PD}, v{PW}, s[{sPF}:{sPF+3}], s{sPER} offen offset:{1920*(n-2)}", "pf"))
        sb.add_post(gk(1) + 44, E(a, f"s_mov_b32 s{sPER}, 3840"))
        def pfd():
            a.e(f"s_lshl_b32 s{sU}, s2, 3")
            a.e(f"s_add_u32 s{sU}, s{sU}, s{sW}")
            a.e(f"s_mul_i32 s{sU}, s{sU}, 960")
            srd(a, sPF, 20, 21, f"s{sU}", "960")
            a.vmem(f"buffer_load_dword v{PD}, v{PW}, s[{sPF}:{sPF+3}], 0 offen", "pf")
        if not OPT.get("pff", 0): sb.add_post(gk(4) + 66, pfd)
        sb.add_pre(gv(5) + 24, lambda: a.wait_vm("pf"))
    sb.spread(su_s, gk(2) + 24, gk(2) + 40)
    sb.add_post(gk(3) + 30, poll_issue2(1, 243, 244, "ph"))
    sb.pre[gk(4)].insert(0, poll_check2("ph", 1, 243, 244, "ph"))
    if OPT.get("pff", 0):
        q0, q1, q2 = KA, KA + 1, KA + 2
        def pf_h():
            a.e(f"v_lshrrev_b32 v{q0}, 4, v{L16}")
            a.e(f"s_mul_i32 s{sU}, s{sNT}, 48")
            a.e(f"v_cmp_gt_u32 vcc, 48, v{q0}")
            a.e(f"v_add_u32 v{q0}, s{sU}, v{q0}")
            a.e(f"v_and_b32 v{q1}, 7, v{q0}")
            a.e(f"v_lshlrev_b32 v{q1}, 7, v{q1}")
            a.e(f"v_lshrrev_b32 v{q2}, 4, v{q0}")
            a.e(f"v_lshl_add_u32 v{q1}, v{q2}, 10, v{q1}")
            a.e(f"v_bfe_u32 v{q2}, v{q0}, 3, 1")
            a.e(f"v_mul_u32_u24 v{q2}, {A_MB}, v{q2}")
            a.e(f"v_add_u32 v{q1}, v{q1}, v{q2}")
            a.e(f"v_mov_b32 v{q2}, 0x1000000")
            a.e(f"v_cndmask_b32 v{q1}, v{q2}, v{q1}, vcc")
            a.vmem(f"buffer_load_dword v243, v{q1}, s[{sO}:{sO+3}], s{sOB_} offen sc1", "pf")
        def pf_d():
            a.e(f"v_lshrrev_b32 v{q0}, 4, v{L16}")
            a.e(f"s_and_b32 s{sU}, s{sMT}, 7")
            a.e(f"s_mul_i32 s{sU}, s{sU}, 24")
            a.e(f"v_cmp_gt_u32 vcc, 48, v{q0}")
            a.e(f"v_lshrrev_b32 v{q1}, 1, v{q0}")
            a.e(f"v_add_u32 v{q1}, s{sU}, v{q1}")
            a.e(f"v_lshrrev_b32 v{q2}, 5, v{q1}")
            a.e(f"v_lshl_add_u32 v{q1}, v{q2}, 5, v{q1}")
            a.e(f"v_mul_u32_u24 v{q1}, 1280, v{q1}")
            a.e(f"v_and_b32 v{q0}, 1, v{q0}")
            a.e(f"v_mul_u32_u24 v{q0}, 156, v{q0}")
            a.e(f"v_add_u32 v{q1}, v{q1}, v{q0}")
            a.e(f"v_mov_b32 v{q2}, 0x1000000")
            a.e(f"v_cndmask_b32 v{q1}, v{q2}, v{q1}, vcc")
            a.e(f"s_and_b32 s{sU}, s{sW}, 1")
            a.e(f"s_mul_i32 s{sU}, s{sU}, {32*1280}")
            a.e(f"s_add_u32 s{sU}, s{sU}, s{sWB}")
            a.vmem(f"buffer_load_dword v244, v{q1}, s[{sWr}:{sWr+3}], s{sU} offen", "pf")
        sb.add_post(gk(4) + 26, pf_d)
        sb.add_post(gk(4) + 44, pf_h)
    sb.spread(su, gv(5) + 24, gk(6) - 2)
    sb.spread(w2_block(0), gk(6) + 2, gv(7) - 2)
    gA = seg[("PV", 7, 0)][0]; gB = seg[("PV", 7, 1)][0]
    sb.spread(w2_block(1), gv(7) + 2, gA + 14)
    sb.spread(o_loads(0, 0) + o_loads(0, 1) + o_loads(1, 0) + o_loads(1, 1), gA + 2, gB - 2)
    oe = [(E(a, f"s_mul_i32 s{sHO}, s{sH}, 6144"), gB + 2)]
    for qs in range(2): oe.append((E(a, f"v_rcp_f32 v{TP+qs}, v{LS+qs}"), gB + 3))
    for s_ in range(6):
        ge = gB + 4 * s_ + 7
        for qs in range(2):
            for e_ in range(2):
                ob = O(2 * s_ + e_, qs)
                for r in range(4): oe.append((E(a, f"v_mul_f32 v{ob+r}, v{TP+qs}, v{ob+r}"), ge))
        for qs in range(2):
            dst = S(0, 0) + 4 * ((2 * s_ + qs) % 8)
            for e_ in range(2):
                ob = O(2 * s_ + e_, qs)
                for q in range(2): oe.append((E(a, f"v_cvt_pk_bf16_f32 v{dst+2*e_+q}, v{ob+2*q}, v{ob+2*q+1}"), ge))
            def ost(qs=qs, s_=s_, dst=dst):
                a.e(f"s_add_u32 s{sT}, s{sHO}, {qs*A_MB + (s_//4)*4096}")
                a.vmem(f"buffer_store_dwordx4 {vr(dst,4)}, v{L16}, s[{sWS}:{sWS+3}], s{sT} offen offset:{1024*(s_%4)} sc1", "ost")
            oe.append((ost, ge))
    per = OPT.get("oe_per", 3)
    g = gB; cnt = 0; n_in = 0
    for (fn, ge) in oe:
        if ge > g: g = ge; cnt = 0
        if g >= NG - 1: break
        sb.add_post(g, fn); n_in += 1; cnt += 1
        if cnt >= per: g += 1; cnt = 0
    sb.emit()
    st()
    a.e("s_nop 7")
    for (fn, ge) in oe[n_in:]: fn()
    st()
    a.e("s_nop 1")
    t = TM2
    a.e(f"v_lshrrev_b32 v{t+2}, 4, v{L16}")
    a.e(f"v_lshrrev_b32 v{t}, 2, v{t+2}")
    a.e(f"v_and_b32 v{t+1}, 3, v{t+2}")
    a.e(f"v_lshlrev_b32 v{t+1}, 3, v{t+1}")
    a.e(f"v_mul_u32_u24 v{t+3}, 160, v{t}")
    a.e(f"s_mul_i32 s{sU2}, s{sKG}, 10240")
    a.e(f"s_add_u32 s{sU2}, s{sU2}, {win(0)}")
    a.e(f"v_add3_u32 v{AF}, v{t+3}, v{t+1}, s{sU2}")
    a.wait_vm(("W2", 1))
    a.e("s_waitcnt lgkmcnt(0)"); a.lgkm = []
    a.e("s_barrier")
    st()
    late = []
    L_ = lambda tx: late.append(E(a, tx))
    L_(f"v_mul_u32_u24 v{t+3}, 320, v{t}")
    L_(f"s_mul_i32 s{sU2}, s{sG}, 20480")
    late.append(lambda: (a.e(f"s_mul_i32 s{sU2}, s{sG}, 20480"), a.e(f"s_add_u32 s{sU2}, s{sU2}, {win(NF)}"), a.e(f"v_add3_u32 v{t+3}, v{t+3}, v{t+1}, s{sU2}")))
    L_(f"v_bfe_u32 v{t+4}, v{t+2}, 4, 1")
    L_(f"v_lshlrev_b32 v{t+4}, 5, v{t+4}")
    L_(f"v_add_u32 v{AW}, v{t+3}, v{t+4}")
    L_(f"v_sub_u32 v{AW+1}, v{t+3}, v{t+4}")
    L_(f"v_and_b32 v{t+7}, 0x30, v{t+2}")
    late.append(lambda: (a.e(f"s_and_b32 s{sPER}, s{sW}, 3"), a.e(f"s_lshl_b32 s{sPER}, s{sPER}, 4")))
    for i in range(5):
        L_(f"v_add_u32 v{t+4}, {64*i}, v{t+2}")
        L_(f"v_mul_u32_u24 v{t+5}, 3277, v{t+4}")
        L_(f"v_lshrrev_b32 v{t+5}, 16, v{t+5}")
        L_(f"v_mul_u32_u24 v{t+6}, 20, v{t+5}")
        L_(f"v_sub_u32 v{t+6}, v{t+4}, v{t+6}")
        L_(f"v_add_u32 v{t+5}, s{sPER}, v{t+5}")
        L_(f"v_bfe_u32 v{t+4}, v{t+5}, 2, 1")
        L_(f"v_lshlrev_b32 v{t+4}, 1, v{t+4}")
        L_(f"v_xor_b32 v{t+6}, v{t+6}, v{t+4}")
        L_(f"v_mul_u32_u24 v{t+5}, 1280, v{t+5}")
        L_(f"v_lshl_add_u32 v{DW[i]}, v{t+6}, 4, v{t+5}")
    sm = Stream(a, FR2)
    started = set()
    tfirst = []; tg0 = []
    for k in range(NT2):
        par = (k + 1) % NSET; so = slot2(k) - win(k)
        tfirst.append(len(sm.frags)); tg0.append(sm.n())
        for ks in range(2):
            sm.add_pre(sm.n(), lambda k=k, ks=ks: a.wait_vm(("o", k, ks)))
            if k < NF:
                for nb in range(5):
                    sm.frag([lambda b, tt=tt: f"ds_read_b64_tr_b16 {vr(b+2*tt,2)}, v{AF} offset:{so+(32*ks+16*tt)*160+32*nb}" for tt in range(2)],
                            [lambda b, qs=qs: mfma_t(ACCF(nb, qs), b, OF + 16 * par + 8 * ks + 4 * qs, C0(ACCF(nb, qs))) for qs in range(2)])
            else:
                for nb in range(10):
                    sm.frag([lambda b, tt=tt: f"ds_read_b64_tr_b16 {vr(b+2*tt,2)}, v{AW+(nb&1)} offset:{so+(32*ks+16*tt)*320+32*nb}" for tt in range(2)],
                            [lambda b, qs=qs: mfma_t(ACC2(nb, qs), b, OF + 16 * par + 8 * ks + 4 * qs, C0(ACC2(nb, qs))) for qs in range(2)])
    tfirst.append(len(sm.frags)); tg0.append(sm.n())
    NG = sm.n()
    sm.spread(late, 0, tg0[2])
    KO = OPT.get("ostep", 5)
    issue = {}
    for k in range(2, NT2):
        tk = max(k - OPT.get("olook", 2), 0) if k < NF else max(k - OPT.get("olook2", 1), KO)
        issue.setdefault(tk, {"w": [], "o": []})["o"] += o_loads(k, 0) + o_loads(k, 1)
        issue.setdefault(max(k - OPT.get("wlook", 2), 0) if k < NF + 2 else k - OPT.get("wlook2", 2), {"w": [], "o": []})["w"] += w2_block(k)
    for tk in sorted(issue):
        wb_, ob_ = issue[tk]["w"], issue[tk]["o"]
        ln = tg0[tk + 1] - tg0[tk] - 7
        sm.spread(ob_, tg0[tk] + 1, tg0[tk] + ln)
        sm.spread(wb_, tg0[tk] + 1, tg0[tk] + ln)
    for k in range(NT2 - 1):
        gb = sm.read_gap(tfirst[k + 1])
        def bar(k=k):
            if k == 0: a.wait_vm("ost")
            if k == KO - 1: poll_check2("po", 2, PV_, ZV, "po")()
            a.wait_vm(("W2", k + 1))
            a.e("s_waitcnt lgkmcnt(0)"); a.lgkm = []
            a.e("s_barrier")
            st(fine=True)
            if win(k) != win(k + 1) and k + 1 != NF:
                for r in ([AF] if k + 1 < NF else [AW, AW + 1]): a.e(f"v_add_u32 v{r}, {(win(k+1)-win(k)) & 0xffffffff}, v{r}")
        sm.add_pre(gb, bar)
        if k == 0:
            sm.add_pre(gb, sig_issue(2, 224, 225, "ao"))
            sm.add_pre(gb + OPT.get("aod", 14), sig_check("os", 2, (224, 225, 226, 227), "ao"))
        if k == KO - 1: sm.add_post(gb - OPT.get("pod", 8), poll_issue2(2, PV_, ZV, "po"))
    sm.emit()
    a.wait_all()
    st()
    a.e("s_barrier")
    a.e(f"s_mul_i32 s{sU}, s{sW}, 10240")
    a.e(f"v_add_u32 v{t}, s{sU}, v{L16}")
    a.e(f"v_add_u32 v{t+2}, {81920}, v{t}")
    a.e(f"s_xor_b32 s{sU2}, s{sW}, 4")
    a.e(f"s_mul_i32 s{sU2}, s{sU2}, 10240")
    a.e(f"v_add_u32 v{t+1}, s{sU2}, v{L16}")
    PBH = 64 * 40 * 1024
    a.e(f"s_lshl_b32 s{sT}, s{sMT}, 2")
    a.e(f"s_add_u32 s{sT}, s{sT}, s{sNT}")
    a.e(f"s_mul_i32 s{sU2}, s{sT}, {40*1024}")
    a.e(f"s_add_u32 s{sU2}, s{sU2}, {WS_P}")
    srd(a, sP, 26, 27, f"s{sU2}", f"{3*PBH + 40*1024}")
    a.e(f"s_lshl_b32 s{sT}, s{sT}, 7")
    a.e(f"s_and_b32 s{sPER}, s{sW}, 2")
    a.e(f"s_add_u32 s{sPER}, s{sPER}, s{sG}")
    a.e(f"s_lshl_b32 s{sU}, s{sPER}, 1")
    a.e(f"s_and_b32 s{sU2}, s{sW}, 1")
    a.e(f"s_add_u32 s{sU}, s{sU}, s{sU2}")
    a.e(f"s_mul_i32 s{sU}, s{sU}, 5120")
    a.e(f"s_mul_i32 s{sU2}, s{sS}, {PBH}")
    a.e(f"s_add_u32 s{sOW}, s{sU}, s{sU2}")
    a.e(f"s_add_u32 s{sOO}, s{sOW}, 4096")
    a.e(f"s_cmp_eq_u32 s{sG}, 0")
    a.e(f"s_cbranch_scc0 L_p2_g1")
    for g in range(2):
        keep = 40 * g; send = 40 * (1 - g)
        for q in range(10): a.e(f"ds_write_b128 v{t}, {vr(send+4*q,4)} offset:{1024*q}")
        a.e("s_waitcnt lgkmcnt(0)")
        a.e("s_barrier")
        for q in range(10): a.e(f"ds_read_b128 {vr(OF+4*q,4)}, v{t+1} offset:{1024*q}")
        for q in range(10):
            a.e(f"s_waitcnt lgkmcnt({9-q})")
            for r in range(4): a.e(f"v_add_f32 v{OF+4*q+r}, v{keep+4*q+r}, v{OF+4*q+r}")
        if g == 0:
            a.e(f"s_branch L_p2_red2")
            a.label(f"L_p2_g1")
    a.label("L_p2_red2")
    R = OF
    a.e(f"s_cmp_eq_u32 s{sPER}, s{sS}")
    a.e(f"s_cbranch_scc1 L_p2_own")
    for p in range(5):
        for q in range(4): a.e(f"v_cvt_pk_bf16_f32 v{4*p+q}, v{R+8*p+2*q}, v{R+8*p+2*q+1}")
        a.e(f"buffer_store_dwordx4 {vr(4*p,4)}, v{L16}, s[{sP}:{sP+3}], s{sOO if p == 4 else sOW} offen offset:{(p%4)*1024} sc1")
    a.e("s_branch L_p2_pub")
    a.label("L_p2_own")
    for q in range(10): a.e(f"ds_write_b128 v{t+1}, {vr(R+4*q,4)} offset:{1024*q}")
    a.label("L_p2_pub")
    st(fine=True)
    for q in range(10): a.e(f"ds_write_b128 v{t+2}, {vr(176+4*q,4)} offset:{1024*q}")
    a.e(f"s_lshl_b32 s{sU2}, s{sMT}, 1")
    a.e(f"s_lshr_b32 s{sU}, s{sS}, 1")
    a.e(f"s_add_u32 s{sU2}, s{sU2}, s{sU}")
    a.e(f"s_mul_i32 s{sU2}, s{sU2}, {64*1280}")
    a.e(f"s_mul_i32 s{sU}, s{sNT}, 320")
    a.e(f"s_add_u32 s{sU2}, s{sU2}, s{sU}")
    a.e(f"s_and_b32 s{sU}, s{sS}, 1")
    a.e(f"s_mul_i32 s{sU}, s{sU}, 160")
    a.e(f"s_add_u32 s{sU2}, s{sU2}, s{sU}")
    srd(a, sXo, 4, 5, f"s{sU2}", "0")
    a.e(f"s_sub_u32 s{sXo+2}, {2048*1280}, s{sU2}")
    srd(a, sOut, 22, 23, f"s{sU2}", "0")
    a.e(f"s_sub_u32 s{sOut+2}, {2048*1280}, s{sU2}")
    XV = t + 6
    a.e(f"v_bfe_u32 v{XV}, v{L16}, 4, 4")
    a.e(f"v_mul_u32_u24 v{XV}, 1280, v{XV}")
    a.e(f"v_lshrrev_b32 v{t+4}, 8, v{L16}")
    a.e(f"v_lshl_add_u32 v{XV}, v{t+4}, 3, v{XV}")
    a.e(f"v_add_u32 v{XV+1}, 20480, v{XV}")
    a.e(f"s_and_b32 s{sU}, s{sS}, 1")
    a.e(f"s_xor_b32 s{sU}, s{sU}, 1")
    a.e(f"s_lshl_b32 s{sU}, s{sU}, 2")
    a.e(f"s_and_b32 s{sU2}, s{sS}, 2")
    a.e(f"s_add_u32 s{sU}, s{sU}, s{sU2}")
    a.e(f"s_mul_i32 s{sKG}, s{sU}, 10240")
    NU = 2
    sQO = [sOO2, sOB_]; sQP = [sTW2, sTO]; VA = [t + 8, t + 9]; VR_ = [t + 10, t + 11]
    XR = 120
    for n in range(NU):
        a.e(f"s_add_u32 s{sU}, s{sW}, {8*n}")
        a.e(f"s_min_u32 s{sU2}, s{sU}, 9")
        a.e(f"s_lshl_b32 s{sPER}, s{sU2}, 11")
        a.e(f"s_add_u32 s{sWB}, s{sPER}, 81920")
        a.e(f"v_add_u32 v{VA[n]}, s{sWB}, v{L16}")
        a.e(f"s_add_u32 s{sWB}, s{sPER}, s{sKG}")
        a.e(f"v_add_u32 v{VR_[n]}, s{sWB}, v{L16}")
        a.e(f"s_lshl_b32 s{sQO[n]}, s{sU2}, 5")
        a.e(f"s_cmp_ge_u32 s{sU2}, 5")
        a.e(f"s_cselect_b32 s{sPER}, {40960-160}, 0")
        a.e(f"s_add_u32 s{sQO[n]}, s{sQO[n]}, s{sPER}")
        a.e(f"s_mul_i32 s{sPER}, s{sS}, 10240")
        a.e(f"s_lshl_b32 s{sQP[n]}, s{sU2}, 10")
        a.e(f"s_add_u32 s{sQP[n]}, s{sQP[n]}, s{sPER}")
        a.e(f"s_cmp_ge_u32 s{sU}, 10")
        a.e(f"s_cselect_b32 s{sQO[n]}, 0x1000000, s{sQO[n]}")
        a.e(f"s_cselect_b32 s{sQP[n]}, 0x4000000, s{sQP[n]}")
    a.wait_all()
    st(fine=True)
    a.e("s_barrier")
    a.e(f"v_mov_b32 v{ZV}, 0")
    signal("ps", sFG, [f"s_mov_b32 s{sU}, s{sT}"], ZV, ONEV)()
    for n in range(NU):
        for qs in range(2): a.vmem(f"buffer_load_dwordx2 {vr(XR+4*n+2*qs,2)}, v{XV+qs}, s[{sXo}:{sXo+3}], s{sQO[n]} offen", "xl")
    for n in range(NU):
        for kg in range(4):
            for qs in range(2): a.e(f"ds_read_b128 {vr(32*n+8*kg+4*qs,4)}, v{VA[n]} offset:{20480*kg+1024*qs}")
        a.e(f"s_waitcnt lgkmcnt(0)")
        for qs in range(2): a.e(f"ds_read_b128 {vr(64+8*n+4*qs,4)}, v{VR_[n]} offset:{1024*qs}")
    a.vmem(f"buffer_load_dword v{PV_}, v{ZV}, s[{sFG}:{sFG+3}], s{sT} offen sc1", "pp")
    for n in range(NU):
        b = 32 * n
        for r in range(8): a.e(f"v_add_f32 v{b+r}, v{b+r}, v{b+8+r}")
        for r in range(8): a.e(f"v_add_f32 v{b+16+r}, v{b+16+r}, v{b+24+r}")
        for r in range(8): a.e(f"v_add_f32 v{b+r}, v{b+r}, v{b+16+r}")
        for r in range(8): a.e(f"v_mul_f32 v{b+8+r}, {f32(-LOG2E)}, v{b+r}")
        for r in range(8): a.e(f"v_exp_f32 v{b+8+r}, v{b+8+r}")
        for r in range(8): a.e(f"v_add_f32 v{b+8+r}, 1.0, v{b+8+r}")
        for r in range(8): a.e(f"v_rcp_f32 v{b+8+r}, v{b+8+r}")
        for r in range(8): a.e(f"v_mul_f32 v{b+r}, v{b+r}, v{b+8+r}")
    a.e("s_waitcnt lgkmcnt(0)")
    poll_check("pp", sFG, sT, 4, "pp")()
    st(fine=True)
    PR = 80
    for n in range(NU):
        for m_ in range(3):
            a.e(f"s_add_u32 s{sU}, s{sS}, {m_+1}")
            a.e(f"s_and_b32 s{sU}, s{sU}, 3")
            a.e(f"s_mul_i32 s{sU}, s{sU}, {PBH}")
            a.e(f"s_add_u32 s{sU}, s{sU}, s{sQP[n]}")
            a.e(f"buffer_load_dwordx4 {vr(PR+12*n+4*m_,4)}, v{L16}, s[{sP}:{sP+3}], s{sU} offen sc1")
    for n in range(NU):
        b = 32 * n; X0 = b + 8; T0_ = b + 16; A_ = 64 + 8 * n
        for q in range(4):
            a.e(f"v_lshlrev_b32 v{X0+2*q}, 16, v{XR+4*n+q}")
            a.e(f"v_and_b32 v{X0+2*q+1}, 0xffff0000, v{XR+4*n+q}")
        for m_ in range(3):
            a.e(f"s_waitcnt vmcnt({3*(NU-1-n) + (2-m_) + 2*n})")
            for q in range(4):
                a.e(f"v_lshlrev_b32 v{T0_+2*q}, 16, v{PR+12*n+4*m_+q}")
                a.e(f"v_and_b32 v{T0_+2*q+1}, 0xffff0000, v{PR+12*n+4*m_+q}")
            for r in range(8): a.e(f"v_add_f32 v{A_+r}, v{A_+r}, v{T0_+r}")
        for r in range(8): a.e(f"v_fma_f32 v{X0+r}, v{A_+r}, v{b+r}, v{X0+r}")
        for q in range(4): a.e(f"v_cvt_pk_bf16_f32 v{XR+4*n+q}, v{X0+2*q}, v{X0+2*q+1}")
        for qs in range(2): a.e(f"buffer_store_dwordx2 {vr(XR+4*n+2*qs,2)}, v{XV+qs}, s[{sOut}:{sOut+3}], s{sQO[n]} offen{OPT.get('outf','')}")
    st()
    st.flush(sW, TM2)
    a.label(f"L_{K}_done")
    a.e("s_endpgm")
    for sfn in stubs: sfn()
    slow_stub(0); slow_stub(1)
    return a

def kd(name, vgpr, sgpr):
    return f""".amdhsa_kernel {name}
  .amdhsa_next_free_vgpr {vgpr}
  .amdhsa_next_free_sgpr {sgpr}
  .amdhsa_accum_offset {(vgpr+3)//4*4}
  .amdhsa_group_segment_fixed_size 0
  .amdhsa_kernarg_size 96
  .amdhsa_user_sgpr_count 2
  .amdhsa_user_sgpr_kernarg_segment_ptr 1
  .amdhsa_system_sgpr_workgroup_id_x 1
.end_amdhsa_kernel
"""

def main(out):
    a = kernel1()
    n = NAME + "_kernel"
    hdr = open("cdna_kernels/" + NAME + ".s.ref").read().split("; Override launch geometry")[0]
    s = hdr + "; @launch grid=(256,1,1) block=(512,1,1) lds=163840\n"
    s += '.amdgcn_target "amdgcn-amd-amdhsa--gfx950"\n.text\n'
    errs = check_hazards(a.L)
    for e in errs[:20]: print("HAZARD", e)
    s += f".globl {n}\n.p2align 8\n.type {n},@function\n{n}:\n" + a.text()
    s += '.section .rodata,"a"\n.p2align 6\n' + kd(n, 256, 102)
    open(out, "w").write(s)
    print("wrote", out, "hazards:", len(errs), "instrs:", len(a.L))

if __name__ == "__main__":
    args = sys.argv[1:]
    if "--stamps" in args:
        STAMPS = True; args.remove("--stamps")
    for x in list(args):
        if x.startswith("-O"):
            k_, v_ = x[2:].split("=")
            OPT[k_] = int(v_) if v_.lstrip("-").isdigit() else v_.replace("_", " ")
            args.remove(x)
    main(args[0] if args else "cdna_kernels/" + NAME + ".s")
```

```python
import sys, struct, math
from asmlib import *

NAME = "recurrent_scan__sliding_block_cached__glu_gated_geglu__prompt"
def f32(x): return "0x%08x" % struct.unpack("<I", struct.pack("<f", x))[0]
LOG2E = 1.4426950408889634
SCALE_C = (192 ** -0.5) * LOG2E
GELU_C0 = -2.0 * math.sqrt(2.0 / math.pi) * LOG2E
GELU_C1 = GELU_C0 * 0.044715
MF = "v_mfma_f32_16x16x32_bf16"

A_MB = 240 * 1024
WS_A_BYTES = 128 * A_MB
WS_P = WS_A_BYTES
PB_BYTES = 128 * 40 * 1024
NPB = 4
WS_X = WS_P + NPB * PB_BYTES + 65536
WS_D = WS_P + NPB * PB_BYTES + 65536 + 128 * 20480
WS_G = WS_P + NPB * PB_BYTES + 16384
WS_F = WS_P + NPB * PB_BYTES
STAMPS = False
OPT = {}
WS_ST = 200 * 1024 * 1024

class Stamper:
    def __init__(self, a, base=86, kid=0):
        self.a = a; self.n = 0; self.kid = kid
    def __call__(self, real=False, fine=False):
        if not STAMPS: return
        if fine and not OPT.get("fine"): return
        a = self.a
        if self.n == 0: a.e("v_mov_b32 v255, -1")
        a.e("s_memrealtime s[84:85]" if (real or OPT.get("real")) else "s_memtime s[84:85]")
        a.e("s_waitcnt lgkmcnt(0)"); a.lgkm = []
        a.e(f"v_writelane_b32 v255, s84, {self.n}")
        self.n += 1; assert self.n <= 64
    def flush(self, swave, vtmp):
        if not STAMPS: return
        a = self.a
        a.e("s_waitcnt vmcnt(0)")
        self()
        a.e("s_memrealtime s[84:85]")
        a.e("s_waitcnt lgkmcnt(0)")
        a.e(f"v_writelane_b32 v255, s84, 63")
        a.e(f"s_lshl_b32 s84, s2, 3")
        a.e(f"s_add_u32 s84, s84, s{swave}")
        a.e(f"s_lshl_b32 s84, s84, 8")
        a.e(f"s_add_u32 s84, s84, {WS_ST + self.kid * 1048576}")
        a.e(f"s_add_u32 s28, s26, s84")
        a.e(f"s_addc_u32 s29, s27, 0")
        a.e(f"s_and_b32 s29, s29, 0xffff")
        a.e(f"s_mov_b32 s30, 256")
        a.e(f"s_mov_b32 s31, 0x20000")
        a.e(f"v_mbcnt_lo_u32_b32 v{vtmp}, -1, 0")
        a.e(f"v_mbcnt_hi_u32_b32 v{vtmp}, -1, v{vtmp}")
        a.e(f"v_lshlrev_b32 v{vtmp}, 2, v{vtmp}")
        a.e(f"buffer_store_dword v255, v{vtmp}, s[28:31], 0 offen")
        if OPT.get("dbgout"):
            a.e(f"s_cmp_eq_u32 s2, {OPT.get('dbgwg', 0)}")
            a.e("s_cbranch_scc0 L_dbg_skip")
            a.e(f"s_cmp_eq_u32 s{swave}, 0")
            a.e("s_cbranch_scc0 L_dbg_skip")
            a.e("v_readlane_b32 s84, v255, 0")
            sel = [int(x) for x in str(OPT["dbgout"]).split(",")]
            slots = [3, 4, 5, 6, 7, 11, 12, 13, 14, 15]
            a.e(f"v_mov_b32 v{vtmp+1}, 0")
            for sl, ix in zip(slots, sel):
                a.e(f"v_readlane_b32 s85, v255, {ix}")
                a.e("s_nop 3")
                a.e("s_sub_u32 s85, s85, s84")
                a.e(f"v_mov_b32 v{vtmp}, s85")
                a.e(f"buffer_store_dword v{vtmp}, v{vtmp+1}, s[92:95], 0 offen offset:{4*sl}")
                a.e("s_nop 1")
            a.label("L_dbg_skip")

def timed(a, acc, fn):
    if not OPT.get("acc"): fn(); return
    a.e("s_memtime s[82:83]"); a.e("s_waitcnt lgkmcnt(0)"); a.lgkm = []
    a.e(f"s_sub_u32 s{acc}, s{acc}, s82")
    fn()
    a.e("s_memtime s[82:83]"); a.e("s_waitcnt lgkmcnt(0)")
    a.e(f"s_add_u32 s{acc}, s{acc}, s82")

def load_ptrs(a):
    a.e("s_load_dwordx16 s[4:19], s[0:1], 0")
    a.e("s_load_dwordx8 s[20:27], s[0:1], 64")

def srd(a, d, base_lo, base_hi, off_sreg, nbytes_expr):
    if off_sreg is None:
        a.e(f"s_mov_b32 s{d}, s{base_lo}")
        a.e(f"s_and_b32 s{d+1}, s{base_hi}, 0xffff")
    else:
        a.e(f"s_add_u32 s{d}, s{base_lo}, {off_sreg}")
        a.e(f"s_addc_u32 s{d+1}, s{base_hi}, 0")
        a.e(f"s_and_b32 s{d+1}, s{d+1}, 0xffff")
    a.e(f"s_mov_b32 s{d+2}, {nbytes_expr}")
    a.e(f"s_mov_b32 s{d+3}, 0x20000")

def mfma_t(d, A, B, c=None):
    cc = vr(d, 4) if c is None else (c if isinstance(c, str) else vr(c, 4))
    return f"{MF} {vr(d,4)}, {vr(A,4)}, {vr(B,4)}, {cc}"

class Stream:
    def __init__(self, a, FR, ring=4, depth=3):
        self.a = a; self.m = []; self.pre = {}; self.post = {}
        self.FR = FR; self.R = ring; self.D = depth
        self.frags = []
    def n(self): return len(self.m)
    def add_pre(self, g, fn): self.pre.setdefault(g, []).append(fn)
    def add_post(self, g, fn): self.post.setdefault(g, []).append(fn)
    def mfma(self, text): self.m.append(text); return len(self.m) - 1
    def buf(self, f=None):
        f = len(self.frags) if f is None else f
        return self.FR + 4 * (f % self.R)
    def frag(self, reads, mfmas):
        f = len(self.frags); b = self.buf(f)
        g0 = self.n()
        self.frags.append((g0, [r(b) for r in reads], len(mfmas)))
        for m_ in mfmas: self.mfma(m_(b))
        return g0
    def spread(self, fns, g0, g1):
        n = len(fns)
        for k, fn in enumerate(fns):
            self.add_post(g0 + (k * (g1 - g0)) // max(n, 1), fn)
    def read_gap(self, f):
        return self.frags[f - self.D][0] if f >= self.D else -1
    def emit(self, tail_reads=None):
        a = self.a
        rd_at = {}
        nf = len(self.frags)
        for f, (g0, reads, nm) in enumerate(self.frags):
            if f < self.D:
                for t in reads: a.ds(t, ("f", f))
            else:
                hg, _, hn = self.frags[f - self.D]
                for k, t in enumerate(reads):
                    rd_at.setdefault(hg + min(k, hn - 1), []).append((t, f))
        first = {g0: f for f, (g0, _, _) in enumerate(self.frags)}
        for g, mt in enumerate(self.m):
            for fn in self.pre.get(g, []): fn()
            if g in first: a.wait_lgkm(("f", first[g]))
            a.e(mt)
            posts = self.post.get(g, [])
            nv = 0
            if OPT.get("vfirst", 1):
                while nv < len(posts) and getattr(posts[nv], "valu", False): posts[nv](); nv += 1
            for (t, f) in rd_at.get(g, []): a.ds(t, ("f", f))
            for fn in posts[nv:]: fn()

def E(a, text):
    fn = lambda: a.e(text)
    fn.valu = text.startswith("v_") and not text.startswith("v_add_u32")
    return fn

def kernel1():
    a = Asm(); K = "k1"; st = Stamper(a, kid=0)
    ACC = lambda jb, qs: (jb * 2 + qs) * 4
    XS = 144; FR = 176; SUMA = 192; GRAM = 200; CSA = 208
    O = ACC; QP = lambda qs, s: 96 + 24 * qs + 4 * s
    S = lambda kb, qs: 144 + (kb * 2 + qs) * 4
    P = lambda qs, u: 192 + (qs * 2 + u) * 4
    NEGM = lambda qs: 208 + 4 * qs
    LT = lambda qs: 216 + 4 * qs
    ONES = 224; LS = 228; TP = 230
    DUT = 230
    AWQ = 238; AGU = 242; DA = 244; DB = 243; XOFF = 247; L16 = 248; KA = 249; VB = 252
    VR = AWQ; KR = [AGU, DB]
    sX, sWQ, sGU, sK, sV, sWS = 28, 32, 36, 40, 44, 48
    sW, sH, sB = 52, 53, 54
    sTW, sOA, sOB, sOB2, sMB0, sTX = 55, 56, 57, 58, 59, 60
    sEX48 = 62
    sXO, sXO2, sT, sT2, sT3 = 64, 65, 66, 67, 68
    sW3 = 69; sHO = 70; sG1 = 71; sFL = 72; sTHR = 73; sKO = 74; sVO = 75
    sRET = 76
    GOFF = 24576; WSLOT = 24576 + 8 * 1664 - 128
    KSL = [114688, 0, 24576]; VSL = [139264, 49152, 73728]
    CSL = 3 * WSLOT
    assert CSL + 1152 <= KSL[0]
    wslot = lambda k: ((k + 2) % 3) * WSLOT
    ROT = OPT.get("rot", 1)

    a.e("s_cmp_ge_u32 s2, 256")
    a.e(f"s_cbranch_scc1 L_{K}_done")
    st(True); st()
    if OPT.get("acc"):
        for r in (99, 100, 101): a.e(f"s_mov_b32 s{r}, 0")
    load_ptrs(a)
    LANE = 0; t = 2
    sFG = 88; sDB_ = 92; sU, sU2 = 97, 98
    NXS = OPT.get("nxs", 3)
    XSET = [144, 160, 192]
    stubs = []
    a.e(f"v_lshrrev_b32 v1, 6, v0")
    a.e(f"v_and_b32 v{LANE}, 63, v0")
    a.e(f"v_readfirstlane_b32 s{sW}, v1")
    a.e(f"s_and_b32 s{sT}, s2, 7")
    a.e(f"s_lshr_b32 s{sT2}, s2, 3")
    a.e(f"s_lshl_b32 s{sH}, s{sT}, 2")
    a.e(f"s_and_b32 s{sT}, s{sT2}, 3")
    a.e(f"s_add_u32 s{sH}, s{sH}, s{sT}")
    a.e(f"s_lshr_b32 s{sB}, s{sT2}, 2")
    HYB = OPT.get("hyb", 1); sR0 = 61
    if HYB:
        a.e(f"s_lshl_b32 s{sT}, s{sT}, 1")
        a.e(f"s_add_u32 s{sR0}, s{sT}, s{sB}")
        a.e(f"s_sub_u32 s{sT}, s{sR0}, 9")
        a.e(f"s_cmp_ge_u32 s{sR0}, 9")
        a.e(f"s_cselect_b32 s{sR0}, s{sT}, s{sR0}")
        a.e(f"s_add_u32 s{sR0}, s{sR0}, 1")
        a.e(f"s_mov_b32 s{sTW}, 0")
    else:
        a.e(f"s_mul_i32 s{sT}, s{sT}, 3")
        a.e(f"s_add_u32 s{sTW}, s{sT}, s{sB}")
        a.e(f"s_sub_u32 s{sT}, s{sTW}, 10")
        a.e(f"s_cmp_ge_u32 s{sTW}, 10")
        a.e(f"s_cselect_b32 s{sTW}, s{sT}, s{sTW}")
    a.e(f"s_mov_b32 s{sTX}, s{sTW}")
    a.e(f"s_mul_i32 s{sW3}, s{sW}, 3072")
    a.e(f"v_lshlrev_b32 v{L16}, 4, v{LANE}")
    a.e(f"s_lshl_b32 s{sT}, s{sB}, 5")
    a.e(f"s_add_u32 s{sT}, s{sT}, s{sH}")
    a.e(f"s_lshl_b32 s{sT}, s{sT}, 3")
    a.e(f"s_add_u32 s{sT}, s{sT}, s{sW}")
    a.e(f"s_mul_i32 s{sT2}, s{sT}, 1280")
    a.e(f"v_lshlrev_b32 v20, 5, v{LANE}")
    a.e("s_waitcnt lgkmcnt(0)")
    srd(a, sX, 4, 5, f"s{sT2}", "1280")
    a.vmem(f"buffer_load_dwordx4 v[24:27], v20, s[{sX}:{sX+3}], 0 offen", "xr")
    a.vmem(f"buffer_load_dwordx4 v[28:31], v20, s[{sX}:{sX+3}], 0 offen offset:16", "xr")
    st()
    a.e(f"s_lshl_b32 s{sT}, s{sW}, 3")
    def voffs(i, which):
        a.e(f"v_add_u32 v{t}, {64*i}, v{LANE}")
        a.e(f"v_mul_u32_u24 v{t+1}, 2731, v{t}")
        a.e(f"v_lshrrev_b32 v{t+1}, 16, v{t+1}")
        a.e(f"v_mul_u32_u24 v{t+2}, 24, v{t+1}")
        a.e(f"v_sub_u32 v{t+2}, v{t}, v{t+2}")
        a.e(f"v_add_u32 v{t+1}, s{sT}, v{t+1}")
        if which == "W":
            a.e(f"v_and_b32 v{t+3}, 2, v{t+1}")
            a.e(f"v_bfe_u32 v{t+4}, v{t+1}, 3, 1")
            a.e(f"v_lshl_or_b32 v{t+3}, v{t+4}, 2, v{t+3}")
            a.e(f"v_xor_b32 v{t+3}, v{t+2}, v{t+3}")
            a.e(f"v_mul_u32_u24 v{t+6}, 12288, v{t+1}")
            a.e(f"v_lshl_add_u32 v{DA+i}, v{t+3}, 4, v{t+6}")
        else:
            a.e(f"v_mul_u32_u24 v{t+6}, 384, v{t+1}")
            a.e(f"v_bfe_u32 v{t+3}, v{t+1}, 1, 3")
            a.e(f"v_xor_b32 v{t+3}, v{t+2}, v{t+3}")
            a.e(f"v_lshl_add_u32 v{KA+i}, v{t+3}, 4, v{t+6}")
            a.e(f"v_and_b32 v{t+3}, 6, v{t+1}")
            a.e(f"v_xor_b32 v{t+3}, v{t+2}, v{t+3}")
            a.e(f"v_lshl_add_u32 v{VB+i}, v{t+3}, 4, v{t+6}")
    for i in range(3): voffs(i, "W")
    a.e(f"s_and_b32 s{sT3}, s{sW}, 3")
    a.e(f"s_lshl_b32 s{sT2}, s{sT3}, 4")
    a.e(f"v_mul_u32_u24 v{t+1}, 10923, v{LANE}")
    a.e(f"v_lshrrev_b32 v{t+1}, 16, v{t+1}")
    a.e(f"v_mul_u32_u24 v{t+2}, 6, v{t+1}")
    a.e(f"v_sub_u32 v{t+2}, v{LANE}, v{t+2}")
    a.e(f"v_add_u32 v{t+1}, s{sT2}, v{t+1}")
    a.e(f"v_mul_u32_u24 v{t+6}, 3072, v{t+1}")
    a.e(f"v_lshl_add_u32 v{DB}, v{t+2}, 4, v{t+6}")
    a.e(f"s_mul_i32 s{sMB0}, s{sT3}, {2*1664}")
    a.e(f"s_cmp_ge_u32 s{sW}, 4")
    a.e(f"s_cselect_b32 s{sT2}, {GOFF+768}, {GOFF}")
    a.e(f"s_add_u32 s{sMB0}, s{sMB0}, s{sT2}")
    a.e(f"s_mov_b32 s{sEX48}, -1")
    a.e(f"s_mov_b32 s{sEX48+1}, 0xffff")
    a.e(f"s_mov_b32 s{sG1}, {f32(GELU_C1)}")
    a.e(f"s_mul_i32 s{sT2}, s{sH}, 384")
    srd(a, sWQ, 10, 11, f"s{sT2}", "0")
    a.e(f"s_sub_u32 s{sWQ+2}, {640*12288}, s{sT2}")
    a.e(f"s_cmp_ge_u32 s{sW}, 4")
    a.e(f"s_cselect_b32 s14, s18, s16")
    a.e(f"s_cselect_b32 s15, s19, s17")
    a.e(f"s_mul_i32 s{sT2}, s{sH}, 96")
    srd(a, sGU, 14, 15, f"s{sT2}", "0")
    a.e(f"s_sub_u32 s{sGU+2}, {640*3072}, s{sT2}")
    a.e(f"s_mov_b32 s{sT2}, {WS_F}")
    srd(a, sFG, 26, 27, f"s{sT2}", f"{16384 + 256*128}")
    srd(a, sDB_, 24, 25, None, "256")
    a.e(f"s_lshl_b32 s{sT2}, s{sB}, 4")
    a.e(f"s_lshr_b32 s{sT3}, s{sH}, 1")
    a.e(f"s_add_u32 s{sT2}, s{sT2}, s{sT3}")
    a.e(f"s_mul_i32 s{sT2}, s{sT2}, 20480")
    a.e(f"s_add_u32 s{sT2}, s{sT2}, {WS_X}")
    srd(a, sK, 26, 27, f"s{sT2}", "20480")
    LNB = KSL[0]
    a.e(f"s_mul_i32 s{sT2}, s{sW}, 10")
    a.e(f"v_lshrrev_b32 v{t}, 3, v{LANE}")
    a.e(f"v_add_u32 v{t}, s{sT2}, v{t}")
    a.e(f"v_and_b32 v{t+1}, 7, v{LANE}")
    a.e(f"v_mul_u32_u24 v21, 1296, v{t+1}")
    a.e(f"v_lshl_add_u32 v21, v{t}, 4, v21")
    a.e(f"v_add_u32 v21, {LNB}, v21")
    a.e(f"s_and_b32 s{sT2}, s{sH}, 1")
    a.e(f"s_lshl_b32 s{sT2}, s{sT2}, 3")
    a.e(f"v_add_u32 v{t+1}, s{sT2}, v{t+1}")
    a.e(f"v_lshlrev_b32 v22, 8, v{t}")
    a.e(f"v_lshl_add_u32 v22, v{t+1}, 4, v22")
    a.e(f"s_mul_i32 s{sT2}, s{sW}, 1296")
    a.e(f"s_add_u32 s{sT2}, s{sT2}, {LNB}")
    a.e(f"v_add_u32 v23, s{sT2}, v20")
    def wave_sum(v, sdst):
        for m_ in ("row_shr:1", "row_shr:2", "row_shr:4", "row_shr:8"):
            a.e("s_nop 1")
            a.e(f"v_add_f32_dpp v{v}, v{v}, v{v} {m_} row_mask:0xf bank_mask:0xf bound_ctrl:0")
        a.e("s_nop 1")
        a.e(f"v_add_f32_dpp v{v}, v{v}, v{v} row_bcast:15 row_mask:0xa bank_mask:0xf")
        a.e("s_nop 1")
        a.e(f"v_add_f32_dpp v{v}, v{v}, v{v} row_bcast:31 row_mask:0xc bank_mask:0xf")
        a.e("s_nop 1")
        a.e(f"v_readlane_b32 s{sdst}, v{v}, 63")
        a.e("s_nop 3")
    def rbf(d, src):
        a.e(f"v_cvt_pk_bf16_f32 v{d}, v{src}, v{src}")
        a.e(f"v_and_b32 v{d}, 0xffff0000, v{d}")
    def w_block(k):
        base = wslot(k); tag = ("W", k); fns = []
        def head():
            a.e(f"s_mul_i32 s{sOA}, s{sTW}, 786432")
            a.e(f"s_mul_i32 s{sOB}, s{sTW}, 196608")
        fns.append(head)
        for i in range(3):
            def f(i=i):
                a.e(f"s_add_u32 m0, s{sW3}, {base + 1024*i}")
                if i == 0: a.e(f"s_add_u32 s{sOB2}, s{sOB}, 24576")
                elif i == 1: a.e(f"s_add_u32 s{sTW}, s{sTW}, 1")
                else: a.e(f"s_cmp_eq_u32 s{sTW}, 10")
                a.vmem(f"buffer_load_dwordx4 v{DA+i}, s[{sWQ}:{sWQ+3}], s{sOA} offen lds", tag)
                if i == 2:
                    a.e(f"s_cselect_b32 s{sTW}, {HYB}, s{sTW}")
                    if HYB and k == 0: a.e(f"s_mov_b32 s{sTW}, s{sR0}")
            fns.append(f)
        for i in range(2):
            def f(i=i):
                a.e(f"s_add_u32 m0, s{sMB0}, {base + 1664*i}")
                a.e(f"s_mov_b64 exec, s[{sEX48}:{sEX48+1}]")
                a.vmem(f"buffer_load_dwordx4 v{DB}, s[{sGU}:{sGU+3}], s{sOB2 if i else sOB} offen lds", tag)
                a.e("s_mov_b64 exec, -1")
            fns.append(f)
        return fns
    W1E = OPT.get("w1e", 0)
    if HYB:
        for f in w_block(0): f()
        if W1E:
            for f in w_block(1): f()
    a.wait_vm("xr")
    XF = 32
    for q in range(8):
        a.e(f"v_lshlrev_b32 v{XF+2*q}, 16, v{24+q}")
        a.e(f"v_and_b32 v{XF+2*q+1}, 0xffff0000, v{24+q}")
    a.e(f"v_add_f32 v48, v{XF}, v{XF+1}")
    a.e(f"v_add_f32 v49, v{XF+2}, v{XF+3}")
    for q in range(4, 16, 2):
        a.e(f"v_add_f32 v48, v48, v{XF+q}")
        a.e(f"v_add_f32 v49, v49, v{XF+q+1}")
    a.e(f"v_add_f32 v48, v48, v49")
    wave_sum(48, sU)
    a.e(f"v_mov_b32 v50, {f32(1.0/640)}")
    a.e(f"v_mul_f32 v50, s{sU}, v50")
    a.e(f"v_cmp_gt_u32 vcc, 40, v{LANE}")
    a.e(f"v_mov_b32 v48, 0")
    a.e(f"v_mov_b32 v49, 0")
    for q in range(16):
        a.e(f"v_sub_f32 v{52+q}, v{XF+q}, v50")
    for q in range(0, 16, 2):
        a.e(f"v_fmac_f32 v48, v{52+q}, v{52+q}")
        a.e(f"v_fmac_f32 v49, v{52+q+1}, v{52+q+1}")
    a.e(f"v_add_f32 v48, v48, v49")
    a.e(f"v_cndmask_b32 v48, 0, v48, vcc")
    wave_sum(48, sU)
    a.e(f"v_mov_b32 v51, {f32(1.0/640)}")
    a.e(f"v_mul_f32 v51, s{sU}, v51")
    rbf(50, 50); rbf(51, 51)
    a.e(f"v_add_f32 v51, {f32(1e-5)}, v51")
    rbf(51, 51)
    a.e(f"v_sqrt_f32 v51, v51")
    a.e("s_nop 0")
    rbf(51, 51)
    a.e(f"v_rcp_f32 v51, v51")
    for q in range(16): a.e(f"v_sub_f32 v{52+q}, v{XF+q}, v50")
    for q in range(8): a.e(f"v_cvt_pk_bf16_f32 v{24+q}, v{52+2*q}, v{52+2*q+1}")
    for q in range(8):
        a.e(f"v_lshlrev_b32 v{XF+2*q}, 16, v{24+q}")
        a.e(f"v_and_b32 v{XF+2*q+1}, 0xffff0000, v{24+q}")
    for q in range(16): a.e(f"v_mul_f32 v{XF+q}, v{XF+q}, v51")
    for q in range(8): a.e(f"v_cvt_pk_bf16_f32 v{24+q}, v{XF+2*q}, v{XF+2*q+1}")
    a.e(f"s_mov_b32 exec_hi, 0xff")
    a.e(f"ds_write_b128 v23, v[24:27]")
    a.e(f"ds_write_b128 v23, v[28:31] offset:16")
    a.e("s_mov_b64 exec, -1")
    a.e("s_waitcnt lgkmcnt(0)")
    a.e("s_barrier")
    a.e(f"ds_read_b128 v[32:35], v21")
    a.e(f"ds_read_b128 v[36:39], v21 offset:128")
    a.e(f"s_lshl_b32 s{sT2}, s{sB}, 3")
    a.e(f"s_add_u32 s{sT2}, s{sT2}, s{sH}")
    a.e(f"s_lshl_b32 s{sT2}, s{sT2}, 7")
    a.e(f"s_cmp_lt_u32 s{sH}, 8")
    a.e(f"s_cselect_b32 s{sT2}, s{sT2}, 0x100000")
    for r in range(40, 44): a.e(f"v_mov_b32 v{r}, 0")
    a.e("s_waitcnt lgkmcnt(0)")
    a.vmem(f"buffer_store_dwordx4 v[32:35], v22, s[{sK}:{sK+3}], 0 offen sc1", "xs")
    a.e("s_mov_b64 exec, 0xffff")
    a.vmem(f"buffer_store_dwordx4 v[36:39], v22, s[{sK}:{sK+3}], 0 offen offset:2048 sc1", "xs")
    a.e(f"s_mov_b64 exec, 1")
    a.vmem(f"buffer_store_dword v40, v40, s[{sFG}:{sFG+3}], s{sT2} offen sc1", "xs")
    a.e(f"s_lshl_b32 s99, s2, 7")
    a.e(f"s_add_u32 s99, s99, 16384")
    a.e(f"s_mov_b64 exec, 15")
    a.vmem(f"buffer_store_dwordx4 v[40:43], v{L16}, s[{sFG}:{sFG+3}], s99 offen sc1", "xs")
    a.e(f"s_mov_b64 exec, -1")
    st()

    def kv_block(which, j):
        srdr, vo, base, so = (sK, KA, KSL[j % 3], sKO) if which == "K" else (sV, VB, VSL[j % 3], sVO)
        tag = (which, j); fns = []
        def head():
            a.e(f"s_add_u32 s{so}, s{sB}, {j}")
            a.e(f"s_and_b32 s{so}, s{so}, 7")
            a.e(f"s_mul_i32 s{so}, s{so}, 24576")
        fns.append(head)
        for i in range(3):
            def f(i=i):
                a.e(f"s_add_u32 m0, s{sW3}, {base + 1024*i}")
                a.e("s_nop 0")
                a.vmem(f"buffer_load_dwordx4 v{vo+i}, s[{srdr}:{srdr+3}], s{so} offen lds", tag)
            fns.append(f)
        return fns
    def x_loads(k, ks):
        xb = XSET[k % NXS]; fns = []
        if ks == 0:
            def head():
                a.e(f"s_lshl_b32 s{sXO}, s{sTX}, 11")
                a.e(f"s_add_u32 s{sTX}, s{sTX}, 1")
                a.e(f"s_add_u32 s{sXO2}, s{sXO}, 20480")
                a.e(f"s_cmp_eq_u32 s{sTX}, 10")
                a.e(f"s_cselect_b32 s{sTX}, {HYB}, s{sTX}")
                if HYB and k == 0: a.e(f"s_mov_b32 s{sTX}, s{sR0}")
            fns.append(head)
        for qs in range(2):
            fns.append(lambda qs=qs: a.vmem(f"buffer_load_dwordx4 {vr(xb+8*ks+4*qs,4)}, v{L16}, s[{sX}:{sX+3}], s{sXO2 if qs else sXO} offen offset:{1024*ks} sc1", ("x", k, ks)))
        return fns
    sFO = 99
    sAO, sPO = 100, 101
    def sig_issue(stage, z, o, tag):
        def fn():
            a.e(f"v_mov_b32 v{z}, 0")
            a.e(f"v_mov_b32 v{o}, 1")
            a.e("s_mov_b64 exec, 1")
            a.vmem(f"buffer_atomic_add v{o}, v{z}, s[{sDB_}:{sDB_+3}], s{sAO} offen offset:{4*stage} sc0 sc1", tag)
            a.e("s_mov_b64 exec, -1")
        return fn
    def sig_check(name, stage, tv, tag):
        z, o, ad, pv = tv
        def fn():
            a.wait_vm(tag)
            a.e(f"v_readfirstlane_b32 s{sU2}, v{o}")
            a.e("s_nop 3")
            a.e(f"s_and_b32 s{sU2}, s{sU2}, 31")
            a.e(f"s_cmp_eq_u32 s{sU2}, 31")
            a.e(f"s_cbranch_scc1 L_{name}_sig")
            a.label(f"L_{name}_sigr")
        def stub():
            a.label(f"L_{name}_sig")
            a.e(f"v_lshrrev_b32 v{ad}, 4, v{L16}")
            if stage == 1:
                a.e(f"v_mov_b32 v{z}, 0")
                a.e(f"v_mov_b32 v{o}, 1")
                a.e("s_mov_b64 exec, 1")
                a.e(f"buffer_atomic_add v{o}, v{z}, s[{sDB_}:{sDB_+3}], 0 offen offset:12 sc0 sc1")
                a.e("s_waitcnt vmcnt(0)")
                a.e("s_mov_b64 exec, -1")
                a.e(f"v_readfirstlane_b32 s{sU2}, v{o}")
                a.e("s_nop 3")
                a.e(f"s_and_b32 s{sU2}, s{sU2}, 7")
                a.e(f"s_cmp_eq_u32 s{sU2}, 7")
                a.e(f"s_cbranch_scc0 L_{name}_sigr")
                a.e(f"v_lshlrev_b32 v{ad}, 7, v{ad}")
                a.e(f"v_mov_b32 v{o}, 1")
                for q in range(4):
                    a.e(f"s_mov_b32 s{sU}, {16384 + 8192*q}")
                    a.e(f"buffer_store_dword v{o}, v{ad}, s[{sFG}:{sFG+3}], s{sU} offen offset:4 sc1")
                a.e(f"s_branch L_{name}_sigr")
                return
            if stage == 2:
                a.e(f"v_and_b32 v{z}, 3, v{ad}")
                a.e(f"v_lshrrev_b32 v{ad}, 2, v{ad}")
                a.e(f"v_lshl_add_u32 v{ad}, v{ad}, 3, v{z}")
                a.e(f"s_and_b32 s{sU}, s{sB}, 3")
                a.e(f"s_lshl_b32 s{sU}, s{sU}, 6")
                a.e(f"s_and_b32 s{sU2}, s{sB}, 4")
                a.e(f"s_add_u32 s{sU}, s{sU}, s{sU2}")
            else:
                a.e(f"s_lshl_b32 s{sU}, s{sB}, 5")
            a.e(f"s_lshl_b32 s{sU}, s{sU}, 7")
            a.e(f"s_add_u32 s{sU}, s{sU}, 16384")
            a.e(f"v_lshlrev_b32 v{ad}, 7, v{ad}")
            a.e(f"v_mov_b32 v{o}, 1")
            a.e("s_mov_b64 exec, 0xffffffff")
            a.e(f"buffer_store_dword v{o}, v{ad}, s[{sFG}:{sFG+3}], s{sU} offen offset:{4*stage} sc1")
            a.e("s_mov_b64 exec, -1")
            a.e(f"s_branch L_{name}_sigr")
        stubs.append(stub)
        return fn
    def poll_issue2(stage, pv, zv, tag):
        def fn():
            a.e(f"v_mov_b32 v{zv}, 0")
            a.e("s_mov_b64 exec, 1")
            a.vmem(f"buffer_load_dword v{pv}, v{zv}, s[{sFG}:{sFG+3}], s{sPO} offen offset:{4*stage} sc1", tag)
            a.e("s_mov_b64 exec, -1")
        return fn
    def poll_check2(name, stage, pv, zv, tag):
        spin = flag_wait(name, stage, pv, zv)
        def fn():
            a.wait_vm(tag)
            a.e(f"v_readfirstlane_b32 s{sU2}, v{pv}")
            a.e("s_nop 3")
            a.e(f"s_or_b32 s{sU2}, s{sU2}, s{sW}")
            a.e(f"s_cmp_eq_u32 s{sU2}, 0")
            a.e(f"s_cbranch_scc1 L_{name}_spin")
            a.label(f"L_{name}_ok")
        return fn
    def flag_wait(name, stage, pv, zv, after=None):
        def fn():
            a.e(f"s_cmp_eq_u32 s{sW}, 0")
            a.e(f"s_cbranch_scc1 L_{name}_spin")
            a.label(f"L_{name}_ok")
        def stub():
            a.label(f"L_{name}_spin")
            a.e(f"s_mov_b32 s{sU}, 0")
            a.e(f"v_mov_b32 v{zv}, 0")
            a.e("s_mov_b64 exec, 1")
            a.label(f"L_{name}_poll")
            a.e(f"buffer_load_dword v{pv}, v{zv}, s[{sFG}:{sFG+3}], s{sFO} offen offset:{4*stage} sc1")
            a.e(f"s_add_u32 s{sU}, s{sU}, 1")
            a.e("s_waitcnt vmcnt(0)")
            a.e(f"v_cmp_ne_u32 vcc, 1, v{pv}")
            a.e(f"s_cbranch_vccz L_{name}_done")
            a.e(f"s_sleep {OPT.get('slp', 2)}")
            a.e(f"s_cmp_lt_u32 s{sU}, 0x20000")
            a.e(f"s_cbranch_scc1 L_{name}_poll")
            a.label(f"L_{name}_done")
            a.e("s_mov_b64 exec, -1")
            if after: after()
            a.e(f"s_branch L_{name}_ok")
        stubs.append(stub)
        return fn

    if not HYB:
        for f in w_block(0): f()
    a.wait_vm("xs")
    a.e("s_barrier")
    a.e(f"s_lshl_b32 s{sAO}, s{sB}, 5")
    a.e(f"s_cmp_eq_u32 s{sW}, 0")
    a.e(f"s_cselect_b32 s{sAO}, s{sAO}, 0x100000")
    a.e(f"s_cselect_b32 s{sPO}, s{sFO}, 0x100000")
    sig_issue(0, 40, 41, "ax")()
    sig_check("xs", 0, (40, 41, 42, 43), "ax")()
    if HYB and not W1E:
        a.e(f"s_cmp_eq_u32 s{sW}, 0")
        a.e(f"s_cbranch_scc1 L_w1_skip")
        for f in w_block(1): f()
        a.label("L_w1_skip")
    st()
    a.e(f"s_lshl_b32 s{sT2}, s{sB}, 3")
    a.e(f"s_add_u32 s{sT2}, s{sT2}, s{sW}")
    a.e(f"s_mul_i32 s{sU}, s{sT2}, 40960")
    a.e(f"s_add_u32 s{sU}, s{sU}, {WS_X}")
    srd(a, sX, 26, 27, f"s{sU}", "40960")
    a.e(f"s_mul_i32 s{sT2}, s{sT2}, {2*A_MB}")
    srd(a, sWS, 26, 27, f"s{sT2}", f"{2*A_MB}")
    a.e(f"s_mul_i32 s{sT2}, s{sH}, 786432")
    a.e(f"s_add_u32 s{sT2}, s{sT2}, {1536*384}")
    srd(a, sK, 6, 7, f"s{sT2}", "196608")
    srd(a, sV, 8, 9, f"s{sT2}", "196608")
    for i in range(3): voffs(i, "KV")
    a.e(f"v_lshrrev_b32 v{t+1}, 4, v{LANE}")
    a.e(f"v_bfe_u32 v{t+3}, v{LANE}, 2, 2")
    a.e(f"v_and_b32 v{t+4}, 3, v{LANE}")
    a.e(f"v_lshlrev_b32 v{t+4}, 3, v{t+4}")
    a.e(f"v_bfe_u32 v{t+5}, v{LANE}, 3, 2")
    a.e(f"v_lshl_add_u32 v{t+7}, v{t+1}, 3, v{t+3}")
    a.e(f"v_mul_u32_u24 v{t+8}, 384, v{t+7}")
    a.e(f"v_add_u32 v{t+8}, v{t+8}, v{t+4}")
    a.e(f"v_add_u32 v{t+8}, {2*WSLOT}, v{t+8}")
    for i in range(4):
        a.e(f"v_xor_b32 v{t+9}, {i}, v{t+5}")
        a.e(f"v_lshl_add_u32 v{AWQ+i}, v{t+9}, 5, v{t+8}")
    a.e(f"v_mul_u32_u24 v{t+8}, 1664, v{t+1}")
    a.e(f"v_mul_u32_u24 v{t+9}, 96, v{t+3}")
    a.e(f"v_add3_u32 v{t+8}, v{t+8}, v{t+9}, v{t+4}")
    a.e(f"v_add_u32 v{AGU}, {GOFF + 2*WSLOT}, v{t+8}")
    for i in range(4): a.e(f"v_mov_b32 v{ONES+i}, 0x3f803f80")
    a.wait_vm(("W", 0))
    st()
    def w1_late():
        if HYB and not W1E:
            for f in w_block(1): f()
    flag_wait("px", 0, 42, 43, w1_late)()
    a.e("s_barrier")
    st()
    for f in x_loads(0, 0) + x_loads(0, 1): f()

    sa = Stream(a, FR)
    tile_first_frag = []; tile_gap0 = []
    addr_regs = [AWQ, AWQ + 1, AWQ + 2, AWQ + 3, AGU]
    started = set()
    def C0(d):
        if d in started: return None
        started.add(d); return "0"
    T = TP + 3
    order9 = [12, 15, 13, 16, 14, 17] + list(range(12))
    g_blk = {}
    for k in range(10):
        xs_ = XSET[k % NXS]
        wb = 0 if wslot(k) < 2 * WSLOT else 2 * WSLOT
        so = wslot(k) - wb
        tile_first_frag.append(len(sa.frags)); tile_gap0.append(sa.n())
        def main(ks, jb):
            xb = xs_ + 8 * ks
            if jb < 12:
                rd = [lambda b, tt=tt: f"ds_read_b64_tr_b16 {vr(b+2*tt,2)}, v{AWQ+(jb&3)} offset:{so+(32*ks+4*tt)*384+(jb>>2)*128}" for tt in range(2)]
            else:
                jj = (jb - 12) % 3; up = (jb - 12) // 3
                rd = [lambda b, tt=tt: f"ds_read_b64_tr_b16 {vr(b+2*tt,2)}, v{AGU} offset:{so+ks*6656+tt*384+up*768+jj*32}" for tt in range(2)]
            sa.frag(rd, [lambda b, qs=qs: mfma_t(ACC(jb, qs), b, xb + 4 * qs, C0(ACC(jb, qs))) for qs in range(2)])
        if k < 9:
            for ks in range(2):
                sa.add_pre(sa.n(), lambda k=k, ks=ks: a.wait_vm(("x", k, ks)))
                for jb in range(18): main(ks, jb)
        else:
            sa.add_pre(sa.n(), lambda: a.wait_vm(("x", 9, 1)))
            for jb in order9:
                main(0, jb); main(1, jb); g_blk[jb] = sa.n()
    tile_first_frag.append(len(sa.frags)); tile_gap0.append(sa.n())
    NG = sa.n()
    KVL = 1
    issue = {k: {"w": [], "x": []} for k in range(10)}
    for k in range(1, 10):
        if not (HYB and k == 1): issue[max(k - 2, 0)]["w"] += w_block(k)
        issue[max(k - (NXS - 1), 1 if k >= 2 else 0)]["x"] += x_loads(k, 0) + x_loads(k, 1)
    KVM = OPT.get("kvm", 1)
    kb0 = kv_block("K", 0); vb0 = kv_block("V", 0)
    if KVM == 0:
        issue[8]["w"] += kb0 + vb0
    elif KVM == 1:
        pieces = [kb0[:2], kb0[2:3], kb0[3:], vb0[:2], vb0[2:3], vb0[3:]]
        for n in range(6): sa.spread(pieces[n], tile_gap0[n + 2] + 63, tile_gap0[n + 2] + 65)
    elif KVM == 2:
        sa.spread(kb0 + vb0, tile_gap0[7] + 30, tile_gap0[7] + 64)
    elif KVM == 3:
        sa.spread(kb0, tile_gap0[7] + 30, tile_gap0[7] + 64)
        issue[8]["w"] += vb0
    for k in range(9):
        g0 = tile_gap0[k]
        if k == 0 and HYB:
            sa.spread(issue[0]["x"][:5], OPT.get("x1a", 0), OPT.get("x1a", 0) + 10)
            sa.spread(issue[0]["w"] + issue[0]["x"][5:], OPT.get("r1b", 36), 64)
        elif k == 0:
            sa.spread(issue[0]["w"][:6] + issue[0]["x"][:5], 0, 18)
            sa.spread(issue[0]["x"][5:] + issue[0]["w"][6:], OPT.get("r1b", 36), 64)
        elif k == 7 and KVM >= 2:
            sa.spread(issue[k]["w"], g0, g0 + 28)
            sa.spread(issue[k]["x"], g0 + 1, g0 + 28)
        else:
            sa.spread(issue[k]["w"], g0 + (OPT.get("kvo", 0) if k == 8 else 0), g0 + 62)
            sa.spread(issue[k]["x"], g0 + 3, g0 + 60)
    sa.spread(kv_block("K", 1) + kv_block("V", 1) + kv_block("K", 2), tile_gap0[9] + 1, tile_gap0[9] + 26)
    for k in range(9):
        gb = sa.read_gap(tile_first_frag[k + 1])
        def bar(k=k):
            a.wait_vm(("W", k + 1))
            a.e("s_waitcnt lgkmcnt(0)"); a.lgkm = []
            a.e("s_barrier")
            st(fine=True)
            w0 = 0 if wslot(k) < 2 * WSLOT else 2 * WSLOT
            w1 = 0 if wslot(k + 1) < 2 * WSLOT else 2 * WSLOT
            if w0 != w1:
                for r in addr_regs: a.e(f"v_add_u32 v{r}, {(w1-w0) & 0xffffffff}, v{r}")
        sa.add_pre(gb, bar)
    G0 = T + 2; HT = 208
    sC = sFL
    epi = [(E(a, f"v_mov_b32 v{G0}, {f32(GELU_C0)}"), tile_gap0[9]), (E(a, f"s_mul_i32 s{sHO}, s{sH}, 3"), tile_gap0[9]),
           (E(a, f"s_mov_b32 s{sC}, {f32(SCALE_C)}"), tile_gap0[9])]
    for n, jb in enumerate(order9):
        ge = g_blk[jb] + 3
        L_ = []
        if jb >= 15:
            jj = jb - 15
            g0 = ACC(12 + jj, 0); u0 = ACC(jb, 0)
            for r in range(8): L_.append(f"v_mul_f32 v{HT+r}, v{g0+r}, v{g0+r}")
            for r in range(8): L_.append(f"v_fma_f32 v{HT+r}, v{HT+r}, s{sG1}, v{G0}")
            for r in range(8): L_.append(f"v_mul_f32 v{HT+r}, v{HT+r}, v{g0+r}")
            for r in range(8): L_.append(f"v_exp_f32 v{HT+r}, v{HT+r}")
            for r in range(8): L_.append(f"v_mul_f32 v{g0+r}, v{g0+r}, v{u0+r}")
            for r in range(8): L_.append(f"v_add_f32 v{HT+r}, 1.0, v{HT+r}")
            for r in range(8): L_.append(f"v_rcp_f32 v{HT+r}, v{HT+r}")
            L_.append(f"s_add_u32 s{sT}, s{sHO}, {jj}")
            for r in range(8): L_.append(f"v_mul_f32 v{g0+r}, v{g0+r}, v{HT+r}")
            hp = 216 + 4 * jj if jj < 2 else u0
            for q in range(4): L_.append(f"v_cvt_pk_bf16_f32 v{hp+q}, v{g0+2*q}, v{g0+2*q+1}")
            for x_ in L_: epi.append((E(a, x_), ge))
            def hstore(hp=hp):
                a.e(f"s_and_b32 s{sT2}, s{sT}, 1")
                a.e(f"s_lshr_b32 s{sT}, s{sT}, 1")
                a.e(f"s_lshl_b32 s{sT}, s{sT}, 10")
                a.e(f"s_lshl_b32 s{sT2}, s{sT2}, 3")
                a.e(f"s_add_u32 s{sT}, s{sT}, s{sT2}")
                a.e(f"s_add_u32 s{sT}, s{sT}, {192*1024}")
                a.e(f"s_add_u32 s{sT2}, s{sT}, {A_MB}")
                a.vmem(f"buffer_store_dwordx2 {vr(hp,2)}, v{L16}, s[{sWS}:{sWS+3}], s{sT} offen{OPT.get('hsf',' sc1')}", "hst")
                a.vmem(f"buffer_store_dwordx2 {vr(hp+2,2)}, v{L16}, s[{sWS}:{sWS+3}], s{sT2} offen{OPT.get('hsf',' sc1')}", "hst")
            epi.append((hstore, ge))
        elif jb < 12:
            s_, e_ = divmod(jb, 2)
            for qs in range(2):
                ac = ACC(jb, qs)
                for r in range(4): L_.append(f"v_mul_f32 v{ac+r}, s{sC}, v{ac+r}")
            for qs in range(2):
                ac = ACC(jb, qs)
                for q in range(2): L_.append(f"v_cvt_pk_bf16_f32 v{QP(qs,s_)+2*e_+q}, v{ac+2*q}, v{ac+2*q+1}")
            if e_ == 1:
                L_.append("s_nop 1")
                for qs in range(2):
                    for q in range(2): L_.append(f"v_permlane32_swap_b32 v{QP(qs,s_)+q}, v{QP(qs,s_)+2+q}")
                L_.append("s_nop 0")
                for qs in range(2):
                    for q in range(2): L_.append(f"v_permlane16_swap_b32 v{QP(qs,s_)+q}, v{QP(qs,s_)+2+q}")
            for x_ in L_: epi.append((E(a, x_), ge))
    per = OPT.get("epi_per", 2)
    g = tile_gap0[9]; cnt = 0; n_in = 0
    for (fn, ge) in epi:
        if ge > g: g = ge; cnt = 0
        if g >= NG - 1: break
        sa.add_post(g, fn); n_in += 1; cnt += 1
        if cnt >= per: g += 1; cnt = 0
    sa.emit()
    st()
    a.e("s_nop 7")
    for (fn, ge) in epi[n_in:]: fn()
    T = TP
    kwin = lambda j: KSL[0] if j % 3 == 0 else 0
    vwin = lambda j: VSL[0] if j % 3 == 0 else VSL[1]
    a.e(f"v_lshrrev_b32 v{T}, 4, v{L16}")
    a.e(f"v_lshrrev_b32 v{T+1}, 4, v{T}")
    a.e(f"v_bfe_u32 v{T+3}, v{T}, 2, 2")
    a.e(f"v_and_b32 v{T+4}, 3, v{T}")
    a.e(f"v_lshlrev_b32 v{T+4}, 3, v{T+4}")
    a.e(f"v_bfe_u32 v{T+5}, v{T}, 3, 2")
    a.e(f"v_lshl_add_u32 v{T+3}, v{T+1}, 2, v{T+3}")
    a.e(f"v_mul_u32_u24 v{T+3}, 384, v{T+3}")
    a.e(f"v_add_u32 v{T+3}, v{T+3}, v{T+4}")
    a.e(f"v_add_u32 v{T+3}, {vwin(0)}, v{T+3}")
    for i in range(4):
        a.e(f"v_xor_b32 v{T+4}, {i}, v{T+5}")
        a.e(f"v_lshl_add_u32 v{VR+i}, v{T+4}, 5, v{T+3}")
    a.e(f"v_and_b32 v{T+3}, 15, v{T}")
    a.e(f"v_bfe_u32 v{T+5}, v{T}, 1, 3")
    a.e(f"v_mul_u32_u24 v{T+3}, 384, v{T+3}")
    a.e(f"v_add_u32 v{T+3}, {kwin(0)}, v{T+3}")
    for i in range(2):
        a.e(f"v_add_u32 v{T+4}, {4*i}, v{T+1}")
        a.e(f"v_xor_b32 v{T+4}, v{T+4}, v{T+5}")
        a.e(f"v_lshl_add_u32 v{KR[i]}, v{T+4}, 4, v{T+3}")
    a.e(f"v_mov_b32 v{LS}, 0")
    a.e(f"v_mov_b32 v{LS+1}, 0")
    a.e(f"s_mov_b32 s{sTHR}, {f32(2.0**60)}")
    if KVL:
        a.wait_vm(("K", 0))
        for _ in range(OPT.get("diag_idle", 0)): a.e("s_sleep 36")
        a.e("s_barrier")
    st()

    def exp_ops(kb):
        u, e_ = divmod(kb, 2)
        o = []
        for r in range(4): o.append(f"v_exp_f32 v{TP+r}, v{S(kb,0)+r}")
        o.append(f"v_exp_f32 v{TP+4}, v{S(kb,1)}")
        o.append(f"v_cvt_pk_bf16_f32 v{P(0,u)+2*e_}, v{TP}, v{TP+1}")
        o.append(f"v_exp_f32 v{TP+5}, v{S(kb,1)+1}")
        o.append(f"v_cvt_pk_bf16_f32 v{P(0,u)+2*e_+1}, v{TP+2}, v{TP+3}")
        o.append(f"v_exp_f32 v{TP+6}, v{S(kb,1)+2}")
        o.append(f"v_exp_f32 v{TP+7}, v{S(kb,1)+3}")
        o.append(f"v_cvt_pk_bf16_f32 v{P(1,u)+2*e_}, v{TP+4}, v{TP+5}")
        o.append(f"v_cvt_pk_bf16_f32 v{P(1,u)+2*e_+1}, v{TP+6}, v{TP+7}")
        return o
    def rowmax_ops(u, D, X):
        o = []
        for qs in range(2):
            s0 = S(2 * u, qs); s1 = S(2 * u + 1, qs)
            o.append(f"v_max3_f32 v{D[qs]}, v{s0}, v{s0+1}, v{s0+2}")
            o.append(f"v_max3_f32 v{D[qs]}, v{D[qs]}, v{s0+3}, v{s1}")
            o.append(f"v_max3_f32 v{D[qs]}, v{D[qs]}, v{s1+1}, v{s1+2}")
            o.append(f"v_max_f32 v{D[qs]}, v{D[qs]}, v{s1+3}")
        for sw in ("v_permlane32_swap_b32", "v_permlane16_swap_b32"):
            for qs in range(2): o.append(f"v_mov_b32 v{X+qs}, v{D[qs]}")
            o.append("s_nop 1")
            for qs in range(2): o.append(f"{sw} v{D[qs]}, v{X+qs}")
            for qs in range(2): o.append(f"v_max_f32 v{D[qs]}, v{D[qs]}, v{X+qs}")
        return o
    def slow_stub(u):
        a.label(f"L_{K}_slow{u}")
        a.e("s_nop 15")
        D = [TP, TP + 1]; AL = [TP + 2, TP + 3]; X = TP + 4
        for tx in rowmax_ops(u, D, X): a.e(tx)
        for qs in range(2):
            a.e(f"v_max_f32 v{D[qs]}, 0, v{D[qs]}")
            a.e(f"v_exp_f32 v{AL[qs]}, -v{D[qs]}")
        for qs in range(2):
            for r in range(4): a.e(f"v_sub_f32 v{NEGM(qs)+r}, v{NEGM(qs)+r}, v{D[qs]}")
            for kb in range(4):
                for r in range(4): a.e(f"v_sub_f32 v{S(kb,qs)+r}, v{S(kb,qs)+r}, v{D[qs]}")
            a.e(f"v_mul_f32 v{LS+qs}, v{LS+qs}, v{AL[qs]}")
            for jb in range(12):
                for r in range(4): a.e(f"v_mul_f32 v{O(jb,qs)+r}, v{O(jb,qs)+r}, v{AL[qs]}")
        for kb in (2 * u, 2 * u + 1):
            for tx in exp_ops(kb): a.e(tx)
        a.e("s_nop 1")
        for qs in range(2): a.e(mfma_t(LT(qs), ONES, P(qs, u), "0"))
        a.e("s_nop 7")
        a.e(f"s_setpc_b64 s[{sRET}:{sRET+1}]")
    def check(j, u):
        def fn():
            a.e(f"v_max_f32 v{LT(0)+1}, v{LT(0)}, v{LT(1)}")
            a.e(f"v_cmp_nge_f32 vcc, s{sTHR}, v{LT(0)+1}")
            a.e(f"s_cbranch_vccnz L_{K}_tr{j}_{u}")
            a.label(f"L_{K}_back{j}_{u}")
        def stub():
            a.label(f"L_{K}_tr{j}_{u}")
            a.e(f"s_call_b64 s[{sRET}:{sRET+1}], L_{K}_slow{u}")
            a.e(f"s_branch L_{K}_back{j}_{u}")
        stubs.append(stub)
        return fn

    sb = Stream(a, FR)
    seg = {}
    def QK(j, u, sum_of=None):
        ko = KSL[j % 3] - kwin(j); g0 = sb.n(); f0 = len(sb.frags)
        for kb in (2 * u, 2 * u + 1):
            for s_ in range(6):
                c0 = ("0" if j == 0 else "negm") if s_ == 0 else None
                sb.frag([lambda b: f"ds_read_b128 {vr(b,4)}, v{KR[s_&1]} offset:{ko+kb*6144+(s_>>1)*128}"],
                        [lambda b, qs=qs: mfma_t(S(kb, qs), b, QP(qs, s_), NEGM(qs) if c0 == "negm" else c0) for qs in range(2)])
                if sum_of is not None and kb == 2 * u + 1 and s_ == 2:
                    seg[("sum", sum_of)] = sb.n()
                    for qs in range(2): sb.mfma(mfma_t(LT(qs), ONES, P(qs, sum_of[1]), "0"))
        seg[("QK", j, u)] = (g0, sb.n(), f0)
    def PV(j, u, sum_of=None):
        vo = VSL[j % 3] - vwin(j); g0 = sb.n(); f0 = len(sb.frags)
        if not (j == 0 and u == 0) and not OPT.get("nocheck"): sb.add_pre(g0, check(j, u))
        sb.add_post(g0, E(a, f"v_add_f32 v{LS}, v{LS}, v{LT(0)}"))
        sb.add_post(g0 + 1, E(a, f"v_add_f32 v{LS+1}, v{LS+1}, v{LT(1)}"))
        for jb in range(12):
            sb.frag([lambda b, tt=tt: f"ds_read_b64_tr_b16 {vr(b+2*tt,2)}, v{VR+(jb&3)} offset:{vo+(32*u+16*tt)*384+(jb>>2)*128}" for tt in range(2)],
                    [lambda b, qs=qs: mfma_t(O(jb, qs), b, P(qs, u), "0" if (j == 0 and u == 0) else None) for qs in range(2)])
            if sum_of is not None and jb == 8:
                seg[("sum", sum_of)] = sb.n()
                for qs in range(2): sb.mfma(mfma_t(LT(qs), ONES, P(qs, sum_of[1]), "0"))
        seg[("PV", j, u)] = (g0, sb.n(), f0)
    QK(0, 0)
    for j in range(8):
        QK(j, 1, sum_of=(j, 0))
        if j < 7:
            PV(j, 0); QK(j + 1, 0, sum_of=(j, 1)); PV(j, 1)
        else:
            PV(j, 0, sum_of=(j, 1)); PV(j, 1)
    NG = sb.n()
    for j in range(8):
        for u in range(2):
            g0 = seg[("QK", j, u)][1] + 3; g1 = seg[("sum", (j, u))] - 2
            ops = exp_ops(2 * u) + exp_ops(2 * u + 1)
            if j == 0 and u == 0:
                D = [LT(0), LT(1)]
                pre = rowmax_ops(0, D, TP)
                for qs in range(2):
                    for kb in range(2):
                        for r in range(4): pre.append(f"v_sub_f32 v{S(kb,qs)+r}, v{S(kb,qs)+r}, v{D[qs]}")
                for qs in range(2):
                    for r in range(4): pre.append(f"v_sub_f32 v{NEGM(qs)+r}, 0, v{D[qs]}")
                ops = pre + ops
            if j == 0 and u == 1:
                pre = []
                for qs in range(2):
                    for kb in range(2, 4):
                        for r in range(4): pre.append(f"v_add_f32 v{S(kb,qs)+r}, v{S(kb,qs)+r}, v{NEGM(qs)}")
                ops = pre + ops
            if not OPT.get("noexp"): sb.spread([E(a, x) for x in ops], g0, g1)
    for j in range(8):
        gb = sb.read_gap(seg[("PV", j, 0)][2])
        def vbar(j=j):
            a.wait_vm(("V", j))
            if not OPT.get("nobar"): a.e("s_barrier")
        sb.add_pre(gb, vbar)
        if j > 0 and vwin(j) != vwin(j - 1):
            sb.spread([E(a, f"v_add_u32 v{VR+r}, {(vwin(j)-vwin(j-1)) & 0xffffffff}, v{VR+r}") for r in range(4)], gb - 9, gb - 1)
        if j + 2 < 8 and not OPT.get("nodma"): sb.spread(kv_block("V", j + 2), gb + 2, gb + 20)
        if j < 7:
            gb = sb.read_gap(seg[("QK", j + 1, 0)][2])
            def kbar(j=j):
                a.wait_vm(("K", j + 1))
                if not OPT.get("nobar"): a.e("s_barrier")
                st(fine=True)
            sb.add_pre(gb, kbar)
            if kwin(j) != kwin(j + 1):
                sb.spread([E(a, f"v_add_u32 v{r}, {(kwin(j+1)-kwin(j)) & 0xffffffff}, v{r}") for r in KR], gb - 6, gb - 1)
            if j + 3 < 8 and not OPT.get("nodma"): sb.spread(kv_block("K", j + 3), gb + 2, gb + 20)
    ACC2 = lambda nb, qs: (nb * 2 + qs) * 4
    ACCF = lambda nb, qs: 176 + (nb * 2 + qs) * 4
    NSET = 4
    OF = 80; FR2 = OF + 16 * NSET
    AW = 160; AF = 162; TM2 = 164
    DF = [243, 244, 245, 247, 254]
    DW = [216, 217, 218, 219, 220]
    ZV, ONEV, PV_ = 221, 222, 223
    sO, sWr, sP = 28, 32, 36
    sS, sMT, sNT, sG, sMBk, sOW, sM0, sOO, sKG, sTW2, sTO = 55, 56, 57, 58, 59, 60, 61, 62, 63, 64, 65
    sOO2, sOB_, sWB, sPER, sR12 = 78, 79, 80, 81, 96
    sCH, sCO = 86, 87
    sXo, sOut = 40, 44
    SLOT = 40960
    NF, NA = 6, 12; NT2 = NF + NA
    slot2 = lambda k: ((k + 2) % 4) * SLOT
    win = lambda k: 0 if slot2(k) < 2 * SLOT else 2 * SLOT
    su = []
    def S_(tx): su.append(E(a, tx))
    def grp(*txs):
        def f():
            for tx in txs: a.e(tx)
        su.append(f)
    grp(f"s_and_b32 s{sS}, s2, 3", f"s_bfe_u32 s{sU}, s2, 0x10002", f"s_lshr_b32 s{sU2}, s2, 3")
    grp(f"s_and_b32 s{sNT}, s{sU2}, 3", f"s_lshr_b32 s{sMT}, s{sU2}, 2")
    grp(f"s_mul_i32 s{sTW2}, s{sMT}, {NF}", f"s_lshr_b32 s{sTW2}, s{sTW2}, 3", f"s_mov_b32 s{sTO}, s{sTW2}")
    grp(f"s_mul_i32 s{sR12}, s{sMT}, {NA}", f"s_lshr_b32 s{sR12}, s{sR12}, 3")
    grp(f"s_lshl_b32 s{sU}, s{sU}, 3", f"s_add_u32 s{sMT}, s{sMT}, s{sU}", f"s_lshr_b32 s{sG}, s{sW}, 2")
    grp(f"s_and_b32 s{sU}, s{sW}, 3", f"s_lshl_b32 s{sMBk}, s{sMT}, 2", f"s_add_u32 s{sMBk}, s{sMBk}, s{sU}")
    grp(f"s_mul_i32 s{sM0}, s{sW}, 5120", f"s_lshr_b32 s{sKG}, s{sW}, 1")
    grp(f"s_lshr_b32 s{sCO}, s{sMT}, 1", f"s_lshl_b32 s{sCO}, s{sCO}, 5", f"s_add_u32 s{sCH}, s{sCO}, 16")
    su_early = list(su); su.clear()
    su_v = list(su); su.clear()
    grp(f"s_mul_i32 s{sWB}, s{sKG}, {NF*10240}", f"s_and_b32 s{sU}, s{sW}, 1", f"s_mul_i32 s{sU}, s{sU}, 5120", f"s_add_u32 s{sWB}, s{sWB}, s{sU}", f"s_mul_i32 s{sOB_}, s{sKG}, {NF*2048}", f"s_add_u32 s{sOB_}, s{sOB_}, {192*1024}")
    def f_():
        a.e(f"s_lshl_b32 s{sU2}, s{sNT}, 1")
        a.e(f"s_and_b32 s{sU}, s{sS}, 1")
        a.e(f"s_add_u32 s{sU2}, s{sU2}, s{sU}")
        a.e(f"s_mul_i32 s{sU2}, s{sU2}, {1536*160}")
        a.e(f"s_add_u32 s{sU2}, s{sU2}, {WS_D}")
        srd(a, sWr, 26, 27, f"s{sU2}", f"{1536*160}")
    su.append(f_)
    def f_():
        a.e(f"s_lshl_b32 s{sU2}, s{sMT}, 2")
        a.e(f"s_and_b32 s{sU}, s{sS}, 2")
        a.e(f"s_add_u32 s{sU2}, s{sU2}, s{sU}")
        a.e(f"s_and_b32 s{sU}, s{sW}, 1")
        a.e(f"s_add_u32 s{sU2}, s{sU2}, s{sU}")
        a.e(f"s_mul_i32 s{sU2}, s{sU2}, {2*A_MB}")
        srd(a, sO, 26, 27, f"s{sU2}", f"{2*A_MB}")
    su.append(f_)
    su_s = list(su); su.clear(); su.extend(su_v)
    def w2_block(k):
        base = slot2(k); tag = ("W2", k); fns = []
        per = NF if k < NF else NA; vo = DF if k < NF else DW
        def head():
            if k == NF:
                a.e(f"s_mul_i32 s{sU2}, s{sNT}, 320")
                srd(a, sWr, 12, 13, f"s{sU2}", "0")
                a.e(f"s_sub_u32 s{sWr+2}, {6144*1280}, s{sU2}")
                a.e(f"s_lshl_b32 s{sU}, s{sS}, 1")
                a.e(f"s_add_u32 s{sU}, s{sU}, s{sG}")
                a.e(f"s_mul_i32 s{sWB}, s{sU}, {NA*64*1280}")
                a.e(f"s_mov_b32 s{sTW2}, s{sR12}")
            a.e(f"s_mul_i32 s{sOW}, s{sTW2}, {10240 if k < NF else 64*1280}")
            a.e(f"s_add_u32 s{sOW}, s{sOW}, s{sWB}")
        fns.append(head)
        for i in range(5):
            def f(i=i):
                a.e(f"s_add_u32 m0, s{sM0}, {base + 1024*i}")
                if i == 0: a.e(f"s_add_u32 s{sTW2}, s{sTW2}, 1")
                elif i == 1: a.e(f"s_cmp_eq_u32 s{sTW2}, {per}")
                else: a.e("s_nop 0")
                if k < NF: a.vmem(f"buffer_load_dwordx4 v{L16}, s[{sWr}:{sWr+3}], s{sOW} offen sc1 lds", tag)
                else: a.vmem(f"buffer_load_dwordx4 v{vo[i]}, s[{sWr}:{sWr+3}], s{sOW} offen lds", tag)
                if i == 1: a.e(f"s_cselect_b32 s{sTW2}, 0, s{sTW2}")
                if k < NF: a.e(f"s_add_u32 s{sOW}, s{sOW}, 1024")
            fns.append(f)
        return fns
    def poll_issue(soff, tag):
        return lambda: a.vmem(f"buffer_load_dword v{PV_}, v{ZV}, s[{sDB_}:{sDB_+3}], s{soff} offen sc1", tag)
    def poll_check(name, srdr, soff, target, tag):
        def fn():
            a.wait_vm(tag)
            a.e(f"v_readfirstlane_b32 s{sU2}, v{PV_}")
            a.e("s_nop 3")
            a.e(f"s_cmp_ge_u32 s{sU2}, {target}")
            a.e(f"s_cbranch_scc0 L_{name}_spin")
            a.label(f"L_{name}_ok")
        def stub():
            a.label(f"L_{name}_spin")
            a.e(f"s_mov_b32 s{sU}, 0")
            a.label(f"L_{name}_poll")
            a.e(f"s_sleep {OPT.get('slp', 8)}")
            a.e(f"buffer_load_dword v{PV_}, v{ZV}, s[{srdr}:{srdr+3}], s{soff} offen sc1")
            a.e("s_waitcnt vmcnt(0)")
            a.e(f"v_readfirstlane_b32 s{sU2}, v{PV_}")
            a.e(f"s_add_u32 s{sU}, s{sU}, 1")
            a.e("s_nop 1")
            a.e(f"s_cmp_ge_u32 s{sU2}, {target}")
            a.e(f"s_cbranch_scc1 L_{name}_ok")
            a.e(f"s_cmp_lt_u32 s{sU}, 0x20000")
            a.e(f"s_cbranch_scc1 L_{name}_poll")
            a.e(f"s_branch L_{name}_ok")
        stubs.append(stub)
        return fn
    def signal(name, srdr, soff_expr, zv, onev):
        def fn():
            a.e(f"s_cmp_eq_u32 s{sW}, 0")
            a.e(f"s_cbranch_scc1 L_{name}_sig")
            a.label(f"L_{name}_sigr")
        def stub():
            a.label(f"L_{name}_sig")
            for tx in soff_expr: a.e(tx)
            a.e(f"v_mov_b32 v{zv}, 0")
            a.e(f"v_mov_b32 v{onev}, 1")
            a.e("s_mov_b64 exec, 1")
            a.e(f"buffer_atomic_add v{onev}, v{zv}, s[{srdr}:{srdr+3}], s{sU} offen sc1")
            a.e("s_mov_b64 exec, -1")
            a.e(f"s_branch L_{name}_sigr")
        stubs.append(stub)
        return fn
    def o_loads(k, ks):
        par = (k + 1) % NSET; fns = []
        per = NF if k < NF else NA
        if ks == 0:
            def head():
                if k == NF:
                    a.e(f"s_mul_i32 s{sU2}, s{sMBk}, {2*A_MB}")
                    srd(a, sO, 26, 27, f"s{sU2}", f"{2*A_MB}")
                    a.e(f"s_lshl_b32 s{sU}, s{sS}, 1")
                    a.e(f"s_add_u32 s{sU}, s{sU}, s{sG}")
                    a.e(f"s_mul_i32 s{sOB_}, s{sU}, {NA*2048}")
                    a.e(f"s_mov_b32 s{sTO}, s{sR12}")
                a.e(f"s_lshl_b32 s{sOO}, s{sTO}, 11")
                a.e(f"s_add_u32 s{sOO}, s{sOO}, s{sOB_}")
                a.e(f"s_add_u32 s{sTO}, s{sTO}, 1")
                a.e(f"s_cmp_eq_u32 s{sTO}, {per}")
                a.e(f"s_cselect_b32 s{sTO}, 0, s{sTO}")
                a.e(f"s_add_u32 s{sOO2}, s{sOO}, {A_MB}")
            fns.append(head)
        for qs in range(2):
            fns.append(lambda qs=qs: a.vmem(f"buffer_load_dwordx4 {vr(OF+16*par+8*ks+4*qs,4)}, v{L16}, s[{sO}:{sO+3}], s{sOO2 if qs else sOO} offen offset:{1024*ks} sc1", ("o", k, ks)))
        return fns
    gk = lambda j: sb.read_gap(seg[("QK", j + 1, 0)][2])
    gv = lambda j: sb.read_gap(seg[("PV", j, 0)][2])
    sRD = 36; RQ = 244
    def rd_load():
        a.e(f"v_lshrrev_b32 v{RQ}, 4, v{L16}")
        a.e(f"v_mul_u32_u24 v{RQ+1}, 6554, v{RQ}")
        a.e(f"v_lshrrev_b32 v{RQ+1}, 16, v{RQ+1}")
        a.e(f"v_mul_u32_u24 v{RQ+2}, {1280-160}, v{RQ+1}")
        a.e(f"v_add_u32 v{RQ}, v{RQ+2}, v{L16}")
        a.e(f"s_lshl_b32 s{sU}, s2, 3")
        a.e(f"s_add_u32 s{sU}, s{sU}, s{sW}")
        a.e(f"s_and_b32 s{sU2}, s{sU}, 255")
        a.e(f"s_mul_i32 s{sU2}, s{sU2}, {6*1280}")
        a.e(f"s_lshr_b32 s{sPER}, s{sU}, 8")
        a.e(f"s_mul_i32 s{sPER}, s{sPER}, 160")
        a.e(f"s_add_u32 s{sU2}, s{sU2}, s{sPER}")
        srd(a, sRD, 20, 21, None, f"{1536*1280}")
        a.e("s_mov_b32 exec_hi, 0xfffffff")
        a.vmem(f"buffer_load_dwordx4 {vr(RQ,4)}, v{RQ}, s[{sRD}:{sRD+3}], s{sU2} offen", "rd")
        a.e("s_mov_b64 exec, -1")
        a.e(f"s_mul_i32 s{sPER}, s{sU}, 960")
        a.e(f"s_add_u32 s{sPER}, s{sPER}, {WS_D}")
    def rd_store():
        srd(a, sRD, 26, 27, f"s{sPER}", "960")
        a.wait_vm("rd")
        a.vmem(f"buffer_store_dwordx4 {vr(RQ,4)}, v{L16}, s[{sRD}:{sRD+3}], 0 offen sc1", "hst")
    sb.add_post(gk(0) + 26, rd_load)
    sb.add_post(gk(1) - 12, rd_store)
    HS = 2
    sb.pre[gk(HS)].insert(0, lambda: a.wait_vm("hst"))
    sb.add_pre(gk(HS), sig_issue(1, 244, 246, "ah"))
    sb.spread(su_early, gk(1) + 22, gk(1) + 39)
    if OPT.get("pfw2", 1):
        PW, PD = 245, 247
        sPF = 36
        def pfs():
            a.e(f"v_lshlrev_b32 v{PW}, 3, v{L16}")
            a.e(f"v_mov_b32 v{PD}, 0x1000000")
            a.e(f"v_cmp_gt_u32 vcc, {15*128}, v{PW}")
            a.e(f"s_lshr_b32 s{sU}, s2, 3")
            a.e(f"s_lshl_b32 s{sU}, s{sU}, 3")
            a.e(f"v_cndmask_b32 v{PW}, v{PD}, v{PW}, vcc")
            a.e(f"s_add_u32 s{sU}, s{sU}, s{sW}")
            a.e(f"s_mul_i32 s{sU}, s{sU}, 7680")
            a.e(f"s_mul_i32 s{sU2}, s{sS}, {1536*1280}")
            a.e(f"s_add_u32 s{sU}, s{sU}, s{sU2}")
            srd(a, sPF, 12, 13, f"s{sU}", "7680")
        sb.add_post(gk(1) + 42, pfs)
        for n in range(4):
            sb.add_post(gk(1 + n) + 60, lambda n=n: a.vmem(f"buffer_load_dword v{PD}, v{PW}, s[{sPF}:{sPF+3}], 0 offen offset:{1920*n if n < 2 else 0}" if n < 2 else
                                                             f"buffer_load_dword v{PD}, v{PW}, s[{sPF}:{sPF+3}], s{sPER} offen offset:{1920*(n-2)}", "pf"))
        sb.add_post(gk(1) + 44, E(a, f"s_mov_b32 s{sPER}, 3840"))
        def pfd():
            a.e(f"s_lshl_b32 s{sU}, s2, 3")
            a.e(f"s_add_u32 s{sU}, s{sU}, s{sW}")
            a.e(f"s_mul_i32 s{sU}, s{sU}, 960")
            srd(a, sPF, 20, 21, f"s{sU}", "960")
            a.vmem(f"buffer_load_dword v{PD}, v{PW}, s[{sPF}:{sPF+3}], 0 offen", "pf")

        sb.add_pre(gv(5) + 24, lambda: a.wait_vm("pf"))
    sb.spread(su_s, gk(2) + 24, gk(2) + 40)
    def ctr_issue():
        a.e(f"v_lshlrev_b32 v244, 1, v{L16}")
        a.e(f"s_cmp_eq_u32 s{sW}, 0")
        a.e(f"s_cselect_b32 s{sU}, 0, 0x100000")
        a.e("s_mov_b64 exec, 0xff")
        a.vmem(f"buffer_load_dword v246, v244, s[{sDB_}:{sDB_+3}], s{sU} offen offset:4 sc1", "ph")
        a.e("s_mov_b64 exec, -1")
    def ctr_test():
        a.e(f"v_add_u32 v246, -1, v246")
        a.e(f"v_and_b32 v246, 0x8000001f, v246")
        a.e(f"v_cmp_ne_u32 vcc, 31, v246")
    def ctr_check():
        a.wait_vm("ph")
        ctr_test()
        a.e(f"s_cmp_eq_u32 s{sW}, 0")
        a.e(f"s_cselect_b32 s{sU}, 0xff, 0")
        a.e("s_nop 1")
        a.e(f"s_and_b32 s{sU}, s{sU}, vcc_lo")
        a.e(f"s_cbranch_scc1 L_ph_spin")
        a.label("L_ph_ok")
    def ctr_stub():
        a.label("L_ph_spin")
        a.e(f"s_mov_b32 s{sU}, 0")
        a.e("s_mov_b64 exec, 0xff")
        a.label("L_ph_poll")
        a.e("s_sleep 16")
        a.e(f"buffer_load_dword v246, v244, s[{sDB_}:{sDB_+3}], 0 offen offset:4 sc1")
        a.e(f"s_add_u32 s{sU}, s{sU}, 1")
        a.e("s_waitcnt vmcnt(0)")
        ctr_test()
        a.e(f"s_cbranch_vccz L_ph_done")
        a.e(f"s_cmp_lt_u32 s{sU}, 0x20000")
        a.e(f"s_cbranch_scc1 L_ph_poll")
        a.label("L_ph_done")
        a.e("s_mov_b64 exec, -1")
        a.e("s_branch L_ph_ok")
    stubs.append(ctr_stub)
    HK = OPT.get("hk", 6)
    sb.add_post(gk(HK) - 40, ctr_issue)
    sb.pre[gk(HK)].insert(0, ctr_check)
    if OPT.get("pff", 0):
        q0, q1, q2 = KA, KA + 1, KA + 2
        def pf_h():
            a.e(f"v_lshrrev_b32 v{q0}, 4, v{L16}")
            a.e(f"s_mul_i32 s{sU}, s{sNT}, 48")
            a.e(f"v_cmp_gt_u32 vcc, 48, v{q0}")
            a.e(f"v_add_u32 v{q0}, s{sU}, v{q0}")
            a.e(f"v_and_b32 v{q1}, 7, v{q0}")
            a.e(f"v_lshlrev_b32 v{q1}, 7, v{q1}")
            a.e(f"v_lshrrev_b32 v{q2}, 4, v{q0}")
            a.e(f"v_lshl_add_u32 v{q1}, v{q2}, 10, v{q1}")
            a.e(f"v_bfe_u32 v{q2}, v{q0}, 3, 1")
            a.e(f"v_mul_u32_u24 v{q2}, {A_MB}, v{q2}")
            a.e(f"v_add_u32 v{q1}, v{q1}, v{q2}")
            a.e(f"v_mov_b32 v{q2}, 0x1000000")
            a.e(f"v_cndmask_b32 v{q1}, v{q2}, v{q1}, vcc")
            a.vmem(f"buffer_load_dword v243, v{q1}, s[{sO}:{sO+3}], s{sOB_} offen sc1", "pf")
        def pf_d():
            a.e(f"v_lshrrev_b32 v{q0}, 4, v{L16}")
            a.e(f"s_and_b32 s{sU}, s{sMT}, 7")
            a.e(f"s_mul_i32 s{sU}, s{sU}, 24")
            a.e(f"v_cmp_gt_u32 vcc, 48, v{q0}")
            a.e(f"v_lshrrev_b32 v{q1}, 1, v{q0}")
            a.e(f"v_add_u32 v{q1}, s{sU}, v{q1}")
            a.e(f"v_lshrrev_b32 v{q2}, 5, v{q1}")
            a.e(f"v_lshl_add_u32 v{q1}, v{q2}, 5, v{q1}")
            a.e(f"v_mul_u32_u24 v{q1}, 1280, v{q1}")
            a.e(f"v_and_b32 v{q0}, 1, v{q0}")
            a.e(f"v_mul_u32_u24 v{q0}, 156, v{q0}")
            a.e(f"v_add_u32 v{q1}, v{q1}, v{q0}")
            a.e(f"v_mov_b32 v{q2}, 0x1000000")
            a.e(f"v_cndmask_b32 v{q1}, v{q2}, v{q1}, vcc")
            a.e(f"s_and_b32 s{sU}, s{sW}, 1")
            a.e(f"s_mul_i32 s{sU}, s{sU}, {32*1280}")
            a.e(f"s_add_u32 s{sU}, s{sU}, s{sWB}")
            a.vmem(f"buffer_load_dword v244, v{q1}, s[{sWr}:{sWr+3}], s{sU} offen", "pf")
        sb.add_post(gk(4) + 26, pf_d)
        sb.add_post(gk(4) + 44, pf_h)
    sb.spread(su, gv(5) + 24, gk(6) - 2)
    sb.spread(w2_block(0), gk(6) + 2, gv(7) - 2)
    gA = seg[("PV", 7, 0)][0]; gB = seg[("PV", 7, 1)][0]
    sb.spread(w2_block(1), gv(7) + 2, gA + 14)
    sb.spread(o_loads(0, 0) + o_loads(0, 1) + o_loads(1, 0) + o_loads(1, 1), gA + 2, gB - 2)
    oe = [(E(a, f"s_mul_i32 s{sHO}, s{sH}, 6144"), gB + 2)]
    for qs in range(2): oe.append((E(a, f"v_rcp_f32 v{TP+qs}, v{LS+qs}"), gB + 3))
    for s_ in range(6):
        ge = gB + 4 * s_ + 7
        for qs in range(2):
            for e_ in range(2):
                ob = O(2 * s_ + e_, qs)
                for r in range(4): oe.append((E(a, f"v_mul_f32 v{ob+r}, v{TP+qs}, v{ob+r}"), ge))
        for qs in range(2):
            dst = S(0, 0) + 4 * ((2 * s_ + qs) % 8)
            for e_ in range(2):
                ob = O(2 * s_ + e_, qs)
                for q in range(2): oe.append((E(a, f"v_cvt_pk_bf16_f32 v{dst+2*e_+q}, v{ob+2*q}, v{ob+2*q+1}"), ge))
            def ost(qs=qs, s_=s_, dst=dst):
                a.e(f"s_add_u32 s{sT}, s{sHO}, {qs*A_MB + (s_//4)*4096}")
                a.vmem(f"buffer_store_dwordx4 {vr(dst,4)}, v{L16}, s[{sWS}:{sWS+3}], s{sT} offen offset:{1024*(s_%4)} sc1", "ost")
            oe.append((ost, ge))
    per = OPT.get("oe_per", 3)
    g = gB; cnt = 0; n_in = 0
    for (fn, ge) in oe:
        if ge > g: g = ge; cnt = 0
        if g >= NG - 1: break
        sb.add_post(g, fn); n_in += 1; cnt += 1
        if cnt >= per: g += 1; cnt = 0
    sb.emit()
    st()
    a.e("s_nop 7")
    for (fn, ge) in oe[n_in:]: fn()
    st()
    a.e("s_nop 1")
    t = TM2
    a.e(f"v_lshrrev_b32 v{t+2}, 4, v{L16}")
    a.e(f"v_lshrrev_b32 v{t}, 2, v{t+2}")
    a.e(f"v_and_b32 v{t+1}, 3, v{t+2}")
    a.e(f"v_lshlrev_b32 v{t+1}, 3, v{t+1}")
    a.e(f"v_mul_u32_u24 v{t+3}, 160, v{t}")
    a.e(f"s_mul_i32 s{sU2}, s{sKG}, 10240")
    a.e(f"s_add_u32 s{sU2}, s{sU2}, {win(0)}")
    a.e(f"v_add3_u32 v{AF}, v{t+3}, v{t+1}, s{sU2}")
    a.wait_vm(("W2", 1))
    a.e("s_waitcnt lgkmcnt(0)"); a.lgkm = []
    a.e("s_barrier")
    st()
    late = []
    L_ = lambda tx: late.append(E(a, tx))
    L_(f"v_mul_u32_u24 v{t+3}, 320, v{t}")
    L_(f"s_mul_i32 s{sU2}, s{sG}, 20480")
    late.append(lambda: (a.e(f"s_mul_i32 s{sU2}, s{sG}, 20480"), a.e(f"s_add_u32 s{sU2}, s{sU2}, {win(NF)}"), a.e(f"v_add3_u32 v{t+3}, v{t+3}, v{t+1}, s{sU2}")))
    L_(f"v_bfe_u32 v{t+4}, v{t+2}, 4, 1")
    L_(f"v_lshlrev_b32 v{t+4}, 5, v{t+4}")
    L_(f"v_add_u32 v{AW}, v{t+3}, v{t+4}")
    L_(f"v_sub_u32 v{AW+1}, v{t+3}, v{t+4}")
    L_(f"v_and_b32 v{t+7}, 0x30, v{t+2}")
    late.append(lambda: (a.e(f"s_and_b32 s{sPER}, s{sW}, 3"), a.e(f"s_lshl_b32 s{sPER}, s{sPER}, 4")))
    for i in range(5):
        L_(f"v_add_u32 v{t+4}, {64*i}, v{t+2}")
        L_(f"v_mul_u32_u24 v{t+5}, 3277, v{t+4}")
        L_(f"v_lshrrev_b32 v{t+5}, 16, v{t+5}")
        L_(f"v_mul_u32_u24 v{t+6}, 20, v{t+5}")
        L_(f"v_sub_u32 v{t+6}, v{t+4}, v{t+6}")
        L_(f"v_add_u32 v{t+5}, s{sPER}, v{t+5}")
        L_(f"v_bfe_u32 v{t+4}, v{t+5}, 2, 1")
        L_(f"v_lshlrev_b32 v{t+4}, 1, v{t+4}")
        L_(f"v_xor_b32 v{t+6}, v{t+6}, v{t+4}")
        L_(f"v_mul_u32_u24 v{t+5}, 1280, v{t+5}")
        L_(f"v_lshl_add_u32 v{DW[i]}, v{t+6}, 4, v{t+5}")
    sm = Stream(a, FR2)
    started = set()
    tfirst = []; tg0 = []
    for k in range(NT2):
        par = (k + 1) % NSET; so = slot2(k) - win(k)
        tfirst.append(len(sm.frags)); tg0.append(sm.n())
        for ks in range(2):
            sm.add_pre(sm.n(), lambda k=k, ks=ks: a.wait_vm(("o", k, ks)))
            if k < NF:
                for nb in range(5):
                    sm.frag([lambda b, tt=tt: f"ds_read_b64_tr_b16 {vr(b+2*tt,2)}, v{AF} offset:{so+(32*ks+16*tt)*160+32*nb}" for tt in range(2)],
                            [lambda b, qs=qs: mfma_t(ACCF(nb, qs), b, OF + 16 * par + 8 * ks + 4 * qs, C0(ACCF(nb, qs))) for qs in range(2)])
            else:
                for nb in range(10):
                    sm.frag([lambda b, tt=tt: f"ds_read_b64_tr_b16 {vr(b+2*tt,2)}, v{AW+(nb&1)} offset:{so+(32*ks+16*tt)*320+32*nb}" for tt in range(2)],
                            [lambda b, qs=qs: mfma_t(ACC2(nb, qs), b, OF + 16 * par + 8 * ks + 4 * qs, C0(ACC2(nb, qs))) for qs in range(2)])
    tfirst.append(len(sm.frags)); tg0.append(sm.n())
    NG = sm.n()
    sm.spread(late, 0, tg0[2])
    def opoll_ld(count):
        tx = f"buffer_load_dword v{PV_}, v{ZV}, s[{sFG}:{sFG+3}], s{sPO} offen offset:32 sc1"
        if count: a.vmem(tx, "po")
        else: a.e(tx)
    def opoll_issue():
        a.e(f"v_lshrrev_b32 v{ZV}, 2, v{L16}")
        a.e("s_mov_b64 exec, 0xff")
        opoll_ld(True)
        a.e("s_mov_b64 exec, -1")
    def opoll_check():
        a.wait_vm("po")
        a.e(f"v_cmp_ne_u32 vcc, 1, v{PV_}")
        a.e(f"s_cmp_eq_u32 s{sW}, 0")
        a.e(f"s_cselect_b32 s{sU}, 0xff, 0")
        a.e("s_nop 1")
        a.e(f"s_and_b32 s{sU}, s{sU}, vcc_lo")
        a.e(f"s_cbranch_scc1 L_po_spin")
        a.label("L_po_ok")
    def opoll_stub():
        a.label("L_po_spin")
        a.e(f"s_mov_b32 s{sU}, 0")
        a.e("s_mov_b64 exec, 0xff")
        a.label("L_po_poll")
        opoll_ld(False)
        a.e(f"s_add_u32 s{sU}, s{sU}, 1")
        a.e("s_waitcnt vmcnt(0)")
        a.e(f"v_cmp_ne_u32 vcc, 1, v{PV_}")
        a.e(f"s_cbranch_vccz L_po_done")
        a.e("s_sleep 1")
        a.e(f"s_cmp_lt_u32 s{sU}, 0x20000")
        a.e(f"s_cbranch_scc1 L_po_poll")
        a.label("L_po_done")
        a.e("s_mov_b64 exec, -1")
        a.e("s_branch L_po_ok")
    stubs.append(opoll_stub)
    OSG = OPT.get("osg", 0)
    KO = OPT.get("ostep", 5)
    issue = {}
    for k in range(2, NT2):
        tk = max(k - OPT.get("olook", 2), 0) if k < NF else max(k - OPT.get("olook2", 1), KO)
        issue.setdefault(tk, {"w": [], "o": []})["o"] += o_loads(k, 0) + o_loads(k, 1)
        issue.setdefault(max(k - OPT.get("wlook", 2), 0) if k < NF + 2 else k - OPT.get("wlook2", 2), {"w": [], "o": []})["w"] += w2_block(k)
    for tk in sorted(issue):
        wb_, ob_ = issue[tk]["w"], issue[tk]["o"]
        ln = tg0[tk + 1] - tg0[tk] - 7
        sm.spread(ob_, tg0[tk] + 1, tg0[tk] + ln)
        sm.spread(wb_, tg0[tk] + 1, tg0[tk] + ln)
    for k in range(NT2 - 1):
        gb = sm.read_gap(tfirst[k + 1])
        def bar(k=k):
            if k == 0 and not OSG: a.wait_vm("ost")
            if k == KO - 1: opoll_check()
            a.wait_vm(("W2", k + 1))
            a.e("s_waitcnt lgkmcnt(0)"); a.lgkm = []
            a.e("s_barrier")
            st(fine=True)
            if win(k) != win(k + 1) and k + 1 != NF:
                for r in ([AF] if k + 1 < NF else [AW, AW + 1]): a.e(f"v_add_u32 v{r}, {(win(k+1)-win(k)) & 0xffffffff}, v{r}")
        sm.add_pre(gb, bar)
        if k == 0:
            def osig():
                a.e(f"s_and_b32 s{sU}, s{sB}, 3")
                a.e(f"s_lshl_b32 s{sU}, s{sU}, 6")
                a.e(f"s_and_b32 s{sU2}, s{sB}, 4")
                a.e(f"s_add_u32 s{sU}, s{sU}, s{sU2}")
                a.e(f"s_lshr_b32 s{sU2}, s{sH}, 3")
                a.e(f"s_add_u32 s{sU}, s{sU}, s{sU2}")
                a.e(f"s_lshl_b32 s{sU}, s{sU}, 7")
                a.e(f"s_and_b32 s{sU2}, s{sH}, 7")
                a.e(f"s_lshl_b32 s{sU2}, s{sU2}, 2")
                a.e(f"s_add_u32 s{sU}, s{sU}, s{sU2}")
                a.e(f"s_add_u32 s{sU}, s{sU}, {16384 + 32}")
                a.e(f"s_cmp_eq_u32 s{sW}, 0")
                a.e(f"s_cselect_b32 s{sU}, s{sU}, 0x100000")
                a.e(f"v_lshlrev_b32 v224, 6, v{L16}")
                a.e(f"v_mov_b32 v225, 1")
                a.e("s_mov_b64 exec, 0xff")
                a.vmem(f"buffer_store_dword v225, v224, s[{sFG}:{sFG+3}], s{sU} offen sc1", "ao")
                a.e("s_mov_b64 exec, -1")
            gs = OSG if OSG else gb
            if OSG: sm.add_pre(gs, lambda: (a.wait_vm("ost"), a.e("s_barrier")))
            sm.add_pre(gs, osig)
        if k == KO - 1: sm.add_post(gb - OPT.get("pod", 8), opoll_issue)
    sm.emit()
    a.wait_all()
    st()
    a.e("s_barrier")
    a.e(f"s_mul_i32 s{sU}, s{sW}, 10240")
    a.e(f"v_add_u32 v{t}, s{sU}, v{L16}")
    a.e(f"v_add_u32 v{t+2}, {81920}, v{t}")
    a.e(f"s_xor_b32 s{sU2}, s{sW}, 4")
    a.e(f"s_mul_i32 s{sU2}, s{sU2}, 10240")
    a.e(f"v_add_u32 v{t+1}, s{sU2}, v{L16}")
    PBH = 64 * 40 * 1024
    a.e(f"s_lshl_b32 s{sT}, s{sMT}, 2")
    a.e(f"s_add_u32 s{sT}, s{sT}, s{sNT}")
    a.e(f"s_mul_i32 s{sU2}, s{sT}, {40*1024}")
    a.e(f"s_add_u32 s{sU2}, s{sU2}, {WS_P}")
    srd(a, sP, 26, 27, f"s{sU2}", f"{3*PBH + 40*1024}")
    a.e(f"s_lshl_b32 s{sT}, s{sT}, 7")
    a.e(f"s_and_b32 s{sPER}, s{sW}, 2")
    a.e(f"s_add_u32 s{sPER}, s{sPER}, s{sG}")
    a.e(f"s_lshl_b32 s{sU}, s{sPER}, 1")
    a.e(f"s_and_b32 s{sU2}, s{sW}, 1")
    a.e(f"s_add_u32 s{sU}, s{sU}, s{sU2}")
    a.e(f"s_mul_i32 s{sU}, s{sU}, 5120")
    a.e(f"s_mul_i32 s{sU2}, s{sS}, {PBH}")
    a.e(f"s_add_u32 s{sOW}, s{sU}, s{sU2}")
    a.e(f"s_add_u32 s{sOO}, s{sOW}, 4096")
    a.e(f"s_cmp_eq_u32 s{sG}, 0")
    a.e(f"s_cbranch_scc0 L_p2_g1")
    for g in range(2):
        keep = 40 * g; send = 40 * (1 - g)
        for q in range(10): a.e(f"ds_write_b128 v{t}, {vr(send+4*q,4)} offset:{1024*q}")
        a.e("s_waitcnt lgkmcnt(0)")
        a.e("s_barrier")
        for q in range(10): a.e(f"ds_read_b128 {vr(OF+4*q,4)}, v{t+1} offset:{1024*q}")
        for q in range(10):
            a.e(f"s_waitcnt lgkmcnt({9-q})")
            for r in range(4): a.e(f"v_add_f32 v{OF+4*q+r}, v{keep+4*q+r}, v{OF+4*q+r}")
        if g == 0:
            a.e(f"s_branch L_p2_red2")
            a.label(f"L_p2_g1")
    a.label("L_p2_red2")
    R = OF
    a.e(f"s_cmp_eq_u32 s{sPER}, s{sS}")
    a.e(f"s_cbranch_scc1 L_p2_own")
    for p in range(5):
        for q in range(4): a.e(f"v_cvt_pk_bf16_f32 v{4*p+q}, v{R+8*p+2*q}, v{R+8*p+2*q+1}")
        a.e(f"buffer_store_dwordx4 {vr(4*p,4)}, v{L16}, s[{sP}:{sP+3}], s{sOO if p == 4 else sOW} offen offset:{(p%4)*1024} sc1")
    a.e("s_branch L_p2_pub")
    a.label("L_p2_own")
    for q in range(10): a.e(f"ds_write_b128 v{t+1}, {vr(R+4*q,4)} offset:{1024*q}")
    a.label("L_p2_pub")
    st(fine=True)
    for q in range(10): a.e(f"ds_write_b128 v{t+2}, {vr(176+4*q,4)} offset:{1024*q}")
    a.e(f"s_lshl_b32 s{sU2}, s{sMT}, 1")
    a.e(f"s_lshr_b32 s{sU}, s{sS}, 1")
    a.e(f"s_add_u32 s{sU2}, s{sU2}, s{sU}")
    a.e(f"s_mul_i32 s{sU2}, s{sU2}, {64*1280}")
    a.e(f"s_mul_i32 s{sU}, s{sNT}, 320")
    a.e(f"s_add_u32 s{sU2}, s{sU2}, s{sU}")
    a.e(f"s_and_b32 s{sU}, s{sS}, 1")
    a.e(f"s_mul_i32 s{sU}, s{sU}, 160")
    a.e(f"s_add_u32 s{sU2}, s{sU2}, s{sU}")
    srd(a, sXo, 4, 5, f"s{sU2}", "0")
    a.e(f"s_sub_u32 s{sXo+2}, {2048*1280}, s{sU2}")
    srd(a, sOut, 22, 23, f"s{sU2}", "0")
    a.e(f"s_sub_u32 s{sOut+2}, {2048*1280}, s{sU2}")
    XV = t + 6
    a.e(f"v_bfe_u32 v{XV}, v{L16}, 4, 4")
    a.e(f"v_mul_u32_u24 v{XV}, 1280, v{XV}")
    a.e(f"v_lshrrev_b32 v{t+4}, 8, v{L16}")
    a.e(f"v_lshl_add_u32 v{XV}, v{t+4}, 3, v{XV}")
    a.e(f"v_add_u32 v{XV+1}, 20480, v{XV}")
    a.e(f"s_and_b32 s{sU}, s{sS}, 1")
    a.e(f"s_xor_b32 s{sU}, s{sU}, 1")
    a.e(f"s_lshl_b32 s{sU}, s{sU}, 2")
    a.e(f"s_and_b32 s{sU2}, s{sS}, 2")
    a.e(f"s_add_u32 s{sU}, s{sU}, s{sU2}")
    a.e(f"s_mul_i32 s{sKG}, s{sU}, 10240")
    NU = 2
    sQO = [sOO2, sOB_]; sQP = [sTW2, sTO]; VA = [t + 8, t + 9]; VR_ = [t + 10, t + 11]
    XR = 120
    for n in range(NU):
        a.e(f"s_add_u32 s{sU}, s{sW}, {8*n}")
        a.e(f"s_min_u32 s{sU2}, s{sU}, 9")
        a.e(f"s_lshl_b32 s{sPER}, s{sU2}, 11")
        a.e(f"s_add_u32 s{sWB}, s{sPER}, 81920")
        a.e(f"v_add_u32 v{VA[n]}, s{sWB}, v{L16}")
        a.e(f"s_add_u32 s{sWB}, s{sPER}, s{sKG}")
        a.e(f"v_add_u32 v{VR_[n]}, s{sWB}, v{L16}")
        a.e(f"s_lshl_b32 s{sQO[n]}, s{sU2}, 5")
        a.e(f"s_cmp_ge_u32 s{sU2}, 5")
        a.e(f"s_cselect_b32 s{sPER}, {40960-160}, 0")
        a.e(f"s_add_u32 s{sQO[n]}, s{sQO[n]}, s{sPER}")
        a.e(f"s_mul_i32 s{sPER}, s{sS}, 10240")
        a.e(f"s_lshl_b32 s{sQP[n]}, s{sU2}, 10")
        a.e(f"s_add_u32 s{sQP[n]}, s{sQP[n]}, s{sPER}")
        a.e(f"s_cmp_ge_u32 s{sU}, 10")
        a.e(f"s_cselect_b32 s{sQO[n]}, 0x1000000, s{sQO[n]}")
        a.e(f"s_cselect_b32 s{sQP[n]}, 0x4000000, s{sQP[n]}")
    a.wait_all()
    st(fine=True)
    a.e("s_barrier")
    a.e(f"v_mov_b32 v{ZV}, 0")
    signal("ps", sFG, [f"s_mov_b32 s{sU}, s{sT}"], ZV, ONEV)()
    for n in range(NU):
        for qs in range(2): a.vmem(f"buffer_load_dwordx2 {vr(XR+4*n+2*qs,2)}, v{XV+qs}, s[{sXo}:{sXo+3}], s{sQO[n]} offen", "xl")
    for n in range(NU):
        for kg in range(4):
            for qs in range(2): a.e(f"ds_read_b128 {vr(32*n+8*kg+4*qs,4)}, v{VA[n]} offset:{20480*kg+1024*qs}")
        a.e(f"s_waitcnt lgkmcnt(0)")
        for qs in range(2): a.e(f"ds_read_b128 {vr(64+8*n+4*qs,4)}, v{VR_[n]} offset:{1024*qs}")
    a.vmem(f"buffer_load_dword v{PV_}, v{ZV}, s[{sFG}:{sFG+3}], s{sT} offen sc1", "pp")
    for n in range(NU):
        b = 32 * n
        for r in range(8): a.e(f"v_add_f32 v{b+r}, v{b+r}, v{b+8+r}")
        for r in range(8): a.e(f"v_add_f32 v{b+16+r}, v{b+16+r}, v{b+24+r}")
        for r in range(8): a.e(f"v_add_f32 v{b+r}, v{b+r}, v{b+16+r}")
        for r in range(8): a.e(f"v_mul_f32 v{b+8+r}, {f32(-LOG2E)}, v{b+r}")
        for r in range(8): a.e(f"v_exp_f32 v{b+8+r}, v{b+8+r}")
        for r in range(8): a.e(f"v_add_f32 v{b+8+r}, 1.0, v{b+8+r}")
        for r in range(8): a.e(f"v_rcp_f32 v{b+8+r}, v{b+8+r}")
        for r in range(8): a.e(f"v_mul_f32 v{b+r}, v{b+r}, v{b+8+r}")
    a.e("s_waitcnt lgkmcnt(0)")
    poll_check("pp", sFG, sT, 4, "pp")()
    st(fine=True)
    PR = 80
    for n in range(NU):
        for m_ in range(3):
            a.e(f"s_add_u32 s{sU}, s{sS}, {m_+1}")
            a.e(f"s_and_b32 s{sU}, s{sU}, 3")
            a.e(f"s_mul_i32 s{sU}, s{sU}, {PBH}")
            a.e(f"s_add_u32 s{sU}, s{sU}, s{sQP[n]}")
            a.e(f"buffer_load_dwordx4 {vr(PR+12*n+4*m_,4)}, v{L16}, s[{sP}:{sP+3}], s{sU} offen sc1")
    for n in range(NU):
        b = 32 * n; X0 = b + 8; T0_ = b + 16; A_ = 64 + 8 * n
        for q in range(4):
            a.e(f"v_lshlrev_b32 v{X0+2*q}, 16, v{XR+4*n+q}")
            a.e(f"v_and_b32 v{X0+2*q+1}, 0xffff0000, v{XR+4*n+q}")
        for m_ in range(3):
            a.e(f"s_waitcnt vmcnt({3*(NU-1-n) + (2-m_) + 2*n})")
            for q in range(4):
                a.e(f"v_lshlrev_b32 v{T0_+2*q}, 16, v{PR+12*n+4*m_+q}")
                a.e(f"v_and_b32 v{T0_+2*q+1}, 0xffff0000, v{PR+12*n+4*m_+q}")
            for r in range(8): a.e(f"v_add_f32 v{A_+r}, v{A_+r}, v{T0_+r}")
        for r in range(8): a.e(f"v_fma_f32 v{X0+r}, v{A_+r}, v{b+r}, v{X0+r}")
        for q in range(4): a.e(f"v_cvt_pk_bf16_f32 v{XR+4*n+q}, v{X0+2*q}, v{X0+2*q+1}")
        for qs in range(2): a.e(f"buffer_store_dwordx2 {vr(XR+4*n+2*qs,2)}, v{XV+qs}, s[{sOut}:{sOut+3}], s{sQO[n]} offen{OPT.get('outf','')}")
    st()
    st.flush(sW, TM2)
    a.label(f"L_{K}_done")
    a.e("s_endpgm")
    for sfn in stubs: sfn()
    slow_stub(0); slow_stub(1)
    return a

def kd(name, vgpr, sgpr):
    return f""".amdhsa_kernel {name}
  .amdhsa_next_free_vgpr {vgpr}
  .amdhsa_next_free_sgpr {sgpr}
  .amdhsa_accum_offset {(vgpr+3)//4*4}
  .amdhsa_group_segment_fixed_size 0
  .amdhsa_kernarg_size 96
  .amdhsa_user_sgpr_count 2
  .amdhsa_user_sgpr_kernarg_segment_ptr 1
  .amdhsa_system_sgpr_workgroup_id_x 1
.end_amdhsa_kernel
"""

def main(out):
    a = kernel1()
    n = NAME + "_kernel"
    hdr = open("cdna_kernels/" + NAME + ".s.ref").read().split("; Override launch geometry")[0]
    s = hdr + "; @launch grid=(256,1,1) block=(512,1,1) lds=163840\n"
    s += '.amdgcn_target "amdgcn-amd-amdhsa--gfx950"\n.text\n'
    errs = check_hazards(a.L)
    for e in errs[:20]: print("HAZARD", e)
    s += f".globl {n}\n.p2align 8\n.type {n},@function\n{n}:\n" + a.text()
    s += '.section .rodata,"a"\n.p2align 6\n' + kd(n, 256, 102)
    open(out, "w").write(s)
    print("wrote", out, "hazards:", len(errs), "instrs:", len(a.L))

if __name__ == "__main__":
    args = sys.argv[1:]
    if "--stamps" in args:
        STAMPS = True; args.remove("--stamps")
    for x in list(args):
        if x.startswith("-O"):
            k_, v_ = x[2:].split("=")
            OPT[k_] = int(v_) if v_.lstrip("-").isdigit() else v_.replace("_", " ")
            args.remove(x)
    main(args[0] if args else "cdna_kernels/" + NAME + ".s")
```

```python
import sys, struct, math
from asmlib import *

NAME = "recurrent_scan__sliding_block_cached__glu_gated_geglu__prompt"
def f32(x): return "0x%08x" % struct.unpack("<I", struct.pack("<f", x))[0]
LOG2E = 1.4426950408889634
SCALE_C = (192 ** -0.5) * LOG2E
GELU_C0 = -2.0 * math.sqrt(2.0 / math.pi) * LOG2E
GELU_C1 = GELU_C0 * 0.044715
MF = "v_mfma_f32_16x16x32_bf16"

A_MB = 240 * 1024
WS_A_BYTES = 128 * A_MB
WS_P = WS_A_BYTES
PB_BYTES = 128 * 40 * 1024
NPB = 4
WS_X = WS_P + NPB * PB_BYTES + 65536
WS_D = WS_P + NPB * PB_BYTES + 65536 + 128 * 20480
WS_G = WS_P + NPB * PB_BYTES + 16384
WS_F = WS_P + NPB * PB_BYTES
STAMPS = False
OPT = {}
WS_ST = 200 * 1024 * 1024

class Stamper:
    def __init__(self, a, base=86, kid=0):
        self.a = a; self.n = 0; self.kid = kid
    def __call__(self, real=False, fine=False):
        if not STAMPS: return
        if fine and not OPT.get("fine"): return
        a = self.a
        if self.n == 0: a.e("v_mov_b32 v255, -1")
        a.e("s_memrealtime s[84:85]" if (real or OPT.get("real")) else "s_memtime s[84:85]")
        a.e("s_waitcnt lgkmcnt(0)"); a.lgkm = []
        a.e(f"v_writelane_b32 v255, s84, {self.n}")
        self.n += 1; assert self.n <= 64
    def flush(self, swave, vtmp):
        if not STAMPS: return
        a = self.a
        a.e("s_waitcnt vmcnt(0)")
        self()
        a.e("s_memrealtime s[84:85]")
        a.e("s_waitcnt lgkmcnt(0)")
        a.e(f"v_writelane_b32 v255, s84, 63")
        a.e(f"s_lshl_b32 s84, s2, 3")
        a.e(f"s_add_u32 s84, s84, s{swave}")
        a.e(f"s_lshl_b32 s84, s84, 8")
        a.e(f"s_add_u32 s84, s84, {WS_ST + self.kid * 1048576}")
        a.e(f"s_add_u32 s28, s26, s84")
        a.e(f"s_addc_u32 s29, s27, 0")
        a.e(f"s_and_b32 s29, s29, 0xffff")
        a.e(f"s_mov_b32 s30, 256")
        a.e(f"s_mov_b32 s31, 0x20000")
        a.e(f"v_mbcnt_lo_u32_b32 v{vtmp}, -1, 0")
        a.e(f"v_mbcnt_hi_u32_b32 v{vtmp}, -1, v{vtmp}")
        a.e(f"v_lshlrev_b32 v{vtmp}, 2, v{vtmp}")
        a.e(f"buffer_store_dword v255, v{vtmp}, s[28:31], 0 offen")
        if OPT.get("dbgout"):
            a.e(f"s_cmp_eq_u32 s2, {OPT.get('dbgwg', 0)}")
            a.e("s_cbranch_scc0 L_dbg_skip")
            a.e(f"s_cmp_eq_u32 s{swave}, 0")
            a.e("s_cbranch_scc0 L_dbg_skip")
            a.e("v_readlane_b32 s84, v255, 0")
            sel = [int(x) for x in str(OPT["dbgout"]).split(",")]
            slots = [3, 4, 5, 6, 7, 11, 12, 13, 14, 15]
            a.e(f"v_mov_b32 v{vtmp+1}, 0")
            for sl, ix in zip(slots, sel):
                a.e(f"v_readlane_b32 s85, v255, {ix}")
                a.e("s_nop 3")
                a.e("s_sub_u32 s85, s85, s84")
                a.e(f"v_mov_b32 v{vtmp}, s85")
                a.e(f"buffer_store_dword v{vtmp}, v{vtmp+1}, s[92:95], 0 offen offset:{4*sl}")
                a.e("s_nop 1")
            a.label("L_dbg_skip")

def timed(a, acc, fn):
    if not OPT.get("acc"): fn(); return
    a.e("s_memtime s[82:83]"); a.e("s_waitcnt lgkmcnt(0)"); a.lgkm = []
    a.e(f"s_sub_u32 s{acc}, s{acc}, s82")
    fn()
    a.e("s_memtime s[82:83]"); a.e("s_waitcnt lgkmcnt(0)")
    a.e(f"s_add_u32 s{acc}, s{acc}, s82")

def load_ptrs(a):
    a.e("s_load_dwordx16 s[4:19], s[0:1], 0")
    a.e("s_load_dwordx8 s[20:27], s[0:1], 64")

def srd(a, d, base_lo, base_hi, off_sreg, nbytes_expr):
    if off_sreg is None:
        a.e(f"s_mov_b32 s{d}, s{base_lo}")
        a.e(f"s_and_b32 s{d+1}, s{base_hi}, 0xffff")
    else:
        a.e(f"s_add_u32 s{d}, s{base_lo}, {off_sreg}")
        a.e(f"s_addc_u32 s{d+1}, s{base_hi}, 0")
        a.e(f"s_and_b32 s{d+1}, s{d+1}, 0xffff")
    a.e(f"s_mov_b32 s{d+2}, {nbytes_expr}")
    a.e(f"s_mov_b32 s{d+3}, 0x20000")

def mfma_t(d, A, B, c=None):
    cc = vr(d, 4) if c is None else (c if isinstance(c, str) else vr(c, 4))
    return f"{MF} {vr(d,4)}, {vr(A,4)}, {vr(B,4)}, {cc}"

class Stream:
    def __init__(self, a, FR, ring=4, depth=3):
        self.a = a; self.m = []; self.pre = {}; self.post = {}
        self.FR = FR; self.R = ring; self.D = depth
        self.frags = []
    def n(self): return len(self.m)
    def add_pre(self, g, fn): self.pre.setdefault(g, []).append(fn)
    def add_post(self, g, fn): self.post.setdefault(g, []).append(fn)
    def mfma(self, text): self.m.append(text); return len(self.m) - 1
    def buf(self, f=None):
        f = len(self.frags) if f is None else f
        return self.FR + 4 * (f % self.R)
    def frag(self, reads, mfmas):
        f = len(self.frags); b = self.buf(f)
        g0 = self.n()
        self.frags.append((g0, [r(b) for r in reads], len(mfmas)))
        for m_ in mfmas: self.mfma(m_(b))
        return g0
    def spread(self, fns, g0, g1):
        n = len(fns)
        for k, fn in enumerate(fns):
            self.add_post(g0 + (k * (g1 - g0)) // max(n, 1), fn)
    def read_gap(self, f):
        return self.frags[f - self.D][0] if f >= self.D else -1
    def emit(self, tail_reads=None):
        a = self.a
        rd_at = {}
        nf = len(self.frags)
        for f, (g0, reads, nm) in enumerate(self.frags):
            if f < self.D:
                for t in reads: a.ds(t, ("f", f))
            else:
                hg, _, hn = self.frags[f - self.D]
                for k, t in enumerate(reads):
                    rd_at.setdefault(hg + min(k, hn - 1), []).append((t, f))
        first = {g0: f for f, (g0, _, _) in enumerate(self.frags)}
        for g, mt in enumerate(self.m):
            for fn in self.pre.get(g, []): fn()
            if g in first: a.wait_lgkm(("f", first[g]))
            a.e(mt)
            posts = self.post.get(g, [])
            nv = 0
            if OPT.get("vfirst", 1):
                while nv < len(posts) and getattr(posts[nv], "valu", False): posts[nv](); nv += 1
            for (t, f) in rd_at.get(g, []): a.ds(t, ("f", f))
            for fn in posts[nv:]: fn()

def E(a, text):
    fn = lambda: a.e(text)
    fn.valu = text.startswith("v_") and not text.startswith("v_add_u32")
    return fn

def kernel1():
    a = Asm(); K = "k1"; st = Stamper(a, kid=0)
    ACC = lambda jb, qs: (jb * 2 + qs) * 4
    XS = 144; FR = 176; SUMA = 192; GRAM = 200; CSA = 208
    O = ACC; QP = lambda qs, s: 96 + 24 * qs + 4 * s
    S = lambda kb, qs: 144 + (kb * 2 + qs) * 4
    P = lambda qs, u: 192 + (qs * 2 + u) * 4
    NEGM = lambda qs: 208 + 4 * qs
    LT = lambda qs: 216 + 4 * qs
    ONES = 224; LS = 228; TP = 230
    DUT = 230
    AWQ = 238; AGU = 242; DA = 244; DB = 243; XOFF = 247; L16 = 248; KA = 249; VB = 252
    VR = AWQ; KR = [AGU, DB]
    sX, sWQ, sGU, sK, sV, sWS = 28, 32, 36, 40, 44, 48
    sW, sH, sB = 52, 53, 54
    sTW, sOA, sOB, sOB2, sMB0, sTX = 55, 56, 57, 58, 59, 60
    sEX48 = 62
    sXO, sXO2, sT, sT2, sT3 = 64, 65, 66, 67, 68
    sW3 = 69; sHO = 70; sG1 = 71; sFL = 72; sTHR = 73; sKO = 74; sVO = 75
    sRET = 76
    GOFF = 24576; WSLOT = 24576 + 8 * 1664 - 128
    KSL = [114688, 0, 24576]; VSL = [139264, 49152, 73728]
    CSL = 3 * WSLOT
    assert CSL + 1152 <= KSL[0]
    wslot = lambda k: ((k + 2) % 3) * WSLOT
    ROT = OPT.get("rot", 1)

    a.e("s_cmp_ge_u32 s2, 256")
    a.e(f"s_cbranch_scc1 L_{K}_done")
    st(True); st()
    if OPT.get("acc"):
        for r in (99, 100, 101): a.e(f"s_mov_b32 s{r}, 0")
    load_ptrs(a)
    LANE = 0; t = 2
    sFG = 88; sDB_ = 92; sU, sU2 = 97, 98
    NXS = OPT.get("nxs", 3)
    XSET = [144, 160, 192]
    stubs = []
    a.e(f"v_lshrrev_b32 v1, 6, v0")
    a.e(f"v_and_b32 v{LANE}, 63, v0")
    a.e(f"v_readfirstlane_b32 s{sW}, v1")
    a.e(f"s_and_b32 s{sT}, s2, 7")
    a.e(f"s_lshr_b32 s{sT2}, s2, 3")
    a.e(f"s_lshl_b32 s{sH}, s{sT}, 2")
    a.e(f"s_and_b32 s{sT}, s{sT2}, 3")
    a.e(f"s_add_u32 s{sH}, s{sH}, s{sT}")
    a.e(f"s_lshr_b32 s{sB}, s{sT2}, 2")
    HYB = OPT.get("hyb", 1); sR0 = 61
    if HYB:
        a.e(f"s_lshl_b32 s{sT}, s{sT}, 1")
        a.e(f"s_add_u32 s{sR0}, s{sT}, s{sB}")
        a.e(f"s_sub_u32 s{sT}, s{sR0}, 9")
        a.e(f"s_cmp_ge_u32 s{sR0}, 9")
        a.e(f"s_cselect_b32 s{sR0}, s{sT}, s{sR0}")
        a.e(f"s_add_u32 s{sR0}, s{sR0}, 1")
        a.e(f"s_mov_b32 s{sTW}, 0")
    else:
        a.e(f"s_mul_i32 s{sT}, s{sT}, 3")
        a.e(f"s_add_u32 s{sTW}, s{sT}, s{sB}")
        a.e(f"s_sub_u32 s{sT}, s{sTW}, 10")
        a.e(f"s_cmp_ge_u32 s{sTW}, 10")
        a.e(f"s_cselect_b32 s{sTW}, s{sT}, s{sTW}")
    a.e(f"s_mov_b32 s{sTX}, s{sTW}")
    a.e(f"s_mul_i32 s{sW3}, s{sW}, 3072")
    a.e(f"v_lshlrev_b32 v{L16}, 4, v{LANE}")
    a.e(f"s_lshl_b32 s{sT}, s{sB}, 5")
    a.e(f"s_add_u32 s{sT}, s{sT}, s{sH}")
    a.e(f"s_lshl_b32 s{sT}, s{sT}, 3")
    a.e(f"s_add_u32 s{sT}, s{sT}, s{sW}")
    a.e(f"s_mul_i32 s{sT2}, s{sT}, 1280")
    a.e(f"v_lshlrev_b32 v20, 5, v{LANE}")
    a.e("s_waitcnt lgkmcnt(0)")
    srd(a, sX, 4, 5, f"s{sT2}", "1280")
    a.vmem(f"buffer_load_dwordx4 v[24:27], v20, s[{sX}:{sX+3}], 0 offen", "xr")
    a.vmem(f"buffer_load_dwordx4 v[28:31], v20, s[{sX}:{sX+3}], 0 offen offset:16", "xr")
    st()
    a.e(f"s_lshl_b32 s{sT}, s{sW}, 3")
    def voffs(i, which):
        a.e(f"v_add_u32 v{t}, {64*i}, v{LANE}")
        a.e(f"v_mul_u32_u24 v{t+1}, 2731, v{t}")
        a.e(f"v_lshrrev_b32 v{t+1}, 16, v{t+1}")
        a.e(f"v_mul_u32_u24 v{t+2}, 24, v{t+1}")
        a.e(f"v_sub_u32 v{t+2}, v{t}, v{t+2}")
        a.e(f"v_add_u32 v{t+1}, s{sT}, v{t+1}")
        if which == "W":
            a.e(f"v_and_b32 v{t+3}, 2, v{t+1}")
            a.e(f"v_bfe_u32 v{t+4}, v{t+1}, 3, 1")
            a.e(f"v_lshl_or_b32 v{t+3}, v{t+4}, 2, v{t+3}")
            a.e(f"v_xor_b32 v{t+3}, v{t+2}, v{t+3}")
            a.e(f"v_mul_u32_u24 v{t+6}, 12288, v{t+1}")
            a.e(f"v_lshl_add_u32 v{DA+i}, v{t+3}, 4, v{t+6}")
        else:
            a.e(f"v_mul_u32_u24 v{t+6}, 384, v{t+1}")
            a.e(f"v_bfe_u32 v{t+3}, v{t+1}, 1, 3")
            a.e(f"v_xor_b32 v{t+3}, v{t+2}, v{t+3}")
            a.e(f"v_lshl_add_u32 v{KA+i}, v{t+3}, 4, v{t+6}")
            a.e(f"v_and_b32 v{t+3}, 6, v{t+1}")
            a.e(f"v_xor_b32 v{t+3}, v{t+2}, v{t+3}")
            a.e(f"v_lshl_add_u32 v{VB+i}, v{t+3}, 4, v{t+6}")
    for i in range(3): voffs(i, "W")
    a.e(f"s_and_b32 s{sT3}, s{sW}, 3")
    a.e(f"s_lshl_b32 s{sT2}, s{sT3}, 4")
    a.e(f"v_mul_u32_u24 v{t+1}, 10923, v{LANE}")
    a.e(f"v_lshrrev_b32 v{t+1}, 16, v{t+1}")
    a.e(f"v_mul_u32_u24 v{t+2}, 6, v{t+1}")
    a.e(f"v_sub_u32 v{t+2}, v{LANE}, v{t+2}")
    a.e(f"v_add_u32 v{t+1}, s{sT2}, v{t+1}")
    a.e(f"v_mul_u32_u24 v{t+6}, 3072, v{t+1}")
    a.e(f"v_lshl_add_u32 v{DB}, v{t+2}, 4, v{t+6}")
    a.e(f"s_mul_i32 s{sMB0}, s{sT3}, {2*1664}")
    a.e(f"s_cmp_ge_u32 s{sW}, 4")
    a.e(f"s_cselect_b32 s{sT2}, {GOFF+768}, {GOFF}")
    a.e(f"s_add_u32 s{sMB0}, s{sMB0}, s{sT2}")
    a.e(f"s_mov_b32 s{sEX48}, -1")
    a.e(f"s_mov_b32 s{sEX48+1}, 0xffff")
    a.e(f"s_mov_b32 s{sG1}, {f32(GELU_C1)}")
    a.e(f"s_mul_i32 s{sT2}, s{sH}, 384")
    srd(a, sWQ, 10, 11, f"s{sT2}", "0")
    a.e(f"s_sub_u32 s{sWQ+2}, {640*12288}, s{sT2}")
    a.e(f"s_cmp_ge_u32 s{sW}, 4")
    a.e(f"s_cselect_b32 s14, s18, s16")
    a.e(f"s_cselect_b32 s15, s19, s17")
    a.e(f"s_mul_i32 s{sT2}, s{sH}, 96")
    srd(a, sGU, 14, 15, f"s{sT2}", "0")
    a.e(f"s_sub_u32 s{sGU+2}, {640*3072}, s{sT2}")
    a.e(f"s_mov_b32 s{sT2}, {WS_F}")
    srd(a, sFG, 26, 27, f"s{sT2}", f"{16384 + 256*128}")
    srd(a, sDB_, 24, 25, None, "256")
    a.e(f"s_lshl_b32 s{sT2}, s{sB}, 4")
    a.e(f"s_lshr_b32 s{sT3}, s{sH}, 1")
    a.e(f"s_add_u32 s{sT2}, s{sT2}, s{sT3}")
    a.e(f"s_mul_i32 s{sT2}, s{sT2}, 20480")
    a.e(f"s_add_u32 s{sT2}, s{sT2}, {WS_X}")
    srd(a, sK, 26, 27, f"s{sT2}", "20480")
    LNB = KSL[0]
    a.e(f"s_mul_i32 s{sT2}, s{sW}, 10")
    a.e(f"v_lshrrev_b32 v{t}, 3, v{LANE}")
    a.e(f"v_add_u32 v{t}, s{sT2}, v{t}")
    a.e(f"v_and_b32 v{t+1}, 7, v{LANE}")
    a.e(f"v_mul_u32_u24 v21, 1296, v{t+1}")
    a.e(f"v_lshl_add_u32 v21, v{t}, 4, v21")
    a.e(f"v_add_u32 v21, {LNB}, v21")
    a.e(f"s_and_b32 s{sT2}, s{sH}, 1")
    a.e(f"s_lshl_b32 s{sT2}, s{sT2}, 3")
    a.e(f"v_add_u32 v{t+1}, s{sT2}, v{t+1}")
    a.e(f"v_lshlrev_b32 v22, 8, v{t}")
    a.e(f"v_lshl_add_u32 v22, v{t+1}, 4, v22")
    a.e(f"s_mul_i32 s{sT2}, s{sW}, 1296")
    a.e(f"s_add_u32 s{sT2}, s{sT2}, {LNB}")
    a.e(f"v_add_u32 v23, s{sT2}, v20")
    def wave_sum(v, sdst):
        for m_ in ("row_shr:1", "row_shr:2", "row_shr:4", "row_shr:8"):
            a.e("s_nop 1")
            a.e(f"v_add_f32_dpp v{v}, v{v}, v{v} {m_} row_mask:0xf bank_mask:0xf bound_ctrl:0")
        a.e("s_nop 1")
        a.e(f"v_add_f32_dpp v{v}, v{v}, v{v} row_bcast:15 row_mask:0xa bank_mask:0xf")
        a.e("s_nop 1")
        a.e(f"v_add_f32_dpp v{v}, v{v}, v{v} row_bcast:31 row_mask:0xc bank_mask:0xf")
        a.e("s_nop 1")
        a.e(f"v_readlane_b32 s{sdst}, v{v}, 63")
        a.e("s_nop 3")
    def rbf(d, src):
        a.e(f"v_cvt_pk_bf16_f32 v{d}, v{src}, v{src}")
        a.e(f"v_and_b32 v{d}, 0xffff0000, v{d}")
    def w_block(k):
        base = wslot(k); tag = ("W", k); fns = []
        def head():
            a.e(f"s_mul_i32 s{sOA}, s{sTW}, 786432")
            a.e(f"s_mul_i32 s{sOB}, s{sTW}, 196608")
        fns.append(head)
        for i in range(3):
            def f(i=i):
                a.e(f"s_add_u32 m0, s{sW3}, {base + 1024*i}")
                if i == 0: a.e(f"s_add_u32 s{sOB2}, s{sOB}, 24576")
                elif i == 1: a.e(f"s_add_u32 s{sTW}, s{sTW}, 1")
                else: a.e(f"s_cmp_eq_u32 s{sTW}, 10")
                a.vmem(f"buffer_load_dwordx4 v{DA+i}, s[{sWQ}:{sWQ+3}], s{sOA} offen lds", tag)
                if i == 2:
                    a.e(f"s_cselect_b32 s{sTW}, {HYB}, s{sTW}")
                    if HYB and k == 0: a.e(f"s_mov_b32 s{sTW}, s{sR0}")
            fns.append(f)
        for i in range(2):
            def f(i=i):
                a.e(f"s_add_u32 m0, s{sMB0}, {base + 1664*i}")
                a.e(f"s_mov_b64 exec, s[{sEX48}:{sEX48+1}]")
                a.vmem(f"buffer_load_dwordx4 v{DB}, s[{sGU}:{sGU+3}], s{sOB2 if i else sOB} offen lds", tag)
                a.e("s_mov_b64 exec, -1")
            fns.append(f)
        return fns
    W1E = OPT.get("w1e", 0)
    if HYB:
        for f in w_block(0): f()
        if W1E:
            for f in w_block(1): f()
    a.wait_vm("xr")
    XF = 32
    for q in range(8):
        a.e(f"v_lshlrev_b32 v{XF+2*q}, 16, v{24+q}")
        a.e(f"v_and_b32 v{XF+2*q+1}, 0xffff0000, v{24+q}")
    a.e(f"v_add_f32 v48, v{XF}, v{XF+1}")
    a.e(f"v_add_f32 v49, v{XF+2}, v{XF+3}")
    for q in range(4, 16, 2):
        a.e(f"v_add_f32 v48, v48, v{XF+q}")
        a.e(f"v_add_f32 v49, v49, v{XF+q+1}")
    a.e(f"v_add_f32 v48, v48, v49")
    wave_sum(48, sU)
    a.e(f"v_mov_b32 v50, {f32(1.0/640)}")
    a.e(f"v_mul_f32 v50, s{sU}, v50")
    a.e(f"v_cmp_gt_u32 vcc, 40, v{LANE}")
    a.e(f"v_mov_b32 v48, 0")
    a.e(f"v_mov_b32 v49, 0")
    for q in range(16):
        a.e(f"v_sub_f32 v{52+q}, v{XF+q}, v50")
    for q in range(0, 16, 2):
        a.e(f"v_fmac_f32 v48, v{52+q}, v{52+q}")
        a.e(f"v_fmac_f32 v49, v{52+q+1}, v{52+q+1}")
    a.e(f"v_add_f32 v48, v48, v49")
    a.e(f"v_cndmask_b32 v48, 0, v48, vcc")
    wave_sum(48, sU)
    a.e(f"v_mov_b32 v51, {f32(1.0/640)}")
    a.e(f"v_mul_f32 v51, s{sU}, v51")
    rbf(50, 50); rbf(51, 51)
    a.e(f"v_add_f32 v51, {f32(1e-5)}, v51")
    rbf(51, 51)
    a.e(f"v_sqrt_f32 v51, v51")
    a.e("s_nop 0")
    rbf(51, 51)
    a.e(f"v_rcp_f32 v51, v51")
    for q in range(16): a.e(f"v_sub_f32 v{52+q}, v{XF+q}, v50")
    for q in range(8): a.e(f"v_cvt_pk_bf16_f32 v{24+q}, v{52+2*q}, v{52+2*q+1}")
    for q in range(8):
        a.e(f"v_lshlrev_b32 v{XF+2*q}, 16, v{24+q}")
        a.e(f"v_and_b32 v{XF+2*q+1}, 0xffff0000, v{24+q}")
    for q in range(16): a.e(f"v_mul_f32 v{XF+q}, v{XF+q}, v51")
    for q in range(8): a.e(f"v_cvt_pk_bf16_f32 v{24+q}, v{XF+2*q}, v{XF+2*q+1}")
    a.e(f"s_mov_b32 exec_hi, 0xff")
    a.e(f"ds_write_b128 v23, v[24:27]")
    a.e(f"ds_write_b128 v23, v[28:31] offset:16")
    a.e("s_mov_b64 exec, -1")
    a.e("s_waitcnt lgkmcnt(0)")
    a.e("s_barrier")
    a.e(f"ds_read_b128 v[32:35], v21")
    a.e(f"ds_read_b128 v[36:39], v21 offset:128")
    a.e(f"s_lshl_b32 s{sT2}, s{sB}, 3")
    a.e(f"s_add_u32 s{sT2}, s{sT2}, s{sH}")
    a.e(f"s_lshl_b32 s{sT2}, s{sT2}, 7")
    a.e(f"s_cmp_lt_u32 s{sH}, 8")
    a.e(f"s_cselect_b32 s{sT2}, s{sT2}, 0x100000")
    for r in range(40, 44): a.e(f"v_mov_b32 v{r}, 0")
    a.e("s_waitcnt lgkmcnt(0)")
    a.vmem(f"buffer_store_dwordx4 v[32:35], v22, s[{sK}:{sK+3}], 0 offen sc1", "xs")
    a.e("s_mov_b64 exec, 0xffff")
    a.vmem(f"buffer_store_dwordx4 v[36:39], v22, s[{sK}:{sK+3}], 0 offen offset:2048 sc1", "xs")
    a.e(f"s_mov_b64 exec, 1")
    a.vmem(f"buffer_store_dword v40, v40, s[{sFG}:{sFG+3}], s{sT2} offen sc1", "xs")
    a.e(f"s_lshl_b32 s99, s2, 7")
    a.e(f"s_add_u32 s99, s99, 16384")
    a.e(f"s_mov_b64 exec, 15")
    a.vmem(f"buffer_store_dwordx4 v[40:43], v{L16}, s[{sFG}:{sFG+3}], s99 offen sc1", "xs")
    a.e(f"s_mov_b64 exec, -1")
    st()

    def kv_block(which, j):
        srdr, vo, base, so = (sK, KA, KSL[j % 3], sKO) if which == "K" else (sV, VB, VSL[j % 3], sVO)
        tag = (which, j); fns = []
        def head():
            a.e(f"s_add_u32 s{so}, s{sB}, {j}")
            a.e(f"s_and_b32 s{so}, s{so}, 7")
            a.e(f"s_mul_i32 s{so}, s{so}, 24576")
        fns.append(head)
        for i in range(3):
            def f(i=i):
                a.e(f"s_add_u32 m0, s{sW3}, {base + 1024*i}")
                a.e("s_nop 0")
                a.vmem(f"buffer_load_dwordx4 v{vo+i}, s[{srdr}:{srdr+3}], s{so} offen lds", tag)
            fns.append(f)
        return fns
    def x_loads(k, ks):
        xb = XSET[k % NXS]; fns = []
        if ks == 0:
            def head():
                a.e(f"s_lshl_b32 s{sXO}, s{sTX}, 11")
                a.e(f"s_add_u32 s{sTX}, s{sTX}, 1")
                a.e(f"s_add_u32 s{sXO2}, s{sXO}, 20480")
                a.e(f"s_cmp_eq_u32 s{sTX}, 10")
                a.e(f"s_cselect_b32 s{sTX}, {HYB}, s{sTX}")
                if HYB and k == 0: a.e(f"s_mov_b32 s{sTX}, s{sR0}")
            fns.append(head)
        for qs in range(2):
            fns.append(lambda qs=qs: a.vmem(f"buffer_load_dwordx4 {vr(xb+8*ks+4*qs,4)}, v{L16}, s[{sX}:{sX+3}], s{sXO2 if qs else sXO} offen offset:{1024*ks} sc1", ("x", k, ks)))
        return fns
    sFO = 99
    sAO, sPO = 100, 101
    def sig_issue(stage, z, o, tag):
        def fn():
            a.e(f"v_mov_b32 v{z}, 0")
            a.e(f"v_mov_b32 v{o}, 1")
            a.e("s_mov_b64 exec, 1")
            a.vmem(f"buffer_atomic_add v{o}, v{z}, s[{sDB_}:{sDB_+3}], s{sAO} offen offset:{4*stage} sc0 sc1", tag)
            a.e("s_mov_b64 exec, -1")
        return fn
    def sig_check(name, stage, tv, tag):
        z, o, ad, pv = tv
        def fn():
            a.wait_vm(tag)
            a.e(f"v_readfirstlane_b32 s{sU2}, v{o}")
            a.e("s_nop 3")
            a.e(f"s_and_b32 s{sU2}, s{sU2}, 31")
            a.e(f"s_cmp_eq_u32 s{sU2}, 31")
            a.e(f"s_cbranch_scc1 L_{name}_sig")
            a.label(f"L_{name}_sigr")
        def stub():
            a.label(f"L_{name}_sig")
            a.e(f"v_lshrrev_b32 v{ad}, 4, v{L16}")
            if stage == 1:
                a.e(f"v_mov_b32 v{z}, 0")
                a.e(f"v_mov_b32 v{o}, 1")
                a.e("s_mov_b64 exec, 1")
                a.e(f"buffer_atomic_add v{o}, v{z}, s[{sDB_}:{sDB_+3}], 0 offen offset:12 sc0 sc1")
                a.e("s_waitcnt vmcnt(0)")
                a.e("s_mov_b64 exec, -1")
                a.e(f"v_readfirstlane_b32 s{sU2}, v{o}")
                a.e("s_nop 3")
                a.e(f"s_and_b32 s{sU2}, s{sU2}, 7")
                a.e(f"s_cmp_eq_u32 s{sU2}, 7")
                a.e(f"s_cbranch_scc0 L_{name}_sigr")
                a.e(f"v_lshlrev_b32 v{ad}, 7, v{ad}")
                a.e(f"v_mov_b32 v{o}, 1")
                for q in range(4):
                    a.e(f"s_mov_b32 s{sU}, {16384 + 8192*q}")
                    a.e(f"buffer_store_dword v{o}, v{ad}, s[{sFG}:{sFG+3}], s{sU} offen offset:4 sc1")
                a.e(f"s_branch L_{name}_sigr")
                return
            if stage == 2:
                a.e(f"v_and_b32 v{z}, 3, v{ad}")
                a.e(f"v_lshrrev_b32 v{ad}, 2, v{ad}")
                a.e(f"v_lshl_add_u32 v{ad}, v{ad}, 3, v{z}")
                a.e(f"s_and_b32 s{sU}, s{sB}, 3")
                a.e(f"s_lshl_b32 s{sU}, s{sU}, 6")
                a.e(f"s_and_b32 s{sU2}, s{sB}, 4")
                a.e(f"s_add_u32 s{sU}, s{sU}, s{sU2}")
            else:
                a.e(f"s_lshl_b32 s{sU}, s{sB}, 5")
            a.e(f"s_lshl_b32 s{sU}, s{sU}, 7")
            a.e(f"s_add_u32 s{sU}, s{sU}, 16384")
            a.e(f"v_lshlrev_b32 v{ad}, 7, v{ad}")
            a.e(f"v_mov_b32 v{o}, 1")
            a.e("s_mov_b64 exec, 0xffffffff")
            a.e(f"buffer_store_dword v{o}, v{ad}, s[{sFG}:{sFG+3}], s{sU} offen offset:{4*stage} sc1")
            a.e("s_mov_b64 exec, -1")
            a.e(f"s_branch L_{name}_sigr")
        stubs.append(stub)
        return fn
    def poll_issue2(stage, pv, zv, tag):
        def fn():
            a.e(f"v_mov_b32 v{zv}, 0")
            a.e("s_mov_b64 exec, 1")
            a.vmem(f"buffer_load_dword v{pv}, v{zv}, s[{sFG}:{sFG+3}], s{sPO} offen offset:{4*stage} sc1", tag)
            a.e("s_mov_b64 exec, -1")
        return fn
    def poll_check2(name, stage, pv, zv, tag):
        spin = flag_wait(name, stage, pv, zv)
        def fn():
            a.wait_vm(tag)
            a.e(f"v_readfirstlane_b32 s{sU2}, v{pv}")
            a.e("s_nop 3")
            a.e(f"s_or_b32 s{sU2}, s{sU2}, s{sW}")
            a.e(f"s_cmp_eq_u32 s{sU2}, 0")
            a.e(f"s_cbranch_scc1 L_{name}_spin")
            a.label(f"L_{name}_ok")
        return fn
    def flag_wait(name, stage, pv, zv, after=None):
        def fn():
            a.e(f"s_cmp_eq_u32 s{sW}, 0")
            a.e(f"s_cbranch_scc1 L_{name}_spin")
            a.label(f"L_{name}_ok")
        def stub():
            a.label(f"L_{name}_spin")
            a.e(f"s_mov_b32 s{sU}, 0")
            a.e(f"v_mov_b32 v{zv}, 0")
            a.e("s_mov_b64 exec, 1")
            a.label(f"L_{name}_poll")
            a.e(f"buffer_load_dword v{pv}, v{zv}, s[{sFG}:{sFG+3}], s{sFO} offen offset:{4*stage} sc1")
            a.e(f"s_add_u32 s{sU}, s{sU}, 1")
            a.e("s_waitcnt vmcnt(0)")
            a.e(f"v_cmp_ne_u32 vcc, 1, v{pv}")
            a.e(f"s_cbranch_vccz L_{name}_done")
            a.e(f"s_sleep {OPT.get('slp', 2)}")
            a.e(f"s_cmp_lt_u32 s{sU}, 0x20000")
            a.e(f"s_cbranch_scc1 L_{name}_poll")
            a.label(f"L_{name}_done")
            a.e("s_mov_b64 exec, -1")
            if after: after()
            a.e(f"s_branch L_{name}_ok")
        stubs.append(stub)
        return fn

    if not HYB:
        for f in w_block(0): f()
    a.wait_vm("xs")
    a.e("s_barrier")
    a.e(f"s_lshl_b32 s{sAO}, s{sB}, 5")
    a.e(f"s_cmp_eq_u32 s{sW}, 0")
    a.e(f"s_cselect_b32 s{sAO}, s{sAO}, 0x100000")
    a.e(f"s_cselect_b32 s{sPO}, s{sFO}, 0x100000")
    sig_issue(0, 40, 41, "ax")()
    sig_check("xs", 0, (40, 41, 42, 43), "ax")()
    if HYB and not W1E:
        a.e(f"s_cmp_eq_u32 s{sW}, 0")
        a.e(f"s_cbranch_scc1 L_w1_skip")
        for f in w_block(1): f()
        a.label("L_w1_skip")
    st()
    a.e(f"s_lshl_b32 s{sT2}, s{sB}, 3")
    a.e(f"s_add_u32 s{sT2}, s{sT2}, s{sW}")
    a.e(f"s_mul_i32 s{sU}, s{sT2}, 40960")
    a.e(f"s_add_u32 s{sU}, s{sU}, {WS_X}")
    srd(a, sX, 26, 27, f"s{sU}", "40960")
    a.e(f"s_mul_i32 s{sT2}, s{sT2}, {2*A_MB}")
    srd(a, sWS, 26, 27, f"s{sT2}", f"{2*A_MB}")
    a.e(f"s_mul_i32 s{sT2}, s{sH}, 786432")
    a.e(f"s_add_u32 s{sT2}, s{sT2}, {1536*384}")
    srd(a, sK, 6, 7, f"s{sT2}", "196608")
    srd(a, sV, 8, 9, f"s{sT2}", "196608")
    for i in range(3): voffs(i, "KV")
    a.e(f"v_lshrrev_b32 v{t+1}, 4, v{LANE}")
    a.e(f"v_bfe_u32 v{t+3}, v{LANE}, 2, 2")
    a.e(f"v_and_b32 v{t+4}, 3, v{LANE}")
    a.e(f"v_lshlrev_b32 v{t+4}, 3, v{t+4}")
    a.e(f"v_bfe_u32 v{t+5}, v{LANE}, 3, 2")
    a.e(f"v_lshl_add_u32 v{t+7}, v{t+1}, 3, v{t+3}")
    a.e(f"v_mul_u32_u24 v{t+8}, 384, v{t+7}")
    a.e(f"v_add_u32 v{t+8}, v{t+8}, v{t+4}")
    a.e(f"v_add_u32 v{t+8}, {2*WSLOT}, v{t+8}")
    for i in range(4):
        a.e(f"v_xor_b32 v{t+9}, {i}, v{t+5}")
        a.e(f"v_lshl_add_u32 v{AWQ+i}, v{t+9}, 5, v{t+8}")
    a.e(f"v_mul_u32_u24 v{t+8}, 1664, v{t+1}")
    a.e(f"v_mul_u32_u24 v{t+9}, 96, v{t+3}")
    a.e(f"v_add3_u32 v{t+8}, v{t+8}, v{t+9}, v{t+4}")
    a.e(f"v_add_u32 v{AGU}, {GOFF + 2*WSLOT}, v{t+8}")
    for i in range(4): a.e(f"v_mov_b32 v{ONES+i}, 0x3f803f80")
    a.wait_vm(("W", 0))
    st()
    def w1_late():
        if HYB and not W1E:
            for f in w_block(1): f()
    flag_wait("px", 0, 42, 43, w1_late)()
    a.e("s_barrier")
    st()
    for f in x_loads(0, 0) + x_loads(0, 1): f()

    sa = Stream(a, FR)
    tile_first_frag = []; tile_gap0 = []
    addr_regs = [AWQ, AWQ + 1, AWQ + 2, AWQ + 3, AGU]
    started = set()
    def C0(d):
        if d in started: return None
        started.add(d); return "0"
    T = TP + 3
    order9 = [12, 15, 13, 16, 14, 17] + list(range(12))
    g_blk = {}
    for k in range(10):
        xs_ = XSET[k % NXS]
        wb = 0 if wslot(k) < 2 * WSLOT else 2 * WSLOT
        so = wslot(k) - wb
        tile_first_frag.append(len(sa.frags)); tile_gap0.append(sa.n())
        def main(ks, jb):
            xb = xs_ + 8 * ks
            if jb < 12:
                rd = [lambda b, tt=tt: f"ds_read_b64_tr_b16 {vr(b+2*tt,2)}, v{AWQ+(jb&3)} offset:{so+(32*ks+4*tt)*384+(jb>>2)*128}" for tt in range(2)]
            else:
                jj = (jb - 12) % 3; up = (jb - 12) // 3
                rd = [lambda b, tt=tt: f"ds_read_b64_tr_b16 {vr(b+2*tt,2)}, v{AGU} offset:{so+ks*6656+tt*384+up*768+jj*32}" for tt in range(2)]
            sa.frag(rd, [lambda b, qs=qs: mfma_t(ACC(jb, qs), b, xb + 4 * qs, C0(ACC(jb, qs))) for qs in range(2)])
        if k < 9:
            for ks in range(2):
                sa.add_pre(sa.n(), lambda k=k, ks=ks: a.wait_vm(("x", k, ks)))
                for jb in range(18): main(ks, jb)
        else:
            sa.add_pre(sa.n(), lambda: a.wait_vm(("x", 9, 1)))
            for jb in order9:
                main(0, jb); main(1, jb); g_blk[jb] = sa.n()
    tile_first_frag.append(len(sa.frags)); tile_gap0.append(sa.n())
    NG = sa.n()
    KVL = 1
    issue = {k: {"w": [], "x": []} for k in range(10)}
    for k in range(1, 10):
        if not (HYB and k == 1): issue[max(k - 2, 0)]["w"] += w_block(k)
        issue[max(k - (NXS - 1), 1 if k >= 2 else 0)]["x"] += x_loads(k, 0) + x_loads(k, 1)
    KVM = OPT.get("kvm", 1)
    kb0 = kv_block("K", 0); vb0 = kv_block("V", 0)
    if KVM == 0:
        issue[8]["w"] += kb0 + vb0
    elif KVM == 1:
        pieces = [kb0[:2], kb0[2:3], kb0[3:], vb0[:2], vb0[2:3], vb0[3:]]
        for n in range(6): sa.spread(pieces[n], tile_gap0[n + 2] + 63, tile_gap0[n + 2] + 65)
    elif KVM == 2:
        sa.spread(kb0 + vb0, tile_gap0[7] + 30, tile_gap0[7] + 64)
    elif KVM == 3:
        sa.spread(kb0, tile_gap0[7] + 30, tile_gap0[7] + 64)
        issue[8]["w"] += vb0
    for k in range(9):
        g0 = tile_gap0[k]
        if k == 0 and HYB:
            sa.spread(issue[0]["x"][:5], OPT.get("x1a", 0), OPT.get("x1a", 0) + 10)
            sa.spread(issue[0]["w"] + issue[0]["x"][5:], OPT.get("r1b", 36), 64)
        elif k == 0:
            sa.spread(issue[0]["w"][:6] + issue[0]["x"][:5], 0, 18)
            sa.spread(issue[0]["x"][5:] + issue[0]["w"][6:], OPT.get("r1b", 36), 64)
        elif k == 7 and KVM >= 2:
            sa.spread(issue[k]["w"], g0, g0 + 28)
            sa.spread(issue[k]["x"], g0 + 1, g0 + 28)
        else:
            sa.spread(issue[k]["w"], g0 + (OPT.get("kvo", 0) if k == 8 else 0), g0 + 62)
            sa.spread(issue[k]["x"], g0 + 3, g0 + 60)
    sa.spread(kv_block("K", 1) + kv_block("V", 1) + kv_block("K", 2), tile_gap0[9] + 1, tile_gap0[9] + 26)
    for k in range(9):
        gb = sa.read_gap(tile_first_frag[k + 1])
        def bar(k=k):
            a.wait_vm(("W", k + 1))
            a.e("s_waitcnt lgkmcnt(0)"); a.lgkm = []
            a.e("s_barrier")
            st(fine=True)
            w0 = 0 if wslot(k) < 2 * WSLOT else 2 * WSLOT
            w1 = 0 if wslot(k + 1) < 2 * WSLOT else 2 * WSLOT
            if w0 != w1:
                for r in addr_regs: a.e(f"v_add_u32 v{r}, {(w1-w0) & 0xffffffff}, v{r}")
        sa.add_pre(gb, bar)
    G0 = T + 2; HT = 208
    sC = sFL
    epi = [(E(a, f"v_mov_b32 v{G0}, {f32(GELU_C0)}"), tile_gap0[9]), (E(a, f"s_mul_i32 s{sHO}, s{sH}, 3"), tile_gap0[9]),
           (E(a, f"s_mov_b32 s{sC}, {f32(SCALE_C)}"), tile_gap0[9])]
    for n, jb in enumerate(order9):
        ge = g_blk[jb] + 3
        L_ = []
        if jb >= 15:
            jj = jb - 15
            g0 = ACC(12 + jj, 0); u0 = ACC(jb, 0)
            for r in range(8): L_.append(f"v_mul_f32 v{HT+r}, v{g0+r}, v{g0+r}")
            for r in range(8): L_.append(f"v_fma_f32 v{HT+r}, v{HT+r}, s{sG1}, v{G0}")
            for r in range(8): L_.append(f"v_mul_f32 v{HT+r}, v{HT+r}, v{g0+r}")
            for r in range(8): L_.append(f"v_exp_f32 v{HT+r}, v{HT+r}")
            for r in range(8): L_.append(f"v_mul_f32 v{g0+r}, v{g0+r}, v{u0+r}")
            for r in range(8): L_.append(f"v_add_f32 v{HT+r}, 1.0, v{HT+r}")
            for r in range(8): L_.append(f"v_rcp_f32 v{HT+r}, v{HT+r}")
            L_.append(f"s_add_u32 s{sT}, s{sHO}, {jj}")
            for r in range(8): L_.append(f"v_mul_f32 v{g0+r}, v{g0+r}, v{HT+r}")
            hp = 216 + 4 * jj if jj < 2 else u0
            for q in range(4): L_.append(f"v_cvt_pk_bf16_f32 v{hp+q}, v{g0+2*q}, v{g0+2*q+1}")
            for x_ in L_: epi.append((E(a, x_), ge))
            def hstore(hp=hp):
                a.e(f"s_and_b32 s{sT2}, s{sT}, 1")
                a.e(f"s_lshr_b32 s{sT}, s{sT}, 1")
                a.e(f"s_lshl_b32 s{sT}, s{sT}, 10")
                a.e(f"s_lshl_b32 s{sT2}, s{sT2}, 3")
                a.e(f"s_add_u32 s{sT}, s{sT}, s{sT2}")
                a.e(f"s_add_u32 s{sT}, s{sT}, {192*1024}")
                a.e(f"s_add_u32 s{sT2}, s{sT}, {A_MB}")
                a.vmem(f"buffer_store_dwordx2 {vr(hp,2)}, v{L16}, s[{sWS}:{sWS+3}], s{sT} offen{OPT.get('hsf',' sc1')}", "hst")
                a.vmem(f"buffer_store_dwordx2 {vr(hp+2,2)}, v{L16}, s[{sWS}:{sWS+3}], s{sT2} offen{OPT.get('hsf',' sc1')}", "hst")
            epi.append((hstore, ge))
        elif jb < 12:
            s_, e_ = divmod(jb, 2)
            for qs in range(2):
                ac = ACC(jb, qs)
                for r in range(4): L_.append(f"v_mul_f32 v{ac+r}, s{sC}, v{ac+r}")
            for qs in range(2):
                ac = ACC(jb, qs)
                for q in range(2): L_.append(f"v_cvt_pk_bf16_f32 v{QP(qs,s_)+2*e_+q}, v{ac+2*q}, v{ac+2*q+1}")
            if e_ == 1:
                L_.append("s_nop 1")
                for qs in range(2):
                    for q in range(2): L_.append(f"v_permlane32_swap_b32 v{QP(qs,s_)+q}, v{QP(qs,s_)+2+q}")
                L_.append("s_nop 0")
                for qs in range(2):
                    for q in range(2): L_.append(f"v_permlane16_swap_b32 v{QP(qs,s_)+q}, v{QP(qs,s_)+2+q}")
            for x_ in L_: epi.append((E(a, x_), ge))
    per = OPT.get("epi_per", 2)
    g = tile_gap0[9]; cnt = 0; n_in = 0
    for (fn, ge) in epi:
        if ge > g: g = ge; cnt = 0
        if g >= NG - 1: break
        sa.add_post(g, fn); n_in += 1; cnt += 1
        if cnt >= per: g += 1; cnt = 0
    sa.emit()
    st()
    a.e("s_nop 7")
    for (fn, ge) in epi[n_in:]: fn()
    T = TP
    kwin = lambda j: KSL[0] if j % 3 == 0 else 0
    vwin = lambda j: VSL[0] if j % 3 == 0 else VSL[1]
    a.e(f"v_lshrrev_b32 v{T}, 4, v{L16}")
    a.e(f"v_lshrrev_b32 v{T+1}, 4, v{T}")
    a.e(f"v_bfe_u32 v{T+3}, v{T}, 2, 2")
    a.e(f"v_and_b32 v{T+4}, 3, v{T}")
    a.e(f"v_lshlrev_b32 v{T+4}, 3, v{T+4}")
    a.e(f"v_bfe_u32 v{T+5}, v{T}, 3, 2")
    a.e(f"v_lshl_add_u32 v{T+3}, v{T+1}, 2, v{T+3}")
    a.e(f"v_mul_u32_u24 v{T+3}, 384, v{T+3}")
    a.e(f"v_add_u32 v{T+3}, v{T+3}, v{T+4}")
    a.e(f"v_add_u32 v{T+3}, {vwin(0)}, v{T+3}")
    for i in range(4):
        a.e(f"v_xor_b32 v{T+4}, {i}, v{T+5}")
        a.e(f"v_lshl_add_u32 v{VR+i}, v{T+4}, 5, v{T+3}")
    a.e(f"v_and_b32 v{T+3}, 15, v{T}")
    a.e(f"v_bfe_u32 v{T+5}, v{T}, 1, 3")
    a.e(f"v_mul_u32_u24 v{T+3}, 384, v{T+3}")
    a.e(f"v_add_u32 v{T+3}, {kwin(0)}, v{T+3}")
    for i in range(2):
        a.e(f"v_add_u32 v{T+4}, {4*i}, v{T+1}")
        a.e(f"v_xor_b32 v{T+4}, v{T+4}, v{T+5}")
        a.e(f"v_lshl_add_u32 v{KR[i]}, v{T+4}, 4, v{T+3}")
    a.e(f"v_mov_b32 v{LS}, 0")
    a.e(f"v_mov_b32 v{LS+1}, 0")
    a.e(f"s_mov_b32 s{sTHR}, {f32(2.0**60)}")
    if KVL:
        a.wait_vm(("K", 0))
        for _ in range(OPT.get("diag_idle", 0)): a.e("s_sleep 36")
        a.e("s_barrier")
    st()

    def exp_ops(kb):
        u, e_ = divmod(kb, 2)
        o = []
        for r in range(4): o.append(f"v_exp_f32 v{TP+r}, v{S(kb,0)+r}")
        o.append(f"v_exp_f32 v{TP+4}, v{S(kb,1)}")
        o.append(f"v_cvt_pk_bf16_f32 v{P(0,u)+2*e_}, v{TP}, v{TP+1}")
        o.append(f"v_exp_f32 v{TP+5}, v{S(kb,1)+1}")
        o.append(f"v_cvt_pk_bf16_f32 v{P(0,u)+2*e_+1}, v{TP+2}, v{TP+3}")
        o.append(f"v_exp_f32 v{TP+6}, v{S(kb,1)+2}")
        o.append(f"v_exp_f32 v{TP+7}, v{S(kb,1)+3}")
        o.append(f"v_cvt_pk_bf16_f32 v{P(1,u)+2*e_}, v{TP+4}, v{TP+5}")
        o.append(f"v_cvt_pk_bf16_f32 v{P(1,u)+2*e_+1}, v{TP+6}, v{TP+7}")
        return o
    def rowmax_ops(u, D, X):
        o = []
        for qs in range(2):
            s0 = S(2 * u, qs); s1 = S(2 * u + 1, qs)
            o.append(f"v_max3_f32 v{D[qs]}, v{s0}, v{s0+1}, v{s0+2}")
            o.append(f"v_max3_f32 v{D[qs]}, v{D[qs]}, v{s0+3}, v{s1}")
            o.append(f"v_max3_f32 v{D[qs]}, v{D[qs]}, v{s1+1}, v{s1+2}")
            o.append(f"v_max_f32 v{D[qs]}, v{D[qs]}, v{s1+3}")
        for sw in ("v_permlane32_swap_b32", "v_permlane16_swap_b32"):
            for qs in range(2): o.append(f"v_mov_b32 v{X+qs}, v{D[qs]}")
            o.append("s_nop 1")
            for qs in range(2): o.append(f"{sw} v{D[qs]}, v{X+qs}")
            for qs in range(2): o.append(f"v_max_f32 v{D[qs]}, v{D[qs]}, v{X+qs}")
        return o
    def slow_stub(u):
        a.label(f"L_{K}_slow{u}")
        a.e("s_nop 15")
        D = [TP, TP + 1]; AL = [TP + 2, TP + 3]; X = TP + 4
        for tx in rowmax_ops(u, D, X): a.e(tx)
        for qs in range(2):
            a.e(f"v_max_f32 v{D[qs]}, 0, v{D[qs]}")
            a.e(f"v_exp_f32 v{AL[qs]}, -v{D[qs]}")
        for qs in range(2):
            for r in range(4): a.e(f"v_sub_f32 v{NEGM(qs)+r}, v{NEGM(qs)+r}, v{D[qs]}")
            for kb in range(4):
                for r in range(4): a.e(f"v_sub_f32 v{S(kb,qs)+r}, v{S(kb,qs)+r}, v{D[qs]}")
            a.e(f"v_mul_f32 v{LS+qs}, v{LS+qs}, v{AL[qs]}")
            for jb in range(12):
                for r in range(4): a.e(f"v_mul_f32 v{O(jb,qs)+r}, v{O(jb,qs)+r}, v{AL[qs]}")
        for kb in (2 * u, 2 * u + 1):
            for tx in exp_ops(kb): a.e(tx)
        a.e("s_nop 1")
        for qs in range(2): a.e(mfma_t(LT(qs), ONES, P(qs, u), "0"))
        a.e("s_nop 7")
        a.e(f"s_setpc_b64 s[{sRET}:{sRET+1}]")
    def check(j, u):
        def fn():
            a.e(f"v_max_f32 v{LT(0)+1}, v{LT(0)}, v{LT(1)}")
            a.e(f"v_cmp_nge_f32 vcc, s{sTHR}, v{LT(0)+1}")
            a.e(f"s_cbranch_vccnz L_{K}_tr{j}_{u}")
            a.label(f"L_{K}_back{j}_{u}")
        def stub():
            a.label(f"L_{K}_tr{j}_{u}")
            a.e(f"s_call_b64 s[{sRET}:{sRET+1}], L_{K}_slow{u}")
            a.e(f"s_branch L_{K}_back{j}_{u}")
        stubs.append(stub)
        return fn

    sb = Stream(a, FR)
    seg = {}
    def QK(j, u, sum_of=None):
        ko = KSL[j % 3] - kwin(j); g0 = sb.n(); f0 = len(sb.frags)
        for kb in (2 * u, 2 * u + 1):
            for s_ in range(6):
                c0 = ("0" if j == 0 else "negm") if s_ == 0 else None
                sb.frag([lambda b: f"ds_read_b128 {vr(b,4)}, v{KR[s_&1]} offset:{ko+kb*6144+(s_>>1)*128}"],
                        [lambda b, qs=qs: mfma_t(S(kb, qs), b, QP(qs, s_), NEGM(qs) if c0 == "negm" else c0) for qs in range(2)])
                if sum_of is not None and kb == 2 * u + 1 and s_ == 2:
                    seg[("sum", sum_of)] = sb.n()
                    for qs in range(2): sb.mfma(mfma_t(LT(qs), ONES, P(qs, sum_of[1]), "0"))
        seg[("QK", j, u)] = (g0, sb.n(), f0)
    def PV(j, u, sum_of=None):
        vo = VSL[j % 3] - vwin(j); g0 = sb.n(); f0 = len(sb.frags)
        if not (j == 0 and u == 0) and not OPT.get("nocheck"): sb.add_pre(g0, check(j, u))
        sb.add_post(g0, E(a, f"v_add_f32 v{LS}, v{LS}, v{LT(0)}"))
        sb.add_post(g0 + 1, E(a, f"v_add_f32 v{LS+1}, v{LS+1}, v{LT(1)}"))
        for jb in range(12):
            sb.frag([lambda b, tt=tt: f"ds_read_b64_tr_b16 {vr(b+2*tt,2)}, v{VR+(jb&3)} offset:{vo+(32*u+16*tt)*384+(jb>>2)*128}" for tt in range(2)],
                    [lambda b, qs=qs: mfma_t(O(jb, qs), b, P(qs, u), "0" if (j == 0 and u == 0) else None) for qs in range(2)])
            if sum_of is not None and jb == 8:
                seg[("sum", sum_of)] = sb.n()
                for qs in range(2): sb.mfma(mfma_t(LT(qs), ONES, P(qs, sum_of[1]), "0"))
        seg[("PV", j, u)] = (g0, sb.n(), f0)
    QK(0, 0)
    for j in range(8):
        QK(j, 1, sum_of=(j, 0))
        if j < 7:
            PV(j, 0); QK(j + 1, 0, sum_of=(j, 1)); PV(j, 1)
        else:
            PV(j, 0, sum_of=(j, 1)); PV(j, 1)
    NG = sb.n()
    for j in range(8):
        for u in range(2):
            g0 = seg[("QK", j, u)][1] + 3; g1 = seg[("sum", (j, u))] - 2
            ops = exp_ops(2 * u) + exp_ops(2 * u + 1)
            if j == 0 and u == 0:
                D = [LT(0), LT(1)]
                pre = rowmax_ops(0, D, TP)
                for qs in range(2):
                    for kb in range(2):
                        for r in range(4): pre.append(f"v_sub_f32 v{S(kb,qs)+r}, v{S(kb,qs)+r}, v{D[qs]}")
                for qs in range(2):
                    for r in range(4): pre.append(f"v_sub_f32 v{NEGM(qs)+r}, 0, v{D[qs]}")
                ops = pre + ops
            if j == 0 and u == 1:
                pre = []
                for qs in range(2):
                    for kb in range(2, 4):
                        for r in range(4): pre.append(f"v_add_f32 v{S(kb,qs)+r}, v{S(kb,qs)+r}, v{NEGM(qs)}")
                ops = pre + ops
            if not OPT.get("noexp"): sb.spread([E(a, x) for x in ops], g0, g1)
    for j in range(8):
        gb = sb.read_gap(seg[("PV", j, 0)][2])
        def vbar(j=j):
            a.wait_vm(("V", j))
            if not OPT.get("nobar"): a.e("s_barrier")
        sb.add_pre(gb, vbar)
        if j > 0 and vwin(j) != vwin(j - 1):
            sb.spread([E(a, f"v_add_u32 v{VR+r}, {(vwin(j)-vwin(j-1)) & 0xffffffff}, v{VR+r}") for r in range(4)], gb - 9, gb - 1)
        if j + 2 < 8 and not OPT.get("nodma"): sb.spread(kv_block("V", j + 2), gb + 2, gb + 20)
        if j < 7:
            gb = sb.read_gap(seg[("QK", j + 1, 0)][2])
            def kbar(j=j):
                a.wait_vm(("K", j + 1))
                if not OPT.get("nobar"): a.e("s_barrier")
                st(fine=True)
            sb.add_pre(gb, kbar)
            if kwin(j) != kwin(j + 1):
                sb.spread([E(a, f"v_add_u32 v{r}, {(kwin(j+1)-kwin(j)) & 0xffffffff}, v{r}") for r in KR], gb - 6, gb - 1)
            if j + 3 < 8 and not OPT.get("nodma"): sb.spread(kv_block("K", j + 3), gb + 2, gb + 20)
    ACC2 = lambda nb, qs: (nb * 2 + qs) * 4
    ACCF = lambda nb, qs: 176 + (nb * 2 + qs) * 4
    NSET = 4
    OF = 80; FR2 = OF + 16 * NSET
    AW = 160; AF = 162; TM2 = 164
    DF = [243, 244, 245, 247, 254]
    DW = [216, 217, 218, 219, 220]
    ZV, ONEV, PV_ = 221, 222, 223
    sO, sWr, sP = 28, 32, 36
    sS, sMT, sNT, sG, sMBk, sOW, sM0, sOO, sKG, sTW2, sTO = 55, 56, 57, 58, 59, 60, 61, 62, 63, 64, 65
    sOO2, sOB_, sWB, sPER, sR12 = 78, 79, 80, 81, 96
    sCH, sCO = 86, 87
    sXo, sOut = 40, 44
    SLOT = 40960
    NF, NA = 6, 12; NT2 = NF + NA
    slot2 = lambda k: ((k + 2) % 4) * SLOT
    win = lambda k: 0 if slot2(k) < 2 * SLOT else 2 * SLOT
    su = []
    def S_(tx): su.append(E(a, tx))
    def grp(*txs):
        def f():
            for tx in txs: a.e(tx)
        su.append(f)
    grp(f"s_and_b32 s{sS}, s2, 3", f"s_bfe_u32 s{sU}, s2, 0x10002", f"s_lshr_b32 s{sU2}, s2, 3")
    grp(f"s_and_b32 s{sNT}, s{sU2}, 3", f"s_lshr_b32 s{sMT}, s{sU2}, 2")
    grp(f"s_mul_i32 s{sTW2}, s{sMT}, {NF}", f"s_lshr_b32 s{sTW2}, s{sTW2}, 3", f"s_mov_b32 s{sTO}, s{sTW2}")
    grp(f"s_mul_i32 s{sR12}, s{sMT}, {NA}", f"s_lshr_b32 s{sR12}, s{sR12}, 3")
    grp(f"s_lshl_b32 s{sU}, s{sU}, 3", f"s_add_u32 s{sMT}, s{sMT}, s{sU}", f"s_lshr_b32 s{sG}, s{sW}, 2")
    grp(f"s_and_b32 s{sU}, s{sW}, 3", f"s_lshl_b32 s{sMBk}, s{sMT}, 2", f"s_add_u32 s{sMBk}, s{sMBk}, s{sU}")
    grp(f"s_mul_i32 s{sM0}, s{sW}, 5120", f"s_lshr_b32 s{sKG}, s{sW}, 1")
    grp(f"s_lshr_b32 s{sCO}, s{sMT}, 1", f"s_lshl_b32 s{sCO}, s{sCO}, 5", f"s_add_u32 s{sCH}, s{sCO}, 16")
    su_early = list(su); su.clear()
    su_v = list(su); su.clear()
    grp(f"s_mul_i32 s{sWB}, s{sKG}, {NF*10240}", f"s_and_b32 s{sU}, s{sW}, 1", f"s_mul_i32 s{sU}, s{sU}, 5120", f"s_add_u32 s{sWB}, s{sWB}, s{sU}", f"s_mul_i32 s{sOB_}, s{sKG}, {NF*2048}", f"s_add_u32 s{sOB_}, s{sOB_}, {192*1024}")
    def f_():
        a.e(f"s_lshl_b32 s{sU2}, s{sNT}, 1")
        a.e(f"s_and_b32 s{sU}, s{sS}, 1")
        a.e(f"s_add_u32 s{sU2}, s{sU2}, s{sU}")
        a.e(f"s_mul_i32 s{sU2}, s{sU2}, {1536*160}")
        a.e(f"s_add_u32 s{sU2}, s{sU2}, {WS_D}")
        srd(a, sWr, 26, 27, f"s{sU2}", f"{1536*160}")
    su.append(f_)
    def f_():
        a.e(f"s_lshl_b32 s{sU2}, s{sMT}, 2")
        a.e(f"s_and_b32 s{sU}, s{sS}, 2")
        a.e(f"s_add_u32 s{sU2}, s{sU2}, s{sU}")
        a.e(f"s_and_b32 s{sU}, s{sW}, 1")
        a.e(f"s_add_u32 s{sU2}, s{sU2}, s{sU}")
        a.e(f"s_mul_i32 s{sU2}, s{sU2}, {2*A_MB}")
        srd(a, sO, 26, 27, f"s{sU2}", f"{2*A_MB}")
    su.append(f_)
    su_s = list(su); su.clear(); su.extend(su_v)
    def w2_block(k):
        base = slot2(k); tag = ("W2", k); fns = []
        per = NF if k < NF else NA; vo = DF if k < NF else DW
        def head():
            if k == NF:
                a.e(f"s_mul_i32 s{sU2}, s{sNT}, 320")
                srd(a, sWr, 12, 13, f"s{sU2}", "0")
                a.e(f"s_sub_u32 s{sWr+2}, {6144*1280}, s{sU2}")
                a.e(f"s_lshl_b32 s{sU}, s{sS}, 1")
                a.e(f"s_add_u32 s{sU}, s{sU}, s{sG}")
                a.e(f"s_mul_i32 s{sWB}, s{sU}, {NA*64*1280}")
                a.e(f"s_mov_b32 s{sTW2}, s{sR12}")
            a.e(f"s_mul_i32 s{sOW}, s{sTW2}, {10240 if k < NF else 64*1280}")
            a.e(f"s_add_u32 s{sOW}, s{sOW}, s{sWB}")
        fns.append(head)
        for i in range(5):
            def f(i=i):
                a.e(f"s_add_u32 m0, s{sM0}, {base + 1024*i}")
                if i == 0: a.e(f"s_add_u32 s{sTW2}, s{sTW2}, 1")
                elif i == 1: a.e(f"s_cmp_eq_u32 s{sTW2}, {per}")
                else: a.e("s_nop 0")
                if k < NF: a.vmem(f"buffer_load_dwordx4 v{L16}, s[{sWr}:{sWr+3}], s{sOW} offen sc1 lds", tag)
                else: a.vmem(f"buffer_load_dwordx4 v{vo[i]}, s[{sWr}:{sWr+3}], s{sOW} offen lds", tag)
                if i == 1: a.e(f"s_cselect_b32 s{sTW2}, 0, s{sTW2}")
                if k < NF: a.e(f"s_add_u32 s{sOW}, s{sOW}, 1024")
            fns.append(f)
        return fns
    def poll_issue(soff, tag):
        return lambda: a.vmem(f"buffer_load_dword v{PV_}, v{ZV}, s[{sDB_}:{sDB_+3}], s{soff} offen sc1", tag)
    def poll_check(name, srdr, soff, target, tag):
        def fn():
            a.wait_vm(tag)
            a.e(f"v_readfirstlane_b32 s{sU2}, v{PV_}")
            a.e("s_nop 3")
            a.e(f"s_cmp_ge_u32 s{sU2}, {target}")
            a.e(f"s_cbranch_scc0 L_{name}_spin")
            a.label(f"L_{name}_ok")
        def stub():
            a.label(f"L_{name}_spin")
            a.e(f"s_mov_b32 s{sU}, 0")
            a.label(f"L_{name}_poll")
            a.e(f"s_sleep {OPT.get('slp', 8)}")
            a.e(f"buffer_load_dword v{PV_}, v{ZV}, s[{srdr}:{srdr+3}], s{soff} offen sc1")
            a.e("s_waitcnt vmcnt(0)")
            a.e(f"v_readfirstlane_b32 s{sU2}, v{PV_}")
            a.e(f"s_add_u32 s{sU}, s{sU}, 1")
            a.e("s_nop 1")
            a.e(f"s_cmp_ge_u32 s{sU2}, {target}")
            a.e(f"s_cbranch_scc1 L_{name}_ok")
            a.e(f"s_cmp_lt_u32 s{sU}, 0x20000")
            a.e(f"s_cbranch_scc1 L_{name}_poll")
            a.e(f"s_branch L_{name}_ok")
        stubs.append(stub)
        return fn
    def signal(name, srdr, soff_expr, zv, onev):
        def fn():
            a.e(f"s_cmp_eq_u32 s{sW}, 0")
            a.e(f"s_cbranch_scc1 L_{name}_sig")
            a.label(f"L_{name}_sigr")
        def stub():
            a.label(f"L_{name}_sig")
            for tx in soff_expr: a.e(tx)
            a.e(f"v_mov_b32 v{zv}, 0")
            a.e(f"v_mov_b32 v{onev}, 1")
            a.e("s_mov_b64 exec, 1")
            a.e(f"buffer_atomic_add v{onev}, v{zv}, s[{srdr}:{srdr+3}], s{sU} offen sc1")
            a.e("s_mov_b64 exec, -1")
            a.e(f"s_branch L_{name}_sigr")
        stubs.append(stub)
        return fn
    def o_loads(k, ks):
        par = (k + 1) % NSET; fns = []
        per = NF if k < NF else NA
        if ks == 0:
            def head():
                if k == NF:
                    a.e(f"s_mul_i32 s{sU2}, s{sMBk}, {2*A_MB}")
                    srd(a, sO, 26, 27, f"s{sU2}", f"{2*A_MB}")
                    a.e(f"s_lshl_b32 s{sU}, s{sS}, 1")
                    a.e(f"s_add_u32 s{sU}, s{sU}, s{sG}")
                    a.e(f"s_mul_i32 s{sOB_}, s{sU}, {NA*2048}")
                    a.e(f"s_mov_b32 s{sTO}, s{sR12}")
                a.e(f"s_lshl_b32 s{sOO}, s{sTO}, 11")
                a.e(f"s_add_u32 s{sOO}, s{sOO}, s{sOB_}")
                a.e(f"s_add_u32 s{sTO}, s{sTO}, 1")
                a.e(f"s_cmp_eq_u32 s{sTO}, {per}")
                a.e(f"s_cselect_b32 s{sTO}, 0, s{sTO}")
                a.e(f"s_add_u32 s{sOO2}, s{sOO}, {A_MB}")
            fns.append(head)
        for qs in range(2):
            fns.append(lambda qs=qs: a.vmem(f"buffer_load_dwordx4 {vr(OF+16*par+8*ks+4*qs,4)}, v{L16}, s[{sO}:{sO+3}], s{sOO2 if qs else sOO} offen offset:{1024*ks} sc1", ("o", k, ks)))
        return fns
    gk = lambda j: sb.read_gap(seg[("QK", j + 1, 0)][2])
    gv = lambda j: sb.read_gap(seg[("PV", j, 0)][2])
    sRD = 36; RQ = 244
    def rd_load():
        a.e(f"v_lshrrev_b32 v{RQ}, 4, v{L16}")
        a.e(f"v_mul_u32_u24 v{RQ+1}, 6554, v{RQ}")
        a.e(f"v_lshrrev_b32 v{RQ+1}, 16, v{RQ+1}")
        a.e(f"v_mul_u32_u24 v{RQ+2}, {1280-160}, v{RQ+1}")
        a.e(f"v_add_u32 v{RQ}, v{RQ+2}, v{L16}")
        a.e(f"s_lshl_b32 s{sU}, s2, 3")
        a.e(f"s_add_u32 s{sU}, s{sU}, s{sW}")
        a.e(f"s_and_b32 s{sU2}, s{sU}, 255")
        a.e(f"s_mul_i32 s{sU2}, s{sU2}, {6*1280}")
        a.e(f"s_lshr_b32 s{sPER}, s{sU}, 8")
        a.e(f"s_mul_i32 s{sPER}, s{sPER}, 160")
        a.e(f"s_add_u32 s{sU2}, s{sU2}, s{sPER}")
        srd(a, sRD, 20, 21, None, f"{1536*1280}")
        a.e("s_mov_b32 exec_hi, 0xfffffff")
        a.vmem(f"buffer_load_dwordx4 {vr(RQ,4)}, v{RQ}, s[{sRD}:{sRD+3}], s{sU2} offen", "rd")
        a.e("s_mov_b64 exec, -1")
        a.e(f"s_mul_i32 s{sPER}, s{sU}, 960")
        a.e(f"s_add_u32 s{sPER}, s{sPER}, {WS_D}")
    def rd_store():
        srd(a, sRD, 26, 27, f"s{sPER}", "960")
        a.wait_vm("rd")
        a.vmem(f"buffer_store_dwordx4 {vr(RQ,4)}, v{L16}, s[{sRD}:{sRD+3}], 0 offen sc1", "hst")
    sb.add_post(gk(0) + 26, rd_load)
    sb.add_post(gk(1) - 12, rd_store)
    HS = 2
    sb.pre[gk(HS)].insert(0, lambda: a.wait_vm("hst"))
    sb.add_pre(gk(HS), sig_issue(1, 244, 246, "ah"))
    sb.spread(su_early, gk(1) + 22, gk(1) + 39)
    if OPT.get("pfw2", 1):
        PW, PD = 245, 247
        sPF = 36
        def pfs():
            a.e(f"v_lshlrev_b32 v{PW}, 3, v{L16}")
            a.e(f"v_mov_b32 v{PD}, 0x1000000")
            a.e(f"v_cmp_gt_u32 vcc, {15*128}, v{PW}")
            a.e(f"s_lshr_b32 s{sU}, s2, 3")
            a.e(f"s_lshl_b32 s{sU}, s{sU}, 3")
            a.e(f"v_cndmask_b32 v{PW}, v{PD}, v{PW}, vcc")
            a.e(f"s_add_u32 s{sU}, s{sU}, s{sW}")
            a.e(f"s_mul_i32 s{sU}, s{sU}, 7680")
            a.e(f"s_mul_i32 s{sU2}, s{sS}, {1536*1280}")
            a.e(f"s_add_u32 s{sU}, s{sU}, s{sU2}")
            srd(a, sPF, 12, 13, f"s{sU}", "7680")
        sb.add_post(gk(1) + 42, pfs)
        for n in range(4):
            sb.add_post(gk(1 + n) + 60, lambda n=n: a.vmem(f"buffer_load_dword v{PD}, v{PW}, s[{sPF}:{sPF+3}], 0 offen offset:{1920*n if n < 2 else 0}" if n < 2 else
                                                             f"buffer_load_dword v{PD}, v{PW}, s[{sPF}:{sPF+3}], s{sPER} offen offset:{1920*(n-2)}", "pf"))
        sb.add_post(gk(1) + 44, E(a, f"s_mov_b32 s{sPER}, 3840"))
        def pfd():
            a.e(f"s_lshl_b32 s{sU}, s2, 3")
            a.e(f"s_add_u32 s{sU}, s{sU}, s{sW}")
            a.e(f"s_mul_i32 s{sU}, s{sU}, 960")
            srd(a, sPF, 20, 21, f"s{sU}", "960")
            a.vmem(f"buffer_load_dword v{PD}, v{PW}, s[{sPF}:{sPF+3}], 0 offen", "pf")

        sb.add_pre(gv(5) + 24, lambda: a.wait_vm("pf"))
    sb.spread(su_s, gk(2) + 24, gk(2) + 40)
    def ctr_issue():
        a.e(f"v_lshlrev_b32 v244, 1, v{L16}")
        a.e(f"s_cmp_eq_u32 s{sW}, 0")
        a.e(f"s_cselect_b32 s{sU}, 0, 0x100000")
        a.e("s_mov_b64 exec, 0xff")
        a.vmem(f"buffer_load_dword v246, v244, s[{sDB_}:{sDB_+3}], s{sU} offen offset:4 sc1", "ph")
        a.e("s_mov_b64 exec, -1")
    def ctr_test():
        a.e(f"v_add_u32 v246, -1, v246")
        a.e(f"v_and_b32 v246, 0x8000001f, v246")
        a.e(f"v_cmp_ne_u32 vcc, 31, v246")
    def ctr_check():
        a.wait_vm("ph")
        ctr_test()
        a.e(f"s_cmp_eq_u32 s{sW}, 0")
        a.e(f"s_cselect_b32 s{sU}, 0xff, 0")
        a.e("s_nop 1")
        a.e(f"s_and_b32 s{sU}, s{sU}, vcc_lo")
        a.e(f"s_cbranch_scc1 L_ph_spin")
        a.label("L_ph_ok")
    def ctr_stub():
        a.label("L_ph_spin")
        a.e(f"s_mov_b32 s{sU}, 0")
        a.e("s_mov_b64 exec, 0xff")
        a.label("L_ph_poll")
        a.e("s_sleep 16")
        a.e(f"buffer_load_dword v246, v244, s[{sDB_}:{sDB_+3}], 0 offen offset:4 sc1")
        a.e(f"s_add_u32 s{sU}, s{sU}, 1")
        a.e("s_waitcnt vmcnt(0)")
        ctr_test()
        a.e(f"s_cbranch_vccz L_ph_done")
        a.e(f"s_cmp_lt_u32 s{sU}, 0x20000")
        a.e(f"s_cbranch_scc1 L_ph_poll")
        a.label("L_ph_done")
        a.e("s_mov_b64 exec, -1")
        a.e("s_branch L_ph_ok")
    stubs.append(ctr_stub)
    HK = OPT.get("hk", 6)
    sb.add_post(gk(HK) - 40, ctr_issue)
    sb.pre[gk(HK)].insert(0, ctr_check)
    if OPT.get("pff", 0):
        q0, q1, q2 = KA, KA + 1, KA + 2
        def pf_h():
            a.e(f"v_lshrrev_b32 v{q0}, 4, v{L16}")
            a.e(f"s_mul_i32 s{sU}, s{sNT}, 48")
            a.e(f"v_cmp_gt_u32 vcc, 48, v{q0}")
            a.e(f"v_add_u32 v{q0}, s{sU}, v{q0}")
            a.e(f"v_and_b32 v{q1}, 7, v{q0}")
            a.e(f"v_lshlrev_b32 v{q1}, 7, v{q1}")
            a.e(f"v_lshrrev_b32 v{q2}, 4, v{q0}")
            a.e(f"v_lshl_add_u32 v{q1}, v{q2}, 10, v{q1}")
            a.e(f"v_bfe_u32 v{q2}, v{q0}, 3, 1")
            a.e(f"v_mul_u32_u24 v{q2}, {A_MB}, v{q2}")
            a.e(f"v_add_u32 v{q1}, v{q1}, v{q2}")
            a.e(f"v_mov_b32 v{q2}, 0x1000000")
            a.e(f"v_cndmask_b32 v{q1}, v{q2}, v{q1}, vcc")
            a.vmem(f"buffer_load_dword v243, v{q1}, s[{sO}:{sO+3}], s{sOB_} offen sc1", "pf")
        def pf_d():
            a.e(f"v_lshrrev_b32 v{q0}, 4, v{L16}")
            a.e(f"s_and_b32 s{sU}, s{sMT}, 7")
            a.e(f"s_mul_i32 s{sU}, s{sU}, 24")
            a.e(f"v_cmp_gt_u32 vcc, 48, v{q0}")
            a.e(f"v_lshrrev_b32 v{q1}, 1, v{q0}")
            a.e(f"v_add_u32 v{q1}, s{sU}, v{q1}")
            a.e(f"v_lshrrev_b32 v{q2}, 5, v{q1}")
            a.e(f"v_lshl_add_u32 v{q1}, v{q2}, 5, v{q1}")
            a.e(f"v_mul_u32_u24 v{q1}, 1280, v{q1}")
            a.e(f"v_and_b32 v{q0}, 1, v{q0}")
            a.e(f"v_mul_u32_u24 v{q0}, 156, v{q0}")
            a.e(f"v_add_u32 v{q1}, v{q1}, v{q0}")
            a.e(f"v_mov_b32 v{q2}, 0x1000000")
            a.e(f"v_cndmask_b32 v{q1}, v{q2}, v{q1}, vcc")
            a.e(f"s_and_b32 s{sU}, s{sW}, 1")
            a.e(f"s_mul_i32 s{sU}, s{sU}, {32*1280}")
            a.e(f"s_add_u32 s{sU}, s{sU}, s{sWB}")
            a.vmem(f"buffer_load_dword v244, v{q1}, s[{sWr}:{sWr+3}], s{sU} offen", "pf")
        sb.add_post(gk(4) + 26, pf_d)
        sb.add_post(gk(4) + 44, pf_h)
    sb.spread(su, gv(5) + 24, gk(6) - 2)
    sb.spread(w2_block(0), gk(6) + 2, gv(7) - 2)
    gA = seg[("PV", 7, 0)][0]; gB = seg[("PV", 7, 1)][0]
    sb.spread(w2_block(1), gv(7) + 2, gA + 14)
    sb.spread(o_loads(0, 0) + o_loads(0, 1) + o_loads(1, 0) + o_loads(1, 1), gA + 2, gB - 2)
    oe = [(E(a, f"s_mul_i32 s{sHO}, s{sH}, 6144"), gB + 2)]
    for qs in range(2): oe.append((E(a, f"v_rcp_f32 v{TP+qs}, v{LS+qs}"), gB + 3))
    for s_ in range(6):
        ge = gB + 4 * s_ + 7
        for qs in range(2):
            for e_ in range(2):
                ob = O(2 * s_ + e_, qs)
                for r in range(4): oe.append((E(a, f"v_mul_f32 v{ob+r}, v{TP+qs}, v{ob+r}"), ge))
        for qs in range(2):
            dst = S(0, 0) + 4 * ((2 * s_ + qs) % 8)
            for e_ in range(2):
                ob = O(2 * s_ + e_, qs)
                for q in range(2): oe.append((E(a, f"v_cvt_pk_bf16_f32 v{dst+2*e_+q}, v{ob+2*q}, v{ob+2*q+1}"), ge))
            def ost(qs=qs, s_=s_, dst=dst):
                a.e(f"s_add_u32 s{sT}, s{sHO}, {qs*A_MB + (s_//4)*4096}")
                a.vmem(f"buffer_store_dwordx4 {vr(dst,4)}, v{L16}, s[{sWS}:{sWS+3}], s{sT} offen offset:{1024*(s_%4)} sc1", "ost")
            oe.append((ost, ge))
    per = OPT.get("oe_per", 3)
    g = gB; cnt = 0; n_in = 0
    for (fn, ge) in oe:
        if ge > g: g = ge; cnt = 0
        if g >= NG - 1: break
        sb.add_post(g, fn); n_in += 1; cnt += 1
        if cnt >= per: g += 1; cnt = 0
    sb.emit()
    st()
    a.e("s_nop 7")
    for (fn, ge) in oe[n_in:]: fn()
    st()
    a.e("s_nop 1")
    t = TM2
    a.e(f"v_lshrrev_b32 v{t+2}, 4, v{L16}")
    a.e(f"v_lshrrev_b32 v{t}, 2, v{t+2}")
    a.e(f"v_and_b32 v{t+1}, 3, v{t+2}")
    a.e(f"v_lshlrev_b32 v{t+1}, 3, v{t+1}")
    a.e(f"v_mul_u32_u24 v{t+3}, 160, v{t}")
    a.e(f"s_mul_i32 s{sU2}, s{sKG}, 10240")
    a.e(f"s_add_u32 s{sU2}, s{sU2}, {win(0)}")
    a.e(f"v_add3_u32 v{AF}, v{t+3}, v{t+1}, s{sU2}")
    a.wait_vm(("W2", 1))
    a.e("s_waitcnt lgkmcnt(0)"); a.lgkm = []
    a.e("s_barrier")
    st()
    late = []
    L_ = lambda tx: late.append(E(a, tx))
    L_(f"v_mul_u32_u24 v{t+3}, 320, v{t}")
    L_(f"s_mul_i32 s{sU2}, s{sG}, 20480")
    late.append(lambda: (a.e(f"s_mul_i32 s{sU2}, s{sG}, 20480"), a.e(f"s_add_u32 s{sU2}, s{sU2}, {win(NF)}"), a.e(f"v_add3_u32 v{t+3}, v{t+3}, v{t+1}, s{sU2}")))
    L_(f"v_bfe_u32 v{t+4}, v{t+2}, 4, 1")
    L_(f"v_lshlrev_b32 v{t+4}, 5, v{t+4}")
    L_(f"v_add_u32 v{AW}, v{t+3}, v{t+4}")
    L_(f"v_sub_u32 v{AW+1}, v{t+3}, v{t+4}")
    L_(f"v_and_b32 v{t+7}, 0x30, v{t+2}")
    late.append(lambda: (a.e(f"s_and_b32 s{sPER}, s{sW}, 3"), a.e(f"s_lshl_b32 s{sPER}, s{sPER}, 4")))
    for i in range(5):
        L_(f"v_add_u32 v{t+4}, {64*i}, v{t+2}")
        L_(f"v_mul_u32_u24 v{t+5}, 3277, v{t+4}")
        L_(f"v_lshrrev_b32 v{t+5}, 16, v{t+5}")
        L_(f"v_mul_u32_u24 v{t+6}, 20, v{t+5}")
        L_(f"v_sub_u32 v{t+6}, v{t+4}, v{t+6}")
        L_(f"v_add_u32 v{t+5}, s{sPER}, v{t+5}")
        L_(f"v_bfe_u32 v{t+4}, v{t+5}, 2, 1")
        L_(f"v_lshlrev_b32 v{t+4}, 1, v{t+4}")
        L_(f"v_xor_b32 v{t+6}, v{t+6}, v{t+4}")
        L_(f"v_mul_u32_u24 v{t+5}, 1280, v{t+5}")
        L_(f"v_lshl_add_u32 v{DW[i]}, v{t+6}, 4, v{t+5}")
    sm = Stream(a, FR2)
    started = set()
    tfirst = []; tg0 = []
    for k in range(NT2):
        par = (k + 1) % NSET; so = slot2(k) - win(k)
        tfirst.append(len(sm.frags)); tg0.append(sm.n())
        for ks in range(2):
            sm.add_pre(sm.n(), lambda k=k, ks=ks: a.wait_vm(("o", k, ks)))
            if k < NF:
                for nb in range(5):
                    sm.frag([lambda b, tt=tt: f"ds_read_b64_tr_b16 {vr(b+2*tt,2)}, v{AF} offset:{so+(32*ks+16*tt)*160+32*nb}" for tt in range(2)],
                            [lambda b, qs=qs: mfma_t(ACCF(nb, qs), b, OF + 16 * par + 8 * ks + 4 * qs, C0(ACCF(nb, qs))) for qs in range(2)])
            else:
                for nb in range(10):
                    sm.frag([lambda b, tt=tt: f"ds_read_b64_tr_b16 {vr(b+2*tt,2)}, v{AW+(nb&1)} offset:{so+(32*ks+16*tt)*320+32*nb}" for tt in range(2)],
                            [lambda b, qs=qs: mfma_t(ACC2(nb, qs), b, OF + 16 * par + 8 * ks + 4 * qs, C0(ACC2(nb, qs))) for qs in range(2)])
    tfirst.append(len(sm.frags)); tg0.append(sm.n())
    NG = sm.n()
    sm.spread(late, 0, tg0[2])
    def opoll_ld(count):
        tx = f"buffer_load_dword v{PV_}, v{ZV}, s[{sFG}:{sFG+3}], s{sPO} offen offset:32 sc1"
        if count: a.vmem(tx, "po")
        else: a.e(tx)
    def opoll_issue():
        a.e(f"v_lshrrev_b32 v{ZV}, 2, v{L16}")
        a.e("s_mov_b64 exec, 0xff")
        opoll_ld(True)
        a.e("s_mov_b64 exec, -1")
    def opoll_check():
        a.wait_vm("po")
        a.e(f"v_cmp_ne_u32 vcc, 1, v{PV_}")
        a.e(f"s_cmp_eq_u32 s{sW}, 0")
        a.e(f"s_cselect_b32 s{sU}, 0xff, 0")
        a.e("s_nop 1")
        a.e(f"s_and_b32 s{sU}, s{sU}, vcc_lo")
        a.e(f"s_cbranch_scc1 L_po_spin")
        a.label("L_po_ok")
    def opoll_stub():
        a.label("L_po_spin")
        a.e(f"s_mov_b32 s{sU}, 0")
        a.e("s_mov_b64 exec, 0xff")
        a.label("L_po_poll")
        opoll_ld(False)
        a.e(f"s_add_u32 s{sU}, s{sU}, 1")
        a.e("s_waitcnt vmcnt(0)")
        a.e(f"v_cmp_ne_u32 vcc, 1, v{PV_}")
        a.e(f"s_cbranch_vccz L_po_done")
        a.e("s_sleep 1")
        a.e(f"s_cmp_lt_u32 s{sU}, 0x20000")
        a.e(f"s_cbranch_scc1 L_po_poll")
        a.label("L_po_done")
        a.e("s_mov_b64 exec, -1")
        a.e("s_branch L_po_ok")
    stubs.append(opoll_stub)
    OSG = OPT.get("osg", 6)
    KO = OPT.get("ostep", 5)
    issue = {}
    for k in range(2, NT2):
        tk = max(k - OPT.get("olook", 2), 0) if k < NF else max(k - OPT.get("olook2", 1), KO)
        issue.setdefault(tk, {"w": [], "o": []})["o"] += o_loads(k, 0) + o_loads(k, 1)
        issue.setdefault(max(k - OPT.get("wlook", 2), 0) if k < NF + 2 else k - OPT.get("wlook2", 2), {"w": [], "o": []})["w"] += w2_block(k)
    for tk in sorted(issue):
        wb_, ob_ = issue[tk]["w"], issue[tk]["o"]
        ln = tg0[tk + 1] - tg0[tk] - 7
        sm.spread(ob_, tg0[tk] + 1, tg0[tk] + ln)
        sm.spread(wb_, tg0[tk] + 1, tg0[tk] + ln)
    for k in range(NT2 - 1):
        gb = sm.read_gap(tfirst[k + 1])
        def bar(k=k):
            if k == 0 and not OSG: a.wait_vm("ost")
            if k == KO - 1: opoll_check()
            a.wait_vm(("W2", k + 1))
            a.e("s_waitcnt lgkmcnt(0)"); a.lgkm = []
            a.e("s_barrier")
            st(fine=True)
            if win(k) != win(k + 1) and k + 1 != NF:
                for r in ([AF] if k + 1 < NF else [AW, AW + 1]): a.e(f"v_add_u32 v{r}, {(win(k+1)-win(k)) & 0xffffffff}, v{r}")
        sm.add_pre(gb, bar)
        if k == 0:
            def osig():
                a.e(f"s_and_b32 s{sU}, s{sB}, 3")
                a.e(f"s_lshl_b32 s{sU}, s{sU}, 6")
                a.e(f"s_and_b32 s{sU2}, s{sB}, 4")
                a.e(f"s_add_u32 s{sU}, s{sU}, s{sU2}")
                a.e(f"s_lshr_b32 s{sU2}, s{sH}, 3")
                a.e(f"s_add_u32 s{sU}, s{sU}, s{sU2}")
                a.e(f"s_lshl_b32 s{sU}, s{sU}, 7")
                a.e(f"s_and_b32 s{sU2}, s{sH}, 7")
                a.e(f"s_lshl_b32 s{sU2}, s{sU2}, 2")
                a.e(f"s_add_u32 s{sU}, s{sU}, s{sU2}")
                a.e(f"s_add_u32 s{sU}, s{sU}, {16384 + 32}")
                a.e(f"s_cmp_eq_u32 s{sW}, 0")
                a.e(f"s_cselect_b32 s{sU}, s{sU}, 0x100000")
                a.e(f"v_lshlrev_b32 v224, 6, v{L16}")
                a.e(f"v_mov_b32 v225, 1")
                a.e("s_mov_b64 exec, 0xff")
                a.vmem(f"buffer_store_dword v225, v224, s[{sFG}:{sFG+3}], s{sU} offen sc1", "ao")
                a.e("s_mov_b64 exec, -1")
            gs = OSG if OSG else gb
            if OSG: sm.add_pre(gs, lambda: (a.wait_vm("ost"), a.e("s_barrier")))
            sm.add_pre(gs, osig)
        if k == KO - 1: sm.add_post(gb - OPT.get("pod", 8), opoll_issue)
    sm.emit()
    a.wait_all()
    st()
    a.e("s_barrier")
    a.e(f"s_mul_i32 s{sU}, s{sW}, 10240")
    a.e(f"v_add_u32 v{t}, s{sU}, v{L16}")
    a.e(f"v_add_u32 v{t+2}, {81920}, v{t}")
    a.e(f"s_xor_b32 s{sU2}, s{sW}, 4")
    a.e(f"s_mul_i32 s{sU2}, s{sU2}, 10240")
    a.e(f"v_add_u32 v{t+1}, s{sU2}, v{L16}")
    PBH = 64 * 40 * 1024
    a.e(f"s_lshl_b32 s{sT}, s{sMT}, 2")
    a.e(f"s_add_u32 s{sT}, s{sT}, s{sNT}")
    a.e(f"s_mul_i32 s{sU2}, s{sT}, {40*1024}")
    a.e(f"s_add_u32 s{sU2}, s{sU2}, {WS_P}")
    srd(a, sP, 26, 27, f"s{sU2}", f"{3*PBH + 40*1024}")
    a.e(f"s_lshl_b32 s{sT}, s{sT}, 7")
    a.e(f"s_and_b32 s{sPER}, s{sW}, 2")
    a.e(f"s_add_u32 s{sPER}, s{sPER}, s{sG}")
    a.e(f"s_lshl_b32 s{sU}, s{sPER}, 1")
    a.e(f"s_and_b32 s{sU2}, s{sW}, 1")
    a.e(f"s_add_u32 s{sU}, s{sU}, s{sU2}")
    a.e(f"s_mul_i32 s{sU}, s{sU}, 5120")
    a.e(f"s_mul_i32 s{sU2}, s{sS}, {PBH}")
    a.e(f"s_add_u32 s{sOW}, s{sU}, s{sU2}")
    a.e(f"s_add_u32 s{sOO}, s{sOW}, 4096")
    a.e(f"s_cmp_eq_u32 s{sG}, 0")
    a.e(f"s_cbranch_scc0 L_p2_g1")
    for g in range(2):
        keep = 40 * g; send = 40 * (1 - g)
        for q in range(10): a.e(f"ds_write_b128 v{t}, {vr(send+4*q,4)} offset:{1024*q}")
        a.e("s_waitcnt lgkmcnt(0)")
        a.e("s_barrier")
        for q in range(10): a.e(f"ds_read_b128 {vr(OF+4*q,4)}, v{t+1} offset:{1024*q}")
        for q in range(10):
            a.e(f"s_waitcnt lgkmcnt({9-q})")
            for r in range(4): a.e(f"v_add_f32 v{OF+4*q+r}, v{keep+4*q+r}, v{OF+4*q+r}")
        if g == 0:
            a.e(f"s_branch L_p2_red2")
            a.label(f"L_p2_g1")
    a.label("L_p2_red2")
    R = OF
    a.e(f"s_cmp_eq_u32 s{sPER}, s{sS}")
    a.e(f"s_cbranch_scc1 L_p2_own")
    for p in range(5):
        for q in range(4): a.e(f"v_cvt_pk_bf16_f32 v{4*p+q}, v{R+8*p+2*q}, v{R+8*p+2*q+1}")
        a.e(f"buffer_store_dwordx4 {vr(4*p,4)}, v{L16}, s[{sP}:{sP+3}], s{sOO if p == 4 else sOW} offen offset:{(p%4)*1024} sc1")
    a.e("s_branch L_p2_pub")
    a.label("L_p2_own")
    for q in range(10): a.e(f"ds_write_b128 v{t+1}, {vr(R+4*q,4)} offset:{1024*q}")
    a.label("L_p2_pub")
    st(fine=True)
    for q in range(10): a.e(f"ds_write_b128 v{t+2}, {vr(176+4*q,4)} offset:{1024*q}")
    a.e(f"s_lshl_b32 s{sU2}, s{sMT}, 1")
    a.e(f"s_lshr_b32 s{sU}, s{sS}, 1")
    a.e(f"s_add_u32 s{sU2}, s{sU2}, s{sU}")
    a.e(f"s_mul_i32 s{sU2}, s{sU2}, {64*1280}")
    a.e(f"s_mul_i32 s{sU}, s{sNT}, 320")
    a.e(f"s_add_u32 s{sU2}, s{sU2}, s{sU}")
    a.e(f"s_and_b32 s{sU}, s{sS}, 1")
    a.e(f"s_mul_i32 s{sU}, s{sU}, 160")
    a.e(f"s_add_u32 s{sU2}, s{sU2}, s{sU}")
    srd(a, sXo, 4, 5, f"s{sU2}", "0")
    a.e(f"s_sub_u32 s{sXo+2}, {2048*1280}, s{sU2}")
    srd(a, sOut, 22, 23, f"s{sU2}", "0")
    a.e(f"s_sub_u32 s{sOut+2}, {2048*1280}, s{sU2}")
    XV = t + 6
    a.e(f"v_bfe_u32 v{XV}, v{L16}, 4, 4")
    a.e(f"v_mul_u32_u24 v{XV}, 1280, v{XV}")
    a.e(f"v_lshrrev_b32 v{t+4}, 8, v{L16}")
    a.e(f"v_lshl_add_u32 v{XV}, v{t+4}, 3, v{XV}")
    a.e(f"v_add_u32 v{XV+1}, 20480, v{XV}")
    a.e(f"s_and_b32 s{sU}, s{sS}, 1")
    a.e(f"s_xor_b32 s{sU}, s{sU}, 1")
    a.e(f"s_lshl_b32 s{sU}, s{sU}, 2")
    a.e(f"s_and_b32 s{sU2}, s{sS}, 2")
    a.e(f"s_add_u32 s{sU}, s{sU}, s{sU2}")
    a.e(f"s_mul_i32 s{sKG}, s{sU}, 10240")
    NU = 2
    sQO = [sOO2, sOB_]; sQP = [sTW2, sTO]; VA = [t + 8, t + 9]; VR_ = [t + 10, t + 11]
    XR = 120
    for n in range(NU):
        a.e(f"s_add_u32 s{sU}, s{sW}, {8*n}")
        a.e(f"s_min_u32 s{sU2}, s{sU}, 9")
        a.e(f"s_lshl_b32 s{sPER}, s{sU2}, 11")
        a.e(f"s_add_u32 s{sWB}, s{sPER}, 81920")
        a.e(f"v_add_u32 v{VA[n]}, s{sWB}, v{L16}")
        a.e(f"s_add_u32 s{sWB}, s{sPER}, s{sKG}")
        a.e(f"v_add_u32 v{VR_[n]}, s{sWB}, v{L16}")
        a.e(f"s_lshl_b32 s{sQO[n]}, s{sU2}, 5")
        a.e(f"s_cmp_ge_u32 s{sU2}, 5")
        a.e(f"s_cselect_b32 s{sPER}, {40960-160}, 0")
        a.e(f"s_add_u32 s{sQO[n]}, s{sQO[n]}, s{sPER}")
        a.e(f"s_mul_i32 s{sPER}, s{sS}, 10240")
        a.e(f"s_lshl_b32 s{sQP[n]}, s{sU2}, 10")
        a.e(f"s_add_u32 s{sQP[n]}, s{sQP[n]}, s{sPER}")
        a.e(f"s_cmp_ge_u32 s{sU}, 10")
        a.e(f"s_cselect_b32 s{sQO[n]}, 0x1000000, s{sQO[n]}")
        a.e(f"s_cselect_b32 s{sQP[n]}, 0x4000000, s{sQP[n]}")
    a.wait_all()
    st(fine=True)
    a.e("s_barrier")
    a.e(f"v_mov_b32 v{ZV}, 0")
    signal("ps", sFG, [f"s_mov_b32 s{sU}, s{sT}"], ZV, ONEV)()
    for n in range(NU):
        for qs in range(2): a.vmem(f"buffer_load_dwordx2 {vr(XR+4*n+2*qs,2)}, v{XV+qs}, s[{sXo}:{sXo+3}], s{sQO[n]} offen", "xl")
    for n in range(NU):
        for kg in range(4):
            for qs in range(2): a.e(f"ds_read_b128 {vr(32*n+8*kg+4*qs,4)}, v{VA[n]} offset:{20480*kg+1024*qs}")
        a.e(f"s_waitcnt lgkmcnt(0)")
        for qs in range(2): a.e(f"ds_read_b128 {vr(64+8*n+4*qs,4)}, v{VR_[n]} offset:{1024*qs}")
    a.vmem(f"buffer_load_dword v{PV_}, v{ZV}, s[{sFG}:{sFG+3}], s{sT} offen sc1", "pp")
    for n in range(NU):
        b = 32 * n
        for r in range(8): a.e(f"v_add_f32 v{b+r}, v{b+r}, v{b+8+r}")
        for r in range(8): a.e(f"v_add_f32 v{b+16+r}, v{b+16+r}, v{b+24+r}")
        for r in range(8): a.e(f"v_add_f32 v{b+r}, v{b+r}, v{b+16+r}")
        for r in range(8): a.e(f"v_mul_f32 v{b+8+r}, {f32(-LOG2E)}, v{b+r}")
        for r in range(8): a.e(f"v_exp_f32 v{b+8+r}, v{b+8+r}")
        for r in range(8): a.e(f"v_add_f32 v{b+8+r}, 1.0, v{b+8+r}")
        for r in range(8): a.e(f"v_rcp_f32 v{b+8+r}, v{b+8+r}")
        for r in range(8): a.e(f"v_mul_f32 v{b+r}, v{b+r}, v{b+8+r}")
    a.e("s_waitcnt lgkmcnt(0)")
    poll_check("pp", sFG, sT, 4, "pp")()
    st(fine=True)
    PR = 80
    for n in range(NU):
        for m_ in range(3):
            a.e(f"s_add_u32 s{sU}, s{sS}, {m_+1}")
            a.e(f"s_and_b32 s{sU}, s{sU}, 3")
            a.e(f"s_mul_i32 s{sU}, s{sU}, {PBH}")
            a.e(f"s_add_u32 s{sU}, s{sU}, s{sQP[n]}")
            a.e(f"buffer_load_dwordx4 {vr(PR+12*n+4*m_,4)}, v{L16}, s[{sP}:{sP+3}], s{sU} offen sc1")
    for n in range(NU):
        b = 32 * n; X0 = b + 8; T0_ = b + 16; A_ = 64 + 8 * n
        for q in range(4):
            a.e(f"v_lshlrev_b32 v{X0+2*q}, 16, v{XR+4*n+q}")
            a.e(f"v_and_b32 v{X0+2*q+1}, 0xffff0000, v{XR+4*n+q}")
        for m_ in range(3):
            a.e(f"s_waitcnt vmcnt({3*(NU-1-n) + (2-m_) + 2*n})")
            for q in range(4):
                a.e(f"v_lshlrev_b32 v{T0_+2*q}, 16, v{PR+12*n+4*m_+q}")
                a.e(f"v_and_b32 v{T0_+2*q+1}, 0xffff0000, v{PR+12*n+4*m_+q}")
            for r in range(8): a.e(f"v_add_f32 v{A_+r}, v{A_+r}, v{T0_+r}")
        for r in range(8): a.e(f"v_fma_f32 v{X0+r}, v{A_+r}, v{b+r}, v{X0+r}")
        for q in range(4): a.e(f"v_cvt_pk_bf16_f32 v{XR+4*n+q}, v{X0+2*q}, v{X0+2*q+1}")
        for qs in range(2): a.e(f"buffer_store_dwordx2 {vr(XR+4*n+2*qs,2)}, v{XV+qs}, s[{sOut}:{sOut+3}], s{sQO[n]} offen{OPT.get('outf','')}")
    st()
    st.flush(sW, TM2)
    a.label(f"L_{K}_done")
    a.e("s_endpgm")
    for sfn in stubs: sfn()
    slow_stub(0); slow_stub(1)
    return a

def kd(name, vgpr, sgpr):
    return f""".amdhsa_kernel {name}
  .amdhsa_next_free_vgpr {vgpr}
  .amdhsa_next_free_sgpr {sgpr}
  .amdhsa_accum_offset {(vgpr+3)//4*4}
  .amdhsa_group_segment_fixed_size 0
  .amdhsa_kernarg_size 96
  .amdhsa_user_sgpr_count 2
  .amdhsa_user_sgpr_kernarg_segment_ptr 1
  .amdhsa_system_sgpr_workgroup_id_x 1
.end_amdhsa_kernel
"""

def main(out):
    a = kernel1()
    n = NAME + "_kernel"
    hdr = open("cdna_kernels/" + NAME + ".s.ref").read().split("; Override launch geometry")[0]
    s = hdr + "; @launch grid=(256,1,1) block=(512,1,1) lds=163840\n"
    s += '.amdgcn_target "amdgcn-amd-amdhsa--gfx950"\n.text\n'
    errs = check_hazards(a.L)
    for e in errs[:20]: print("HAZARD", e)
    s += f".globl {n}\n.p2align 8\n.type {n},@function\n{n}:\n" + a.text()
    s += '.section .rodata,"a"\n.p2align 6\n' + kd(n, 256, 102)
    open(out, "w").write(s)
    print("wrote", out, "hazards:", len(errs), "instrs:", len(a.L))

if __name__ == "__main__":
    args = sys.argv[1:]
    if "--stamps" in args:
        STAMPS = True; args.remove("--stamps")
    for x in list(args):
        if x.startswith("-O"):
            k_, v_ = x[2:].split("=")
            OPT[k_] = int(v_) if v_.lstrip("-").isdigit() else v_.replace("_", " ")
            args.remove(x)
    main(args[0] if args else "cdna_kernels/" + NAME + ".s")
```
